```python
import torch

def _softmax(x, axis=-1):
    return torch.softmax(x, dim=axis)
def _gelu(x):
    return torch.nn.functional.gelu(x, approximate="tanh")
def _silu(x):
    return torch.nn.functional.silu(x)
def _sigmoid(x):
    return torch.sigmoid(x)
def _layernorm(x, axis=-1, eps=1e-5):
    m = x.mean(dim=axis, keepdim=True)
    v = x.var(dim=axis, keepdim=True, unbiased=False)
    return (x - m) / torch.sqrt(v + eps)
def _scatter_add(tgt, idx, src, axis=0):
    return tgt.clone().index_add_(axis, idx, src)
def _segment_sum(src, seg, n):
    out = torch.zeros((n,) + src.shape[1:], dtype=src.dtype)
    return out.index_add_(0, seg, src)
def _pad(x, pw):
    flat = tuple(v for pair in reversed(pw) for v in pair)
    return torch.nn.functional.pad(x, flat)

kernel_name = 'parallel_sum__sliding_block_cached__dense_activation_mish__decode'

def setup_inputs():

    _w = (lambda a: (lambda t: t.to(torch.bfloat16) if t.is_floating_point() else t)(torch.as_tensor(a)))
    def _A_setup():
        B, Sq, D = 2, 1, 512
        Hq, Hkv, Sk, Dh = 32, 8, 8192, 128
        assert Hq % Hkv == 0, (Hq, Hkv)
        return {
            "x": _w((lambda *s: torch.randn(*s, dtype=torch.bfloat16) * 0.05)(B, Sq, D)),
            "k_cache": _w((lambda *s: torch.randn(*s, dtype=torch.bfloat16) * 1.6)(B, Hkv, Sk, Dh)),
            "v_cache": _w((lambda *s: torch.randn(*s, dtype=torch.bfloat16) * 0.4)(B, Hkv, Sk, Dh)),
            "wq": _w((lambda *s: torch.randn(*s, dtype=torch.bfloat16) * 1.6)(D, Hq * Dh) * (D ** -0.5)),
            "wo": _w((lambda *s: torch.randn(*s, dtype=torch.bfloat16) * 0.4)(Hq * Dh, D) * ((Hq * Dh) ** -0.5)),
        }
    _A_in = _A_setup()

    def _B_setup():
        B, S, D, F = 2, 1, 512, 1792
        return {
            "x": _w((lambda *s: torch.randn(*s, dtype=torch.bfloat16) * 0.05)(B, S, D)),
            "w1": _w((lambda *s: torch.randn(*s, dtype=torch.bfloat16) * 0.8)(D, F) * (D ** -0.5)),
            "b1": _w((lambda *s: torch.randn(*s, dtype=torch.bfloat16) * 0.2)(F)),
            "w2": _w((lambda *s: torch.randn(*s, dtype=torch.bfloat16) * 0.1)(F, D) * (F ** -0.5)),
        }
    _B_in = _B_setup()

    return {
        "A_x": _A_in["x"],
        "A_k_cache": _A_in["k_cache"],
        "A_v_cache": _A_in["v_cache"],
        "A_wq": _A_in["wq"],
        "A_wo": _A_in["wo"],
        "B_x": _B_in["x"],
        "B_w1": _B_in["w1"],
        "B_b1": _B_in["b1"],
        "B_w2": _B_in["w2"],
    }

def reference(A_x, A_k_cache, A_v_cache, A_wq, A_wo, B_x, B_w1, B_b1, B_w2):
    def _A_ref(x, k_cache, v_cache, wq, wo):
        B, Sq, D = x.shape
        Hq, Dh = 32, 128
        Hkv, Sk = k_cache.shape[1], k_cache.shape[2]
        W = min(4096, max(256, Sk // 4))
        rep = Hq // Hkv
        q = (lambda x, *d: x.permute(*d))((x @ wq).reshape(B, Sq, Hq, Dh), 0, 2, 1, 3)
        k = (lambda x, n, axis: torch.repeat_interleave(x, n, dim=axis))(k_cache[:, :, Sk - W:, :], rep, axis=1)
        v = (lambda x, n, axis: torch.repeat_interleave(x, n, dim=axis))(v_cache[:, :, Sk - W:, :], rep, axis=1)
        scores = torch.einsum("bhqd,bhkd->bhqk", q, k) * (Dh ** -0.5)
        p = _softmax(scores, axis=-1)
        o = torch.einsum("bhqk,bhkd->bhqd", p, v)
        return (lambda x, *d: x.permute(*d))(o, 0, 2, 1, 3).reshape(B, Sq, Hq * Dh) @ wo

    def _B_ref(x, w1, b1, w2):
        h = torch.einsum("bsd,df->bsf", x, w1) + b1
        sp = torch.log1p(torch.exp(-torch.abs(h))) + torch.where(h > 0, h, torch.zeros_like(h))
        act = h * torch.tanh(sp)
        return torch.einsum("bsf,fd->bsd", act, w2)

    x = A_x
    xn = _layernorm(x, axis=-1)
    return x + _A_ref(xn, A_k_cache, A_v_cache, A_wq, A_wo) + _B_ref(xn, B_w1, B_b1, B_w2)
```

```python
import re

def _regs(tok):
    tok = tok.strip()
    tok = tok.lstrip('-')
    m = re.fullmatch(r'abs\((.*)\)', tok) or re.fullmatch(r'\|(.*)\|', tok)
    if m: tok = m.group(1)
    m = re.fullmatch(r'([vsa])\[(\d+):(\d+)\]', tok)
    if m: return {(m.group(1), i) for i in range(int(m.group(2)), int(m.group(3)) + 1)}
    m = re.fullmatch(r'([vsa])(\d+)', tok)
    if m: return {(m.group(1), int(m.group(2)))}
    if tok == 'vcc': return {('s', 'vcc')}
    if tok in ('vcc_lo', 'vcc_hi'): return {('s', 'vcc')}
    if tok == 'm0': return {('s', 'm0')}
    if tok in ('exec', 'exec_lo', 'exec_hi'): return {('s', 'exec')}
    return set()

TRANS = ('v_exp_f32', 'v_log_f32', 'v_rcp_f32', 'v_rsq_f32', 'v_sqrt_f32', 'v_sin_f32', 'v_cos_f32')

class Ins:
    def __init__(self, text):
        self.text = text
        t = text.split(';')[0].strip()
        self.label = t.endswith(':')
        self.op = t.split()[0] if t else ''
        rest = t[len(self.op):].strip()
        ops = []; depth = 0; cur = ''
        for ch in rest:
            if ch in '[(': depth += 1
            if ch in '])': depth -= 1
            if ch == ',' and depth == 0: ops.append(cur.strip()); cur = ''
            else: cur += ch
        if cur.strip(): ops.append(cur.strip())
        mods = ''
        if ops:
            parts = ops[-1].split()
            if len(parts) > 1:
                ops[-1] = parts[0]; mods = ' '.join(parts[1:])
        self.ops = ops; self.mods = mods
        op = self.op
        self.is_mfma = op.startswith('v_mfma')
        self.is_valu = op.startswith('v_') and not self.is_mfma
        self.is_vmem = op.startswith(('buffer_', 'global_', 'flat_'))
        self.is_ds = op.startswith('ds_')
        self.is_salu = op.startswith('s_')
        self.is_dpp = any(k in mods for k in ('row_', 'quad_perm', 'wave_')) and self.is_valu
        self.is_perm = op.startswith('v_permlane')
        self.is_trans = op.replace('_e32', '').replace('_e64', '') in TRANS
        self.is_rdlane = op.startswith(('v_readlane', 'v_readfirstlane'))
        self.is_lds_dma = self.is_vmem and ('lds' in mods.split() or '_lds_' in op)
        R = [_regs(o) for o in ops]
        wr = set(); rd = set()
        if self.label or not ops:
            pass
        elif self.is_mfma:
            wr = R[0]; rd = R[1] | R[2] | R[3]; self.srcC = R[3]; self.srcAB = R[1] | R[2]
        elif self.is_perm and 'swap' in op:
            wr = R[0] | R[1]; rd = R[0] | R[1]
        elif self.is_valu:
            wr = set(R[0]);
            k = 1
            if op.startswith(('v_add_co', 'v_sub_co', 'v_addc_co', 'v_subb_co', 'v_subrev_co', 'v_div_scale', 'v_mad_u64')):
                wr |= R[1]; k = 2
            for r in R[k:]: rd |= r
            if op.startswith(('v_fmac', 'v_writelane', 'v_dot2c')) or self.is_dpp: rd |= R[0]
            if op.startswith('v_cmpx'): wr |= {('s', 'exec')}
        elif self.is_vmem:
            if 'store' in op or ('atomic' in op and 'sc0' not in mods):
                for r in R: rd |= r
                self.data = R[0] if op.startswith('buffer_') else R[1]
            elif self.is_lds_dma:
                for r in R: rd |= r
                rd |= {('s', 'm0')}
            else:
                wr = R[0]
                for r in R[1:]: rd |= r
        elif self.is_ds:
            if op.startswith(('ds_read', 'ds_bpermute', 'ds_permute', 'ds_swizzle')):
                wr = R[0]
                for r in R[1:]: rd |= r
            else:
                for r in R: rd |= r
        elif self.is_salu:
            if op.startswith(('s_cmp', 's_cbranch', 's_branch', 's_waitcnt', 's_nop', 's_barrier', 's_sleep', 's_setprio', 's_endpgm', 's_bitcmp')):
                for r in R: rd |= r
            else:
                wr = R[0]
                for r in R[1:]: rd |= r
                if 'saveexec' in op: wr |= {('s', 'exec')}
        self.wr = wr; self.rd = rd
        self.states = 0 if self.label else (int(ops[0], 0) + 1 if op == 's_nop' else 1)

def need(p, c):
    w = 0
    vw = {r for r in p.wr if r[0] in 'va'}
    sw = {r for r in p.wr if r[0] == 's'}
    if p.is_valu:
        if c.is_mfma and vw & c.rd: w = max(w, 2)
        if (c.is_perm or c.is_dpp) and vw & c.rd: w = max(w, 2)
        if p.is_trans and c.is_valu and not c.is_trans and vw & c.rd: w = max(w, 1)
        if c.is_rdlane and vw & c.rd: w = max(w, 1)
        if sw:
            s2 = sw - {('s', 'exec')}
            if (c.is_valu or c.is_mfma) and s2 & c.rd: w = max(w, 4 if c.op.startswith(('v_readlane', 'v_writelane')) else 2)
            if c.is_vmem and s2 & c.rd: w = max(w, 5)
            if ('s', 'exec') in sw and (c.is_dpp or c.is_mfma or c.is_perm or c.is_rdlane): w = max(w, 5)
    if p.is_mfma:
        if c.is_mfma:
            if p.wr & c.srcAB: w = max(w, 8)
            if p.wr & c.srcC and p.wr != c.srcC: w = max(w, 6)
        elif (c.is_valu or c.is_vmem or c.is_ds) and (p.wr & (c.rd | c.wr)): w = max(w, 8)
        if c.is_valu and p.srcC & c.wr: w = max(w, 3)
    if p.is_salu and ('s', 'm0') in p.wr and c.is_lds_dma: w = max(w, 1)
    if p.is_vmem and hasattr(p, 'data') and len(p.data) >= 3 and c.wr & p.data: w = max(w, 2)
    return w

class Asm:
    def __init__(self):
        self.lines = []
    def __call__(self, text):
        for t in text.split('\n'):
            t = t.strip()
            if t: self.lines.append(t)
    def finish(self):
        out = []; hist = []
        for t in self.lines:
            if t.startswith(('.', ';')):
                out.append(t); continue
            c = Ins(t)
            if not c.label:
                dist = 0; pad = 0
                for p in reversed(hist[-24:]):
                    pad = max(pad, need(p, c) - dist)
                    dist += p.states
                    if dist >= 12: break
                if pad > 0:
                    n = Ins(f"s_nop {pad-1}"); hist.append(n); out.append("    " + n.text)
                if c.op in ('s_branch', 's_endpgm'):
                    hist = []; out.append("    " + t); continue
            hist.append(c)
            out.append(t if c.label else "    " + t)
        return "\n".join(out) + "\n"
```

```python
import sys
from asmlib import Asm

NAME = "parallel_sum__sliding_block_cached__dense_activation_mish__decode_kernel"

L_K, L_V, L_WQ, L_WO, L_W1, L_W2 = 0x0, 0x8000, 0x10000, 0x14000, 0x18000, 0x1A000
L_S = 0x1C000
L_Q, L_P, L_O, L_ML, L_FLG = L_S, L_S + 0x500, L_S + 0x900, L_S + 0xB40, L_S + 0xC00
L_XN, L_ACT = 0x1D000, 0x1D900
LDS_BYTES = 0x1DA00
QSTR, XSTR, OSTR = 272, 1040, 272
F_WQ, F_W1, F_K, F_V, F_W3, F_CLR, F_OK, F_ACT = [4 * i for i in range(8)]
W_F1, W_F2, W_BLK = 0x1000, 0x2000, 0x10000
B_QP, B_HP, B_OP, B_FP, B_LSE = 0, 512, 1024, 2048, 2560
SPIN = 1 << 18

def gen(depth=26, stamps=False, safe=True, order=('wq', 'w1', 'k', 'v', 'wo', 'w2'), header=""):
    A = Asm()
    uid = [0]
    def lab(p):
        uid[0] += 1
        return f"L_{p}{uid[0]}"
    VST = 127
    def stamp(k):
        if stamps:
            A(f"s_memrealtime s[98:99]\ns_waitcnt lgkmcnt(0)\nv_writelane_b32 v{VST}, s98, {k}")
    def dump_stamps():
        if stamps:
            A(f"""s_lshl_b32 s96, s2, 3
            s_add_u32 s96, s96, s3
            s_lshl_b32 s96, s96, 6
            s_add_u32 s96, s96, 0x8000000
            s_add_u32 s96, s26, s96
            s_addc_u32 s97, s27, 0
            s_mov_b64 exec, 0xffff
            v_mbcnt_lo_u32_b32 v126, -1, 0
            v_lshlrev_b32 v126, 2, v126
            global_store_dword v126, v{VST}, s[96:97]""")
    def loop_back(l):
        if safe:
            o = lab("out")
            A(f"""s_add_u32 s100, s100, 1
            s_bitcmp1_b32 s100, 21
            s_cbranch_scc1 {o}
            s_cbranch_vccnz {l}
            {o}:""")
        else:
            A(f"s_cbranch_vccnz {l}")
    def wait_flag(vaddr, off, vt):
        l = lab("wf")
        A(f"""{l}:
        ds_read_b32 v{vt}, v{vaddr} offset:{off}
        s_waitcnt lgkmcnt(0)
        v_cmp_eq_u32 vcc, -1, v{vt}""")
        loop_back(l)
    def set_flag(vaddr, off, vdata):
        A(f"""s_mov_b64 exec, 1
        ds_write_b32 v{vaddr}, v{vdata} offset:{off}
        s_mov_b64 exec, -1""")
    def any_sent(regs, vt):
        regs = list(regs)
        A(f"v_max3_u32 v{vt}, v{regs[0]}, v{regs[1]}, v{regs[2] if len(regs) > 2 else regs[1]}")
        rest = regs[3:]
        while rest:
            a = rest[0]; b = rest[1] if len(rest) > 1 else rest[0]
            A(f"v_max3_u32 v{vt}, v{vt}, v{a}, v{b}")
            rest = rest[2:]
        A(f"v_cmp_eq_u32 vcc, -1, v{vt}")
    def bf16r(d, s):
        A(f"v_cvt_pk_bf16_f32 v{d}, v{s}, v{s}\nv_lshlrev_b32 v{d}, 16, v{d}")
    def ws_srd(d):
        A(f"""s_add_u32 s{d}, s26, {W_BLK}
        s_addc_u32 s{d+1}, s27, 0
        s_mov_b32 s{d+2}, 0x100000
        s_mov_b32 s{d+3}, 0x00020000""")

    A(header)
    A(f"; @launch grid=(256,1,1) block=(384,1,1) lds={LDS_BYTES}")
    A(f""".amdgcn_target "amdgcn-amd-amdhsa--gfx950"
    .text
    .globl {NAME}
    .p2align 8
    .type {NAME},@function
    {NAME}:""")
    A("""s_load_dwordx16 s[4:19], s[0:1], 0
    s_load_dwordx8 s[20:27], s[0:1], 64
    s_cmp_ge_u32 s2, 256
    s_cbranch_scc1 L_end
    v_lshrrev_b32 v1, 6, v0
    v_and_b32 v0, 63, v0
    v_readfirstlane_b32 s3, v1
    s_and_b32 s28, s2, 7
    s_lshr_b32 s29, s2, 3""")
    if stamps:
        A(f"s_memrealtime s[94:95]\nv_mov_b32 v{VST}, 0")
    A("""s_cmp_eq_u32 s3, 0
    s_cbranch_scc0 L_notloader""")

    A("s_setprio 3")
    A("""v_lshrrev_b32 v2, 3, v0
    v_and_b32 v3, 6, v2
    v_xor_b32 v3, v3, v0
    v_and_b32 v3, 7, v3
    v_lshlrev_b32 v3, 4, v3
    v_lshrrev_b32 v4, 5, v0
    v_and_b32 v5, 3, v2
    v_lshl_add_u32 v6, v4, 3, v5
    v_lshl_add_u32 v10, v6, 13, v3
    v_add_u32 v11, 31744, v10
    s_mov_b32 s34, 4194304
    s_mov_b32 s35, 0x00020000
    s_movk_i32 s60, 0x800
    s_lshr_b32 s57, s29, 3
    s_lshl_b32 s57, s57, 20
    s_lshl_b32 s58, s28, 10
    s_add_u32 s57, s57, s58
    s_and_b32 s58, s29, 7
    s_lshl_b32 s56, s58, 11
    s_lshl_b32 s58, s58, 7
    s_add_u32 s57, s57, s58
    s_waitcnt lgkmcnt(0)
    s_mov_b32 s32, s10
    s_mov_b32 s33, s11""")
    info = dict(wq=(8, 32, 10, L_WQ, F_WQ), w1=(4, 36, 12, L_W1, F_W1), k=(16, 40, 14, L_K, F_K), v=(16, 44, 14, L_V, F_V),
                wo=(8, 48, 16, L_WO, None), w2=(4, 52, 18, L_W2, None))
    last = order[-1]
    flag_at = {}
    cum = 0
    for m in order:
        cum += 2 * info[m][0]
        f = info[m][4]
        if m in ('wo', 'w2'):
            if all(order.index(z) <= order.index(m) for z in ('wo', 'w2')): f = F_W3
        if f is not None: flag_at[cum] = f
    def setup(m):
        if m == 'wq': return
        if m == 'w1':
            A("""v_mul_u32_u24 v12, 3584, v6
            v_add_u32 v12, v12, v3
            v_add_u32 v13, 13312, v12
            s_mov_b32 s36, s16
            s_mov_b32 s37, s17
            s_cmp_lt_u32 s29, 28
            s_cselect_b32 s38, 1835008, 0
            s_mov_b32 s39, 0x00020000
            s_mul_i32 s57, s28, 229376
            s_lshl_b32 s58, s29, 7
            s_add_u32 s57, s57, s58
            s_and_b32 s56, s29, 3
            s_lshl_b32 s56, s56, 11""")
        elif m in ('k', 'v'):
            p = 6 if m == 'k' else 8
            d = info[m][1]
            A(f"""v_lshrrev_b32 v7, 4, v0
            v_lshlrev_b32 v8, 1, v7
            v_xor_b32 v8, v8, v0
            v_and_b32 v8, 15, v8
            v_lshlrev_b32 v8, 4, v8
            v_lshl_add_u32 v14, v7, 8, v8
            v_xor_b32 v15, 128, v14
            s_mov_b32 s{d}, s{p}
            s_mov_b32 s{d+1}, s{p+1}
            s_mov_b32 s{d+2}, 33554432
            s_mov_b32 s{d+3}, 0x00020000
            s_lshr_b32 s57, s29, 4
            s_lshl_b32 s57, s57, 3
            s_add_u32 s57, s57, s28
            s_lshl_b32 s57, s57, 21
            s_and_b32 s58, s29, 15
            s_lshl_b32 s56, s58, 11
            s_lshl_b32 s58, s58, 15
            s_add_u32 s57, s57, s58
            s_add_u32 s57, s57, 1572864""")
        elif m == 'wo':
            A("""v_lshl_add_u32 v7, v4, 7, v5
            v_lshl_add_u32 v16, v7, 10, v3
            v_add_u32 v17, 15360, v16
            s_mov_b32 s48, s12
            s_mov_b32 s49, s13
            s_mov_b32 s50, 4194304
            s_mov_b32 s51, 0x00020000
            s_lshr_b32 s57, s29, 2
            s_lshl_b32 s57, s57, 19
            s_and_b32 s58, s29, 3
            s_lshl_b32 s58, s58, 15
            s_add_u32 s57, s57, s58
            s_lshl_b32 s58, s28, 7
            s_add_u32 s57, s57, s58
            s_and_b32 s56, s29, 7
            s_lshl_b32 s56, s56, 11""")
        elif m == 'w2':
            A("""v_lshl_add_u32 v18, v6, 10, v3
            v_add_u32 v19, 3072, v18
            s_mov_b32 s52, s20
            s_mov_b32 s53, s21
            s_cmp_lt_u32 s29, 28
            s_cselect_b32 s54, 1835008, 0
            s_mov_b32 s55, 0x00020000
            s_lshl_b32 s57, s29, 16
            s_lshl_b32 s58, s28, 7
            s_add_u32 s57, s57, s58
            s_and_b32 s56, s29, 3
            s_lshl_b32 s56, s56, 11""")
    issued = 0
    done_barrier = False
    flagged = set()
    def landed(n):
        for c in sorted(flag_at):
            if c <= n and c not in flagged:
                flagged.add(c)
                set_flag(20, flag_at[c], 20)
                stamp(2 + len(flagged))
    for m in order:
        npair, srd, vo, lbase, _ = info[m]
        setup(m)
        for p in range(npair):
            if issued + 2 > depth:
                if not done_barrier:
                    A(f"v_mov_b32 v20, {L_FLG}\ns_barrier")
                    stamp(1)
                    done_barrier = True
                A(f"s_waitcnt vmcnt({depth - 2})")
                landed(issued - (depth - 2))
            A(f"s_add_u32 m0, s56, {lbase}" if lbase else "s_mov_b32 m0, s56")
            if m == 'wq': A("s_lshl_b32 s58, s56, 6\ns_add_u32 s58, s58, s57")
            elif m == 'w1': A("s_mul_i32 s58, s56, 28\ns_add_u32 s58, s58, s57")
            elif m == 'w2': A("s_lshl_b32 s58, s56, 3\ns_add_u32 s58, s58, s57")
            elif m == 'wo': A("s_and_b32 s58, s56, s60\ns_lshl_b32 s58, s58, 7\ns_and_b32 s59, s56, 0x3000\ns_add_u32 s58, s58, s59\ns_add_u32 s58, s58, s57")
            else: A("s_add_u32 s58, s56, s57")
            A(f"buffer_load_dwordx4 v{vo}, s[{srd}:{srd+3}], s58 offen nt lds")
            A(f"buffer_load_dwordx4 v{vo+1}, s[{srd}:{srd+3}], s58 offen offset:1024 nt lds")
            issued += 2
            if p != npair - 1:
                A(f"s_add_u32 s56, s56, s60\ns_and_b32 s56, s56, {npair * 2048 - 1}")
    for c in sorted(flag_at):
        if c not in flagged:
            A(f"s_waitcnt vmcnt({issued - c})")
            landed(c)
    if stamps: A(f"v_writelane_b32 v{VST}, s94, 0")
    dump_stamps()
    A("s_endpgm")

    A("L_notloader:")
    A("s_cmp_eq_u32 s3, 1\ns_cbranch_scc0 L_compute")
    A("""v_lshlrev_b32 v2, 4, v0
    v_mov_b32 v4, -1
    v_mov_b32 v5, -1
    v_mov_b32 v6, -1
    v_mov_b32 v7, -1
    s_lshl_b32 s30, s28, 5
    s_add_u32 s30, s30, s29
    s_lshl_b32 s31, s30, 12
    s_waitcnt lgkmcnt(0)
    s_load_dword s5, s[26:27], 0 glc""")
    if stamps: A(f"v_writelane_b32 v{VST}, s94, 0")
    A("s_getreg_b32 s4, hwreg(HW_REG_XCC_ID)")
    ws_srd(8)
    A(f"""buffer_store_dwordx4 v[4:7], v2, s[8:11], s31 offen sc1
    buffer_store_dwordx4 v[4:7], v2, s[8:11], s31 offen offset:1024 sc1
    buffer_store_dwordx4 v[4:7], v2, s[8:11], s31 offen offset:2048 sc1
    s_barrier
    v_mov_b32 v20, {L_FLG}
    s_and_b32 s4, s4, 15
    s_lshl_b32 s6, s28, 7
    s_add_u32 s6, s6, {W_F1}
    s_add_u32 s12, s26, s6
    s_addc_u32 s13, s27, 0
    s_lshr_b32 s6, s29, 2
    s_lshl_b32 s6, s6, 7
    s_add_u32 s6, s6, {W_F1}
    s_add_u32 s14, s26, s6
    s_addc_u32 s15, s27, 0
    s_lshl_b32 s6, s29, 5
    s_add_u32 s6, s6, {W_F2}
    s_add_u32 s16, s26, s6
    s_addc_u32 s17, s27, 0
    s_lshl_b32 s6, s29, 2
    v_mov_b32 v8, s6
    s_lshl_b32 s6, s28, 2
    v_mov_b32 v9, s6
    s_waitcnt lgkmcnt(0)
    s_mul_i32 s20, s5, 0x9E3779B1
    s_add_u32 s20, s20, 0x7F4A7C15
    s_and_b32 s20, s20, -16
    s_or_b32 s21, s20, s4
    v_mov_b32 v10, s21
    s_waitcnt vmcnt(0)""")
    set_flag(20, F_CLR, 20)
    A("""s_mov_b64 exec, 1
    global_store_dword v8, v10, s[12:13] sc1
    global_store_dword v9, v10, s[16:17] sc1
    s_mov_b64 exec, -1""")
    stamp(1)
    A("""v_and_b32 v11, 7, v0
    v_lshlrev_b32 v11, 2, v11
    v_lshrrev_b32 v12, 5, v0
    v_lshl_add_u32 v11, v12, 1, v11
    v_bfe_u32 v12, v0, 4, 1
    v_add_u32 v11, v11, v12
    v_bfe_u32 v12, v0, 3, 1
    v_lshl_add_u32 v11, v12, 5, v11
    s_min_u32 s6, s29, 27
    s_lshl_b32 s6, s6, 6
    v_add_u32 v13, s6, v11
    v_lshlrev_b32 v13, 1, v13
    global_load_ushort v14, v13, s[18:19]
    s_mov_b32 s7, 0""")
    l = lab("fl")
    A(f"""{l}:
    s_load_dwordx16 s[32:47], s[12:13], 0 glc
    s_load_dwordx16 s[48:63], s[12:13], 64 glc
    s_load_dwordx16 s[64:79], s[14:15], 0 glc
    s_load_dwordx16 s[80:95], s[14:15], 64 glc
    s_waitcnt lgkmcnt(0)""")
    def chains(lo, n, first):
        for i in range(0, n, 2):
            r = f"s[{lo+i}:{lo+i+1}]"
            if first and i == 0:
                A(f"s_mov_b64 s[22:23], {r}\ns_mov_b64 s[24:25], {r}")
            else:
                A(f"s_and_b64 s[22:23], s[22:23], {r}\ns_or_b64 s[24:25], s[24:25], {r}")
    def fcheck(ok, l):
        A(f"""s_and_b32 s22, s22, s23
        s_or_b32 s24, s24, s25
        s_and_b32 s22, s22, -16
        s_and_b32 s24, s24, -16
        s_xor_b32 s22, s22, s20
        s_xor_b32 s24, s24, s20
        s_or_b32 s22, s22, s24
        s_cbranch_scc0 {ok}
        s_add_u32 s7, s7, 1
        s_cmp_lt_u32 s7, {SPIN}
        s_cbranch_scc1 {l}
        {ok}:""")
    chains(32, 32, True)
    A("""s_and_b32 s22, s22, s23
    s_or_b32 s24, s24, s25
    s_cmp_eq_u32 s22, s24
    s_cselect_b32 s6, 1, 0
    s_mov_b32 s23, s22
    s_mov_b32 s25, s24""")
    chains(64, 32, False)
    fcheck("L_flagsok", l)
    A("v_mov_b32 v15, s6")
    set_flag(20, F_OK, 15)
    stamp(2)
    A("v_mov_b32 v15, s5")
    A(f"""v_mov_b32 v40, 0
    v_mov_b32 v41, 0
    s_cmp_lt_u32 s29, 28
    s_cbranch_scc0 L_actw
    v_lshrrev_b32 v16, 3, v0
    v_lshlrev_b32 v16, 17, v16
    v_and_b32 v17, 7, v0
    v_lshl_add_u32 v16, v17, 4, v16
    s_lshl_b32 s31, s29, 12
    s_mov_b32 s7, 0""")
    l = lab("f2")
    A(f"""{l}:
    s_load_dwordx8 s[32:39], s[16:17], 0 glc
    s_waitcnt lgkmcnt(0)""")
    chains(32, 8, True)
    fcheck("L_f2ok", l)
    A("s_mov_b32 s7, 0")
    l = lab("hp")
    A(f"{l}:")
    for i in range(4):
        b, half = i & 1, i >> 1
        A(f"buffer_load_dwordx4 v[{24+4*i}:{27+4*i}], v16, s[8:11], s31 offen offset:{B_HP + b*256 + half*128} sc1")
    A("s_waitcnt vmcnt(0)")
    any_sent(range(24, 40), 18)
    A(f"""s_cbranch_vccz L_hpok
    s_sleep 8
    s_add_u32 s7, s7, 1
    s_cmp_lt_u32 s7, {SPIN}
    s_cbranch_scc1 {l}
    L_hpok:""")
    stamp(3)
    for i in range(4):
        r = 24 + 4 * i
        A(f"""v_permlane32_swap_b32 v{r}, v{r+2}
        v_permlane32_swap_b32 v{r+1}, v{r+3}
        v_add_f32 v{r}, v{r}, v{r+2}
        v_add_f32 v{r+1}, v{r+1}, v{r+3}""")
    for i in range(4):
        r = 24 + 4 * i
        A(f"v_permlane16_swap_b32 v{r}, v{r+1}\nv_add_f32 v{r}, v{r}, v{r+1}")
    for i in range(4):
        r = 24 + 4 * i
        A(f"v_add_f32 v{r}, v{r}, v{r} row_ror:8")
    A("""v_and_b32 v18, 8, v0
    v_cmp_eq_u32 vcc, 0, v18
    v_cndmask_b32 v40, v32, v24, vcc
    v_cndmask_b32 v41, v36, v28, vcc
    v_lshlrev_b32 v14, 16, v14
    s_mov_b32 s32, 0x3fb8aa3b
    s_mov_b32 s33, 0x3f317218""")
    for h in (40, 41):
        t = 44
        bf16r(h, h)
        A(f"v_add_f32 v{h}, v{h}, v14")
        bf16r(h, h)
        A(f"v_mul_f32 v{t}, s32, v{h}\nv_exp_f32 v{t}, -abs(v{t})")
        bf16r(t, t)
        A(f"""v_add_f32 v{t+1}, 1.0, v{t}
        v_log_f32 v{t+2}, v{t+1}
        v_add_f32 v{t+3}, -1.0, v{t+1}
        v_rcp_f32 v{t+3}, v{t+3}
        v_mul_f32 v{t+2}, s33, v{t+2}
        v_mul_f32 v{t+2}, v{t+2}, v{t}
        v_mul_f32 v{t+2}, v{t+2}, v{t+3}
        v_cmp_eq_f32 vcc, 1.0, v{t+1}
        v_cndmask_b32 v{t+2}, v{t+2}, v{t}, vcc""")
        bf16r(t+2, t+2)
        A(f"v_max_f32 v{t+1}, 0, v{h}\nv_add_f32 v{t+2}, v{t+2}, v{t+1}")
        bf16r(t+2, t+2)
        A(f"""v_mul_f32 v{t}, -2.0, v{t+2}
        v_mul_f32 v{t+1}, s32, v{t}
        v_exp_f32 v{t+1}, v{t+1}
        v_log_f32 v{t+3}, v{t+1}
        v_add_f32 v{t+4}, -1.0, v{t+1}
        v_mul_f32 v{t+3}, s33, v{t+3}
        v_rcp_f32 v{t+3}, v{t+3}
        v_mul_f32 v{t+5}, v{t+4}, v{t}
        v_mul_f32 v{t+5}, v{t+5}, v{t+3}
        v_cmp_eq_f32 vcc, 1.0, v{t+1}
        v_cndmask_b32 v{t+5}, v{t+5}, v{t}, vcc
        v_cmp_gt_f32 vcc, 0.5, v{t+1}
        v_cndmask_b32 v{t+5}, v{t+5}, v{t+4}, vcc
        v_add_f32 v{t+4}, 2.0, v{t+5}
        v_rcp_f32 v{t+4}, v{t+4}
        v_mul_f32 v{t+5}, v{t+5}, v{t+4}
        v_sub_f32 v{t+5}, 0, v{t+5}""")
        bf16r(t+5, t+5)
        A(f"v_mul_f32 v{h}, v{h}, v{t+5}\nv_cvt_pk_bf16_f32 v{h}, v{h}, v{h}")
    A(f"""L_actw:
    v_lshlrev_b32 v11, 1, v11
    v_add_u32 v11, {L_ACT}, v11
    ds_write_b16 v11, v40
    ds_write_b16 v11, v41 offset:128""")
    set_flag(20, 32, 15)
    set_flag(20, F_ACT, 20)
    stamp(4)
    dump_stamps()
    A("s_waitcnt lgkmcnt(0)\ns_endpgm")

    A("L_compute:")
    A(f"""s_mov_b32 s100, 0
    s_sub_u32 s30, s3, 2
    v_lshlrev_b32 v2, 4, v0
    s_lshl_b32 s31, s30, 10
    s_add_u32 s31, s31, {L_S}
    v_add_u32 v3, s31, v2
    v_mov_b32 v4, -1
    v_mov_b32 v5, -1
    v_mov_b32 v6, -1
    v_mov_b32 v7, -1
    ds_write_b128 v3, v[4:7]
    s_waitcnt lgkmcnt(0)
    global_load_dwordx4 v[8:11], v2, s[4:5]
    global_load_dwordx4 v[12:15], v2, s[4:5] offset:1024
    s_barrier""")
    ws_srd(32)
    A(f"""s_mov_b32 s36, 0xffff0000
    v_and_b32 v4, 15, v0
    v_lshrrev_b32 v5, 4, v0
    v_mov_b32 v6, {L_FLG}
    v_bfe_u32 v16, v0, 2, 2
    v_and_b32 v17, 1, v5
    v_lshl_add_u32 v16, v17, 2, v16
    v_bfe_u32 v18, v0, 1, 1
    s_lshl_b32 s37, s30, 1
    v_add_u32 v18, s37, v18
    v_and_b32 v19, 6, v16
    v_xor_b32 v18, v18, v19
    v_lshlrev_b32 v18, 4, v18
    v_and_b32 v19, 1, v0
    v_lshl_add_u32 v18, v19, 3, v18
    v_lshrrev_b32 v17, 5, v0
    v_lshl_add_u32 v17, v17, 4, v16
    v_lshl_add_u32 v7, v17, 7, v18
    v_add_u32 v7, {L_WQ}, v7
    v_bfe_u32 v18, v0, 1, 1
    s_lshl_b32 s37, s30, 2
    v_add_u32 v18, s37, v18
    v_lshlrev_b32 v17, 1, v16
    v_xor_b32 v18, v18, v17
    v_lshlrev_b32 v18, 4, v18
    v_lshl_add_u32 v18, v19, 3, v18
    v_lshrrev_b32 v17, 2, v0
    v_lshl_add_u32 v100, v17, 8, v18
    v_xor_b32 v101, 32, v100
    v_and_b32 v17, 7, v0
    v_lshlrev_b32 v17, 1, v17
    v_xor_b32 v17, v17, v5
    v_lshlrev_b32 v17, 4, v17
    v_lshl_add_u32 v17, v4, 8, v17
    s_lshl_b32 s37, s30, 13
    v_add_u32 v102, s37, v17
    v_xor_b32 v103, 64, v102
    v_xor_b32 v104, 128, v102
    v_xor_b32 v105, 192, v102
    v_and_b32 v17, 1, v0
    v_mul_u32_u24 v18, {XSTR}, v17
    v_lshl_add_u32 v106, v5, 4, v18
    s_lshl_b32 s37, s30, 6
    v_lshlrev_b32 v18, 8, v4
    v_lshl_add_u32 v18, v5, 4, v18
    v_add_u32 v107, s37, v18
    s_lshl_b32 s38, s28, 5
    s_add_u32 s38, s38, s29
    s_lshl_b32 s38, s38, 12
    v_add_u32 v3, {L_XN}, v2""")
    stamp(1)
    A("s_waitcnt vmcnt(0)")
    stamp(2)
    for b in range(2):
        for i in range(4):
            A(f"v_lshlrev_b32 v{16+8*b+2*i}, 16, v{8+4*b+i}\nv_and_b32 v{17+8*b+2*i}, s36, v{8+4*b+i}")
    def red2(a, b, t):
        A(f"""v_permlane32_swap_b32 v{a}, v{b}
        v_add_f32 v{a}, v{a}, v{b}
        v_mov_b32 v{t}, v{a}
        v_permlane16_swap_b32 v{t}, v{a}
        v_add_f32 v{a}, v{a}, v{t}
        v_add_f32 v{a}, v{a}, v{a} row_ror:8
        v_add_f32 v{a}, v{a}, v{a} row_ror:4
        v_add_f32 v{a}, v{a}, v{a} row_ror:2
        v_add_f32 v{a}, v{a}, v{a} row_ror:1""")
    for b in range(2):
        f = 16 + 8 * b
        A(f"""v_pk_add_f32 v[{32+4*b}:{33+4*b}], v[{f}:{f+1}], v[{f+2}:{f+3}]
        v_pk_add_f32 v[{34+4*b}:{35+4*b}], v[{f+4}:{f+5}], v[{f+6}:{f+7}]""")
    for b in range(2):
        A(f"v_pk_add_f32 v[{32+4*b}:{33+4*b}], v[{32+4*b}:{33+4*b}], v[{34+4*b}:{35+4*b}]")
    A("v_add_f32 v32, v32, v33\nv_add_f32 v36, v36, v37")
    red2(32, 36, 33)
    A("""v_mul_f32 v32, 0x3b000000, v32
    v_readlane_b32 s40, v32, 0
    v_readlane_b32 s42, v32, 32""")
    for b in range(2):
        f = 16 + 8 * b
        for i in range(4):
            A(f"v_pk_add_f32 v[{40+8*b+2*i}:{41+8*b+2*i}], v[{f+2*i}:{f+2*i+1}], s[{40+2*b}:{41+2*b}] op_sel_hi:[1,0] neg_lo:[0,1] neg_hi:[0,1]")
    for b in range(2):
        d = 40 + 8 * b
        A(f"v_pk_mul_f32 v[{34+2*b}:{35+2*b}], v[{d}:{d+1}], v[{d}:{d+1}]")
    for i in range(1, 4):
        for b in range(2):
            d = 40 + 8 * b + 2 * i
            A(f"v_pk_fma_f32 v[{34+2*b}:{35+2*b}], v[{d}:{d+1}], v[{d}:{d+1}], v[{34+2*b}:{35+2*b}]")
    A("v_add_f32 v34, v34, v35\nv_add_f32 v36, v36, v37")
    red2(34, 36, 33)
    A("v_mul_f32 v34, 0x3b000000, v34")
    bf16r(34, 34)
    A("v_add_f32 v34, 0x3727c5ac, v34")
    bf16r(34, 34)
    A("v_sqrt_f32 v34, v34")
    bf16r(34, 34)
    A("v_rcp_f32 v34, v34")
    bf16r(32, 32)
    A("""v_readlane_b32 s40, v32, 0
    v_readlane_b32 s42, v32, 32
    v_readlane_b32 s44, v34, 0
    v_readlane_b32 s46, v34, 32""")
    for b in range(2):
        f = 16 + 8 * b
        for i in range(4):
            A(f"v_pk_add_f32 v[{f+2*i}:{f+2*i+1}], v[{f+2*i}:{f+2*i+1}], s[{40+2*b}:{41+2*b}] op_sel_hi:[1,0] neg_lo:[0,1] neg_hi:[0,1]")
    for i in range(8):
        A(f"v_cvt_pk_bf16_f32 v{8+i}, v{16+2*i}, v{17+2*i}")
    for i in range(8):
        A(f"v_lshlrev_b32 v{16+2*i}, 16, v{8+i}\nv_and_b32 v{17+2*i}, s36, v{8+i}")
    for b in range(2):
        f = 16 + 8 * b
        for i in range(4):
            A(f"v_pk_mul_f32 v[{f+2*i}:{f+2*i+1}], v[{f+2*i}:{f+2*i+1}], s[{44+2*b}:{45+2*b}] op_sel_hi:[1,0]")
    for i in range(8):
        A(f"v_cvt_pk_bf16_f32 v{8+i}, v{16+2*i}, v{17+2*i}")
    A(f"""ds_write_b128 v3, v[8:11]
    ds_write_b128 v3, v[12:15] offset:{XSTR}
    s_lshr_b32 s37, s29, 3
    s_lshl_b32 s37, s37, 8
    s_add_u32 s37, s37, {L_XN}
    v_add_u32 v17, s37, v106
    s_lshl_b32 s37, s28, 7
    s_add_u32 s37, s37, {L_XN}
    v_add_u32 v18, s37, v106
    s_waitcnt lgkmcnt(0)""")
    for kk in range(4): A(f"ds_read_b128 v[{24+4*kk}:{27+4*kk}], v17 offset:{64*kk}")
    for kk in range(2): A(f"ds_read_b128 v[{40+4*kk}:{43+4*kk}], v18 offset:{64*kk}")
    A("v_mov_b32 v8, 0\nv_mov_b32 v9, 0\nv_mov_b32 v10, 0\nv_mov_b32 v11, 0\nv_mov_b32 v12, 0\nv_mov_b32 v13, 0\nv_mov_b32 v14, 0\nv_mov_b32 v15, 0")
    A("s_mov_b32 s48, 0x00030003\ns_mov_b32 s49, 0x00030003\ns_mov_b32 s50, 0x000f000f\ns_mov_b32 s51, 0x000f000f\ns_mov_b32 s52, -2")
    stamp(3)
    wait_flag(6, F_CLR, 16)
    wait_flag(6, F_WQ, 16)
    stamp(4)
    def trw(base, nk, r0):
        for kk in range(nk):
            for u in range(2):
                A(f"ds_read_b64_tr_b16 v[{r0+4*kk+2*u}:{r0+4*kk+2*u+1}], v7 offset:{base - L_WQ + kk*4096 + u*1024}")
    trw(L_WQ, 4, 48)
    A("s_waitcnt lgkmcnt(0)")
    for kk in range(4):
        A(f"v_mfma_f32_16x16x32_bf16 v[8:11], v[{48+4*kk}:{51+4*kk}], v[{24+4*kk}:{27+4*kk}], v[8:11]")
    for r in range(8, 12): A(f"v_min_u32 v{r}, s52, v{r}")
    A(f"""s_mov_b64 exec, s[48:49]
    buffer_store_dwordx4 v[8:11], v107, s[32:35], s38 offen offset:{B_QP} sc1
    s_mov_b64 exec, -1""")
    stamp(5)
    wait_flag(6, F_W1, 16)
    trw(L_W1, 2, 48)
    A("s_waitcnt lgkmcnt(0)")
    for kk in range(2):
        A(f"v_mfma_f32_16x16x32_bf16 v[12:15], v[{48+4*kk}:{51+4*kk}], v[{40+4*kk}:{43+4*kk}], v[12:15]")
    for r in range(12, 16): A(f"v_min_u32 v{r}, s52, v{r}")
    A(f"""s_mov_b64 exec, s[48:49]
    buffer_store_dwordx4 v[12:15], v107, s[32:35], s38 offen offset:{B_HP} sc1
    s_mov_b64 exec, -1""")
    A(f"""v_lshlrev_b32 v16, 15, v5
    v_lshl_add_u32 v16, v4, 4, v16
    s_lshl_b32 s39, s28, 17
    s_lshl_b32 s37, s30, 13
    s_add_u32 s39, s39, s37
    s_lshr_b32 s37, s29, 4
    s_lshl_b32 s37, s37, 8
    s_add_u32 s39, s39, s37
    s_add_u32 s40, s39, 4096
    v_lshrrev_b32 v17, 5, v0
    v_lshlrev_b32 v17, 7, v17
    v_lshl_add_u32 v17, v4, 3, v17
    v_and_b32 v18, 1, v5
    v_lshl_add_u32 v17, v18, 2, v17
    s_mul_i32 s37, s30, {QSTR}
    s_add_u32 s37, s37, {L_Q}
    v_add_u32 v17, s37, v17
    v_and_b32 v19, 3, v0
    v_mul_u32_u24 v18, {QSTR}, v19
    v_lshl_add_u32 v18, v5, 4, v18
    v_add_u32 v18, {L_Q}, v18
    v_lshlrev_b32 v20, 6, v5
    v_lshl_add_u32 v20, v19, 4, v20
    v_add_u32 v108, {L_P}, v20
    s_lshl_b32 s37, s30, 8
    v_add_u32 v109, s37, v20
    v_add_u32 v110, s37, v108
    v_lshlrev_b32 v111, 5, v19
    v_add_u32 v111, {L_ML}, v111
    s_lshl_b32 s37, s30, 3
    v_add_u32 v112, s37, v111
    s_mov_b32 s41, 0""")
    wait_flag(6, F_OK, 20)
    A("v_readfirstlane_b32 s53, v20")
    stamp(6)
    l = lab("qg")
    A(f"""{l}:
    buffer_load_dwordx4 v[24:27], v16, s[32:35], s39 offen offset:{B_QP} sc1
    buffer_load_dwordx4 v[28:31], v16, s[32:35], s40 offen offset:{B_QP} sc1
    s_waitcnt vmcnt(0)""")
    any_sent(range(24, 32), 20)
    A(f"""s_cbranch_vccz L_qok
    s_add_u32 s41, s41, 1
    s_cmp_lt_u32 s41, {SPIN}
    s_cbranch_scc1 {l}
    L_qok:""")
    stamp(7)
    for r in range(4): A(f"v_permlane32_swap_b32 v{24+r}, v{28+r}")
    for r in range(4): A(f"v_add_f32 v{24+r}, v{24+r}, v{28+r}")
    A("""v_permlane16_swap_b32 v24, v26
    v_permlane16_swap_b32 v25, v27
    v_add_f32 v24, v24, v26
    v_add_f32 v25, v25, v27
    v_cvt_pk_bf16_f32 v24, v24, v25
    v_min_u32 v24, s52, v24
    ds_write_b32 v17, v24""")
    wait_flag(6, F_K, 20)
    for t in range(2):
        for kk in range(4):
            A(f"ds_read_b128 v[{48+16*t+4*kk}:{51+16*t+4*kk}], v{102+kk} offset:{L_K + t*4096}")
    for r in range(8, 16): A(f"v_mov_b32 v{r}, 0")
    l = lab("ql")
    A(f"{l}:")
    for kk in range(4): A(f"ds_read_b128 v[{24+4*kk}:{27+4*kk}], v18 offset:{64*kk}")
    A("s_waitcnt lgkmcnt(0)")
    any_sent(range(24, 40), 20)
    loop_back(l)
    stamp(8)
    for kk in range(4):
        for t in range(2):
            A(f"v_mfma_f32_16x16x32_bf16 v[{8+4*t}:{11+4*t}], v[{48+16*t+4*kk}:{51+16*t+4*kk}], v[{24+4*kk}:{27+4*kk}], v[{8+4*t}:{11+4*t}]")
    A("s_mov_b32 s42, 0x3db504f3\ns_mov_b32 s43, 0x3fb8aa3b")
    for rnd in range(2):
        for i in range(4): A(f"v_cvt_pk_bf16_f32 v{24+i}, v{8+2*i}, v{9+2*i}")
        for i in range(4): A(f"v_lshlrev_b32 v{8+2*i}, 16, v{24+i}\nv_and_b32 v{9+2*i}, s36, v{24+i}")
        if rnd == 0:
            for i in range(8): A(f"v_mul_f32 v{8+i}, s42, v{8+i}")
    A("""v_max3_f32 v24, v8, v9, v10
    v_max3_f32 v25, v11, v12, v13
    v_max3_f32 v24, v24, v14, v15
    v_max_f32 v24, v24, v25
    v_mov_b32 v25, v24
    v_permlane32_swap_b32 v25, v24
    v_max_f32 v24, v24, v25
    v_mov_b32 v25, v24
    v_permlane16_swap_b32 v25, v24
    v_max_f32 v24, v24, v25
    v_mul_f32 v24, s43, v24""")
    for i in range(8): A(f"v_fma_f32 v{8+i}, v{8+i}, s43, -v24")
    for i in range(8): A(f"v_exp_f32 v{8+i}, v{8+i}")
    A("""v_add_f32 v25, v8, v9
    v_add_f32 v26, v10, v11
    v_add_f32 v27, v12, v13
    v_add_f32 v28, v14, v15
    v_add_f32 v25, v25, v26
    v_add_f32 v27, v27, v28
    v_add_f32 v25, v25, v27
    v_mov_b32 v26, v25
    v_permlane32_swap_b32 v26, v25
    v_add_f32 v25, v25, v26
    v_mov_b32 v26, v25
    v_permlane16_swap_b32 v26, v25
    v_add_f32 v25, v25, v26
    v_min_u32 v26, s52, v24
    v_min_u32 v27, s52, v25
    s_mov_b64 exec, 15
    ds_write_b64 v112, v[26:27]
    s_mov_b64 exec, -1""")
    l = lab("ml")
    A(f"""{l}:
    ds_read_b128 v[28:31], v111
    ds_read_b128 v[32:35], v111 offset:16
    s_waitcnt lgkmcnt(0)""")
    any_sent(range(28, 36), 20)
    loop_back(l)
    A("""v_max3_f32 v26, v28, v30, v32
    v_max_f32 v26, v26, v34
    v_sub_f32 v28, v28, v26
    v_sub_f32 v30, v30, v26
    v_sub_f32 v32, v32, v26
    v_sub_f32 v34, v34, v26
    v_sub_f32 v24, v24, v26
    v_exp_f32 v28, v28
    v_exp_f32 v30, v30
    v_exp_f32 v32, v32
    v_exp_f32 v34, v34
    v_exp_f32 v24, v24
    v_mul_f32 v27, v28, v29
    v_fmac_f32 v27, v30, v31
    v_fmac_f32 v27, v32, v33
    v_fmac_f32 v27, v34, v35
    v_rcp_f32 v28, v27
    v_log_f32 v29, v27
    v_mul_f32 v24, v24, v28""")
    for i in range(8): A(f"v_mul_f32 v{8+i}, v{8+i}, v24")
    for i in range(4): A(f"v_cvt_pk_bf16_f32 v{8+i}, v{8+2*i}, v{9+2*i}")
    for i in range(4): A(f"v_min_u32 v{8+i}, s52, v{8+i}")
    A(f"""v_add_f32 v29, v29, v26
    v_min_u32 v29, s52, v29
    s_mov_b64 exec, s[50:51]
    ds_write_b128 v110, v[8:11]
    s_mov_b64 exec, -1
    s_cmp_eq_u32 s30, 0
    s_cbranch_scc0 L_nolse
    v_lshlrev_b32 v28, 2, v0
    s_mov_b64 exec, 15
    buffer_store_dword v29, v28, s[32:35], s38 offen offset:{B_LSE} sc1
    s_mov_b64 exec, -1
    L_nolse:""")
    A(f"""v_lshrrev_b32 v16, 3, v0
    v_lshlrev_b32 v16, 12, v16
    v_and_b32 v17, 7, v0
    v_lshl_add_u32 v113, v17, 4, v16
    v_lshl_add_u32 v114, v19, 2, v16
    s_lshr_b32 s44, s29, 2
    s_lshl_b32 s44, s44, 17
    s_and_b32 s37, s30, 1
    s_lshl_b32 s37, s37, 16
    s_add_u32 s44, s44, s37
    s_add_u32 s45, s44, 32768
    s_and_b32 s37, s29, 3
    s_lshl_b32 s37, s37, 8
    s_lshr_b32 s39, s30, 1
    s_lshl_b32 s39, s39, 7
    s_add_u32 s37, s37, s39
    s_add_u32 s46, s44, s37
    s_add_u32 s47, s45, s37
    v_lshlrev_b32 v115, 4, v17
    v_lshl_add_u32 v115, v5, 2, v115
    s_and_b32 s37, s30, 1
    s_mul_i32 s37, s37, {OSTR}
    s_add_u32 s37, s37, s39
    s_add_u32 s37, s37, {L_O}
    v_add_u32 v115, s37, v115
    v_and_b32 v17, 1, v0
    v_mul_u32_u24 v116, {OSTR}, v17
    v_lshl_add_u32 v116, v5, 4, v116
    v_add_u32 v116, {L_O}, v116
    v_lshlrev_b32 v117, 7, v17
    v_lshl_add_u32 v117, v5, 4, v117
    v_add_u32 v117, {L_ACT}, v117
    v_lshlrev_b32 v118, 5, v5
    v_lshl_add_u32 v118, v4, 4, v118
    s_lshl_b32 s37, s30, 7
    v_add_u32 v118, s37, v118""")
    for r in range(12, 20): A(f"v_mov_b32 v{r}, 0")
    l = lab("pl")
    A(f"{l}:")
    for kk in range(4): A(f"ds_read_b128 v[{24+4*kk}:{27+4*kk}], v108 offset:{256*kk}")
    A("s_waitcnt lgkmcnt(0)")
    any_sent(range(24, 40), 20)
    loop_back(l)
    stamp(9)
    wait_flag(6, F_V, 20)
    stamp(10)
    for kk in range(4):
        for t in range(2):
            for u in range(2):
                r = 48 + 16 * t + 4 * kk + 2 * u
                A(f"ds_read_b64_tr_b16 v[{r}:{r+1}], v{100+t} offset:{L_V + kk*8192 + u*4096}")
    for kk in range(4):
        A(f"s_waitcnt lgkmcnt({12 - 4*kk})")
        for t in range(2):
            A(f"v_mfma_f32_16x16x32_bf16 v[{12+4*t}:{15+4*t}], v[{48+16*t+4*kk}:{51+16*t+4*kk}], v[{24+4*kk}:{27+4*kk}], v[{12+4*t}:{15+4*t}]")
    for i in range(4): A(f"v_cvt_pk_bf16_f32 v{8+i}, v{12+2*i}, v{13+2*i}")
    for i in range(4): A(f"v_min_u32 v{8+i}, s52, v{8+i}")
    A(f"""s_mov_b64 exec, s[50:51]
    buffer_store_dwordx4 v[8:11], v109, s[32:35], s38 offen offset:{B_OP} sc1
    s_mov_b64 exec, -1
    s_mov_b32 s41, 0""")
    stamp(11)
    l = lab("lg")
    A(f"""{l}:
    buffer_load_dword v20, v114, s[32:35], s44 offen offset:{B_LSE} sc1
    buffer_load_dword v21, v114, s[32:35], s45 offen offset:{B_LSE} sc1
    buffer_load_dwordx4 v[24:27], v113, s[32:35], s46 offen offset:{B_OP} sc1
    buffer_load_dwordx4 v[28:31], v113, s[32:35], s47 offen offset:{B_OP} sc1
    s_waitcnt vmcnt(2)
    v_max_u32 v22, v20, v21
    v_cmp_eq_u32 vcc, -1, v22
    s_cbranch_vccz L_lseok
    s_waitcnt vmcnt(0)
    s_add_u32 s41, s41, 1
    s_cmp_lt_u32 s41, {SPIN}
    s_cbranch_scc1 {l}
    L_lseok:
    v_max_f32 v22, v20, v21
    v_mov_b32 v23, v22
    v_permlane32_swap_b32 v23, v22
    v_max_f32 v22, v22, v23
    v_mov_b32 v23, v22
    v_permlane16_swap_b32 v23, v22
    v_max_f32 v22, v22, v23
    v_max_f32 v22, v22, v22 row_ror:8
    v_sub_f32 v20, v20, v22
    v_sub_f32 v21, v21, v22
    v_exp_f32 v20, v20
    v_exp_f32 v21, v21
    v_add_f32 v22, v20, v21
    v_mov_b32 v23, v22
    v_permlane32_swap_b32 v23, v22
    v_add_f32 v22, v22, v23
    v_mov_b32 v23, v22
    v_permlane16_swap_b32 v23, v22
    v_add_f32 v22, v22, v23
    v_add_f32 v22, v22, v22 row_ror:8
    v_rcp_f32 v22, v22
    v_mul_f32 v20, v20, v22
    v_mul_f32 v21, v21, v22""")
    for r in range(12, 16): A(f"v_mov_b32 v{r}, 0")
    wait_flag(6, F_W3, 22)
    trw(L_WO, 4, 48)
    trw(L_W2, 2, 64)
    wait_flag(6, F_ACT, 22)
    A("ds_read_b128 v[72:75], v117\nds_read_b128 v[76:79], v117 offset:64\ns_waitcnt lgkmcnt(0)")
    for kk in range(2):
        A(f"v_mfma_f32_16x16x32_bf16 v[12:15], v[{64+4*kk}:{67+4*kk}], v[{72+4*kk}:{75+4*kk}], v[12:15]")
    stamp(12)
    l = lab("og")
    A(f"""s_mov_b32 s41, 0
    s_branch L_ochk
    {l}:
    buffer_load_dwordx4 v[24:27], v113, s[32:35], s46 offen offset:{B_OP} sc1
    buffer_load_dwordx4 v[28:31], v113, s[32:35], s47 offen offset:{B_OP} sc1
    L_ochk:
    s_waitcnt vmcnt(0)""")
    any_sent(range(24, 32), 22)
    A(f"""s_cbranch_vccz L_ook
    s_add_u32 s41, s41, 1
    s_cmp_lt_u32 s41, {SPIN}
    s_cbranch_scc1 {l}
    L_ook:""")
    stamp(13)
    for i in range(4):
        A(f"v_lshlrev_b32 v{32+2*i}, 16, v{24+i}\nv_and_b32 v{33+2*i}, s36, v{24+i}")
    for i in range(8): A(f"v_mul_f32 v{32+i}, v20, v{32+i}")
    for i in range(4):
        A(f"v_lshlrev_b32 v{40+2*i}, 16, v{28+i}\nv_and_b32 v{41+2*i}, s36, v{28+i}")
    for i in range(8): A(f"v_fmac_f32 v{32+i}, v21, v{40+i}")
    for e in range(4): A(f"v_permlane32_swap_b32 v{32+e}, v{36+e}")
    for e in range(4): A(f"v_add_f32 v{32+e}, v{32+e}, v{36+e}")
    A("""v_permlane16_swap_b32 v32, v34
    v_permlane16_swap_b32 v33, v35
    v_add_f32 v32, v32, v34
    v_add_f32 v33, v33, v35
    v_add_f32 v32, v32, v32 row_ror:8
    v_add_f32 v33, v33, v33 row_ror:8
    v_cvt_pk_bf16_f32 v32, v32, v33
    v_min_u32 v32, s52, v32
    ds_write_b32 v115, v32""")
    l = lab("ol")
    A(f"{l}:")
    for kk in range(4): A(f"ds_read_b128 v[{24+4*kk}:{27+4*kk}], v116 offset:{64*kk}")
    A("s_waitcnt lgkmcnt(0)")
    any_sent(range(24, 40), 22)
    loop_back(l)
    for kk in range(4):
        A(f"v_mfma_f32_16x16x32_bf16 v[12:15], v[{48+4*kk}:{51+4*kk}], v[{24+4*kk}:{27+4*kk}], v[12:15]")
    for r in range(12, 16): A(f"v_min_u32 v{r}, s52, v{r}")
    A(f"""s_mov_b64 exec, s[48:49]
    buffer_store_dwordx4 v[12:15], v118, s[32:35], s38 offen offset:{B_FP} sc1
    s_mov_b64 exec, -1""")
    stamp(14)
    A("s_cmp_eq_u32 s29, 0\ns_cbranch_scc0 L_cend")
    A(f"""s_lshl_b32 s44, s28, 17
    s_lshl_b32 s37, s30, 7
    s_add_u32 s44, s44, s37
    s_add_u32 s45, s44, 32768
    s_add_u32 s46, s44, 65536
    s_add_u32 s47, s44, 98304
    v_and_b32 v16, 1, v0
    v_lshlrev_b32 v16, 10, v16
    v_bfe_u32 v17, v0, 1, 2
    v_lshl_add_u32 v16, v17, 3, v16
    v_lshrrev_b32 v17, 5, v0
    v_lshl_add_u32 v16, v17, 2, v16
    s_lshl_b32 s37, s28, 7
    s_lshl_b32 s39, s30, 5
    s_add_u32 s37, s37, s39
    v_add_u32 v16, s37, v16
    global_load_dword v18, v16, s[4:5]
    s_mov_b32 s41, 0""")
    l = lab("fg")
    A(f"{l}:")
    for i in range(4):
        A(f"buffer_load_dwordx4 v[{24+4*i}:{27+4*i}], v113, s[32:35], s{44+i} offen offset:{B_FP} sc1")
    A("s_waitcnt vmcnt(0)")
    any_sent(range(24, 40), 22)
    A(f"""s_cbranch_vccz L_fok
    s_add_u32 s41, s41, 1
    s_cmp_lt_u32 s41, {SPIN}
    s_cbranch_scc1 {l}
    L_fok:
    v_pk_add_f32 v[24:25], v[24:25], v[28:29]
    v_pk_add_f32 v[26:27], v[26:27], v[30:31]
    v_pk_add_f32 v[32:33], v[32:33], v[36:37]
    v_pk_add_f32 v[34:35], v[34:35], v[38:39]
    v_pk_add_f32 v[24:25], v[24:25], v[32:33]
    v_pk_add_f32 v[26:27], v[26:27], v[34:35]
    v_permlane32_swap_b32 v24, v26
    v_permlane32_swap_b32 v25, v27
    v_add_f32 v24, v24, v26
    v_add_f32 v25, v25, v27
    v_mov_b32 v26, v24
    v_mov_b32 v27, v25
    v_permlane16_swap_b32 v26, v24
    v_permlane16_swap_b32 v27, v25
    v_add_f32 v24, v24, v26
    v_add_f32 v25, v25, v27
    v_add_f32 v24, v24, v24 row_ror:8
    v_add_f32 v25, v25, v25 row_ror:8
    v_lshlrev_b32 v26, 16, v18
    v_and_b32 v27, s36, v18
    v_add_f32 v24, v24, v26
    v_add_f32 v25, v25, v27
    v_cvt_pk_bf16_f32 v24, v24, v25
    s_mov_b32 s40, 0xff
    s_mov_b32 s41, 0xff
    s_mov_b64 exec, s[40:41]
    global_store_dword v16, v24, s[22:23]
    s_mov_b64 exec, -1""")
    A("s_or_b32 s37, s2, s30\ns_cbranch_scc1 L_cend")
    A("ds_read_b32 v20, v6 offset:32\nv_mov_b32 v21, 0\ns_waitcnt lgkmcnt(0)\nv_add_u32 v20, 1, v20\ns_mov_b64 exec, 1\nglobal_store_dword v21, v20, s[26:27] sc1\ns_mov_b64 exec, -1")
    A("L_cend:")
    stamp(15)
    if stamps: A(f"v_writelane_b32 v{VST}, s94, 0")
    dump_stamps()
    A("L_end:\ns_endpgm")
    A(f""".section .rodata,"a"
    .p2align 6
    .amdhsa_kernel {NAME}
    .amdhsa_next_free_vgpr 128
    .amdhsa_next_free_sgpr 102
    .amdhsa_accum_offset 128
    .amdhsa_group_segment_fixed_size 0
    .amdhsa_kernarg_size 96
    .amdhsa_user_sgpr_count 2
    .amdhsa_user_sgpr_kernarg_segment_ptr 1
    .amdhsa_system_sgpr_workgroup_id_x 1
    .amdhsa_float_denorm_mode_32 3
    .end_amdhsa_kernel""")
    return A.finish()

if __name__ == "__main__":
    out = sys.argv[1] if len(sys.argv) > 1 else "k.s"
    open(out, "w").write(gen(stamps=("stamps" in sys.argv)))
```

```python
import sys
from asmlib import Asm

NAME = "parallel_sum__sliding_block_cached__dense_activation_mish__decode_kernel"

L_K, L_V, L_WQ, L_WO, L_W1, L_W2 = 0x0, 0x8000, 0x10000, 0x14000, 0x18000, 0x1A000
L_S = 0x1C000
L_Q, L_P, L_O, L_ML, L_FLG = L_S, L_S + 0x500, L_S + 0x900, L_S + 0xB40, L_S + 0xC00
L_XN, L_ACT = 0x1D000, 0x1D900
LDS_BYTES = 0x1DA00
QSTR, XSTR, OSTR = 272, 1040, 272
F_WQ, F_W1, F_K, F_V, F_W3, F_CLR, F_OK, F_ACT = [4 * i for i in range(8)]
W_F1, W_F2, W_BLK = 0x1000, 0x2000, 0x10000
B_QP, B_HP, B_OP, B_FP, B_LSE = 0, 512, 1024, 2048, 2560
SPIN = 1 << 18

def gen(depth=26, stamps=False, safe=True, fsleep=0, presleep=0, noflag=False, noclear=False, order=('wq', 'w1', 'k', 'v', 'wo', 'w2'), header=""):
    A = Asm()
    uid = [0]
    def lab(p):
        uid[0] += 1
        return f"L_{p}{uid[0]}"
    VST = 127
    def stamp(k):
        if stamps:
            A(f"s_memrealtime s[98:99]\ns_waitcnt lgkmcnt(0)\nv_writelane_b32 v{VST}, s98, {k}")
    def dump_stamps():
        if stamps:
            A(f"""s_lshl_b32 s96, s2, 3
            s_add_u32 s96, s96, s3
            s_lshl_b32 s96, s96, 6
            s_add_u32 s96, s96, 0x8000000
            s_add_u32 s96, s26, s96
            s_addc_u32 s97, s27, 0
            s_mov_b64 exec, 0xffff
            v_mbcnt_lo_u32_b32 v126, -1, 0
            v_lshlrev_b32 v126, 2, v126
            global_store_dword v126, v{VST}, s[96:97]""")
    def loop_back(l):
        if safe:
            o = lab("out")
            A(f"""s_add_u32 s100, s100, 1
            s_bitcmp1_b32 s100, 21
            s_cbranch_scc1 {o}
            s_cbranch_vccnz {l}
            {o}:""")
        else:
            A(f"s_cbranch_vccnz {l}")
    def wait_flag(vaddr, off, vt):
        l = lab("wf")
        A(f"""{l}:
        ds_read_b32 v{vt}, v{vaddr} offset:{off}
        s_waitcnt lgkmcnt(0)
        v_cmp_eq_u32 vcc, -1, v{vt}""")
        loop_back(l)
    def set_flag(vaddr, off, vdata):
        A(f"""s_mov_b64 exec, 1
        ds_write_b32 v{vaddr}, v{vdata} offset:{off}
        s_mov_b64 exec, -1""")
    def any_sent(regs, vt):
        regs = list(regs)
        A(f"v_max3_u32 v{vt}, v{regs[0]}, v{regs[1]}, v{regs[2] if len(regs) > 2 else regs[1]}")
        rest = regs[3:]
        while rest:
            a = rest[0]; b = rest[1] if len(rest) > 1 else rest[0]
            A(f"v_max3_u32 v{vt}, v{vt}, v{a}, v{b}")
            rest = rest[2:]
        A(f"v_cmp_eq_u32 vcc, -1, v{vt}")
    def bf16r(d, s):
        A(f"v_cvt_pk_bf16_f32 v{d}, v{s}, v{s}\nv_lshlrev_b32 v{d}, 16, v{d}")
    def ws_srd(d):
        A(f"""s_add_u32 s{d}, s26, {W_BLK}
        s_addc_u32 s{d+1}, s27, 0
        s_mov_b32 s{d+2}, 0x100000
        s_mov_b32 s{d+3}, 0x00020000""")

    A(header)
    A(f"; @launch grid=(256,1,1) block=(384,1,1) lds={LDS_BYTES}")
    A(f""".amdgcn_target "amdgcn-amd-amdhsa--gfx950"
    .text
    .globl {NAME}
    .p2align 8
    .type {NAME},@function
    {NAME}:""")
    A("""s_load_dwordx16 s[4:19], s[0:1], 0
    s_load_dwordx8 s[20:27], s[0:1], 64
    s_cmp_ge_u32 s2, 256
    s_cbranch_scc1 L_end
    v_lshrrev_b32 v1, 6, v0
    v_and_b32 v0, 63, v0
    v_readfirstlane_b32 s3, v1
    s_and_b32 s28, s2, 7
    s_lshr_b32 s29, s2, 3""")
    if stamps:
        A(f"s_memrealtime s[94:95]\nv_mov_b32 v{VST}, 0")
    A("""s_cmp_eq_u32 s3, 0
    s_cbranch_scc0 L_notloader""")

    A("s_setprio 3")
    A("""v_lshrrev_b32 v2, 3, v0
    v_and_b32 v3, 6, v2
    v_xor_b32 v3, v3, v0
    v_and_b32 v3, 7, v3
    v_lshlrev_b32 v3, 4, v3
    v_lshrrev_b32 v4, 5, v0
    v_and_b32 v5, 3, v2
    v_lshl_add_u32 v6, v4, 3, v5
    v_lshl_add_u32 v10, v6, 13, v3
    v_add_u32 v11, 31744, v10
    s_mov_b32 s34, 4194304
    s_mov_b32 s35, 0x00020000
    s_movk_i32 s60, 0x800
    s_lshr_b32 s57, s29, 3
    s_lshl_b32 s57, s57, 20
    s_lshl_b32 s58, s28, 10
    s_add_u32 s57, s57, s58
    s_and_b32 s58, s29, 7
    s_lshl_b32 s56, s58, 11
    s_lshl_b32 s58, s58, 7
    s_add_u32 s57, s57, s58
    s_waitcnt lgkmcnt(0)
    s_mov_b32 s32, s10
    s_mov_b32 s33, s11""")
    info = dict(wq=(8, 32, 10, L_WQ, F_WQ), w1=(4, 36, 12, L_W1, F_W1), k=(16, 40, 14, L_K, F_K), v=(16, 44, 14, L_V, F_V),
                wo=(8, 48, 16, L_WO, None), w2=(4, 52, 18, L_W2, None))
    last = order[-1]
    flag_at = {}
    cum = 0
    for m in order:
        cum += 2 * info[m][0]
        f = info[m][4]
        if m in ('wo', 'w2'):
            if all(order.index(z) <= order.index(m) for z in ('wo', 'w2')): f = F_W3
        if f is not None: flag_at[cum] = f
    def setup(m):
        if m == 'wq': return
        if m == 'w1':
            A("""v_mul_u32_u24 v12, 3584, v6
            v_add_u32 v12, v12, v3
            v_add_u32 v13, 13312, v12
            s_mov_b32 s36, s16
            s_mov_b32 s37, s17
            s_cmp_lt_u32 s29, 28
            s_cselect_b32 s38, 1835008, 0
            s_mov_b32 s39, 0x00020000
            s_mul_i32 s57, s28, 229376
            s_lshl_b32 s58, s29, 7
            s_add_u32 s57, s57, s58
            s_and_b32 s56, s29, 3
            s_lshl_b32 s56, s56, 11""")
        elif m in ('k', 'v'):
            p = 6 if m == 'k' else 8
            d = info[m][1]
            A(f"""v_lshrrev_b32 v7, 4, v0
            v_lshlrev_b32 v8, 1, v7
            v_xor_b32 v8, v8, v0
            v_and_b32 v8, 15, v8
            v_lshlrev_b32 v8, 4, v8
            v_lshl_add_u32 v14, v7, 8, v8
            v_xor_b32 v15, 128, v14
            s_mov_b32 s{d}, s{p}
            s_mov_b32 s{d+1}, s{p+1}
            s_mov_b32 s{d+2}, 33554432
            s_mov_b32 s{d+3}, 0x00020000
            s_lshr_b32 s57, s29, 4
            s_lshl_b32 s57, s57, 3
            s_add_u32 s57, s57, s28
            s_lshl_b32 s57, s57, 21
            s_and_b32 s58, s29, 15
            s_lshl_b32 s56, s58, 11
            s_lshl_b32 s58, s58, 15
            s_add_u32 s57, s57, s58
            s_add_u32 s57, s57, 1572864""")
        elif m == 'wo':
            A("""v_lshl_add_u32 v7, v4, 7, v5
            v_lshl_add_u32 v16, v7, 10, v3
            v_add_u32 v17, 15360, v16
            s_mov_b32 s48, s12
            s_mov_b32 s49, s13
            s_mov_b32 s50, 4194304
            s_mov_b32 s51, 0x00020000
            s_lshr_b32 s57, s29, 2
            s_lshl_b32 s57, s57, 19
            s_and_b32 s58, s29, 3
            s_lshl_b32 s58, s58, 15
            s_add_u32 s57, s57, s58
            s_lshl_b32 s58, s28, 7
            s_add_u32 s57, s57, s58
            s_and_b32 s56, s29, 7
            s_lshl_b32 s56, s56, 11""")
        elif m == 'w2':
            A("""v_lshl_add_u32 v18, v6, 10, v3
            v_add_u32 v19, 3072, v18
            s_mov_b32 s52, s20
            s_mov_b32 s53, s21
            s_cmp_lt_u32 s29, 28
            s_cselect_b32 s54, 1835008, 0
            s_mov_b32 s55, 0x00020000
            s_lshl_b32 s57, s29, 16
            s_lshl_b32 s58, s28, 7
            s_add_u32 s57, s57, s58
            s_and_b32 s56, s29, 3
            s_lshl_b32 s56, s56, 11""")
    issued = 0
    done_barrier = False
    flagged = set()
    def landed(n):
        for c in sorted(flag_at):
            if c <= n and c not in flagged:
                flagged.add(c)
                set_flag(20, flag_at[c], 20)
                stamp(2 + len(flagged))
    for m in order:
        npair, srd, vo, lbase, _ = info[m]
        setup(m)
        for p in range(npair):
            if issued + 2 > depth:
                if not done_barrier:
                    A(f"v_mov_b32 v20, {L_FLG}\ns_barrier")
                    stamp(1)
                    done_barrier = True
                A(f"s_waitcnt vmcnt({depth - 2})")
                landed(issued - (depth - 2))
            A(f"s_add_u32 m0, s56, {lbase}" if lbase else "s_mov_b32 m0, s56")
            if m == 'wq': A("s_lshl_b32 s58, s56, 6\ns_add_u32 s58, s58, s57")
            elif m == 'w1': A("s_mul_i32 s58, s56, 28\ns_add_u32 s58, s58, s57")
            elif m == 'w2': A("s_lshl_b32 s58, s56, 3\ns_add_u32 s58, s58, s57")
            elif m == 'wo': A("s_and_b32 s58, s56, s60\ns_lshl_b32 s58, s58, 7\ns_and_b32 s59, s56, 0x3000\ns_add_u32 s58, s58, s59\ns_add_u32 s58, s58, s57")
            else: A("s_add_u32 s58, s56, s57")
            A(f"buffer_load_dwordx4 v{vo}, s[{srd}:{srd+3}], s58 offen nt lds")
            A(f"buffer_load_dwordx4 v{vo+1}, s[{srd}:{srd+3}], s58 offen offset:1024 nt lds")
            issued += 2
            if p != npair - 1:
                A(f"s_add_u32 s56, s56, s60\ns_and_b32 s56, s56, {npair * 2048 - 1}")
    for c in sorted(flag_at):
        if c not in flagged:
            A(f"s_waitcnt vmcnt({issued - c})")
            landed(c)
    if stamps: A(f"v_writelane_b32 v{VST}, s94, 0")
    dump_stamps()
    A("s_endpgm")

    A("L_notloader:")
    A("s_cmp_eq_u32 s3, 1\ns_cbranch_scc0 L_compute")
    A("""v_lshlrev_b32 v2, 4, v0
    v_mov_b32 v4, -1
    v_mov_b32 v5, -1
    v_mov_b32 v6, -1
    v_mov_b32 v7, -1
    s_lshl_b32 s30, s28, 5
    s_add_u32 s30, s30, s29
    s_lshl_b32 s31, s30, 12
    s_waitcnt lgkmcnt(0)
    s_load_dword s5, s[26:27], 0""")
    if stamps: A(f"v_writelane_b32 v{VST}, s94, 0")
    A("s_getreg_b32 s4, hwreg(HW_REG_XCC_ID)")
    ws_srd(8)
    if not noclear: A(f"""buffer_store_dwordx4 v[4:7], v2, s[8:11], s31 offen sc1
    buffer_store_dwordx4 v[4:7], v2, s[8:11], s31 offen offset:1024 sc1
    buffer_store_dwordx4 v[4:7], v2, s[8:11], s31 offen offset:2048 sc1""")
    A(f"""s_barrier
    v_mov_b32 v20, {L_FLG}
    s_and_b32 s4, s4, 15
    s_lshl_b32 s6, s28, 7
    s_add_u32 s6, s6, {W_F1}
    s_add_u32 s12, s26, s6
    s_addc_u32 s13, s27, 0
    s_lshr_b32 s6, s29, 2
    s_lshl_b32 s6, s6, 7
    s_add_u32 s6, s6, {W_F1}
    s_add_u32 s14, s26, s6
    s_addc_u32 s15, s27, 0
    s_lshl_b32 s6, s29, 5
    s_add_u32 s6, s6, {W_F2}
    s_add_u32 s16, s26, s6
    s_addc_u32 s17, s27, 0
    s_lshl_b32 s6, s29, 2
    v_mov_b32 v8, s6
    s_lshl_b32 s6, s28, 2
    v_mov_b32 v9, s6
    s_waitcnt lgkmcnt(0)
    s_mul_i32 s20, s5, 0x9E3779B1
    s_add_u32 s20, s20, 0x7F4A7C15
    s_and_b32 s20, s20, -16
    s_or_b32 s21, s20, s4
    v_mov_b32 v10, s21
    s_waitcnt vmcnt(0)""")
    set_flag(20, F_CLR, 20)
    A("""s_mov_b64 exec, 1
    global_store_dword v8, v10, s[12:13] sc1
    global_store_dword v9, v10, s[16:17] sc1
    s_mov_b64 exec, -1""")
    stamp(1)
    A("""v_and_b32 v11, 7, v0
    v_lshlrev_b32 v11, 2, v11
    v_lshrrev_b32 v12, 5, v0
    v_lshl_add_u32 v11, v12, 1, v11
    v_bfe_u32 v12, v0, 4, 1
    v_add_u32 v11, v11, v12
    v_bfe_u32 v12, v0, 3, 1
    v_lshl_add_u32 v11, v12, 5, v11
    s_min_u32 s6, s29, 27
    s_lshl_b32 s6, s6, 6
    v_add_u32 v13, s6, v11
    v_lshlrev_b32 v13, 1, v13
    global_load_ushort v14, v13, s[18:19]
    s_mov_b32 s7, 0""")
    l = lab("fl")
    if presleep: A(f"s_sleep {presleep}")
    if noflag: A("s_mov_b32 s6, 0\ns_branch L_flagsok")
    A(f"{l}:")
    if fsleep: A(f"s_sleep {fsleep}")
    A(f"""s_load_dwordx16 s[32:47], s[12:13], 0 glc
    s_load_dwordx16 s[48:63], s[12:13], 64 glc
    s_load_dwordx16 s[64:79], s[14:15], 0 glc
    s_load_dwordx16 s[80:95], s[14:15], 64 glc
    s_waitcnt lgkmcnt(0)""")
    def chains(lo, n, first):
        for i in range(0, n, 2):
            r = f"s[{lo+i}:{lo+i+1}]"
            if first and i == 0:
                A(f"s_mov_b64 s[22:23], {r}\ns_mov_b64 s[24:25], {r}")
            else:
                A(f"s_and_b64 s[22:23], s[22:23], {r}\ns_or_b64 s[24:25], s[24:25], {r}")
    def fcheck(ok, l):
        A(f"""s_and_b32 s22, s22, s23
        s_or_b32 s24, s24, s25
        s_and_b32 s22, s22, -16
        s_and_b32 s24, s24, -16
        s_xor_b32 s22, s22, s20
        s_xor_b32 s24, s24, s20
        s_or_b32 s22, s22, s24
        s_cbranch_scc0 {ok}
        s_add_u32 s7, s7, 1
        s_cmp_lt_u32 s7, {SPIN}
        s_cbranch_scc1 {l}
        {ok}:""")
    chains(32, 32, True)
    A("""s_and_b32 s22, s22, s23
    s_or_b32 s24, s24, s25
    s_cmp_eq_u32 s22, s24
    s_cselect_b32 s6, 1, 0
    s_mov_b32 s23, s22
    s_mov_b32 s25, s24""")
    chains(64, 32, False)
    fcheck("L_flagsok", l)
    A("v_mov_b32 v15, s6")
    set_flag(20, F_OK, 15)
    stamp(2)
    A("v_mov_b32 v15, s5")
    A(f"""v_mov_b32 v40, 0
    v_mov_b32 v41, 0
    s_cmp_lt_u32 s29, 28
    s_cbranch_scc0 L_actw
    v_lshrrev_b32 v16, 3, v0
    v_lshlrev_b32 v16, 17, v16
    v_and_b32 v17, 7, v0
    v_lshl_add_u32 v16, v17, 4, v16
    s_lshl_b32 s31, s29, 12
    s_mov_b32 s7, 0""")
    l = lab("f2")
    A(f"""{l}:
    s_load_dwordx8 s[32:39], s[16:17], 0 glc
    s_waitcnt lgkmcnt(0)""")
    chains(32, 8, True)
    fcheck("L_f2ok", l)
    A("s_mov_b32 s7, 0")
    l = lab("hp")
    A(f"{l}:")
    for i in range(4):
        b, half = i & 1, i >> 1
        A(f"buffer_load_dwordx4 v[{24+4*i}:{27+4*i}], v16, s[8:11], s31 offen offset:{B_HP + b*256 + half*128} sc1")
    A("s_waitcnt vmcnt(0)")
    any_sent(range(24, 40), 18)
    A(f"""s_cbranch_vccz L_hpok
    s_sleep 8
    s_add_u32 s7, s7, 1
    s_cmp_lt_u32 s7, {SPIN}
    s_cbranch_scc1 {l}
    L_hpok:""")
    stamp(3)
    for i in range(4):
        r = 24 + 4 * i
        A(f"""v_permlane32_swap_b32 v{r}, v{r+2}
        v_permlane32_swap_b32 v{r+1}, v{r+3}
        v_add_f32 v{r}, v{r}, v{r+2}
        v_add_f32 v{r+1}, v{r+1}, v{r+3}""")
    for i in range(4):
        r = 24 + 4 * i
        A(f"v_permlane16_swap_b32 v{r}, v{r+1}\nv_add_f32 v{r}, v{r}, v{r+1}")
    for i in range(4):
        r = 24 + 4 * i
        A(f"v_add_f32 v{r}, v{r}, v{r} row_ror:8")
    A("""v_and_b32 v18, 8, v0
    v_cmp_eq_u32 vcc, 0, v18
    v_cndmask_b32 v40, v32, v24, vcc
    v_cndmask_b32 v41, v36, v28, vcc
    v_lshlrev_b32 v14, 16, v14
    s_mov_b32 s32, 0x3fb8aa3b
    s_mov_b32 s33, 0x3f317218""")
    for h in (40, 41):
        t = 44
        bf16r(h, h)
        A(f"v_add_f32 v{h}, v{h}, v14")
        bf16r(h, h)
        A(f"v_mul_f32 v{t}, s32, v{h}\nv_exp_f32 v{t}, -abs(v{t})")
        bf16r(t, t)
        A(f"""v_add_f32 v{t+1}, 1.0, v{t}
        v_log_f32 v{t+2}, v{t+1}
        v_add_f32 v{t+3}, -1.0, v{t+1}
        v_rcp_f32 v{t+3}, v{t+3}
        v_mul_f32 v{t+2}, s33, v{t+2}
        v_mul_f32 v{t+2}, v{t+2}, v{t}
        v_mul_f32 v{t+2}, v{t+2}, v{t+3}
        v_cmp_eq_f32 vcc, 1.0, v{t+1}
        v_cndmask_b32 v{t+2}, v{t+2}, v{t}, vcc""")
        bf16r(t+2, t+2)
        A(f"v_max_f32 v{t+1}, 0, v{h}\nv_add_f32 v{t+2}, v{t+2}, v{t+1}")
        bf16r(t+2, t+2)
        A(f"""v_mul_f32 v{t}, -2.0, v{t+2}
        v_mul_f32 v{t+1}, s32, v{t}
        v_exp_f32 v{t+1}, v{t+1}
        v_log_f32 v{t+3}, v{t+1}
        v_add_f32 v{t+4}, -1.0, v{t+1}
        v_mul_f32 v{t+3}, s33, v{t+3}
        v_rcp_f32 v{t+3}, v{t+3}
        v_mul_f32 v{t+5}, v{t+4}, v{t}
        v_mul_f32 v{t+5}, v{t+5}, v{t+3}
        v_cmp_eq_f32 vcc, 1.0, v{t+1}
        v_cndmask_b32 v{t+5}, v{t+5}, v{t}, vcc
        v_cmp_gt_f32 vcc, 0.5, v{t+1}
        v_cndmask_b32 v{t+5}, v{t+5}, v{t+4}, vcc
        v_add_f32 v{t+4}, 2.0, v{t+5}
        v_rcp_f32 v{t+4}, v{t+4}
        v_mul_f32 v{t+5}, v{t+5}, v{t+4}
        v_sub_f32 v{t+5}, 0, v{t+5}""")
        bf16r(t+5, t+5)
        A(f"v_mul_f32 v{h}, v{h}, v{t+5}\nv_cvt_pk_bf16_f32 v{h}, v{h}, v{h}")
    A(f"""L_actw:
    v_lshlrev_b32 v11, 1, v11
    v_add_u32 v11, {L_ACT}, v11
    ds_write_b16 v11, v40
    ds_write_b16 v11, v41 offset:128""")
    set_flag(20, 32, 15)
    set_flag(20, F_ACT, 20)
    stamp(4)
    dump_stamps()
    A("s_waitcnt lgkmcnt(0)\ns_endpgm")

    A("L_compute:")
    A(f"""s_mov_b32 s100, 0
    s_sub_u32 s30, s3, 2
    v_lshlrev_b32 v2, 4, v0
    s_lshl_b32 s31, s30, 10
    s_add_u32 s31, s31, {L_S}
    v_add_u32 v3, s31, v2
    v_mov_b32 v4, -1
    v_mov_b32 v5, -1
    v_mov_b32 v6, -1
    v_mov_b32 v7, -1
    ds_write_b128 v3, v[4:7]
    s_waitcnt lgkmcnt(0)
    global_load_dwordx4 v[8:11], v2, s[4:5]
    global_load_dwordx4 v[12:15], v2, s[4:5] offset:1024
    s_barrier""")
    ws_srd(32)
    A(f"""s_mov_b32 s36, 0xffff0000
    v_and_b32 v4, 15, v0
    v_lshrrev_b32 v5, 4, v0
    v_mov_b32 v6, {L_FLG}
    v_bfe_u32 v16, v0, 2, 2
    v_and_b32 v17, 1, v5
    v_lshl_add_u32 v16, v17, 2, v16
    v_bfe_u32 v18, v0, 1, 1
    s_lshl_b32 s37, s30, 1
    v_add_u32 v18, s37, v18
    v_and_b32 v19, 6, v16
    v_xor_b32 v18, v18, v19
    v_lshlrev_b32 v18, 4, v18
    v_and_b32 v19, 1, v0
    v_lshl_add_u32 v18, v19, 3, v18
    v_lshrrev_b32 v17, 5, v0
    v_lshl_add_u32 v17, v17, 4, v16
    v_lshl_add_u32 v7, v17, 7, v18
    v_add_u32 v7, {L_WQ}, v7
    v_bfe_u32 v18, v0, 1, 1
    s_lshl_b32 s37, s30, 2
    v_add_u32 v18, s37, v18
    v_lshlrev_b32 v17, 1, v16
    v_xor_b32 v18, v18, v17
    v_lshlrev_b32 v18, 4, v18
    v_lshl_add_u32 v18, v19, 3, v18
    v_lshrrev_b32 v17, 2, v0
    v_lshl_add_u32 v100, v17, 8, v18
    v_xor_b32 v101, 32, v100
    v_and_b32 v17, 7, v0
    v_lshlrev_b32 v17, 1, v17
    v_xor_b32 v17, v17, v5
    v_lshlrev_b32 v17, 4, v17
    v_lshl_add_u32 v17, v4, 8, v17
    s_lshl_b32 s37, s30, 13
    v_add_u32 v102, s37, v17
    v_xor_b32 v103, 64, v102
    v_xor_b32 v104, 128, v102
    v_xor_b32 v105, 192, v102
    v_and_b32 v17, 1, v0
    v_mul_u32_u24 v18, {XSTR}, v17
    v_lshl_add_u32 v106, v5, 4, v18
    s_lshl_b32 s37, s30, 6
    v_lshlrev_b32 v18, 8, v4
    v_lshl_add_u32 v18, v5, 4, v18
    v_add_u32 v107, s37, v18
    s_lshl_b32 s38, s28, 5
    s_add_u32 s38, s38, s29
    s_lshl_b32 s38, s38, 12
    v_add_u32 v3, {L_XN}, v2""")
    stamp(1)
    A("s_waitcnt vmcnt(0)")
    stamp(2)
    for b in range(2):
        for i in range(4):
            A(f"v_lshlrev_b32 v{16+8*b+2*i}, 16, v{8+4*b+i}\nv_and_b32 v{17+8*b+2*i}, s36, v{8+4*b+i}")
    def red2(a, b, t):
        A(f"""v_permlane32_swap_b32 v{a}, v{b}
        v_add_f32 v{a}, v{a}, v{b}
        v_mov_b32 v{t}, v{a}
        v_permlane16_swap_b32 v{t}, v{a}
        v_add_f32 v{a}, v{a}, v{t}
        v_add_f32 v{a}, v{a}, v{a} row_ror:8
        v_add_f32 v{a}, v{a}, v{a} row_ror:4
        v_add_f32 v{a}, v{a}, v{a} row_ror:2
        v_add_f32 v{a}, v{a}, v{a} row_ror:1""")
    for b in range(2):
        f = 16 + 8 * b
        A(f"""v_pk_add_f32 v[{32+4*b}:{33+4*b}], v[{f}:{f+1}], v[{f+2}:{f+3}]
        v_pk_add_f32 v[{34+4*b}:{35+4*b}], v[{f+4}:{f+5}], v[{f+6}:{f+7}]""")
    for b in range(2):
        A(f"v_pk_add_f32 v[{32+4*b}:{33+4*b}], v[{32+4*b}:{33+4*b}], v[{34+4*b}:{35+4*b}]")
    A("v_add_f32 v32, v32, v33\nv_add_f32 v36, v36, v37")
    red2(32, 36, 33)
    A("""v_mul_f32 v32, 0x3b000000, v32
    v_readlane_b32 s40, v32, 0
    v_readlane_b32 s42, v32, 32""")
    for b in range(2):
        f = 16 + 8 * b
        for i in range(4):
            A(f"v_pk_add_f32 v[{40+8*b+2*i}:{41+8*b+2*i}], v[{f+2*i}:{f+2*i+1}], s[{40+2*b}:{41+2*b}] op_sel_hi:[1,0] neg_lo:[0,1] neg_hi:[0,1]")
    for b in range(2):
        d = 40 + 8 * b
        A(f"v_pk_mul_f32 v[{34+2*b}:{35+2*b}], v[{d}:{d+1}], v[{d}:{d+1}]")
    for i in range(1, 4):
        for b in range(2):
            d = 40 + 8 * b + 2 * i
            A(f"v_pk_fma_f32 v[{34+2*b}:{35+2*b}], v[{d}:{d+1}], v[{d}:{d+1}], v[{34+2*b}:{35+2*b}]")
    A("v_add_f32 v34, v34, v35\nv_add_f32 v36, v36, v37")
    red2(34, 36, 33)
    A("v_mul_f32 v34, 0x3b000000, v34")
    bf16r(34, 34)
    A("v_add_f32 v34, 0x3727c5ac, v34")
    bf16r(34, 34)
    A("v_sqrt_f32 v34, v34")
    bf16r(34, 34)
    A("v_rcp_f32 v34, v34")
    bf16r(32, 32)
    A("""v_readlane_b32 s40, v32, 0
    v_readlane_b32 s42, v32, 32
    v_readlane_b32 s44, v34, 0
    v_readlane_b32 s46, v34, 32""")
    for b in range(2):
        f = 16 + 8 * b
        for i in range(4):
            A(f"v_pk_add_f32 v[{f+2*i}:{f+2*i+1}], v[{f+2*i}:{f+2*i+1}], s[{40+2*b}:{41+2*b}] op_sel_hi:[1,0] neg_lo:[0,1] neg_hi:[0,1]")
    for i in range(8):
        A(f"v_cvt_pk_bf16_f32 v{8+i}, v{16+2*i}, v{17+2*i}")
    for i in range(8):
        A(f"v_lshlrev_b32 v{16+2*i}, 16, v{8+i}\nv_and_b32 v{17+2*i}, s36, v{8+i}")
    for b in range(2):
        f = 16 + 8 * b
        for i in range(4):
            A(f"v_pk_mul_f32 v[{f+2*i}:{f+2*i+1}], v[{f+2*i}:{f+2*i+1}], s[{44+2*b}:{45+2*b}] op_sel_hi:[1,0]")
    for i in range(8):
        A(f"v_cvt_pk_bf16_f32 v{8+i}, v{16+2*i}, v{17+2*i}")
    A(f"""ds_write_b128 v3, v[8:11]
    ds_write_b128 v3, v[12:15] offset:{XSTR}
    s_lshr_b32 s37, s29, 3
    s_lshl_b32 s37, s37, 8
    s_add_u32 s37, s37, {L_XN}
    v_add_u32 v17, s37, v106
    s_lshl_b32 s37, s28, 7
    s_add_u32 s37, s37, {L_XN}
    v_add_u32 v18, s37, v106
    s_waitcnt lgkmcnt(0)""")
    for kk in range(4): A(f"ds_read_b128 v[{24+4*kk}:{27+4*kk}], v17 offset:{64*kk}")
    for kk in range(2): A(f"ds_read_b128 v[{40+4*kk}:{43+4*kk}], v18 offset:{64*kk}")
    A("v_mov_b32 v8, 0\nv_mov_b32 v9, 0\nv_mov_b32 v10, 0\nv_mov_b32 v11, 0\nv_mov_b32 v12, 0\nv_mov_b32 v13, 0\nv_mov_b32 v14, 0\nv_mov_b32 v15, 0")
    A("s_mov_b32 s48, 0x00030003\ns_mov_b32 s49, 0x00030003\ns_mov_b32 s50, 0x000f000f\ns_mov_b32 s51, 0x000f000f\ns_mov_b32 s52, -2")
    stamp(3)
    wait_flag(6, F_CLR, 16)
    wait_flag(6, F_WQ, 16)
    stamp(4)
    def trw(base, nk, r0):
        for kk in range(nk):
            for u in range(2):
                A(f"ds_read_b64_tr_b16 v[{r0+4*kk+2*u}:{r0+4*kk+2*u+1}], v7 offset:{base - L_WQ + kk*4096 + u*1024}")
    trw(L_WQ, 4, 48)
    A("s_waitcnt lgkmcnt(0)")
    for kk in range(4):
        A(f"v_mfma_f32_16x16x32_bf16 v[8:11], v[{48+4*kk}:{51+4*kk}], v[{24+4*kk}:{27+4*kk}], v[8:11]")
    for r in range(8, 12): A(f"v_min_u32 v{r}, s52, v{r}")
    A(f"""s_mov_b64 exec, s[48:49]
    buffer_store_dwordx4 v[8:11], v107, s[32:35], s38 offen offset:{B_QP} sc1
    s_mov_b64 exec, -1""")
    stamp(5)
    wait_flag(6, F_W1, 16)
    trw(L_W1, 2, 48)
    A("s_waitcnt lgkmcnt(0)")
    for kk in range(2):
        A(f"v_mfma_f32_16x16x32_bf16 v[12:15], v[{48+4*kk}:{51+4*kk}], v[{40+4*kk}:{43+4*kk}], v[12:15]")
    for r in range(12, 16): A(f"v_min_u32 v{r}, s52, v{r}")
    A(f"""s_mov_b64 exec, s[48:49]
    buffer_store_dwordx4 v[12:15], v107, s[32:35], s38 offen offset:{B_HP} sc1
    s_mov_b64 exec, -1""")
    A(f"""v_lshlrev_b32 v16, 15, v5
    v_lshl_add_u32 v16, v4, 4, v16
    s_lshl_b32 s39, s28, 17
    s_lshl_b32 s37, s30, 13
    s_add_u32 s39, s39, s37
    s_lshr_b32 s37, s29, 4
    s_lshl_b32 s37, s37, 8
    s_add_u32 s39, s39, s37
    s_add_u32 s40, s39, 4096
    v_lshrrev_b32 v17, 5, v0
    v_lshlrev_b32 v17, 7, v17
    v_lshl_add_u32 v17, v4, 3, v17
    v_and_b32 v18, 1, v5
    v_lshl_add_u32 v17, v18, 2, v17
    s_mul_i32 s37, s30, {QSTR}
    s_add_u32 s37, s37, {L_Q}
    v_add_u32 v17, s37, v17
    v_and_b32 v19, 3, v0
    v_mul_u32_u24 v18, {QSTR}, v19
    v_lshl_add_u32 v18, v5, 4, v18
    v_add_u32 v18, {L_Q}, v18
    v_lshlrev_b32 v20, 6, v5
    v_lshl_add_u32 v20, v19, 4, v20
    v_add_u32 v108, {L_P}, v20
    s_lshl_b32 s37, s30, 8
    v_add_u32 v109, s37, v20
    v_add_u32 v110, s37, v108
    v_lshlrev_b32 v111, 5, v19
    v_add_u32 v111, {L_ML}, v111
    s_lshl_b32 s37, s30, 3
    v_add_u32 v112, s37, v111
    s_mov_b32 s41, 0""")
    wait_flag(6, F_OK, 20)
    A("v_readfirstlane_b32 s53, v20")
    stamp(6)
    l = lab("qg")
    A(f"""{l}:
    buffer_load_dwordx4 v[24:27], v16, s[32:35], s39 offen offset:{B_QP} sc1
    buffer_load_dwordx4 v[28:31], v16, s[32:35], s40 offen offset:{B_QP} sc1
    s_waitcnt vmcnt(0)""")
    any_sent(range(24, 32), 20)
    A(f"""s_cbranch_vccz L_qok
    s_add_u32 s41, s41, 1
    s_cmp_lt_u32 s41, {SPIN}
    s_cbranch_scc1 {l}
    L_qok:""")
    stamp(7)
    for r in range(4): A(f"v_permlane32_swap_b32 v{24+r}, v{28+r}")
    for r in range(4): A(f"v_add_f32 v{24+r}, v{24+r}, v{28+r}")
    A("""v_permlane16_swap_b32 v24, v26
    v_permlane16_swap_b32 v25, v27
    v_add_f32 v24, v24, v26
    v_add_f32 v25, v25, v27
    v_cvt_pk_bf16_f32 v24, v24, v25
    v_min_u32 v24, s52, v24
    ds_write_b32 v17, v24""")
    wait_flag(6, F_K, 20)
    for t in range(2):
        for kk in range(4):
            A(f"ds_read_b128 v[{48+16*t+4*kk}:{51+16*t+4*kk}], v{102+kk} offset:{L_K + t*4096}")
    for r in range(8, 16): A(f"v_mov_b32 v{r}, 0")
    l = lab("ql")
    A(f"{l}:")
    for kk in range(4): A(f"ds_read_b128 v[{24+4*kk}:{27+4*kk}], v18 offset:{64*kk}")
    A("s_waitcnt lgkmcnt(0)")
    any_sent(range(24, 40), 20)
    loop_back(l)
    stamp(8)
    for kk in range(4):
        for t in range(2):
            A(f"v_mfma_f32_16x16x32_bf16 v[{8+4*t}:{11+4*t}], v[{48+16*t+4*kk}:{51+16*t+4*kk}], v[{24+4*kk}:{27+4*kk}], v[{8+4*t}:{11+4*t}]")
    A("s_mov_b32 s42, 0x3db504f3\ns_mov_b32 s43, 0x3fb8aa3b")
    for rnd in range(2):
        for i in range(4): A(f"v_cvt_pk_bf16_f32 v{24+i}, v{8+2*i}, v{9+2*i}")
        for i in range(4): A(f"v_lshlrev_b32 v{8+2*i}, 16, v{24+i}\nv_and_b32 v{9+2*i}, s36, v{24+i}")
        if rnd == 0:
            for i in range(8): A(f"v_mul_f32 v{8+i}, s42, v{8+i}")
    A("""v_max3_f32 v24, v8, v9, v10
    v_max3_f32 v25, v11, v12, v13
    v_max3_f32 v24, v24, v14, v15
    v_max_f32 v24, v24, v25
    v_mov_b32 v25, v24
    v_permlane32_swap_b32 v25, v24
    v_max_f32 v24, v24, v25
    v_mov_b32 v25, v24
    v_permlane16_swap_b32 v25, v24
    v_max_f32 v24, v24, v25
    v_mul_f32 v24, s43, v24""")
    for i in range(8): A(f"v_fma_f32 v{8+i}, v{8+i}, s43, -v24")
    for i in range(8): A(f"v_exp_f32 v{8+i}, v{8+i}")
    A("""v_add_f32 v25, v8, v9
    v_add_f32 v26, v10, v11
    v_add_f32 v27, v12, v13
    v_add_f32 v28, v14, v15
    v_add_f32 v25, v25, v26
    v_add_f32 v27, v27, v28
    v_add_f32 v25, v25, v27
    v_mov_b32 v26, v25
    v_permlane32_swap_b32 v26, v25
    v_add_f32 v25, v25, v26
    v_mov_b32 v26, v25
    v_permlane16_swap_b32 v26, v25
    v_add_f32 v25, v25, v26
    v_min_u32 v26, s52, v24
    v_min_u32 v27, s52, v25
    s_mov_b64 exec, 15
    ds_write_b64 v112, v[26:27]
    s_mov_b64 exec, -1""")
    l = lab("ml")
    A(f"""{l}:
    ds_read_b128 v[28:31], v111
    ds_read_b128 v[32:35], v111 offset:16
    s_waitcnt lgkmcnt(0)""")
    any_sent(range(28, 36), 20)
    loop_back(l)
    A("""v_max3_f32 v26, v28, v30, v32
    v_max_f32 v26, v26, v34
    v_sub_f32 v28, v28, v26
    v_sub_f32 v30, v30, v26
    v_sub_f32 v32, v32, v26
    v_sub_f32 v34, v34, v26
    v_sub_f32 v24, v24, v26
    v_exp_f32 v28, v28
    v_exp_f32 v30, v30
    v_exp_f32 v32, v32
    v_exp_f32 v34, v34
    v_exp_f32 v24, v24
    v_mul_f32 v27, v28, v29
    v_fmac_f32 v27, v30, v31
    v_fmac_f32 v27, v32, v33
    v_fmac_f32 v27, v34, v35
    v_rcp_f32 v28, v27
    v_log_f32 v29, v27
    v_mul_f32 v24, v24, v28""")
    for i in range(8): A(f"v_mul_f32 v{8+i}, v{8+i}, v24")
    for i in range(4): A(f"v_cvt_pk_bf16_f32 v{8+i}, v{8+2*i}, v{9+2*i}")
    for i in range(4): A(f"v_min_u32 v{8+i}, s52, v{8+i}")
    A(f"""v_add_f32 v29, v29, v26
    v_min_u32 v29, s52, v29
    s_mov_b64 exec, s[50:51]
    ds_write_b128 v110, v[8:11]
    s_mov_b64 exec, -1
    s_cmp_eq_u32 s30, 0
    s_cbranch_scc0 L_nolse
    v_lshlrev_b32 v28, 2, v0
    s_mov_b64 exec, 15
    buffer_store_dword v29, v28, s[32:35], s38 offen offset:{B_LSE} sc1
    s_mov_b64 exec, -1
    L_nolse:""")
    A(f"""v_lshrrev_b32 v16, 3, v0
    v_lshlrev_b32 v16, 12, v16
    v_and_b32 v17, 7, v0
    v_lshl_add_u32 v113, v17, 4, v16
    v_lshl_add_u32 v114, v19, 2, v16
    s_lshr_b32 s44, s29, 2
    s_lshl_b32 s44, s44, 17
    s_and_b32 s37, s30, 1
    s_lshl_b32 s37, s37, 16
    s_add_u32 s44, s44, s37
    s_add_u32 s45, s44, 32768
    s_and_b32 s37, s29, 3
    s_lshl_b32 s37, s37, 8
    s_lshr_b32 s39, s30, 1
    s_lshl_b32 s39, s39, 7
    s_add_u32 s37, s37, s39
    s_add_u32 s46, s44, s37
    s_add_u32 s47, s45, s37
    v_lshlrev_b32 v115, 4, v17
    v_lshl_add_u32 v115, v5, 2, v115
    s_and_b32 s37, s30, 1
    s_mul_i32 s37, s37, {OSTR}
    s_add_u32 s37, s37, s39
    s_add_u32 s37, s37, {L_O}
    v_add_u32 v115, s37, v115
    v_and_b32 v17, 1, v0
    v_mul_u32_u24 v116, {OSTR}, v17
    v_lshl_add_u32 v116, v5, 4, v116
    v_add_u32 v116, {L_O}, v116
    v_lshlrev_b32 v117, 7, v17
    v_lshl_add_u32 v117, v5, 4, v117
    v_add_u32 v117, {L_ACT}, v117
    v_lshlrev_b32 v118, 5, v5
    v_lshl_add_u32 v118, v4, 4, v118
    s_lshl_b32 s37, s30, 7
    v_add_u32 v118, s37, v118""")
    for r in range(12, 20): A(f"v_mov_b32 v{r}, 0")
    l = lab("pl")
    A(f"{l}:")
    for kk in range(4): A(f"ds_read_b128 v[{24+4*kk}:{27+4*kk}], v108 offset:{256*kk}")
    A("s_waitcnt lgkmcnt(0)")
    any_sent(range(24, 40), 20)
    loop_back(l)
    stamp(9)
    wait_flag(6, F_V, 20)
    stamp(10)
    for kk in range(4):
        for t in range(2):
            for u in range(2):
                r = 48 + 16 * t + 4 * kk + 2 * u
                A(f"ds_read_b64_tr_b16 v[{r}:{r+1}], v{100+t} offset:{L_V + kk*8192 + u*4096}")
    for kk in range(4):
        A(f"s_waitcnt lgkmcnt({12 - 4*kk})")
        for t in range(2):
            A(f"v_mfma_f32_16x16x32_bf16 v[{12+4*t}:{15+4*t}], v[{48+16*t+4*kk}:{51+16*t+4*kk}], v[{24+4*kk}:{27+4*kk}], v[{12+4*t}:{15+4*t}]")
    for i in range(4): A(f"v_cvt_pk_bf16_f32 v{8+i}, v{12+2*i}, v{13+2*i}")
    for i in range(4): A(f"v_min_u32 v{8+i}, s52, v{8+i}")
    A(f"""s_mov_b64 exec, s[50:51]
    buffer_store_dwordx4 v[8:11], v109, s[32:35], s38 offen offset:{B_OP} sc1
    s_mov_b64 exec, -1
    s_mov_b32 s41, 0""")
    stamp(11)
    l = lab("lg")
    A(f"""{l}:
    buffer_load_dword v20, v114, s[32:35], s44 offen offset:{B_LSE} sc1
    buffer_load_dword v21, v114, s[32:35], s45 offen offset:{B_LSE} sc1
    buffer_load_dwordx4 v[24:27], v113, s[32:35], s46 offen offset:{B_OP} sc1
    buffer_load_dwordx4 v[28:31], v113, s[32:35], s47 offen offset:{B_OP} sc1
    s_waitcnt vmcnt(2)
    v_max_u32 v22, v20, v21
    v_cmp_eq_u32 vcc, -1, v22
    s_cbranch_vccz L_lseok
    s_waitcnt vmcnt(0)
    s_add_u32 s41, s41, 1
    s_cmp_lt_u32 s41, {SPIN}
    s_cbranch_scc1 {l}
    L_lseok:
    v_max_f32 v22, v20, v21
    v_mov_b32 v23, v22
    v_permlane32_swap_b32 v23, v22
    v_max_f32 v22, v22, v23
    v_mov_b32 v23, v22
    v_permlane16_swap_b32 v23, v22
    v_max_f32 v22, v22, v23
    v_max_f32 v22, v22, v22 row_ror:8
    v_sub_f32 v20, v20, v22
    v_sub_f32 v21, v21, v22
    v_exp_f32 v20, v20
    v_exp_f32 v21, v21
    v_add_f32 v22, v20, v21
    v_mov_b32 v23, v22
    v_permlane32_swap_b32 v23, v22
    v_add_f32 v22, v22, v23
    v_mov_b32 v23, v22
    v_permlane16_swap_b32 v23, v22
    v_add_f32 v22, v22, v23
    v_add_f32 v22, v22, v22 row_ror:8
    v_rcp_f32 v22, v22
    v_mul_f32 v20, v20, v22
    v_mul_f32 v21, v21, v22""")
    for r in range(12, 16): A(f"v_mov_b32 v{r}, 0")
    wait_flag(6, F_W3, 22)
    trw(L_WO, 4, 48)
    trw(L_W2, 2, 64)
    wait_flag(6, F_ACT, 22)
    A("ds_read_b128 v[72:75], v117\nds_read_b128 v[76:79], v117 offset:64\ns_waitcnt lgkmcnt(0)")
    for kk in range(2):
        A(f"v_mfma_f32_16x16x32_bf16 v[12:15], v[{64+4*kk}:{67+4*kk}], v[{72+4*kk}:{75+4*kk}], v[12:15]")
    stamp(12)
    l = lab("og")
    A(f"""s_mov_b32 s41, 0
    s_branch L_ochk
    {l}:
    buffer_load_dwordx4 v[24:27], v113, s[32:35], s46 offen offset:{B_OP} sc1
    buffer_load_dwordx4 v[28:31], v113, s[32:35], s47 offen offset:{B_OP} sc1
    L_ochk:
    s_waitcnt vmcnt(0)""")
    any_sent(range(24, 32), 22)
    A(f"""s_cbranch_vccz L_ook
    s_add_u32 s41, s41, 1
    s_cmp_lt_u32 s41, {SPIN}
    s_cbranch_scc1 {l}
    L_ook:""")
    stamp(13)
    for i in range(4):
        A(f"v_lshlrev_b32 v{32+2*i}, 16, v{24+i}\nv_and_b32 v{33+2*i}, s36, v{24+i}")
    for i in range(8): A(f"v_mul_f32 v{32+i}, v20, v{32+i}")
    for i in range(4):
        A(f"v_lshlrev_b32 v{40+2*i}, 16, v{28+i}\nv_and_b32 v{41+2*i}, s36, v{28+i}")
    for i in range(8): A(f"v_fmac_f32 v{32+i}, v21, v{40+i}")
    for e in range(4): A(f"v_permlane32_swap_b32 v{32+e}, v{36+e}")
    for e in range(4): A(f"v_add_f32 v{32+e}, v{32+e}, v{36+e}")
    A("""v_permlane16_swap_b32 v32, v34
    v_permlane16_swap_b32 v33, v35
    v_add_f32 v32, v32, v34
    v_add_f32 v33, v33, v35
    v_add_f32 v32, v32, v32 row_ror:8
    v_add_f32 v33, v33, v33 row_ror:8
    v_cvt_pk_bf16_f32 v32, v32, v33
    v_min_u32 v32, s52, v32
    ds_write_b32 v115, v32""")
    l = lab("ol")
    A(f"{l}:")
    for kk in range(4): A(f"ds_read_b128 v[{24+4*kk}:{27+4*kk}], v116 offset:{64*kk}")
    A("s_waitcnt lgkmcnt(0)")
    any_sent(range(24, 40), 22)
    loop_back(l)
    for kk in range(4):
        A(f"v_mfma_f32_16x16x32_bf16 v[12:15], v[{48+4*kk}:{51+4*kk}], v[{24+4*kk}:{27+4*kk}], v[12:15]")
    for r in range(12, 16): A(f"v_min_u32 v{r}, s52, v{r}")
    A(f"""s_mov_b64 exec, s[48:49]
    buffer_store_dwordx4 v[12:15], v118, s[32:35], s38 offen offset:{B_FP} sc1
    s_mov_b64 exec, -1""")
    stamp(14)
    A("s_cmp_eq_u32 s29, 0\ns_cbranch_scc0 L_cend")
    A(f"""s_lshl_b32 s44, s28, 17
    s_lshl_b32 s37, s30, 7
    s_add_u32 s44, s44, s37
    s_add_u32 s45, s44, 32768
    s_add_u32 s46, s44, 65536
    s_add_u32 s47, s44, 98304
    v_and_b32 v16, 1, v0
    v_lshlrev_b32 v16, 10, v16
    v_bfe_u32 v17, v0, 1, 2
    v_lshl_add_u32 v16, v17, 3, v16
    v_lshrrev_b32 v17, 5, v0
    v_lshl_add_u32 v16, v17, 2, v16
    s_lshl_b32 s37, s28, 7
    s_lshl_b32 s39, s30, 5
    s_add_u32 s37, s37, s39
    v_add_u32 v16, s37, v16
    global_load_dword v18, v16, s[4:5]
    s_mov_b32 s41, 0""")
    l = lab("fg")
    A(f"{l}:")
    for i in range(4):
        A(f"buffer_load_dwordx4 v[{24+4*i}:{27+4*i}], v113, s[32:35], s{44+i} offen offset:{B_FP} sc1")
    A("s_waitcnt vmcnt(0)")
    any_sent(range(24, 40), 22)
    A(f"""s_cbranch_vccz L_fok
    s_add_u32 s41, s41, 1
    s_cmp_lt_u32 s41, {SPIN}
    s_cbranch_scc1 {l}
    L_fok:
    v_pk_add_f32 v[24:25], v[24:25], v[28:29]
    v_pk_add_f32 v[26:27], v[26:27], v[30:31]
    v_pk_add_f32 v[32:33], v[32:33], v[36:37]
    v_pk_add_f32 v[34:35], v[34:35], v[38:39]
    v_pk_add_f32 v[24:25], v[24:25], v[32:33]
    v_pk_add_f32 v[26:27], v[26:27], v[34:35]
    v_permlane32_swap_b32 v24, v26
    v_permlane32_swap_b32 v25, v27
    v_add_f32 v24, v24, v26
    v_add_f32 v25, v25, v27
    v_mov_b32 v26, v24
    v_mov_b32 v27, v25
    v_permlane16_swap_b32 v26, v24
    v_permlane16_swap_b32 v27, v25
    v_add_f32 v24, v24, v26
    v_add_f32 v25, v25, v27
    v_add_f32 v24, v24, v24 row_ror:8
    v_add_f32 v25, v25, v25 row_ror:8
    v_lshlrev_b32 v26, 16, v18
    v_and_b32 v27, s36, v18
    v_add_f32 v24, v24, v26
    v_add_f32 v25, v25, v27
    v_cvt_pk_bf16_f32 v24, v24, v25
    s_mov_b32 s40, 0xff
    s_mov_b32 s41, 0xff
    s_mov_b64 exec, s[40:41]
    global_store_dword v16, v24, s[22:23]
    s_mov_b64 exec, -1""")
    A("s_or_b32 s37, s2, s30\ns_cbranch_scc1 L_cend")
    A("ds_read_b32 v20, v6 offset:32\nv_mov_b32 v21, 0\ns_waitcnt lgkmcnt(0)\nv_add_u32 v20, 1, v20\ns_mov_b64 exec, 1\nglobal_store_dword v21, v20, s[26:27] sc1\ns_mov_b64 exec, -1")
    A("L_cend:")
    stamp(15)
    if stamps: A(f"v_writelane_b32 v{VST}, s94, 0")
    dump_stamps()
    A("L_end:\ns_endpgm")
    A(f""".section .rodata,"a"
    .p2align 6
    .amdhsa_kernel {NAME}
    .amdhsa_next_free_vgpr 128
    .amdhsa_next_free_sgpr 102
    .amdhsa_accum_offset 128
    .amdhsa_group_segment_fixed_size 0
    .amdhsa_kernarg_size 96
    .amdhsa_user_sgpr_count 2
    .amdhsa_user_sgpr_kernarg_segment_ptr 1
    .amdhsa_system_sgpr_workgroup_id_x 1
    .amdhsa_float_denorm_mode_32 3
    .end_amdhsa_kernel""")
    return A.finish()

if __name__ == "__main__":
    out = sys.argv[1] if len(sys.argv) > 1 else "k.s"
    kw = {}
    for a in sys.argv[2:]:
        if '=' in a:
            k, v = a.split('=', 1); kw[k] = eval(v)
        else: kw[a] = True
    open(out, "w").write(gen(**kw))
```

```python
import sys
from asmlib import Asm

NAME = "parallel_sum__sliding_block_cached__dense_activation_mish__decode_kernel"

L_K, L_V, L_WQ, L_WO, L_W1, L_W2 = 0x0, 0x8000, 0x10000, 0x14000, 0x18000, 0x1A000
L_S = 0x1C000
L_Q, L_P, L_O, L_ML, L_FLG = L_S, L_S + 0x500, L_S + 0x900, L_S + 0xB40, L_S + 0xC00
L_XN, L_ACT = 0x1D000, 0x1D900
LDS_BYTES = 0x1DA00
QSTR, XSTR, OSTR = 272, 1040, 272
F_WQ, F_W1, F_K, F_V, F_W3, F_CLR, F_OK, F_ACT = [4 * i for i in range(8)]
W_F1, W_F2, W_BLK = 0x1000, 0x2000, 0x10000
B_QP, B_HP, B_OP, B_FP, B_LSE = 0, 512, 1024, 2048, 2560
SPIN = 1 << 18

def gen(depth=26, stamps=False, dbgout=False, safe=True, fsleep=0, presleep=0, noflag=False, noclear=False, order=('wq', 'w1', 'k', 'v', 'wo', 'w2'), header=""):
    A = Asm()
    uid = [0]
    def lab(p):
        uid[0] += 1
        return f"L_{p}{uid[0]}"
    VST = 127
    def stamp(k):
        if stamps:
            A(f"s_memrealtime s[98:99]\ns_waitcnt lgkmcnt(0)\nv_writelane_b32 v{VST}, s98, {k}")
    def dump_stamps():
        if stamps:
            A(f"""s_lshl_b32 s96, s2, 3
            s_add_u32 s96, s96, s3
            s_lshl_b32 s96, s96, 6
            s_add_u32 s96, s96, 0x8000000
            s_add_u32 s96, s26, s96
            s_addc_u32 s97, s27, 0
            s_mov_b64 exec, 0xffff
            v_mbcnt_lo_u32_b32 v126, -1, 0
            v_lshlrev_b32 v126, 2, v126
            global_store_dword v126, v{VST}, s[96:97]""")
    def loop_back(l):
        if safe:
            o = lab("out")
            A(f"""s_add_u32 s100, s100, 1
            s_bitcmp1_b32 s100, 21
            s_cbranch_scc1 {o}
            s_cbranch_vccnz {l}
            {o}:""")
        else:
            A(f"s_cbranch_vccnz {l}")
    def wait_flag(vaddr, off, vt):
        l = lab("wf")
        A(f"""{l}:
        ds_read_b32 v{vt}, v{vaddr} offset:{off}
        s_waitcnt lgkmcnt(0)
        v_cmp_eq_u32 vcc, -1, v{vt}""")
        loop_back(l)
    def set_flag(vaddr, off, vdata):
        A(f"""s_mov_b64 exec, 1
        ds_write_b32 v{vaddr}, v{vdata} offset:{off}
        s_mov_b64 exec, -1""")
    def any_sent(regs, vt):
        regs = list(regs)
        A(f"v_max3_u32 v{vt}, v{regs[0]}, v{regs[1]}, v{regs[2] if len(regs) > 2 else regs[1]}")
        rest = regs[3:]
        while rest:
            a = rest[0]; b = rest[1] if len(rest) > 1 else rest[0]
            A(f"v_max3_u32 v{vt}, v{vt}, v{a}, v{b}")
            rest = rest[2:]
        A(f"v_cmp_eq_u32 vcc, -1, v{vt}")
    def bf16r(d, s):
        A(f"v_cvt_pk_bf16_f32 v{d}, v{s}, v{s}\nv_lshlrev_b32 v{d}, 16, v{d}")
    def ws_srd(d):
        A(f"""s_add_u32 s{d}, s26, {W_BLK}
        s_addc_u32 s{d+1}, s27, 0
        s_mov_b32 s{d+2}, 0x100000
        s_mov_b32 s{d+3}, 0x00020000""")

    A(header)
    A(f"; @launch grid=(256,1,1) block=(384,1,1) lds={LDS_BYTES}")
    A(f""".amdgcn_target "amdgcn-amd-amdhsa--gfx950"
    .text
    .globl {NAME}
    .p2align 8
    .type {NAME},@function
    {NAME}:""")
    A("""s_load_dwordx16 s[4:19], s[0:1], 0
    s_load_dwordx8 s[20:27], s[0:1], 64
    s_cmp_ge_u32 s2, 256
    s_cbranch_scc1 L_end
    v_lshrrev_b32 v1, 6, v0
    v_and_b32 v0, 63, v0
    v_readfirstlane_b32 s3, v1
    s_and_b32 s28, s2, 7
    s_lshr_b32 s29, s2, 3""")
    if stamps:
        A(f"s_memrealtime s[94:95]\nv_mov_b32 v{VST}, 0")
    A("""s_cmp_eq_u32 s3, 0
    s_cbranch_scc0 L_notloader""")

    A("s_setprio 3")
    A("""v_lshrrev_b32 v2, 3, v0
    v_and_b32 v3, 6, v2
    v_xor_b32 v3, v3, v0
    v_and_b32 v3, 7, v3
    v_lshlrev_b32 v3, 4, v3
    v_lshrrev_b32 v4, 5, v0
    v_and_b32 v5, 3, v2
    v_lshl_add_u32 v6, v4, 3, v5
    v_lshl_add_u32 v10, v6, 13, v3
    v_add_u32 v11, 31744, v10
    s_mov_b32 s34, 4194304
    s_mov_b32 s35, 0x00020000
    s_movk_i32 s60, 0x800
    s_lshr_b32 s57, s29, 3
    s_lshl_b32 s57, s57, 20
    s_lshl_b32 s58, s28, 10
    s_add_u32 s57, s57, s58
    s_and_b32 s58, s29, 7
    s_lshl_b32 s56, s58, 11
    s_lshl_b32 s58, s58, 7
    s_add_u32 s57, s57, s58
    s_waitcnt lgkmcnt(0)
    s_mov_b32 s32, s10
    s_mov_b32 s33, s11""")
    info = dict(wq=(8, 32, 10, L_WQ, F_WQ), w1=(4, 36, 12, L_W1, F_W1), k=(16, 40, 14, L_K, F_K), v=(16, 44, 14, L_V, F_V),
                wo=(8, 48, 16, L_WO, None), w2=(4, 52, 18, L_W2, None))
    last = order[-1]
    flag_at = {}
    cum = 0
    for m in order:
        cum += 2 * info[m][0]
        f = info[m][4]
        if m in ('wo', 'w2'):
            if all(order.index(z) <= order.index(m) for z in ('wo', 'w2')): f = F_W3
        if f is not None: flag_at[cum] = f
    def setup(m):
        if m == 'wq': return
        if m == 'w1':
            A("""v_mul_u32_u24 v12, 3584, v6
            v_add_u32 v12, v12, v3
            v_add_u32 v13, 13312, v12
            s_mov_b32 s36, s16
            s_mov_b32 s37, s17
            s_cmp_lt_u32 s29, 28
            s_cselect_b32 s38, 1835008, 0
            s_mov_b32 s39, 0x00020000
            s_mul_i32 s57, s28, 229376
            s_lshl_b32 s58, s29, 7
            s_add_u32 s57, s57, s58
            s_and_b32 s56, s29, 3
            s_lshl_b32 s56, s56, 11""")
        elif m in ('k', 'v'):
            p = 6 if m == 'k' else 8
            d = info[m][1]
            A(f"""v_lshrrev_b32 v7, 4, v0
            v_lshlrev_b32 v8, 1, v7
            v_xor_b32 v8, v8, v0
            v_and_b32 v8, 15, v8
            v_lshlrev_b32 v8, 4, v8
            v_lshl_add_u32 v14, v7, 8, v8
            v_xor_b32 v15, 128, v14
            s_mov_b32 s{d}, s{p}
            s_mov_b32 s{d+1}, s{p+1}
            s_mov_b32 s{d+2}, 33554432
            s_mov_b32 s{d+3}, 0x00020000
            s_lshr_b32 s57, s29, 4
            s_lshl_b32 s57, s57, 3
            s_add_u32 s57, s57, s28
            s_lshl_b32 s57, s57, 21
            s_and_b32 s58, s29, 15
            s_lshl_b32 s56, s58, 11
            s_lshl_b32 s58, s58, 15
            s_add_u32 s57, s57, s58
            s_add_u32 s57, s57, 1572864""")
        elif m == 'wo':
            A("""v_lshl_add_u32 v7, v4, 7, v5
            v_lshl_add_u32 v16, v7, 10, v3
            v_add_u32 v17, 15360, v16
            s_mov_b32 s48, s12
            s_mov_b32 s49, s13
            s_mov_b32 s50, 4194304
            s_mov_b32 s51, 0x00020000
            s_lshr_b32 s57, s29, 2
            s_lshl_b32 s57, s57, 19
            s_and_b32 s58, s29, 3
            s_lshl_b32 s58, s58, 15
            s_add_u32 s57, s57, s58
            s_lshl_b32 s58, s28, 7
            s_add_u32 s57, s57, s58
            s_and_b32 s56, s29, 7
            s_lshl_b32 s56, s56, 11""")
        elif m == 'w2':
            A("""v_lshl_add_u32 v18, v6, 10, v3
            v_add_u32 v19, 3072, v18
            s_mov_b32 s52, s20
            s_mov_b32 s53, s21
            s_cmp_lt_u32 s29, 28
            s_cselect_b32 s54, 1835008, 0
            s_mov_b32 s55, 0x00020000
            s_lshl_b32 s57, s29, 16
            s_lshl_b32 s58, s28, 7
            s_add_u32 s57, s57, s58
            s_and_b32 s56, s29, 3
            s_lshl_b32 s56, s56, 11""")
    issued = 0
    done_barrier = False
    flagged = set()
    def landed(n):
        for c in sorted(flag_at):
            if c <= n and c not in flagged:
                flagged.add(c)
                set_flag(20, flag_at[c], 20)
                stamp(2 + len(flagged))
    for m in order:
        npair, srd, vo, lbase, _ = info[m]
        setup(m)
        for p in range(npair):
            if issued + 2 > depth:
                if not done_barrier:
                    A(f"v_mov_b32 v20, {L_FLG}\ns_barrier")
                    stamp(1)
                    done_barrier = True
                A(f"s_waitcnt vmcnt({depth - 2})")
                landed(issued - (depth - 2))
            A(f"s_add_u32 m0, s56, {lbase}" if lbase else "s_mov_b32 m0, s56")
            if m == 'wq': A("s_lshl_b32 s58, s56, 6\ns_add_u32 s58, s58, s57")
            elif m == 'w1': A("s_mul_i32 s58, s56, 28\ns_add_u32 s58, s58, s57")
            elif m == 'w2': A("s_lshl_b32 s58, s56, 3\ns_add_u32 s58, s58, s57")
            elif m == 'wo': A("s_and_b32 s58, s56, s60\ns_lshl_b32 s58, s58, 7\ns_and_b32 s59, s56, 0x3000\ns_add_u32 s58, s58, s59\ns_add_u32 s58, s58, s57")
            else: A("s_add_u32 s58, s56, s57")
            A(f"buffer_load_dwordx4 v{vo}, s[{srd}:{srd+3}], s58 offen nt lds")
            A(f"buffer_load_dwordx4 v{vo+1}, s[{srd}:{srd+3}], s58 offen offset:1024 nt lds")
            issued += 2
            if p != npair - 1:
                A(f"s_add_u32 s56, s56, s60\ns_and_b32 s56, s56, {npair * 2048 - 1}")
    for c in sorted(flag_at):
        if c not in flagged:
            A(f"s_waitcnt vmcnt({issued - c})")
            landed(c)
    if stamps: A(f"v_writelane_b32 v{VST}, s94, 0")
    dump_stamps()
    A("s_endpgm")

    A("L_notloader:")
    A("s_cmp_eq_u32 s3, 1\ns_cbranch_scc0 L_compute")
    A("""v_lshlrev_b32 v2, 4, v0
    v_mov_b32 v4, -1
    v_mov_b32 v5, -1
    v_mov_b32 v6, -1
    v_mov_b32 v7, -1
    s_lshl_b32 s30, s28, 5
    s_add_u32 s30, s30, s29
    s_lshl_b32 s31, s30, 12
    s_waitcnt lgkmcnt(0)
    s_load_dword s5, s[26:27], 0""")
    if stamps: A(f"v_writelane_b32 v{VST}, s94, 0")
    A("s_getreg_b32 s4, hwreg(HW_REG_XCC_ID)")
    ws_srd(8)
    if not noclear: A(f"""buffer_store_dwordx4 v[4:7], v2, s[8:11], s31 offen sc1
    buffer_store_dwordx4 v[4:7], v2, s[8:11], s31 offen offset:1024 sc1
    buffer_store_dwordx4 v[4:7], v2, s[8:11], s31 offen offset:2048 sc1""")
    A(f"""s_barrier
    v_mov_b32 v20, {L_FLG}
    s_and_b32 s4, s4, 15
    s_lshl_b32 s6, s28, 7
    s_add_u32 s6, s6, {W_F1}
    s_add_u32 s12, s26, s6
    s_addc_u32 s13, s27, 0
    s_lshr_b32 s6, s29, 2
    s_lshl_b32 s6, s6, 7
    s_add_u32 s6, s6, {W_F1}
    s_add_u32 s14, s26, s6
    s_addc_u32 s15, s27, 0
    s_lshl_b32 s6, s29, 5
    s_add_u32 s6, s6, {W_F2}
    s_add_u32 s16, s26, s6
    s_addc_u32 s17, s27, 0
    s_lshl_b32 s6, s29, 2
    v_mov_b32 v8, s6
    s_lshl_b32 s6, s28, 2
    v_mov_b32 v9, s6
    s_waitcnt lgkmcnt(0)
    s_mul_i32 s20, s5, 0x9E3779B1
    s_add_u32 s20, s20, 0x7F4A7C15
    s_and_b32 s20, s20, -16
    s_or_b32 s21, s20, s4
    v_mov_b32 v10, s21
    s_waitcnt vmcnt(0)""")
    set_flag(20, F_CLR, 20)
    A("""s_mov_b64 exec, 1
    global_store_dword v8, v10, s[12:13] sc1
    global_store_dword v9, v10, s[16:17] sc1
    s_mov_b64 exec, -1""")
    stamp(1)
    A("""v_and_b32 v11, 7, v0
    v_lshlrev_b32 v11, 2, v11
    v_lshrrev_b32 v12, 5, v0
    v_lshl_add_u32 v11, v12, 1, v11
    v_bfe_u32 v12, v0, 4, 1
    v_add_u32 v11, v11, v12
    v_bfe_u32 v12, v0, 3, 1
    v_lshl_add_u32 v11, v12, 5, v11
    s_min_u32 s6, s29, 27
    s_lshl_b32 s6, s6, 6
    v_add_u32 v13, s6, v11
    v_lshlrev_b32 v13, 1, v13
    global_load_ushort v14, v13, s[18:19]
    s_mov_b32 s7, 0""")
    l = lab("fl")
    if presleep: A(f"s_sleep {presleep}")
    if noflag: A("s_mov_b32 s6, 0\ns_branch L_flagsok")
    A(f"{l}:")
    if fsleep: A(f"s_sleep {fsleep}")
    A(f"""s_load_dwordx16 s[32:47], s[12:13], 0 glc
    s_load_dwordx16 s[48:63], s[12:13], 64 glc
    s_load_dwordx16 s[64:79], s[14:15], 0 glc
    s_load_dwordx16 s[80:95], s[14:15], 64 glc
    s_waitcnt lgkmcnt(0)""")
    def chains(lo, n, first):
        for i in range(0, n, 2):
            r = f"s[{lo+i}:{lo+i+1}]"
            if first and i == 0:
                A(f"s_mov_b64 s[22:23], {r}\ns_mov_b64 s[24:25], {r}")
            else:
                A(f"s_and_b64 s[22:23], s[22:23], {r}\ns_or_b64 s[24:25], s[24:25], {r}")
    def fcheck(ok, l):
        A(f"""s_and_b32 s22, s22, s23
        s_or_b32 s24, s24, s25
        s_and_b32 s22, s22, -16
        s_and_b32 s24, s24, -16
        s_xor_b32 s22, s22, s20
        s_xor_b32 s24, s24, s20
        s_or_b32 s22, s22, s24
        s_cbranch_scc0 {ok}
        s_add_u32 s7, s7, 1
        s_cmp_lt_u32 s7, {SPIN}
        s_cbranch_scc1 {l}
        {ok}:""")
    chains(32, 32, True)
    A("""s_and_b32 s22, s22, s23
    s_or_b32 s24, s24, s25
    s_cmp_eq_u32 s22, s24
    s_cselect_b32 s6, 1, 0
    s_mov_b32 s23, s22
    s_mov_b32 s25, s24""")
    chains(64, 32, False)
    fcheck("L_flagsok", l)
    A("v_mov_b32 v15, s6")
    set_flag(20, F_OK, 15)
    stamp(2)
    A("v_mov_b32 v15, s5")
    A(f"""v_mov_b32 v40, 0
    v_mov_b32 v41, 0
    s_cmp_lt_u32 s29, 28
    s_cbranch_scc0 L_actw
    v_lshrrev_b32 v16, 3, v0
    v_lshlrev_b32 v16, 17, v16
    v_and_b32 v17, 7, v0
    v_lshl_add_u32 v16, v17, 4, v16
    s_lshl_b32 s31, s29, 12
    s_mov_b32 s7, 0""")
    l = lab("f2")
    A(f"""{l}:
    s_load_dwordx8 s[32:39], s[16:17], 0 glc
    s_waitcnt lgkmcnt(0)""")
    chains(32, 8, True)
    fcheck("L_f2ok", l)
    A("s_mov_b32 s7, 0")
    l = lab("hp")
    A(f"{l}:")
    for i in range(4):
        b, half = i & 1, i >> 1
        A(f"buffer_load_dwordx4 v[{24+4*i}:{27+4*i}], v16, s[8:11], s31 offen offset:{B_HP + b*256 + half*128} sc1")
    A("s_waitcnt vmcnt(0)")
    any_sent(range(24, 40), 18)
    A(f"""s_cbranch_vccz L_hpok
    s_sleep 8
    s_add_u32 s7, s7, 1
    s_cmp_lt_u32 s7, {SPIN}
    s_cbranch_scc1 {l}
    L_hpok:""")
    stamp(3)
    for i in range(4):
        r = 24 + 4 * i
        A(f"""v_permlane32_swap_b32 v{r}, v{r+2}
        v_permlane32_swap_b32 v{r+1}, v{r+3}
        v_add_f32 v{r}, v{r}, v{r+2}
        v_add_f32 v{r+1}, v{r+1}, v{r+3}""")
    for i in range(4):
        r = 24 + 4 * i
        A(f"v_permlane16_swap_b32 v{r}, v{r+1}\nv_add_f32 v{r}, v{r}, v{r+1}")
    for i in range(4):
        r = 24 + 4 * i
        A(f"v_add_f32 v{r}, v{r}, v{r} row_ror:8")
    A("""v_and_b32 v18, 8, v0
    v_cmp_eq_u32 vcc, 0, v18
    v_cndmask_b32 v40, v32, v24, vcc
    v_cndmask_b32 v41, v36, v28, vcc
    v_lshlrev_b32 v14, 16, v14
    s_mov_b32 s32, 0x3fb8aa3b
    s_mov_b32 s33, 0x3f317218""")
    for h in (40, 41):
        t = 44
        bf16r(h, h)
        A(f"v_add_f32 v{h}, v{h}, v14")
        bf16r(h, h)
        A(f"v_mul_f32 v{t}, s32, v{h}\nv_exp_f32 v{t}, -abs(v{t})")
        bf16r(t, t)
        A(f"""v_add_f32 v{t+1}, 1.0, v{t}
        v_log_f32 v{t+2}, v{t+1}
        v_add_f32 v{t+3}, -1.0, v{t+1}
        v_rcp_f32 v{t+3}, v{t+3}
        v_mul_f32 v{t+2}, s33, v{t+2}
        v_mul_f32 v{t+2}, v{t+2}, v{t}
        v_mul_f32 v{t+2}, v{t+2}, v{t+3}
        v_cmp_eq_f32 vcc, 1.0, v{t+1}
        v_cndmask_b32 v{t+2}, v{t+2}, v{t}, vcc""")
        bf16r(t+2, t+2)
        A(f"v_max_f32 v{t+1}, 0, v{h}\nv_add_f32 v{t+2}, v{t+2}, v{t+1}")
        bf16r(t+2, t+2)
        A(f"""v_mul_f32 v{t}, -2.0, v{t+2}
        v_mul_f32 v{t+1}, s32, v{t}
        v_exp_f32 v{t+1}, v{t+1}
        v_log_f32 v{t+3}, v{t+1}
        v_add_f32 v{t+4}, -1.0, v{t+1}
        v_mul_f32 v{t+3}, s33, v{t+3}
        v_rcp_f32 v{t+3}, v{t+3}
        v_mul_f32 v{t+5}, v{t+4}, v{t}
        v_mul_f32 v{t+5}, v{t+5}, v{t+3}
        v_cmp_eq_f32 vcc, 1.0, v{t+1}
        v_cndmask_b32 v{t+5}, v{t+5}, v{t}, vcc
        v_cmp_gt_f32 vcc, 0.5, v{t+1}
        v_cndmask_b32 v{t+5}, v{t+5}, v{t+4}, vcc
        v_add_f32 v{t+4}, 2.0, v{t+5}
        v_rcp_f32 v{t+4}, v{t+4}
        v_mul_f32 v{t+5}, v{t+5}, v{t+4}
        v_sub_f32 v{t+5}, 0, v{t+5}""")
        bf16r(t+5, t+5)
        A(f"v_mul_f32 v{h}, v{h}, v{t+5}\nv_cvt_pk_bf16_f32 v{h}, v{h}, v{h}")
    A(f"""L_actw:
    v_lshlrev_b32 v11, 1, v11
    v_add_u32 v11, {L_ACT}, v11
    ds_write_b16 v11, v40
    ds_write_b16 v11, v41 offset:128""")
    set_flag(20, 32, 15)
    set_flag(20, F_ACT, 20)
    stamp(4)
    dump_stamps()
    A("s_waitcnt lgkmcnt(0)\ns_endpgm")

    A("L_compute:")
    A(f"""s_mov_b32 s100, 0
    s_sub_u32 s30, s3, 2
    v_lshlrev_b32 v2, 4, v0
    s_lshl_b32 s31, s30, 10
    s_add_u32 s31, s31, {L_S}
    v_add_u32 v3, s31, v2
    v_mov_b32 v4, -1
    v_mov_b32 v5, -1
    v_mov_b32 v6, -1
    v_mov_b32 v7, -1
    ds_write_b128 v3, v[4:7]
    s_waitcnt lgkmcnt(0)
    global_load_dwordx4 v[8:11], v2, s[4:5]
    global_load_dwordx4 v[12:15], v2, s[4:5] offset:1024
    s_barrier""")
    ws_srd(32)
    A(f"""s_mov_b32 s36, 0xffff0000
    v_and_b32 v4, 15, v0
    v_lshrrev_b32 v5, 4, v0
    v_mov_b32 v6, {L_FLG}
    v_bfe_u32 v16, v0, 2, 2
    v_and_b32 v17, 1, v5
    v_lshl_add_u32 v16, v17, 2, v16
    v_bfe_u32 v18, v0, 1, 1
    s_lshl_b32 s37, s30, 1
    v_add_u32 v18, s37, v18
    v_and_b32 v19, 6, v16
    v_xor_b32 v18, v18, v19
    v_lshlrev_b32 v18, 4, v18
    v_and_b32 v19, 1, v0
    v_lshl_add_u32 v18, v19, 3, v18
    v_lshrrev_b32 v17, 5, v0
    v_lshl_add_u32 v17, v17, 4, v16
    v_lshl_add_u32 v7, v17, 7, v18
    v_add_u32 v7, {L_WQ}, v7
    v_bfe_u32 v18, v0, 1, 1
    s_lshl_b32 s37, s30, 2
    v_add_u32 v18, s37, v18
    v_lshlrev_b32 v17, 1, v16
    v_xor_b32 v18, v18, v17
    v_lshlrev_b32 v18, 4, v18
    v_lshl_add_u32 v18, v19, 3, v18
    v_lshrrev_b32 v17, 2, v0
    v_lshl_add_u32 v100, v17, 8, v18
    v_xor_b32 v101, 32, v100
    v_and_b32 v17, 7, v0
    v_lshlrev_b32 v17, 1, v17
    v_xor_b32 v17, v17, v5
    v_lshlrev_b32 v17, 4, v17
    v_lshl_add_u32 v17, v4, 8, v17
    s_lshl_b32 s37, s30, 13
    v_add_u32 v102, s37, v17
    v_xor_b32 v103, 64, v102
    v_xor_b32 v104, 128, v102
    v_xor_b32 v105, 192, v102
    v_and_b32 v17, 1, v0
    v_mul_u32_u24 v18, {XSTR}, v17
    v_lshl_add_u32 v106, v5, 4, v18
    s_lshl_b32 s37, s30, 6
    v_lshlrev_b32 v18, 8, v4
    v_lshl_add_u32 v18, v5, 4, v18
    v_add_u32 v107, s37, v18
    s_lshl_b32 s38, s28, 5
    s_add_u32 s38, s38, s29
    s_lshl_b32 s38, s38, 12
    v_add_u32 v3, {L_XN}, v2""")
    stamp(1)
    A("s_waitcnt vmcnt(0)")
    stamp(2)
    for b in range(2):
        for i in range(4):
            A(f"v_lshlrev_b32 v{16+8*b+2*i}, 16, v{8+4*b+i}\nv_and_b32 v{17+8*b+2*i}, s36, v{8+4*b+i}")
    def red2(a, b, t):
        A(f"""v_permlane32_swap_b32 v{a}, v{b}
        v_add_f32 v{a}, v{a}, v{b}
        v_mov_b32 v{t}, v{a}
        v_permlane16_swap_b32 v{t}, v{a}
        v_add_f32 v{a}, v{a}, v{t}
        v_add_f32 v{a}, v{a}, v{a} row_ror:8
        v_add_f32 v{a}, v{a}, v{a} row_ror:4
        v_add_f32 v{a}, v{a}, v{a} row_ror:2
        v_add_f32 v{a}, v{a}, v{a} row_ror:1""")
    for b in range(2):
        f = 16 + 8 * b
        A(f"""v_pk_add_f32 v[{32+4*b}:{33+4*b}], v[{f}:{f+1}], v[{f+2}:{f+3}]
        v_pk_add_f32 v[{34+4*b}:{35+4*b}], v[{f+4}:{f+5}], v[{f+6}:{f+7}]""")
    for b in range(2):
        A(f"v_pk_add_f32 v[{32+4*b}:{33+4*b}], v[{32+4*b}:{33+4*b}], v[{34+4*b}:{35+4*b}]")
    A("v_add_f32 v32, v32, v33\nv_add_f32 v36, v36, v37")
    red2(32, 36, 33)
    A("""v_mul_f32 v32, 0x3b000000, v32
    v_readlane_b32 s40, v32, 0
    v_readlane_b32 s42, v32, 32""")
    for b in range(2):
        f = 16 + 8 * b
        for i in range(4):
            A(f"v_pk_add_f32 v[{40+8*b+2*i}:{41+8*b+2*i}], v[{f+2*i}:{f+2*i+1}], s[{40+2*b}:{41+2*b}] op_sel_hi:[1,0] neg_lo:[0,1] neg_hi:[0,1]")
    for b in range(2):
        d = 40 + 8 * b
        A(f"v_pk_mul_f32 v[{34+2*b}:{35+2*b}], v[{d}:{d+1}], v[{d}:{d+1}]")
    for i in range(1, 4):
        for b in range(2):
            d = 40 + 8 * b + 2 * i
            A(f"v_pk_fma_f32 v[{34+2*b}:{35+2*b}], v[{d}:{d+1}], v[{d}:{d+1}], v[{34+2*b}:{35+2*b}]")
    A("v_add_f32 v34, v34, v35\nv_add_f32 v36, v36, v37")
    red2(34, 36, 33)
    A("v_mul_f32 v34, 0x3b000000, v34")
    bf16r(34, 34)
    A("v_add_f32 v34, 0x3727c5ac, v34")
    bf16r(34, 34)
    A("v_sqrt_f32 v34, v34")
    bf16r(34, 34)
    A("v_rcp_f32 v34, v34")
    bf16r(32, 32)
    A("""v_readlane_b32 s40, v32, 0
    v_readlane_b32 s42, v32, 32
    v_readlane_b32 s44, v34, 0
    v_readlane_b32 s46, v34, 32""")
    for b in range(2):
        f = 16 + 8 * b
        for i in range(4):
            A(f"v_pk_add_f32 v[{f+2*i}:{f+2*i+1}], v[{f+2*i}:{f+2*i+1}], s[{40+2*b}:{41+2*b}] op_sel_hi:[1,0] neg_lo:[0,1] neg_hi:[0,1]")
    for i in range(8):
        A(f"v_cvt_pk_bf16_f32 v{8+i}, v{16+2*i}, v{17+2*i}")
    for i in range(8):
        A(f"v_lshlrev_b32 v{16+2*i}, 16, v{8+i}\nv_and_b32 v{17+2*i}, s36, v{8+i}")
    for b in range(2):
        f = 16 + 8 * b
        for i in range(4):
            A(f"v_pk_mul_f32 v[{f+2*i}:{f+2*i+1}], v[{f+2*i}:{f+2*i+1}], s[{44+2*b}:{45+2*b}] op_sel_hi:[1,0]")
    for i in range(8):
        A(f"v_cvt_pk_bf16_f32 v{8+i}, v{16+2*i}, v{17+2*i}")
    A(f"""ds_write_b128 v3, v[8:11]
    ds_write_b128 v3, v[12:15] offset:{XSTR}
    s_lshr_b32 s37, s29, 3
    s_lshl_b32 s37, s37, 8
    s_add_u32 s37, s37, {L_XN}
    v_add_u32 v17, s37, v106
    s_lshl_b32 s37, s28, 7
    s_add_u32 s37, s37, {L_XN}
    v_add_u32 v18, s37, v106
    s_waitcnt lgkmcnt(0)""")
    for kk in range(4): A(f"ds_read_b128 v[{24+4*kk}:{27+4*kk}], v17 offset:{64*kk}")
    for kk in range(2): A(f"ds_read_b128 v[{40+4*kk}:{43+4*kk}], v18 offset:{64*kk}")
    A("v_mov_b32 v8, 0\nv_mov_b32 v9, 0\nv_mov_b32 v10, 0\nv_mov_b32 v11, 0\nv_mov_b32 v12, 0\nv_mov_b32 v13, 0\nv_mov_b32 v14, 0\nv_mov_b32 v15, 0")
    A("s_mov_b32 s48, 0x00030003\ns_mov_b32 s49, 0x00030003\ns_mov_b32 s50, 0x000f000f\ns_mov_b32 s51, 0x000f000f\ns_mov_b32 s52, -2")
    stamp(3)
    wait_flag(6, F_CLR, 16)
    wait_flag(6, F_WQ, 16)
    stamp(4)
    def trw(base, nk, r0):
        for kk in range(nk):
            for u in range(2):
                A(f"ds_read_b64_tr_b16 v[{r0+4*kk+2*u}:{r0+4*kk+2*u+1}], v7 offset:{base - L_WQ + kk*4096 + u*1024}")
    trw(L_WQ, 4, 48)
    A("s_waitcnt lgkmcnt(0)")
    for kk in range(4):
        A(f"v_mfma_f32_16x16x32_bf16 v[8:11], v[{48+4*kk}:{51+4*kk}], v[{24+4*kk}:{27+4*kk}], v[8:11]")
    for r in range(8, 12): A(f"v_min_u32 v{r}, s52, v{r}")
    A(f"""s_mov_b64 exec, s[48:49]
    buffer_store_dwordx4 v[8:11], v107, s[32:35], s38 offen offset:{B_QP} sc1
    s_mov_b64 exec, -1""")
    stamp(5)
    wait_flag(6, F_W1, 16)
    trw(L_W1, 2, 48)
    A("s_waitcnt lgkmcnt(0)")
    for kk in range(2):
        A(f"v_mfma_f32_16x16x32_bf16 v[12:15], v[{48+4*kk}:{51+4*kk}], v[{40+4*kk}:{43+4*kk}], v[12:15]")
    for r in range(12, 16): A(f"v_min_u32 v{r}, s52, v{r}")
    A(f"""s_mov_b64 exec, s[48:49]
    buffer_store_dwordx4 v[12:15], v107, s[32:35], s38 offen offset:{B_HP} sc1
    s_mov_b64 exec, -1""")
    A(f"""v_lshlrev_b32 v16, 15, v5
    v_lshl_add_u32 v16, v4, 4, v16
    s_lshl_b32 s39, s28, 17
    s_lshl_b32 s37, s30, 13
    s_add_u32 s39, s39, s37
    s_lshr_b32 s37, s29, 4
    s_lshl_b32 s37, s37, 8
    s_add_u32 s39, s39, s37
    s_add_u32 s40, s39, 4096
    v_lshrrev_b32 v17, 5, v0
    v_lshlrev_b32 v17, 7, v17
    v_lshl_add_u32 v17, v4, 3, v17
    v_and_b32 v18, 1, v5
    v_lshl_add_u32 v17, v18, 2, v17
    s_mul_i32 s37, s30, {QSTR}
    s_add_u32 s37, s37, {L_Q}
    v_add_u32 v17, s37, v17
    v_and_b32 v19, 3, v0
    v_mul_u32_u24 v18, {QSTR}, v19
    v_lshl_add_u32 v18, v5, 4, v18
    v_add_u32 v18, {L_Q}, v18
    v_lshlrev_b32 v20, 6, v5
    v_lshl_add_u32 v20, v19, 4, v20
    v_add_u32 v108, {L_P}, v20
    s_lshl_b32 s37, s30, 8
    v_add_u32 v109, s37, v20
    v_add_u32 v110, s37, v108
    v_lshlrev_b32 v111, 5, v19
    v_add_u32 v111, {L_ML}, v111
    s_lshl_b32 s37, s30, 3
    v_add_u32 v112, s37, v111
    s_mov_b32 s41, 0""")
    wait_flag(6, F_OK, 20)
    A("v_readfirstlane_b32 s53, v20")
    stamp(6)
    l = lab("qg")
    A(f"""{l}:
    buffer_load_dwordx4 v[24:27], v16, s[32:35], s39 offen offset:{B_QP} sc1
    buffer_load_dwordx4 v[28:31], v16, s[32:35], s40 offen offset:{B_QP} sc1
    s_waitcnt vmcnt(0)""")
    any_sent(range(24, 32), 20)
    A(f"""s_cbranch_vccz L_qok
    s_add_u32 s41, s41, 1
    s_cmp_lt_u32 s41, {SPIN}
    s_cbranch_scc1 {l}
    L_qok:""")
    stamp(7)
    for r in range(4): A(f"v_permlane32_swap_b32 v{24+r}, v{28+r}")
    for r in range(4): A(f"v_add_f32 v{24+r}, v{24+r}, v{28+r}")
    A("""v_permlane16_swap_b32 v24, v26
    v_permlane16_swap_b32 v25, v27
    v_add_f32 v24, v24, v26
    v_add_f32 v25, v25, v27
    v_cvt_pk_bf16_f32 v24, v24, v25
    v_min_u32 v24, s52, v24
    ds_write_b32 v17, v24""")
    wait_flag(6, F_K, 20)
    for t in range(2):
        for kk in range(4):
            A(f"ds_read_b128 v[{48+16*t+4*kk}:{51+16*t+4*kk}], v{102+kk} offset:{L_K + t*4096}")
    for r in range(8, 16): A(f"v_mov_b32 v{r}, 0")
    l = lab("ql")
    A(f"{l}:")
    for kk in range(4): A(f"ds_read_b128 v[{24+4*kk}:{27+4*kk}], v18 offset:{64*kk}")
    A("s_waitcnt lgkmcnt(0)")
    any_sent(range(24, 40), 20)
    loop_back(l)
    stamp(8)
    for kk in range(4):
        for t in range(2):
            A(f"v_mfma_f32_16x16x32_bf16 v[{8+4*t}:{11+4*t}], v[{48+16*t+4*kk}:{51+16*t+4*kk}], v[{24+4*kk}:{27+4*kk}], v[{8+4*t}:{11+4*t}]")
    A("s_mov_b32 s42, 0x3db504f3\ns_mov_b32 s43, 0x3fb8aa3b")
    for rnd in range(2):
        for i in range(4): A(f"v_cvt_pk_bf16_f32 v{24+i}, v{8+2*i}, v{9+2*i}")
        for i in range(4): A(f"v_lshlrev_b32 v{8+2*i}, 16, v{24+i}\nv_and_b32 v{9+2*i}, s36, v{24+i}")
        if rnd == 0:
            for i in range(8): A(f"v_mul_f32 v{8+i}, s42, v{8+i}")
    A("""v_max3_f32 v24, v8, v9, v10
    v_max3_f32 v25, v11, v12, v13
    v_max3_f32 v24, v24, v14, v15
    v_max_f32 v24, v24, v25
    v_mov_b32 v25, v24
    v_permlane32_swap_b32 v25, v24
    v_max_f32 v24, v24, v25
    v_mov_b32 v25, v24
    v_permlane16_swap_b32 v25, v24
    v_max_f32 v24, v24, v25
    v_mul_f32 v24, s43, v24""")
    for i in range(8): A(f"v_fma_f32 v{8+i}, v{8+i}, s43, -v24")
    for i in range(8): A(f"v_exp_f32 v{8+i}, v{8+i}")
    A("""v_add_f32 v25, v8, v9
    v_add_f32 v26, v10, v11
    v_add_f32 v27, v12, v13
    v_add_f32 v28, v14, v15
    v_add_f32 v25, v25, v26
    v_add_f32 v27, v27, v28
    v_add_f32 v25, v25, v27
    v_mov_b32 v26, v25
    v_permlane32_swap_b32 v26, v25
    v_add_f32 v25, v25, v26
    v_mov_b32 v26, v25
    v_permlane16_swap_b32 v26, v25
    v_add_f32 v25, v25, v26
    v_min_u32 v26, s52, v24
    v_min_u32 v27, s52, v25
    s_mov_b64 exec, 15
    ds_write_b64 v112, v[26:27]
    s_mov_b64 exec, -1""")
    l = lab("ml")
    A(f"""{l}:
    ds_read_b128 v[28:31], v111
    ds_read_b128 v[32:35], v111 offset:16
    s_waitcnt lgkmcnt(0)""")
    any_sent(range(28, 36), 20)
    loop_back(l)
    A("""v_max3_f32 v26, v28, v30, v32
    v_max_f32 v26, v26, v34
    v_sub_f32 v28, v28, v26
    v_sub_f32 v30, v30, v26
    v_sub_f32 v32, v32, v26
    v_sub_f32 v34, v34, v26
    v_sub_f32 v24, v24, v26
    v_exp_f32 v28, v28
    v_exp_f32 v30, v30
    v_exp_f32 v32, v32
    v_exp_f32 v34, v34
    v_exp_f32 v24, v24
    v_mul_f32 v27, v28, v29
    v_fmac_f32 v27, v30, v31
    v_fmac_f32 v27, v32, v33
    v_fmac_f32 v27, v34, v35
    v_rcp_f32 v28, v27
    v_log_f32 v29, v27
    v_mul_f32 v24, v24, v28""")
    for i in range(8): A(f"v_mul_f32 v{8+i}, v{8+i}, v24")
    for i in range(4): A(f"v_cvt_pk_bf16_f32 v{8+i}, v{8+2*i}, v{9+2*i}")
    for i in range(4): A(f"v_min_u32 v{8+i}, s52, v{8+i}")
    A(f"""v_add_f32 v29, v29, v26
    v_min_u32 v29, s52, v29
    s_mov_b64 exec, s[50:51]
    ds_write_b128 v110, v[8:11]
    s_mov_b64 exec, -1
    s_cmp_eq_u32 s30, 0
    s_cbranch_scc0 L_nolse
    v_lshlrev_b32 v28, 2, v0
    s_mov_b64 exec, 15
    buffer_store_dword v29, v28, s[32:35], s38 offen offset:{B_LSE} sc1
    s_mov_b64 exec, -1
    L_nolse:""")
    A(f"""v_lshrrev_b32 v16, 3, v0
    v_lshlrev_b32 v16, 12, v16
    v_and_b32 v17, 7, v0
    v_lshl_add_u32 v113, v17, 4, v16
    v_lshl_add_u32 v114, v19, 2, v16
    s_lshr_b32 s44, s29, 2
    s_lshl_b32 s44, s44, 17
    s_and_b32 s37, s30, 1
    s_lshl_b32 s37, s37, 16
    s_add_u32 s44, s44, s37
    s_add_u32 s45, s44, 32768
    s_and_b32 s37, s29, 3
    s_lshl_b32 s37, s37, 8
    s_lshr_b32 s39, s30, 1
    s_lshl_b32 s39, s39, 7
    s_add_u32 s37, s37, s39
    s_add_u32 s46, s44, s37
    s_add_u32 s47, s45, s37
    v_lshlrev_b32 v115, 4, v17
    v_lshl_add_u32 v115, v5, 2, v115
    s_and_b32 s37, s30, 1
    s_mul_i32 s37, s37, {OSTR}
    s_add_u32 s37, s37, s39
    s_add_u32 s37, s37, {L_O}
    v_add_u32 v115, s37, v115
    v_and_b32 v17, 1, v0
    v_mul_u32_u24 v116, {OSTR}, v17
    v_lshl_add_u32 v116, v5, 4, v116
    v_add_u32 v116, {L_O}, v116
    v_lshlrev_b32 v117, 7, v17
    v_lshl_add_u32 v117, v5, 4, v117
    v_add_u32 v117, {L_ACT}, v117
    v_lshlrev_b32 v118, 5, v5
    v_lshl_add_u32 v118, v4, 4, v118
    s_lshl_b32 s37, s30, 7
    v_add_u32 v118, s37, v118""")
    for r in range(12, 20): A(f"v_mov_b32 v{r}, 0")
    l = lab("pl")
    A(f"{l}:")
    for kk in range(4): A(f"ds_read_b128 v[{24+4*kk}:{27+4*kk}], v108 offset:{256*kk}")
    A("s_waitcnt lgkmcnt(0)")
    any_sent(range(24, 40), 20)
    loop_back(l)
    stamp(9)
    wait_flag(6, F_V, 20)
    stamp(10)
    for kk in range(4):
        for t in range(2):
            for u in range(2):
                r = 48 + 16 * t + 4 * kk + 2 * u
                A(f"ds_read_b64_tr_b16 v[{r}:{r+1}], v{100+t} offset:{L_V + kk*8192 + u*4096}")
    for kk in range(4):
        A(f"s_waitcnt lgkmcnt({12 - 4*kk})")
        for t in range(2):
            A(f"v_mfma_f32_16x16x32_bf16 v[{12+4*t}:{15+4*t}], v[{48+16*t+4*kk}:{51+16*t+4*kk}], v[{24+4*kk}:{27+4*kk}], v[{12+4*t}:{15+4*t}]")
    for i in range(4): A(f"v_cvt_pk_bf16_f32 v{8+i}, v{12+2*i}, v{13+2*i}")
    for i in range(4): A(f"v_min_u32 v{8+i}, s52, v{8+i}")
    A(f"""s_mov_b64 exec, s[50:51]
    buffer_store_dwordx4 v[8:11], v109, s[32:35], s38 offen offset:{B_OP} sc1
    s_mov_b64 exec, -1
    s_mov_b32 s41, 0""")
    stamp(11)
    l = lab("lg")
    A(f"""{l}:
    buffer_load_dword v20, v114, s[32:35], s44 offen offset:{B_LSE} sc1
    buffer_load_dword v21, v114, s[32:35], s45 offen offset:{B_LSE} sc1
    buffer_load_dwordx4 v[24:27], v113, s[32:35], s46 offen offset:{B_OP} sc1
    buffer_load_dwordx4 v[28:31], v113, s[32:35], s47 offen offset:{B_OP} sc1
    s_waitcnt vmcnt(2)
    v_max_u32 v22, v20, v21
    v_cmp_eq_u32 vcc, -1, v22
    s_cbranch_vccz L_lseok
    s_waitcnt vmcnt(0)
    s_add_u32 s41, s41, 1
    s_cmp_lt_u32 s41, {SPIN}
    s_cbranch_scc1 {l}
    L_lseok:
    v_max_f32 v22, v20, v21
    v_mov_b32 v23, v22
    v_permlane32_swap_b32 v23, v22
    v_max_f32 v22, v22, v23
    v_mov_b32 v23, v22
    v_permlane16_swap_b32 v23, v22
    v_max_f32 v22, v22, v23
    v_max_f32 v22, v22, v22 row_ror:8
    v_sub_f32 v20, v20, v22
    v_sub_f32 v21, v21, v22
    v_exp_f32 v20, v20
    v_exp_f32 v21, v21
    v_add_f32 v22, v20, v21
    v_mov_b32 v23, v22
    v_permlane32_swap_b32 v23, v22
    v_add_f32 v22, v22, v23
    v_mov_b32 v23, v22
    v_permlane16_swap_b32 v23, v22
    v_add_f32 v22, v22, v23
    v_add_f32 v22, v22, v22 row_ror:8
    v_rcp_f32 v22, v22
    v_mul_f32 v20, v20, v22
    v_mul_f32 v21, v21, v22""")
    for r in range(12, 16): A(f"v_mov_b32 v{r}, 0")
    wait_flag(6, F_W3, 22)
    trw(L_WO, 4, 48)
    trw(L_W2, 2, 64)
    wait_flag(6, F_ACT, 22)
    A("ds_read_b128 v[72:75], v117\nds_read_b128 v[76:79], v117 offset:64\ns_waitcnt lgkmcnt(0)")
    for kk in range(2):
        A(f"v_mfma_f32_16x16x32_bf16 v[12:15], v[{64+4*kk}:{67+4*kk}], v[{72+4*kk}:{75+4*kk}], v[12:15]")
    stamp(12)
    l = lab("og")
    A(f"""s_mov_b32 s41, 0
    s_branch L_ochk
    {l}:
    buffer_load_dwordx4 v[24:27], v113, s[32:35], s46 offen offset:{B_OP} sc1
    buffer_load_dwordx4 v[28:31], v113, s[32:35], s47 offen offset:{B_OP} sc1
    L_ochk:
    s_waitcnt vmcnt(0)""")
    any_sent(range(24, 32), 22)
    A(f"""s_cbranch_vccz L_ook
    s_add_u32 s41, s41, 1
    s_cmp_lt_u32 s41, {SPIN}
    s_cbranch_scc1 {l}
    L_ook:""")
    stamp(13)
    for i in range(4):
        A(f"v_lshlrev_b32 v{32+2*i}, 16, v{24+i}\nv_and_b32 v{33+2*i}, s36, v{24+i}")
    for i in range(8): A(f"v_mul_f32 v{32+i}, v20, v{32+i}")
    for i in range(4):
        A(f"v_lshlrev_b32 v{40+2*i}, 16, v{28+i}\nv_and_b32 v{41+2*i}, s36, v{28+i}")
    for i in range(8): A(f"v_fmac_f32 v{32+i}, v21, v{40+i}")
    for e in range(4): A(f"v_permlane32_swap_b32 v{32+e}, v{36+e}")
    for e in range(4): A(f"v_add_f32 v{32+e}, v{32+e}, v{36+e}")
    A("""v_permlane16_swap_b32 v32, v34
    v_permlane16_swap_b32 v33, v35
    v_add_f32 v32, v32, v34
    v_add_f32 v33, v33, v35
    v_add_f32 v32, v32, v32 row_ror:8
    v_add_f32 v33, v33, v33 row_ror:8
    v_cvt_pk_bf16_f32 v32, v32, v33
    v_min_u32 v32, s52, v32
    ds_write_b32 v115, v32""")
    l = lab("ol")
    A(f"{l}:")
    for kk in range(4): A(f"ds_read_b128 v[{24+4*kk}:{27+4*kk}], v116 offset:{64*kk}")
    A("s_waitcnt lgkmcnt(0)")
    any_sent(range(24, 40), 22)
    loop_back(l)
    for kk in range(4):
        A(f"v_mfma_f32_16x16x32_bf16 v[12:15], v[{48+4*kk}:{51+4*kk}], v[{24+4*kk}:{27+4*kk}], v[12:15]")
    for r in range(12, 16): A(f"v_min_u32 v{r}, s52, v{r}")
    A(f"""s_mov_b64 exec, s[48:49]
    buffer_store_dwordx4 v[12:15], v118, s[32:35], s38 offen offset:{B_FP} sc1
    s_mov_b64 exec, -1""")
    stamp(14)
    A("s_cmp_eq_u32 s29, 0\ns_cbranch_scc0 L_cend")
    A(f"""s_lshl_b32 s44, s28, 17
    s_lshl_b32 s37, s30, 7
    s_add_u32 s44, s44, s37
    s_add_u32 s45, s44, 32768
    s_add_u32 s46, s44, 65536
    s_add_u32 s47, s44, 98304
    v_and_b32 v16, 1, v0
    v_lshlrev_b32 v16, 10, v16
    v_bfe_u32 v17, v0, 1, 2
    v_lshl_add_u32 v16, v17, 3, v16
    v_lshrrev_b32 v17, 5, v0
    v_lshl_add_u32 v16, v17, 2, v16
    s_lshl_b32 s37, s28, 7
    s_lshl_b32 s39, s30, 5
    s_add_u32 s37, s37, s39
    v_add_u32 v16, s37, v16
    global_load_dword v18, v16, s[4:5]
    s_mov_b32 s41, 0""")
    l = lab("fg")
    A(f"{l}:")
    for i in range(4):
        A(f"buffer_load_dwordx4 v[{24+4*i}:{27+4*i}], v113, s[32:35], s{44+i} offen offset:{B_FP} sc1")
    A("s_waitcnt vmcnt(0)")
    any_sent(range(24, 40), 22)
    A(f"""s_cbranch_vccz L_fok
    s_add_u32 s41, s41, 1
    s_cmp_lt_u32 s41, {SPIN}
    s_cbranch_scc1 {l}
    L_fok:
    v_pk_add_f32 v[24:25], v[24:25], v[28:29]
    v_pk_add_f32 v[26:27], v[26:27], v[30:31]
    v_pk_add_f32 v[32:33], v[32:33], v[36:37]
    v_pk_add_f32 v[34:35], v[34:35], v[38:39]
    v_pk_add_f32 v[24:25], v[24:25], v[32:33]
    v_pk_add_f32 v[26:27], v[26:27], v[34:35]
    v_permlane32_swap_b32 v24, v26
    v_permlane32_swap_b32 v25, v27
    v_add_f32 v24, v24, v26
    v_add_f32 v25, v25, v27
    v_mov_b32 v26, v24
    v_mov_b32 v27, v25
    v_permlane16_swap_b32 v26, v24
    v_permlane16_swap_b32 v27, v25
    v_add_f32 v24, v24, v26
    v_add_f32 v25, v25, v27
    v_add_f32 v24, v24, v24 row_ror:8
    v_add_f32 v25, v25, v25 row_ror:8
    v_lshlrev_b32 v26, 16, v18
    v_and_b32 v27, s36, v18
    v_add_f32 v24, v24, v26
    v_add_f32 v25, v25, v27
    v_cvt_pk_bf16_f32 v24, v24, v25
    s_mov_b32 s40, 0xff
    s_mov_b32 s41, 0xff
    s_mov_b64 exec, s[40:41]
    global_store_dword v16, v24, s[22:23]
    s_mov_b64 exec, -1""")
    A("s_or_b32 s37, s2, s30\ns_cbranch_scc1 L_cend")
    A("ds_read_b32 v20, v6 offset:32\nv_mov_b32 v21, 0\ns_waitcnt lgkmcnt(0)\nv_add_u32 v20, 1, v20\ns_mov_b64 exec, 1\nglobal_store_dword v21, v20, s[26:27] sc1\ns_mov_b64 exec, -1")
    A("L_cend:")
    stamp(15)
    if stamps: A(f"v_writelane_b32 v{VST}, s94, 0")
    if dbgout:
        A(f"""s_cmp_eq_u32 s30, 0
        s_cbranch_scc0 L_end
        s_cmp_lt_u32 s2, 8
        s_cbranch_scc0 L_end
        s_lshl_b32 s37, s2, 2
        s_add_u32 s37, s37, 32
        v_mov_b32 v20, s37
        v_mov_b32 v21, s98
        s_mov_b64 exec, 1
        global_store_dword v20, v21, s[24:25]
        s_cmp_eq_u32 s2, 0
        s_cbranch_scc0 L_end""")
        for i, k in enumerate([0, 2, 4, 7, 8, 10, 13, 14]):
            A(f"v_readlane_b32 s37, v{VST}, {k}\nv_mov_b32 v20, {4*i}\nv_mov_b32 v21, s37\nglobal_store_dword v20, v21, s[24:25]")
    else:
        dump_stamps()
    A("L_end:\ns_endpgm")
    A(f""".section .rodata,"a"
    .p2align 6
    .amdhsa_kernel {NAME}
    .amdhsa_next_free_vgpr 128
    .amdhsa_next_free_sgpr 102
    .amdhsa_accum_offset 128
    .amdhsa_group_segment_fixed_size 0
    .amdhsa_kernarg_size 96
    .amdhsa_user_sgpr_count 2
    .amdhsa_user_sgpr_kernarg_segment_ptr 1
    .amdhsa_system_sgpr_workgroup_id_x 1
    .amdhsa_float_denorm_mode_32 3
    .end_amdhsa_kernel""")
    return A.finish()

if __name__ == "__main__":
    out = sys.argv[1] if len(sys.argv) > 1 else "k.s"
    kw = {}
    for a in sys.argv[2:]:
        if '=' in a:
            k, v = a.split('=', 1); kw[k] = eval(v)
        else: kw[a] = True
    open(out, "w").write(gen(**kw))
```

```python
import sys
from asmlib import Asm

NAME = "parallel_sum__sliding_block_cached__dense_activation_mish__decode_kernel"

L_K, L_V, L_WQ, L_WO, L_W1, L_W2 = 0x0, 0x8000, 0x10000, 0x14000, 0x18000, 0x1A000
L_S = 0x1C000
L_Q, L_P, L_O, L_ML, L_FLG = L_S, L_S + 0x500, L_S + 0x900, L_S + 0xB40, L_S + 0xC00
L_XN, L_ACT = 0x1D000, 0x1D900
LDS_BYTES = 0x1DA00
QSTR, XSTR, OSTR = 272, 1040, 272
F_WQ, F_W1, F_K, F_V, F_W3, F_CLR, F_OK, F_ACT = [4 * i for i in range(8)]
W_F1, W_F2, W_BLK = 0x1000, 0x2000, 0x10000
B_QP, B_HP, B_OP, B_FP, B_LSE = 0, 512, 1024, 2048, 2560
SPIN = 1 << 18

def gen(depth=26, stamps=False, amp=None, ampwg=0, dbgout=False, safe=True, fsleep=0, presleep=0, noflag=False, noclear=False, order=('wq', 'w1', 'k', 'v', 'wo', 'w2'), header=""):
    A = Asm()
    uid = [0]
    def lab(p):
        uid[0] += 1
        return f"L_{p}{uid[0]}"
    VST = 127
    def stamp(k):
        if stamps:
            A(f"s_memrealtime s[98:99]\ns_waitcnt lgkmcnt(0)\nv_writelane_b32 v{VST}, s98, {k}")
    def dump_stamps():
        if stamps:
            A(f"""s_lshl_b32 s96, s2, 3
            s_add_u32 s96, s96, s3
            s_lshl_b32 s96, s96, 6
            s_add_u32 s96, s96, 0x8000000
            s_add_u32 s96, s26, s96
            s_addc_u32 s97, s27, 0
            s_mov_b64 exec, 0xffff
            v_mbcnt_lo_u32_b32 v126, -1, 0
            v_lshlrev_b32 v126, 2, v126
            global_store_dword v126, v{VST}, s[96:97]""")
    def loop_back(l):
        if safe:
            o = lab("out")
            A(f"""s_add_u32 s100, s100, 1
            s_bitcmp1_b32 s100, 21
            s_cbranch_scc1 {o}
            s_cbranch_vccnz {l}
            {o}:""")
        else:
            A(f"s_cbranch_vccnz {l}")
    def wait_flag(vaddr, off, vt):
        l = lab("wf")
        A(f"""{l}:
        ds_read_b32 v{vt}, v{vaddr} offset:{off}
        s_waitcnt lgkmcnt(0)
        v_cmp_eq_u32 vcc, -1, v{vt}""")
        loop_back(l)
    def set_flag(vaddr, off, vdata):
        A(f"""s_mov_b64 exec, 1
        ds_write_b32 v{vaddr}, v{vdata} offset:{off}
        s_mov_b64 exec, -1""")
    def any_sent(regs, vt):
        regs = list(regs)
        A(f"v_max3_u32 v{vt}, v{regs[0]}, v{regs[1]}, v{regs[2] if len(regs) > 2 else regs[1]}")
        rest = regs[3:]
        while rest:
            a = rest[0]; b = rest[1] if len(rest) > 1 else rest[0]
            A(f"v_max3_u32 v{vt}, v{vt}, v{a}, v{b}")
            rest = rest[2:]
        A(f"v_cmp_eq_u32 vcc, -1, v{vt}")
    def bf16r(d, s):
        A(f"v_cvt_pk_bf16_f32 v{d}, v{s}, v{s}\nv_lshlrev_b32 v{d}, 16, v{d}")
    def ws_srd(d):
        A(f"""s_add_u32 s{d}, s26, {W_BLK}
        s_addc_u32 s{d+1}, s27, 0
        s_mov_b32 s{d+2}, 0x100000
        s_mov_b32 s{d+3}, 0x00020000""")

    A(header)
    A(f"; @launch grid=(256,1,1) block=(384,1,1) lds={LDS_BYTES}")
    A(f""".amdgcn_target "amdgcn-amd-amdhsa--gfx950"
    .text
    .globl {NAME}
    .p2align 8
    .type {NAME},@function
    {NAME}:""")
    A("""s_load_dwordx16 s[4:19], s[0:1], 0
    s_load_dwordx8 s[20:27], s[0:1], 64
    s_cmp_ge_u32 s2, 256
    s_cbranch_scc1 L_end
    v_lshrrev_b32 v1, 6, v0
    v_and_b32 v0, 63, v0
    v_readfirstlane_b32 s3, v1
    s_and_b32 s28, s2, 7
    s_lshr_b32 s29, s2, 3""")
    if stamps:
        A(f"s_memrealtime s[94:95]\nv_mov_b32 v{VST}, 0")
    A("""s_cmp_eq_u32 s3, 0
    s_cbranch_scc0 L_notloader""")

    A("s_setprio 3")
    A("""v_lshrrev_b32 v2, 3, v0
    v_and_b32 v3, 6, v2
    v_xor_b32 v3, v3, v0
    v_and_b32 v3, 7, v3
    v_lshlrev_b32 v3, 4, v3
    v_lshrrev_b32 v4, 5, v0
    v_and_b32 v5, 3, v2
    v_lshl_add_u32 v6, v4, 3, v5
    v_lshl_add_u32 v10, v6, 13, v3
    v_add_u32 v11, 31744, v10
    s_mov_b32 s34, 4194304
    s_mov_b32 s35, 0x00020000
    s_movk_i32 s60, 0x800
    s_lshr_b32 s57, s29, 3
    s_lshl_b32 s57, s57, 20
    s_lshl_b32 s58, s28, 10
    s_add_u32 s57, s57, s58
    s_and_b32 s58, s29, 7
    s_lshl_b32 s56, s58, 11
    s_lshl_b32 s58, s58, 7
    s_add_u32 s57, s57, s58
    s_waitcnt lgkmcnt(0)
    s_mov_b32 s32, s10
    s_mov_b32 s33, s11""")
    info = dict(wq=(8, 32, 10, L_WQ, F_WQ), w1=(4, 36, 12, L_W1, F_W1), k=(16, 40, 14, L_K, F_K), v=(16, 44, 14, L_V, F_V),
                wo=(8, 48, 16, L_WO, None), w2=(4, 52, 18, L_W2, None))
    last = order[-1]
    flag_at = {}
    cum = 0
    for m in order:
        cum += 2 * info[m][0]
        f = info[m][4]
        if m in ('wo', 'w2'):
            if all(order.index(z) <= order.index(m) for z in ('wo', 'w2')): f = F_W3
        if f is not None: flag_at[cum] = f
    def setup(m):
        if m == 'wq': return
        if m == 'w1':
            A("""v_mul_u32_u24 v12, 3584, v6
            v_add_u32 v12, v12, v3
            v_add_u32 v13, 13312, v12
            s_mov_b32 s36, s16
            s_mov_b32 s37, s17
            s_cmp_lt_u32 s29, 28
            s_cselect_b32 s38, 1835008, 0
            s_mov_b32 s39, 0x00020000
            s_mul_i32 s57, s28, 229376
            s_lshl_b32 s58, s29, 7
            s_add_u32 s57, s57, s58
            s_and_b32 s56, s29, 3
            s_lshl_b32 s56, s56, 11""")
        elif m in ('k', 'v'):
            p = 6 if m == 'k' else 8
            d = info[m][1]
            A(f"""v_lshrrev_b32 v7, 4, v0
            v_lshlrev_b32 v8, 1, v7
            v_xor_b32 v8, v8, v0
            v_and_b32 v8, 15, v8
            v_lshlrev_b32 v8, 4, v8
            v_lshl_add_u32 v14, v7, 8, v8
            v_xor_b32 v15, 128, v14
            s_mov_b32 s{d}, s{p}
            s_mov_b32 s{d+1}, s{p+1}
            s_mov_b32 s{d+2}, 33554432
            s_mov_b32 s{d+3}, 0x00020000
            s_lshr_b32 s57, s29, 4
            s_lshl_b32 s57, s57, 3
            s_add_u32 s57, s57, s28
            s_lshl_b32 s57, s57, 21
            s_and_b32 s58, s29, 15
            s_lshl_b32 s56, s58, 11
            s_lshl_b32 s58, s58, 15
            s_add_u32 s57, s57, s58
            s_add_u32 s57, s57, 1572864""")
        elif m == 'wo':
            A("""v_lshl_add_u32 v7, v4, 7, v5
            v_lshl_add_u32 v16, v7, 10, v3
            v_add_u32 v17, 15360, v16
            s_mov_b32 s48, s12
            s_mov_b32 s49, s13
            s_mov_b32 s50, 4194304
            s_mov_b32 s51, 0x00020000
            s_lshr_b32 s57, s29, 2
            s_lshl_b32 s57, s57, 19
            s_and_b32 s58, s29, 3
            s_lshl_b32 s58, s58, 15
            s_add_u32 s57, s57, s58
            s_lshl_b32 s58, s28, 7
            s_add_u32 s57, s57, s58
            s_and_b32 s56, s29, 7
            s_lshl_b32 s56, s56, 11""")
        elif m == 'w2':
            A("""v_lshl_add_u32 v18, v6, 10, v3
            v_add_u32 v19, 3072, v18
            s_mov_b32 s52, s20
            s_mov_b32 s53, s21
            s_cmp_lt_u32 s29, 28
            s_cselect_b32 s54, 1835008, 0
            s_mov_b32 s55, 0x00020000
            s_lshl_b32 s57, s29, 16
            s_lshl_b32 s58, s28, 7
            s_add_u32 s57, s57, s58
            s_and_b32 s56, s29, 3
            s_lshl_b32 s56, s56, 11""")
    issued = 0
    done_barrier = False
    flagged = set()
    def landed(n):
        for c in sorted(flag_at):
            if c <= n and c not in flagged:
                flagged.add(c)
                set_flag(20, flag_at[c], 20)
                stamp(2 + len(flagged))
    for m in order:
        npair, srd, vo, lbase, _ = info[m]
        setup(m)
        for p in range(npair):
            if issued + 2 > depth:
                if not done_barrier:
                    A(f"v_mov_b32 v20, {L_FLG}\ns_barrier")
                    stamp(1)
                    done_barrier = True
                A(f"s_waitcnt vmcnt({depth - 2})")
                landed(issued - (depth - 2))
            A(f"s_add_u32 m0, s56, {lbase}" if lbase else "s_mov_b32 m0, s56")
            if m == 'wq': A("s_lshl_b32 s58, s56, 6\ns_add_u32 s58, s58, s57")
            elif m == 'w1': A("s_mul_i32 s58, s56, 28\ns_add_u32 s58, s58, s57")
            elif m == 'w2': A("s_lshl_b32 s58, s56, 3\ns_add_u32 s58, s58, s57")
            elif m == 'wo': A("s_and_b32 s58, s56, s60\ns_lshl_b32 s58, s58, 7\ns_and_b32 s59, s56, 0x3000\ns_add_u32 s58, s58, s59\ns_add_u32 s58, s58, s57")
            else: A("s_add_u32 s58, s56, s57")
            A(f"buffer_load_dwordx4 v{vo}, s[{srd}:{srd+3}], s58 offen nt lds")
            A(f"buffer_load_dwordx4 v{vo+1}, s[{srd}:{srd+3}], s58 offen offset:1024 nt lds")
            issued += 2
            if p != npair - 1:
                A(f"s_add_u32 s56, s56, s60\ns_and_b32 s56, s56, {npair * 2048 - 1}")
    for c in sorted(flag_at):
        if c not in flagged:
            A(f"s_waitcnt vmcnt({issued - c})")
            landed(c)
    if stamps: A(f"v_writelane_b32 v{VST}, s94, 0")
    dump_stamps()
    A("s_endpgm")

    A("L_notloader:")
    A("s_cmp_eq_u32 s3, 1\ns_cbranch_scc0 L_compute")
    A("""v_lshlrev_b32 v2, 4, v0
    v_mov_b32 v4, -1
    v_mov_b32 v5, -1
    v_mov_b32 v6, -1
    v_mov_b32 v7, -1
    s_lshl_b32 s30, s28, 5
    s_add_u32 s30, s30, s29
    s_lshl_b32 s31, s30, 12
    s_waitcnt lgkmcnt(0)
    s_load_dword s5, s[26:27], 0""")
    if stamps: A(f"v_writelane_b32 v{VST}, s94, 0")
    A("s_getreg_b32 s4, hwreg(HW_REG_XCC_ID)")
    ws_srd(8)
    if not noclear: A(f"""buffer_store_dwordx4 v[4:7], v2, s[8:11], s31 offen sc1
    buffer_store_dwordx4 v[4:7], v2, s[8:11], s31 offen offset:1024 sc1
    buffer_store_dwordx4 v[4:7], v2, s[8:11], s31 offen offset:2048 sc1""")
    A(f"""s_barrier
    v_mov_b32 v20, {L_FLG}
    s_and_b32 s4, s4, 15
    s_lshl_b32 s6, s28, 7
    s_add_u32 s6, s6, {W_F1}
    s_add_u32 s12, s26, s6
    s_addc_u32 s13, s27, 0
    s_lshr_b32 s6, s29, 2
    s_lshl_b32 s6, s6, 7
    s_add_u32 s6, s6, {W_F1}
    s_add_u32 s14, s26, s6
    s_addc_u32 s15, s27, 0
    s_lshl_b32 s6, s29, 5
    s_add_u32 s6, s6, {W_F2}
    s_add_u32 s16, s26, s6
    s_addc_u32 s17, s27, 0
    s_lshl_b32 s6, s29, 2
    v_mov_b32 v8, s6
    s_lshl_b32 s6, s28, 2
    v_mov_b32 v9, s6
    s_waitcnt lgkmcnt(0)
    s_mul_i32 s20, s5, 0x9E3779B1
    s_add_u32 s20, s20, 0x7F4A7C15
    s_and_b32 s20, s20, -16
    s_or_b32 s21, s20, s4
    v_mov_b32 v10, s21
    s_waitcnt vmcnt(0)""")
    set_flag(20, F_CLR, 20)
    A("""s_mov_b64 exec, 1
    global_store_dword v8, v10, s[12:13] sc1
    global_store_dword v9, v10, s[16:17] sc1
    s_mov_b64 exec, -1""")
    stamp(1)
    A("""v_and_b32 v11, 7, v0
    v_lshlrev_b32 v11, 2, v11
    v_lshrrev_b32 v12, 5, v0
    v_lshl_add_u32 v11, v12, 1, v11
    v_bfe_u32 v12, v0, 4, 1
    v_add_u32 v11, v11, v12
    v_bfe_u32 v12, v0, 3, 1
    v_lshl_add_u32 v11, v12, 5, v11
    s_min_u32 s6, s29, 27
    s_lshl_b32 s6, s6, 6
    v_add_u32 v13, s6, v11
    v_lshlrev_b32 v13, 1, v13
    global_load_ushort v14, v13, s[18:19]
    s_mov_b32 s7, 0""")
    l = lab("fl")
    if presleep: A(f"s_sleep {presleep}")
    if noflag: A("s_mov_b32 s6, 0\ns_branch L_flagsok")
    A(f"{l}:")
    if fsleep: A(f"s_sleep {fsleep}")
    A(f"""s_load_dwordx16 s[32:47], s[12:13], 0 glc
    s_load_dwordx16 s[48:63], s[12:13], 64 glc
    s_load_dwordx16 s[64:79], s[14:15], 0 glc
    s_load_dwordx16 s[80:95], s[14:15], 64 glc
    s_waitcnt lgkmcnt(0)""")
    def chains(lo, n, first):
        for i in range(0, n, 2):
            r = f"s[{lo+i}:{lo+i+1}]"
            if first and i == 0:
                A(f"s_mov_b64 s[22:23], {r}\ns_mov_b64 s[24:25], {r}")
            else:
                A(f"s_and_b64 s[22:23], s[22:23], {r}\ns_or_b64 s[24:25], s[24:25], {r}")
    def fcheck(ok, l):
        A(f"""s_and_b32 s22, s22, s23
        s_or_b32 s24, s24, s25
        s_and_b32 s22, s22, -16
        s_and_b32 s24, s24, -16
        s_xor_b32 s22, s22, s20
        s_xor_b32 s24, s24, s20
        s_or_b32 s22, s22, s24
        s_cbranch_scc0 {ok}
        s_add_u32 s7, s7, 1
        s_cmp_lt_u32 s7, {SPIN}
        s_cbranch_scc1 {l}
        {ok}:""")
    chains(32, 32, True)
    A("""s_and_b32 s22, s22, s23
    s_or_b32 s24, s24, s25
    s_cmp_eq_u32 s22, s24
    s_cselect_b32 s6, 1, 0
    s_mov_b32 s23, s22
    s_mov_b32 s25, s24""")
    chains(64, 32, False)
    fcheck("L_flagsok", l)
    A("v_mov_b32 v15, s6")
    set_flag(20, F_OK, 15)
    stamp(2)
    A("v_mov_b32 v15, s5")
    A(f"""v_mov_b32 v40, 0
    v_mov_b32 v41, 0
    s_cmp_lt_u32 s29, 28
    s_cbranch_scc0 L_actw
    v_lshrrev_b32 v16, 3, v0
    v_lshlrev_b32 v16, 17, v16
    v_and_b32 v17, 7, v0
    v_lshl_add_u32 v16, v17, 4, v16
    s_lshl_b32 s31, s29, 12
    s_mov_b32 s7, 0""")
    l = lab("f2")
    A(f"""{l}:
    s_load_dwordx8 s[32:39], s[16:17], 0 glc
    s_waitcnt lgkmcnt(0)""")
    chains(32, 8, True)
    fcheck("L_f2ok", l)
    A("s_mov_b32 s7, 0")
    l = lab("hp")
    A(f"{l}:")
    for i in range(4):
        b, half = i & 1, i >> 1
        A(f"buffer_load_dwordx4 v[{24+4*i}:{27+4*i}], v16, s[8:11], s31 offen offset:{B_HP + b*256 + half*128} sc1")
    A("s_waitcnt vmcnt(0)")
    any_sent(range(24, 40), 18)
    A(f"""s_cbranch_vccz L_hpok
    s_sleep 8
    s_add_u32 s7, s7, 1
    s_cmp_lt_u32 s7, {SPIN}
    s_cbranch_scc1 {l}
    L_hpok:""")
    stamp(3)
    for i in range(4):
        r = 24 + 4 * i
        A(f"""v_permlane32_swap_b32 v{r}, v{r+2}
        v_permlane32_swap_b32 v{r+1}, v{r+3}
        v_add_f32 v{r}, v{r}, v{r+2}
        v_add_f32 v{r+1}, v{r+1}, v{r+3}""")
    for i in range(4):
        r = 24 + 4 * i
        A(f"v_permlane16_swap_b32 v{r}, v{r+1}\nv_add_f32 v{r}, v{r}, v{r+1}")
    for i in range(4):
        r = 24 + 4 * i
        A(f"v_add_f32 v{r}, v{r}, v{r} row_ror:8")
    A("""v_and_b32 v18, 8, v0
    v_cmp_eq_u32 vcc, 0, v18
    v_cndmask_b32 v40, v32, v24, vcc
    v_cndmask_b32 v41, v36, v28, vcc
    v_lshlrev_b32 v14, 16, v14
    s_mov_b32 s32, 0x3fb8aa3b
    s_mov_b32 s33, 0x3f317218""")
    for h in (40, 41):
        t = 44
        bf16r(h, h)
        A(f"v_add_f32 v{h}, v{h}, v14")
        bf16r(h, h)
        A(f"v_mul_f32 v{t}, s32, v{h}\nv_exp_f32 v{t}, -abs(v{t})")
        bf16r(t, t)
        A(f"""v_add_f32 v{t+1}, 1.0, v{t}
        v_log_f32 v{t+2}, v{t+1}
        v_add_f32 v{t+3}, -1.0, v{t+1}
        v_rcp_f32 v{t+3}, v{t+3}
        v_mul_f32 v{t+2}, s33, v{t+2}
        v_mul_f32 v{t+2}, v{t+2}, v{t}
        v_mul_f32 v{t+2}, v{t+2}, v{t+3}
        v_cmp_eq_f32 vcc, 1.0, v{t+1}
        v_cndmask_b32 v{t+2}, v{t+2}, v{t}, vcc""")
        bf16r(t+2, t+2)
        A(f"v_max_f32 v{t+1}, 0, v{h}\nv_add_f32 v{t+2}, v{t+2}, v{t+1}")
        bf16r(t+2, t+2)
        A(f"""v_mul_f32 v{t}, -2.0, v{t+2}
        v_mul_f32 v{t+1}, s32, v{t}
        v_exp_f32 v{t+1}, v{t+1}
        v_log_f32 v{t+3}, v{t+1}
        v_add_f32 v{t+4}, -1.0, v{t+1}
        v_mul_f32 v{t+3}, s33, v{t+3}
        v_rcp_f32 v{t+3}, v{t+3}
        v_mul_f32 v{t+5}, v{t+4}, v{t}
        v_mul_f32 v{t+5}, v{t+5}, v{t+3}
        v_cmp_eq_f32 vcc, 1.0, v{t+1}
        v_cndmask_b32 v{t+5}, v{t+5}, v{t}, vcc
        v_cmp_gt_f32 vcc, 0.5, v{t+1}
        v_cndmask_b32 v{t+5}, v{t+5}, v{t+4}, vcc
        v_add_f32 v{t+4}, 2.0, v{t+5}
        v_rcp_f32 v{t+4}, v{t+4}
        v_mul_f32 v{t+5}, v{t+5}, v{t+4}
        v_sub_f32 v{t+5}, 0, v{t+5}""")
        bf16r(t+5, t+5)
        A(f"v_mul_f32 v{h}, v{h}, v{t+5}\nv_cvt_pk_bf16_f32 v{h}, v{h}, v{h}")
    A(f"""L_actw:
    v_lshlrev_b32 v11, 1, v11
    v_add_u32 v11, {L_ACT}, v11
    ds_write_b16 v11, v40
    ds_write_b16 v11, v41 offset:128""")
    set_flag(20, 32, 15)
    set_flag(20, F_ACT, 20)
    stamp(4)
    dump_stamps()
    A("s_waitcnt lgkmcnt(0)\ns_endpgm")

    A("L_compute:")
    A(f"""s_mov_b32 s100, 0
    s_sub_u32 s30, s3, 2
    v_lshlrev_b32 v2, 4, v0
    s_lshl_b32 s31, s30, 10
    s_add_u32 s31, s31, {L_S}
    v_add_u32 v3, s31, v2
    v_mov_b32 v4, -1
    v_mov_b32 v5, -1
    v_mov_b32 v6, -1
    v_mov_b32 v7, -1
    ds_write_b128 v3, v[4:7]
    s_waitcnt lgkmcnt(0)
    global_load_dwordx4 v[8:11], v2, s[4:5]
    global_load_dwordx4 v[12:15], v2, s[4:5] offset:1024
    s_barrier""")
    ws_srd(32)
    A(f"""s_mov_b32 s36, 0xffff0000
    v_and_b32 v4, 15, v0
    v_lshrrev_b32 v5, 4, v0
    v_mov_b32 v6, {L_FLG}
    v_bfe_u32 v16, v0, 2, 2
    v_and_b32 v17, 1, v5
    v_lshl_add_u32 v16, v17, 2, v16
    v_bfe_u32 v18, v0, 1, 1
    s_lshl_b32 s37, s30, 1
    v_add_u32 v18, s37, v18
    v_and_b32 v19, 6, v16
    v_xor_b32 v18, v18, v19
    v_lshlrev_b32 v18, 4, v18
    v_and_b32 v19, 1, v0
    v_lshl_add_u32 v18, v19, 3, v18
    v_lshrrev_b32 v17, 5, v0
    v_lshl_add_u32 v17, v17, 4, v16
    v_lshl_add_u32 v7, v17, 7, v18
    v_add_u32 v7, {L_WQ}, v7
    v_bfe_u32 v18, v0, 1, 1
    s_lshl_b32 s37, s30, 2
    v_add_u32 v18, s37, v18
    v_lshlrev_b32 v17, 1, v16
    v_xor_b32 v18, v18, v17
    v_lshlrev_b32 v18, 4, v18
    v_lshl_add_u32 v18, v19, 3, v18
    v_lshrrev_b32 v17, 2, v0
    v_lshl_add_u32 v100, v17, 8, v18
    v_xor_b32 v101, 32, v100
    v_and_b32 v17, 7, v0
    v_lshlrev_b32 v17, 1, v17
    v_xor_b32 v17, v17, v5
    v_lshlrev_b32 v17, 4, v17
    v_lshl_add_u32 v17, v4, 8, v17
    s_lshl_b32 s37, s30, 13
    v_add_u32 v102, s37, v17
    v_xor_b32 v103, 64, v102
    v_xor_b32 v104, 128, v102
    v_xor_b32 v105, 192, v102
    v_and_b32 v17, 1, v0
    v_mul_u32_u24 v18, {XSTR}, v17
    v_lshl_add_u32 v106, v5, 4, v18
    s_lshl_b32 s37, s30, 6
    v_lshlrev_b32 v18, 8, v4
    v_lshl_add_u32 v18, v5, 4, v18
    v_add_u32 v107, s37, v18
    s_lshl_b32 s38, s28, 5
    s_add_u32 s38, s38, s29
    s_lshl_b32 s38, s38, 12
    v_add_u32 v3, {L_XN}, v2""")
    stamp(1)
    A("s_waitcnt vmcnt(0)")
    stamp(2)
    for b in range(2):
        for i in range(4):
            A(f"v_lshlrev_b32 v{16+8*b+2*i}, 16, v{8+4*b+i}\nv_and_b32 v{17+8*b+2*i}, s36, v{8+4*b+i}")
    def red2(a, b, t):
        A(f"""v_permlane32_swap_b32 v{a}, v{b}
        v_add_f32 v{a}, v{a}, v{b}
        v_mov_b32 v{t}, v{a}
        v_permlane16_swap_b32 v{t}, v{a}
        v_add_f32 v{a}, v{a}, v{t}
        v_add_f32 v{a}, v{a}, v{a} row_ror:8
        v_add_f32 v{a}, v{a}, v{a} row_ror:4
        v_add_f32 v{a}, v{a}, v{a} row_ror:2
        v_add_f32 v{a}, v{a}, v{a} row_ror:1""")
    for b in range(2):
        f = 16 + 8 * b
        A(f"""v_pk_add_f32 v[{32+4*b}:{33+4*b}], v[{f}:{f+1}], v[{f+2}:{f+3}]
        v_pk_add_f32 v[{34+4*b}:{35+4*b}], v[{f+4}:{f+5}], v[{f+6}:{f+7}]""")
    for b in range(2):
        A(f"v_pk_add_f32 v[{32+4*b}:{33+4*b}], v[{32+4*b}:{33+4*b}], v[{34+4*b}:{35+4*b}]")
    A("v_add_f32 v32, v32, v33\nv_add_f32 v36, v36, v37")
    red2(32, 36, 33)
    A("""v_mul_f32 v32, 0x3b000000, v32
    v_readlane_b32 s40, v32, 0
    v_readlane_b32 s42, v32, 32""")
    for b in range(2):
        f = 16 + 8 * b
        for i in range(4):
            A(f"v_pk_add_f32 v[{40+8*b+2*i}:{41+8*b+2*i}], v[{f+2*i}:{f+2*i+1}], s[{40+2*b}:{41+2*b}] op_sel_hi:[1,0] neg_lo:[0,1] neg_hi:[0,1]")
    for b in range(2):
        d = 40 + 8 * b
        A(f"v_pk_mul_f32 v[{34+2*b}:{35+2*b}], v[{d}:{d+1}], v[{d}:{d+1}]")
    for i in range(1, 4):
        for b in range(2):
            d = 40 + 8 * b + 2 * i
            A(f"v_pk_fma_f32 v[{34+2*b}:{35+2*b}], v[{d}:{d+1}], v[{d}:{d+1}], v[{34+2*b}:{35+2*b}]")
    A("v_add_f32 v34, v34, v35\nv_add_f32 v36, v36, v37")
    red2(34, 36, 33)
    A("v_mul_f32 v34, 0x3b000000, v34")
    bf16r(34, 34)
    A("v_add_f32 v34, 0x3727c5ac, v34")
    bf16r(34, 34)
    A("v_sqrt_f32 v34, v34")
    bf16r(34, 34)
    A("v_rcp_f32 v34, v34")
    bf16r(32, 32)
    A("""v_readlane_b32 s40, v32, 0
    v_readlane_b32 s42, v32, 32
    v_readlane_b32 s44, v34, 0
    v_readlane_b32 s46, v34, 32""")
    for b in range(2):
        f = 16 + 8 * b
        for i in range(4):
            A(f"v_pk_add_f32 v[{f+2*i}:{f+2*i+1}], v[{f+2*i}:{f+2*i+1}], s[{40+2*b}:{41+2*b}] op_sel_hi:[1,0] neg_lo:[0,1] neg_hi:[0,1]")
    for i in range(8):
        A(f"v_cvt_pk_bf16_f32 v{8+i}, v{16+2*i}, v{17+2*i}")
    for i in range(8):
        A(f"v_lshlrev_b32 v{16+2*i}, 16, v{8+i}\nv_and_b32 v{17+2*i}, s36, v{8+i}")
    for b in range(2):
        f = 16 + 8 * b
        for i in range(4):
            A(f"v_pk_mul_f32 v[{f+2*i}:{f+2*i+1}], v[{f+2*i}:{f+2*i+1}], s[{44+2*b}:{45+2*b}] op_sel_hi:[1,0]")
    for i in range(8):
        A(f"v_cvt_pk_bf16_f32 v{8+i}, v{16+2*i}, v{17+2*i}")
    A(f"""ds_write_b128 v3, v[8:11]
    ds_write_b128 v3, v[12:15] offset:{XSTR}
    s_lshr_b32 s37, s29, 3
    s_lshl_b32 s37, s37, 8
    s_add_u32 s37, s37, {L_XN}
    v_add_u32 v17, s37, v106
    s_lshl_b32 s37, s28, 7
    s_add_u32 s37, s37, {L_XN}
    v_add_u32 v18, s37, v106
    s_waitcnt lgkmcnt(0)""")
    for kk in range(4): A(f"ds_read_b128 v[{24+4*kk}:{27+4*kk}], v17 offset:{64*kk}")
    for kk in range(2): A(f"ds_read_b128 v[{40+4*kk}:{43+4*kk}], v18 offset:{64*kk}")
    A("v_mov_b32 v8, 0\nv_mov_b32 v9, 0\nv_mov_b32 v10, 0\nv_mov_b32 v11, 0\nv_mov_b32 v12, 0\nv_mov_b32 v13, 0\nv_mov_b32 v14, 0\nv_mov_b32 v15, 0")
    A("s_mov_b32 s48, 0x00030003\ns_mov_b32 s49, 0x00030003\ns_mov_b32 s50, 0x000f000f\ns_mov_b32 s51, 0x000f000f\ns_mov_b32 s52, -2")
    stamp(3)
    wait_flag(6, F_CLR, 16)
    wait_flag(6, F_WQ, 16)
    stamp(4)
    def trw(base, nk, r0):
        for kk in range(nk):
            for u in range(2):
                A(f"ds_read_b64_tr_b16 v[{r0+4*kk+2*u}:{r0+4*kk+2*u+1}], v7 offset:{base - L_WQ + kk*4096 + u*1024}")
    trw(L_WQ, 4, 48)
    A("s_waitcnt lgkmcnt(0)")
    for kk in range(4):
        A(f"v_mfma_f32_16x16x32_bf16 v[8:11], v[{48+4*kk}:{51+4*kk}], v[{24+4*kk}:{27+4*kk}], v[8:11]")
    for r in range(8, 12): A(f"v_min_u32 v{r}, s52, v{r}")
    A(f"""s_mov_b64 exec, s[48:49]
    buffer_store_dwordx4 v[8:11], v107, s[32:35], s38 offen offset:{B_QP} sc1
    s_mov_b64 exec, -1""")
    stamp(5)
    wait_flag(6, F_W1, 16)
    trw(L_W1, 2, 48)
    A("s_waitcnt lgkmcnt(0)")
    for kk in range(2):
        A(f"v_mfma_f32_16x16x32_bf16 v[12:15], v[{48+4*kk}:{51+4*kk}], v[{40+4*kk}:{43+4*kk}], v[12:15]")
    for r in range(12, 16): A(f"v_min_u32 v{r}, s52, v{r}")
    A(f"""s_mov_b64 exec, s[48:49]
    buffer_store_dwordx4 v[12:15], v107, s[32:35], s38 offen offset:{B_HP} sc1
    s_mov_b64 exec, -1""")
    A(f"""v_lshlrev_b32 v16, 15, v5
    v_lshl_add_u32 v16, v4, 4, v16
    s_lshl_b32 s39, s28, 17
    s_lshl_b32 s37, s30, 13
    s_add_u32 s39, s39, s37
    s_lshr_b32 s37, s29, 4
    s_lshl_b32 s37, s37, 8
    s_add_u32 s39, s39, s37
    s_add_u32 s40, s39, 4096
    v_lshrrev_b32 v17, 5, v0
    v_lshlrev_b32 v17, 7, v17
    v_lshl_add_u32 v17, v4, 3, v17
    v_and_b32 v18, 1, v5
    v_lshl_add_u32 v17, v18, 2, v17
    s_mul_i32 s37, s30, {QSTR}
    s_add_u32 s37, s37, {L_Q}
    v_add_u32 v17, s37, v17
    v_and_b32 v19, 3, v0
    v_mul_u32_u24 v18, {QSTR}, v19
    v_lshl_add_u32 v18, v5, 4, v18
    v_add_u32 v18, {L_Q}, v18
    v_lshlrev_b32 v20, 6, v5
    v_lshl_add_u32 v20, v19, 4, v20
    v_add_u32 v108, {L_P}, v20
    s_lshl_b32 s37, s30, 8
    v_add_u32 v109, s37, v20
    v_add_u32 v110, s37, v108
    v_lshlrev_b32 v111, 5, v19
    v_add_u32 v111, {L_ML}, v111
    s_lshl_b32 s37, s30, 3
    v_add_u32 v112, s37, v111
    s_mov_b32 s41, 0""")
    wait_flag(6, F_OK, 20)
    A("v_readfirstlane_b32 s53, v20")
    stamp(6)
    l = lab("qg")
    A(f"""{l}:
    buffer_load_dwordx4 v[24:27], v16, s[32:35], s39 offen offset:{B_QP} sc1
    buffer_load_dwordx4 v[28:31], v16, s[32:35], s40 offen offset:{B_QP} sc1
    s_waitcnt vmcnt(0)""")
    any_sent(range(24, 32), 20)
    A(f"""s_cbranch_vccz L_qok
    s_add_u32 s41, s41, 1
    s_cmp_lt_u32 s41, {SPIN}
    s_cbranch_scc1 {l}
    L_qok:""")
    stamp(7)
    for r in range(4): A(f"v_permlane32_swap_b32 v{24+r}, v{28+r}")
    for r in range(4): A(f"v_add_f32 v{24+r}, v{24+r}, v{28+r}")
    A("""v_permlane16_swap_b32 v24, v26
    v_permlane16_swap_b32 v25, v27
    v_add_f32 v24, v24, v26
    v_add_f32 v25, v25, v27
    v_cvt_pk_bf16_f32 v24, v24, v25
    v_min_u32 v24, s52, v24
    ds_write_b32 v17, v24""")
    wait_flag(6, F_K, 20)
    for t in range(2):
        for kk in range(4):
            A(f"ds_read_b128 v[{48+16*t+4*kk}:{51+16*t+4*kk}], v{102+kk} offset:{L_K + t*4096}")
    for r in range(8, 16): A(f"v_mov_b32 v{r}, 0")
    l = lab("ql")
    A(f"{l}:")
    for kk in range(4): A(f"ds_read_b128 v[{24+4*kk}:{27+4*kk}], v18 offset:{64*kk}")
    A("s_waitcnt lgkmcnt(0)")
    any_sent(range(24, 40), 20)
    loop_back(l)
    stamp(8)
    for kk in range(4):
        for t in range(2):
            A(f"v_mfma_f32_16x16x32_bf16 v[{8+4*t}:{11+4*t}], v[{48+16*t+4*kk}:{51+16*t+4*kk}], v[{24+4*kk}:{27+4*kk}], v[{8+4*t}:{11+4*t}]")
    A("s_mov_b32 s42, 0x3db504f3\ns_mov_b32 s43, 0x3fb8aa3b")
    for rnd in range(2):
        for i in range(4): A(f"v_cvt_pk_bf16_f32 v{24+i}, v{8+2*i}, v{9+2*i}")
        for i in range(4): A(f"v_lshlrev_b32 v{8+2*i}, 16, v{24+i}\nv_and_b32 v{9+2*i}, s36, v{24+i}")
        if rnd == 0:
            for i in range(8): A(f"v_mul_f32 v{8+i}, s42, v{8+i}")
    A("""v_max3_f32 v24, v8, v9, v10
    v_max3_f32 v25, v11, v12, v13
    v_max3_f32 v24, v24, v14, v15
    v_max_f32 v24, v24, v25
    v_mov_b32 v25, v24
    v_permlane32_swap_b32 v25, v24
    v_max_f32 v24, v24, v25
    v_mov_b32 v25, v24
    v_permlane16_swap_b32 v25, v24
    v_max_f32 v24, v24, v25
    v_mul_f32 v24, s43, v24""")
    for i in range(8): A(f"v_fma_f32 v{8+i}, v{8+i}, s43, -v24")
    for i in range(8): A(f"v_exp_f32 v{8+i}, v{8+i}")
    A("""v_add_f32 v25, v8, v9
    v_add_f32 v26, v10, v11
    v_add_f32 v27, v12, v13
    v_add_f32 v28, v14, v15
    v_add_f32 v25, v25, v26
    v_add_f32 v27, v27, v28
    v_add_f32 v25, v25, v27
    v_mov_b32 v26, v25
    v_permlane32_swap_b32 v26, v25
    v_add_f32 v25, v25, v26
    v_mov_b32 v26, v25
    v_permlane16_swap_b32 v26, v25
    v_add_f32 v25, v25, v26
    v_min_u32 v26, s52, v24
    v_min_u32 v27, s52, v25
    s_mov_b64 exec, 15
    ds_write_b64 v112, v[26:27]
    s_mov_b64 exec, -1""")
    l = lab("ml")
    A(f"""{l}:
    ds_read_b128 v[28:31], v111
    ds_read_b128 v[32:35], v111 offset:16
    s_waitcnt lgkmcnt(0)""")
    any_sent(range(28, 36), 20)
    loop_back(l)
    A("""v_max3_f32 v26, v28, v30, v32
    v_max_f32 v26, v26, v34
    v_sub_f32 v28, v28, v26
    v_sub_f32 v30, v30, v26
    v_sub_f32 v32, v32, v26
    v_sub_f32 v34, v34, v26
    v_sub_f32 v24, v24, v26
    v_exp_f32 v28, v28
    v_exp_f32 v30, v30
    v_exp_f32 v32, v32
    v_exp_f32 v34, v34
    v_exp_f32 v24, v24
    v_mul_f32 v27, v28, v29
    v_fmac_f32 v27, v30, v31
    v_fmac_f32 v27, v32, v33
    v_fmac_f32 v27, v34, v35
    v_rcp_f32 v28, v27
    v_log_f32 v29, v27
    v_mul_f32 v24, v24, v28""")
    for i in range(8): A(f"v_mul_f32 v{8+i}, v{8+i}, v24")
    for i in range(4): A(f"v_cvt_pk_bf16_f32 v{8+i}, v{8+2*i}, v{9+2*i}")
    for i in range(4): A(f"v_min_u32 v{8+i}, s52, v{8+i}")
    A(f"""v_add_f32 v29, v29, v26
    v_min_u32 v29, s52, v29
    s_mov_b64 exec, s[50:51]
    ds_write_b128 v110, v[8:11]
    s_mov_b64 exec, -1
    s_cmp_eq_u32 s30, 0
    s_cbranch_scc0 L_nolse
    v_lshlrev_b32 v28, 2, v0
    s_mov_b64 exec, 15
    buffer_store_dword v29, v28, s[32:35], s38 offen offset:{B_LSE} sc1
    s_mov_b64 exec, -1
    L_nolse:""")
    A(f"""v_lshrrev_b32 v16, 3, v0
    v_lshlrev_b32 v16, 12, v16
    v_and_b32 v17, 7, v0
    v_lshl_add_u32 v113, v17, 4, v16
    v_lshl_add_u32 v114, v19, 2, v16
    s_lshr_b32 s44, s29, 2
    s_lshl_b32 s44, s44, 17
    s_and_b32 s37, s30, 1
    s_lshl_b32 s37, s37, 16
    s_add_u32 s44, s44, s37
    s_add_u32 s45, s44, 32768
    s_and_b32 s37, s29, 3
    s_lshl_b32 s37, s37, 8
    s_lshr_b32 s39, s30, 1
    s_lshl_b32 s39, s39, 7
    s_add_u32 s37, s37, s39
    s_add_u32 s46, s44, s37
    s_add_u32 s47, s45, s37
    v_lshlrev_b32 v115, 4, v17
    v_lshl_add_u32 v115, v5, 2, v115
    s_and_b32 s37, s30, 1
    s_mul_i32 s37, s37, {OSTR}
    s_add_u32 s37, s37, s39
    s_add_u32 s37, s37, {L_O}
    v_add_u32 v115, s37, v115
    v_and_b32 v17, 1, v0
    v_mul_u32_u24 v116, {OSTR}, v17
    v_lshl_add_u32 v116, v5, 4, v116
    v_add_u32 v116, {L_O}, v116
    v_lshlrev_b32 v117, 7, v17
    v_lshl_add_u32 v117, v5, 4, v117
    v_add_u32 v117, {L_ACT}, v117
    v_lshlrev_b32 v118, 5, v5
    v_lshl_add_u32 v118, v4, 4, v118
    s_lshl_b32 s37, s30, 7
    v_add_u32 v118, s37, v118""")
    for r in range(12, 20): A(f"v_mov_b32 v{r}, 0")
    l = lab("pl")
    A(f"{l}:")
    for kk in range(4): A(f"ds_read_b128 v[{24+4*kk}:{27+4*kk}], v108 offset:{256*kk}")
    A("s_waitcnt lgkmcnt(0)")
    any_sent(range(24, 40), 20)
    loop_back(l)
    stamp(9)
    wait_flag(6, F_V, 20)
    stamp(10)
    for kk in range(4):
        for t in range(2):
            for u in range(2):
                r = 48 + 16 * t + 4 * kk + 2 * u
                A(f"ds_read_b64_tr_b16 v[{r}:{r+1}], v{100+t} offset:{L_V + kk*8192 + u*4096}")
    for kk in range(4):
        A(f"s_waitcnt lgkmcnt({12 - 4*kk})")
        for t in range(2):
            A(f"v_mfma_f32_16x16x32_bf16 v[{12+4*t}:{15+4*t}], v[{48+16*t+4*kk}:{51+16*t+4*kk}], v[{24+4*kk}:{27+4*kk}], v[{12+4*t}:{15+4*t}]")
    for i in range(4): A(f"v_cvt_pk_bf16_f32 v{8+i}, v{12+2*i}, v{13+2*i}")
    for i in range(4): A(f"v_min_u32 v{8+i}, s52, v{8+i}")
    A(f"""s_mov_b64 exec, s[50:51]
    buffer_store_dwordx4 v[8:11], v109, s[32:35], s38 offen offset:{B_OP} sc1
    s_mov_b64 exec, -1
    s_mov_b32 s41, 0""")
    stamp(11)
    l = lab("lg")
    A(f"""{l}:
    buffer_load_dword v20, v114, s[32:35], s44 offen offset:{B_LSE} sc1
    buffer_load_dword v21, v114, s[32:35], s45 offen offset:{B_LSE} sc1
    buffer_load_dwordx4 v[24:27], v113, s[32:35], s46 offen offset:{B_OP} sc1
    buffer_load_dwordx4 v[28:31], v113, s[32:35], s47 offen offset:{B_OP} sc1
    s_waitcnt vmcnt(2)
    v_max_u32 v22, v20, v21
    v_cmp_eq_u32 vcc, -1, v22
    s_cbranch_vccz L_lseok
    s_waitcnt vmcnt(0)
    s_add_u32 s41, s41, 1
    s_cmp_lt_u32 s41, {SPIN}
    s_cbranch_scc1 {l}
    L_lseok:
    v_max_f32 v22, v20, v21
    v_mov_b32 v23, v22
    v_permlane32_swap_b32 v23, v22
    v_max_f32 v22, v22, v23
    v_mov_b32 v23, v22
    v_permlane16_swap_b32 v23, v22
    v_max_f32 v22, v22, v23
    v_max_f32 v22, v22, v22 row_ror:8
    v_sub_f32 v20, v20, v22
    v_sub_f32 v21, v21, v22
    v_exp_f32 v20, v20
    v_exp_f32 v21, v21
    v_add_f32 v22, v20, v21
    v_mov_b32 v23, v22
    v_permlane32_swap_b32 v23, v22
    v_add_f32 v22, v22, v23
    v_mov_b32 v23, v22
    v_permlane16_swap_b32 v23, v22
    v_add_f32 v22, v22, v23
    v_add_f32 v22, v22, v22 row_ror:8
    v_rcp_f32 v22, v22
    v_mul_f32 v20, v20, v22
    v_mul_f32 v21, v21, v22""")
    for r in range(12, 16): A(f"v_mov_b32 v{r}, 0")
    wait_flag(6, F_W3, 22)
    trw(L_WO, 4, 48)
    trw(L_W2, 2, 64)
    wait_flag(6, F_ACT, 22)
    A("ds_read_b128 v[72:75], v117\nds_read_b128 v[76:79], v117 offset:64\ns_waitcnt lgkmcnt(0)")
    for kk in range(2):
        A(f"v_mfma_f32_16x16x32_bf16 v[12:15], v[{64+4*kk}:{67+4*kk}], v[{72+4*kk}:{75+4*kk}], v[12:15]")
    stamp(12)
    l = lab("og")
    A(f"""s_mov_b32 s41, 0
    s_branch L_ochk
    {l}:
    buffer_load_dwordx4 v[24:27], v113, s[32:35], s46 offen offset:{B_OP} sc1
    buffer_load_dwordx4 v[28:31], v113, s[32:35], s47 offen offset:{B_OP} sc1
    L_ochk:
    s_waitcnt vmcnt(0)""")
    any_sent(range(24, 32), 22)
    A(f"""s_cbranch_vccz L_ook
    s_add_u32 s41, s41, 1
    s_cmp_lt_u32 s41, {SPIN}
    s_cbranch_scc1 {l}
    L_ook:""")
    stamp(13)
    for i in range(4):
        A(f"v_lshlrev_b32 v{32+2*i}, 16, v{24+i}\nv_and_b32 v{33+2*i}, s36, v{24+i}")
    for i in range(8): A(f"v_mul_f32 v{32+i}, v20, v{32+i}")
    for i in range(4):
        A(f"v_lshlrev_b32 v{40+2*i}, 16, v{28+i}\nv_and_b32 v{41+2*i}, s36, v{28+i}")
    for i in range(8): A(f"v_fmac_f32 v{32+i}, v21, v{40+i}")
    for e in range(4): A(f"v_permlane32_swap_b32 v{32+e}, v{36+e}")
    for e in range(4): A(f"v_add_f32 v{32+e}, v{32+e}, v{36+e}")
    A("""v_permlane16_swap_b32 v32, v34
    v_permlane16_swap_b32 v33, v35
    v_add_f32 v32, v32, v34
    v_add_f32 v33, v33, v35
    v_add_f32 v32, v32, v32 row_ror:8
    v_add_f32 v33, v33, v33 row_ror:8
    v_cvt_pk_bf16_f32 v32, v32, v33
    v_min_u32 v32, s52, v32
    ds_write_b32 v115, v32""")
    l = lab("ol")
    A(f"{l}:")
    for kk in range(4): A(f"ds_read_b128 v[{24+4*kk}:{27+4*kk}], v116 offset:{64*kk}")
    A("s_waitcnt lgkmcnt(0)")
    any_sent(range(24, 40), 22)
    loop_back(l)
    for kk in range(4):
        A(f"v_mfma_f32_16x16x32_bf16 v[12:15], v[{48+4*kk}:{51+4*kk}], v[{24+4*kk}:{27+4*kk}], v[12:15]")
    for r in range(12, 16): A(f"v_min_u32 v{r}, s52, v{r}")
    A(f"""s_mov_b64 exec, s[48:49]
    buffer_store_dwordx4 v[12:15], v118, s[32:35], s38 offen offset:{B_FP} sc1
    s_mov_b64 exec, -1""")
    stamp(14)
    A("s_cmp_eq_u32 s29, 0\ns_cbranch_scc0 L_cend")
    A(f"""s_lshl_b32 s44, s28, 17
    s_lshl_b32 s37, s30, 7
    s_add_u32 s44, s44, s37
    s_add_u32 s45, s44, 32768
    s_add_u32 s46, s44, 65536
    s_add_u32 s47, s44, 98304
    v_and_b32 v16, 1, v0
    v_lshlrev_b32 v16, 10, v16
    v_bfe_u32 v17, v0, 1, 2
    v_lshl_add_u32 v16, v17, 3, v16
    v_lshrrev_b32 v17, 5, v0
    v_lshl_add_u32 v16, v17, 2, v16
    s_lshl_b32 s37, s28, 7
    s_lshl_b32 s39, s30, 5
    s_add_u32 s37, s37, s39
    v_add_u32 v16, s37, v16
    global_load_dword v18, v16, s[4:5]
    s_mov_b32 s41, 0""")
    l = lab("fg")
    A(f"{l}:")
    for i in range(4):
        A(f"buffer_load_dwordx4 v[{24+4*i}:{27+4*i}], v113, s[32:35], s{44+i} offen offset:{B_FP} sc1")
    A("s_waitcnt vmcnt(0)")
    any_sent(range(24, 40), 22)
    A(f"""s_cbranch_vccz L_fok
    s_add_u32 s41, s41, 1
    s_cmp_lt_u32 s41, {SPIN}
    s_cbranch_scc1 {l}
    L_fok:
    v_pk_add_f32 v[24:25], v[24:25], v[28:29]
    v_pk_add_f32 v[26:27], v[26:27], v[30:31]
    v_pk_add_f32 v[32:33], v[32:33], v[36:37]
    v_pk_add_f32 v[34:35], v[34:35], v[38:39]
    v_pk_add_f32 v[24:25], v[24:25], v[32:33]
    v_pk_add_f32 v[26:27], v[26:27], v[34:35]
    v_permlane32_swap_b32 v24, v26
    v_permlane32_swap_b32 v25, v27
    v_add_f32 v24, v24, v26
    v_add_f32 v25, v25, v27
    v_mov_b32 v26, v24
    v_mov_b32 v27, v25
    v_permlane16_swap_b32 v26, v24
    v_permlane16_swap_b32 v27, v25
    v_add_f32 v24, v24, v26
    v_add_f32 v25, v25, v27
    v_add_f32 v24, v24, v24 row_ror:8
    v_add_f32 v25, v25, v25 row_ror:8
    v_lshlrev_b32 v26, 16, v18
    v_and_b32 v27, s36, v18
    v_add_f32 v24, v24, v26
    v_add_f32 v25, v25, v27
    v_cvt_pk_bf16_f32 v24, v24, v25
    s_mov_b32 s40, 0xff
    s_mov_b32 s41, 0xff
    s_mov_b64 exec, s[40:41]
    global_store_dword v16, v24, s[22:23]
    s_mov_b64 exec, -1""")
    A("s_or_b32 s37, s2, s30\ns_cbranch_scc1 L_cend")
    A("ds_read_b32 v20, v6 offset:32\nv_mov_b32 v21, 0\ns_waitcnt lgkmcnt(0)\nv_add_u32 v20, 1, v20\ns_mov_b64 exec, 1\nglobal_store_dword v21, v20, s[26:27] sc1\ns_mov_b64 exec, -1")
    A("L_cend:")
    stamp(15)
    if stamps: A(f"v_writelane_b32 v{VST}, s94, 0")
    if amp is not None:
        A(f"""s_cmp_eq_u32 s30, 0
        s_cbranch_scc0 L_end
        s_cmp_eq_u32 s2, {ampwg}
        s_cbranch_scc0 L_end
        v_readlane_b32 s37, v{VST}, {amp}
        s_nop 4
        s_sub_u32 s37, s37, s94
        s_mul_i32 s37, s37, 10
        s_add_u32 s37, s37, s98
        L_ampl:
        s_memrealtime s[40:41]
        s_waitcnt lgkmcnt(0)
        s_sub_u32 s40, s40, s37
        s_cmp_lt_i32 s40, 0
        s_cbranch_scc1 L_ampl""")
    elif dbgout:
        A(f"""s_cmp_eq_u32 s30, 0
        s_cbranch_scc0 L_end
        s_cmp_lt_u32 s2, 8
        s_cbranch_scc0 L_end
        s_lshl_b32 s37, s2, 2
        s_add_u32 s37, s37, 32
        v_mov_b32 v20, s37
        v_mov_b32 v21, s98
        s_mov_b64 exec, 1
        global_store_dword v20, v21, s[24:25]
        s_cmp_eq_u32 s2, 0
        s_cbranch_scc0 L_end""")
        for i, k in enumerate([0, 2, 4, 7, 8, 10, 13, 14]):
            A(f"v_readlane_b32 s37, v{VST}, {k}\nv_mov_b32 v20, {4*i}\nv_mov_b32 v21, s37\nglobal_store_dword v20, v21, s[24:25]")
    else:
        dump_stamps()
    A("L_end:\ns_endpgm")
    A(f""".section .rodata,"a"
    .p2align 6
    .amdhsa_kernel {NAME}
    .amdhsa_next_free_vgpr 128
    .amdhsa_next_free_sgpr 102
    .amdhsa_accum_offset 128
    .amdhsa_group_segment_fixed_size 0
    .amdhsa_kernarg_size 96
    .amdhsa_user_sgpr_count 2
    .amdhsa_user_sgpr_kernarg_segment_ptr 1
    .amdhsa_system_sgpr_workgroup_id_x 1
    .amdhsa_float_denorm_mode_32 3
    .end_amdhsa_kernel""")
    return A.finish()

if __name__ == "__main__":
    out = sys.argv[1] if len(sys.argv) > 1 else "k.s"
    kw = {}
    for a in sys.argv[2:]:
        if '=' in a:
            k, v = a.split('=', 1); kw[k] = eval(v)
        else: kw[a] = True
    open(out, "w").write(gen(**kw))
```

```python
import sys
from asmlib import Asm

NAME = "parallel_sum__sliding_block_cached__dense_activation_mish__decode_kernel"

L_K, L_V, L_WQ, L_WO, L_W1, L_W2 = 0x0, 0x8000, 0x10000, 0x14000, 0x18000, 0x1A000
L_S = 0x1C000
L_Q, L_P, L_O, L_ML, L_FLG, L_AL = L_S, L_S + 0x500, L_S + 0x900, L_S + 0xB40, L_S + 0xC00, L_S + 0xD00
L_XN, L_ACT, L_XR = 0x1D000, 0x1D900, 0x1DA00
LDS_BYTES = 0x1E200
QSTR, XSTR, OSTR = 272, 1040, 272
F_WQ, F_W1, F_K, F_V, F_WO, F_W2, F_QA, F_QB, F_ACT, F_X, F_MODE, F_V0, F_V1, F_V2 = [4 * i for i in range(14)]
W_BLK = 0x10000
B_QP, B_HP, B_OP, B_ML, B_ID = 0, 512, 1024, 3072, 3200
W_FP = 0x100000
W_B = 0x200000
SPIN = 1 << 18
IDTRY = 48

def gen(depth=22, stamps=False, safe=True, amp=None, ampwg=0, order=('wq', 'w1', 'k', 'w2', 'v', 'wo'),
        qa=34, qb=44, hpt='k', pref=True, header="", warmfp=True, fdelay=0, loaderonly=False, vsplit=True,
        forcemode=None, mlt='k', nobeacon=False, noB=False, fullml=False, fullid=False, prof=False, dsched=None, kph='A', wph='A', ntw=' nt', ntkv=' nt'):
    A = Asm()
    uid = [0]
    def lab(p):
        uid[0] += 1
        return f"L_{p}{uid[0]}"
    VST = 127
    def stamp(k):
        if stamps:
            A(f"s_memrealtime s[98:99]\ns_waitcnt lgkmcnt(0)\nv_writelane_b32 v{VST}, s98, {k}")
    def stamp0():
        if stamps: A(f"v_writelane_b32 v{VST}, s94, 0")
    def dump_stamps():
        if stamps and amp is None:
            A(f"""s_lshl_b32 s96, s2, 3
            s_add_u32 s96, s96, s3
            s_lshl_b32 s96, s96, 7
            s_add_u32 s96, s96, 0x8000000
            s_add_u32 s96, s26, s96
            s_addc_u32 s97, s27, 0
            s_mov_b32 exec_lo, -1
            s_mov_b32 exec_hi, 0
            v_mbcnt_lo_u32_b32 v126, -1, 0
            v_lshlrev_b32 v126, 2, v126
            global_store_dword v126, v{VST}, s[96:97]""")
    def loop_back(l):
        if safe:
            o = lab("out")
            A(f"""s_add_u32 s100, s100, 1
            s_bitcmp1_b32 s100, 21
            s_cbranch_scc1 {o}
            s_cbranch_vccnz {l}
            {o}:""")
        else:
            A(f"s_cbranch_vccnz {l}")
    def gloop_back(l, sleep=0):
        o = lab("ok")
        A(f"s_cbranch_vccz {o}")
        if sleep: A(f"s_sleep {sleep}")
        A(f"""s_add_u32 s101, s101, 1
        s_cmp_lt_u32 s101, {SPIN}
        s_cbranch_scc1 {l}
        {o}:""")
    def wait_flag(vaddr, off, vt):
        l = lab("wf")
        A(f"""{l}:
        ds_read_b32 v{vt}, v{vaddr} offset:{off}
        s_waitcnt lgkmcnt(0)
        v_cmp_eq_u32 vcc, -1, v{vt}""")
        loop_back(l)
    def set_flag(vaddr, off, vdata):
        A(f"""s_mov_b64 exec, 1
        ds_write_b32 v{vaddr}, v{vdata} offset:{off}
        s_mov_b64 exec, -1""")
    def any_sent(regs, vt):
        regs = list(regs)
        A(f"v_max3_u32 v{vt}, v{regs[0]}, v{regs[1]}, v{regs[2] if len(regs) > 2 else regs[1]}")
        rest = regs[3:]
        while rest:
            a = rest[0]; b = rest[1] if len(rest) > 1 else rest[0]
            A(f"v_max3_u32 v{vt}, v{vt}, v{a}, v{b}")
            rest = rest[2:]
        A(f"v_cmp_eq_u32 vcc, -1, v{vt}")
    def bad_tag(regs, t0, sT, vzero):
        regs = list(regs); n = len(regs) // 2
        for i in range(n):
            A(f"v_bitop3_b32 v{t0+i}, v{regs[2*i]}, v{regs[2*i+1]}, s{sT} bitop3:0x7e")
        cur = [t0 + i for i in range(n)]
        while len(cur) > 1:
            if len(cur) >= 3:
                A(f"v_or3_b32 v{cur[0]}, v{cur[0]}, v{cur[1]}, v{cur[2]}"); cur = cur[3:] + [cur[0]]
            else:
                A(f"v_or_b32 v{cur[0]}, v{cur[0]}, v{cur[1]}"); cur = [cur[0]]
        A(f"v_cmp_ne_u32_sdwa vcc, v{cur[0]}, v{vzero} src0_sel:BYTE_0 src1_sel:DWORD")
    def bf16r(d, s):
        A(f"v_cvt_pk_bf16_f32 v{d}, v{s}, v{s}\nv_lshlrev_b32 v{d}, 16, v{d}")
    def ws_srd(d):
        A(f"""s_add_u32 s{d}, s26, {W_BLK}
        s_addc_u32 s{d+1}, s27, 0
        s_mov_b32 s{d+2}, 0x300000
        s_mov_b32 s{d+3}, 0x00020000""")
    def allred(v, t, op):
        A(f"""v_mov_b32 v{t}, v{v}
        v_permlane32_swap_b32 v{t}, v{v}
        {op} v{v}, v{v}, v{t}
        v_mov_b32 v{t}, v{v}
        v_permlane16_swap_b32 v{t}, v{v}
        {op} v{v}, v{v}, v{t}""")

    A(header)
    A(f"; @launch grid=(256,1,1) block=(384,1,1) lds={LDS_BYTES}")
    A(f""".amdgcn_target "amdgcn-amd-amdhsa--gfx950"
    .text
    .globl {NAME}
    .p2align 8
    .type {NAME},@function
    {NAME}:""")
    A("""s_load_dwordx16 s[4:19], s[0:1], 0
    s_load_dwordx8 s[20:27], s[0:1], 64""")
    if pref: A("s_getpc_b64 s[30:31]\nL_pc:")
    A("""s_cmp_ge_u32 s2, 256
    s_cbranch_scc1 L_end
    v_lshrrev_b32 v1, 6, v0""")
    if pref:
        A("""v_and_b32 v2, 15, v0
        v_lshl_add_u32 v2, v1, 4, v2
        v_lshlrev_b32 v2, 7, v2
        v_min_u32 v2, L_end-L_pc, v2
        s_mov_b64 exec, 0xffff
        global_load_dword v125, v2, s[30:31]
        s_mov_b64 exec, -1""")
    A("""v_readfirstlane_b32 s3, v1
    v_and_b32 v0, 63, v0
    s_and_b32 s28, s2, 7
    s_lshr_b32 s29, s2, 3""")
    if stamps:
        A(f"s_memrealtime s[94:95]\nv_mov_b32 v{VST}, 0")
    A("""s_cmp_eq_u32 s3, 0
    s_cbranch_scc0 L_notloader""")

    A("s_setprio 3")
    A(f"""v_lshlrev_b32 v21, 4, v0
    s_mov_b32 m0, {L_XR}
    v_lshrrev_b32 v2, 3, v0
    v_and_b32 v9, 6, v2
    v_xor_b32 v9, v9, v0
    v_and_b32 v9, 7, v9
    v_lshlrev_b32 v9, 4, v9
    v_lshrrev_b32 v4, 5, v0
    v_and_b32 v5, 3, v2
    v_lshl_add_u32 v6, v4, 3, v5
    v_lshl_add_u32 v10, v6, 13, v9
    v_add_u32 v11, 31744, v10
    s_mov_b32 s34, 4194304
    s_mov_b32 s35, 0x00020000
    s_movk_i32 s60, 0x800
    s_lshr_b32 s57, s29, 3
    s_lshl_b32 s57, s57, 20
    s_lshl_b32 s58, s28, 10
    s_add_u32 s57, s57, s58
    s_and_b32 s58, s29, 7
    {dict(A='s_lshl_b32 s56, s58, 11', Z='s_mov_b32 s56, 0', X='s_lshl_b32 s56, s28, 11', P='s_and_b32 s56, s58, 6' + chr(10) + 's_lshl_b32 s56, s56, 11')[wph]}
    s_lshl_b32 s58, s58, 7
    s_add_u32 s57, s57, s58
    s_and_b32 s61, s29, 3
    s_lshl_b32 s62, s61, 3
    s_add_u32 s62, s62, s28
    s_lshr_b32 s63, s29, 2
    s_waitcnt lgkmcnt(0)
    global_load_lds_dwordx4 v21, s[4:5]
    global_load_lds_dwordx4 v21, s[4:5] offset:1024
    s_mov_b32 s32, s10
    s_mov_b32 s33, s11""")
    info = dict(wq=(8, 32, 10, L_WQ, F_WQ), w1=(4, 36, 12, L_W1, F_W1), k=(16, 40, 14, L_K, F_K), v=(16, 44, 14, L_V, F_V),
                wo=(8, 48, 16, L_WO, F_WO), w2=(4, 52, 18, L_W2, F_W2))
    flag_at = {2: [F_X]}
    cum = 2
    for m in order:
        if m == 'v' and vsplit:
            for i, f in enumerate((F_V0, F_V1, F_V2)): flag_at.setdefault(cum + 8 * (i + 1), []).append(f)
        cum += 2 * info[m][0]
        flag_at.setdefault(cum, []).append(info[m][4])
    flag_at.setdefault(qa + 2, []).append(F_QA)
    flag_at.setdefault(qb + 2, []).append(F_QB)
    def kphase():
        if kph == 'A': A("s_and_b32 s67, s29, 15")
        elif kph == 'B': A("s_lshl_b32 s67, s28, 1\ns_lshr_b32 s59, s29, 4\ns_add_u32 s67, s67, s59")
        elif kph == 'C': A("s_lshl_b32 s67, s28, 1\ns_lshr_b32 s59, s29, 4\ns_add_u32 s67, s67, s59\ns_and_b32 s59, s29, 8\ns_add_u32 s67, s67, s59\ns_and_b32 s67, s67, 15")
        elif kph == 'D': A("s_lshl_b32 s67, s28, 1\ns_add_u32 s67, s67, s29\ns_and_b32 s67, s67, 15")
        elif kph == 'E': A("s_lshl_b32 s67, s28, 1\ns_lshr_b32 s59, s29, 2\ns_add_u32 s67, s67, s59\ns_and_b32 s67, s67, 15")
        elif kph == 'F': A("s_mul_i32 s67, s29, 5\ns_mul_i32 s59, s28, 3\ns_add_u32 s67, s67, s59\ns_and_b32 s67, s67, 15")
        elif kph == 'G': A("s_and_b32 s67, s29, 7\ns_lshl_b32 s67, s67, 1")
        elif kph == 'Z': A("s_mov_b32 s67, 0")
    def setup(m):
        if m == 'wq': return
        if m == 'w1':
            A("""v_mul_u32_u24 v12, 3584, v6
            v_add_u32 v12, v12, v9
            v_add_u32 v13, 13312, v12
            s_mov_b32 s36, s16
            s_mov_b32 s37, s17
            s_cmp_lt_u32 s62, 28
            s_cselect_b32 s38, 1835008, 0
            s_mov_b32 s39, 0x00020000
            s_mul_i32 s57, s63, 229376
            s_lshl_b32 s58, s62, 7
            s_add_u32 s57, s57, s58
            s_lshl_b32 s56, s61, 11""")
        elif m == 'k':
            A(f"""v_lshrrev_b32 v7, 4, v0
            v_lshlrev_b32 v8, 1, v7
            v_xor_b32 v8, v8, v0
            v_and_b32 v8, 15, v8
            v_lshlrev_b32 v8, 4, v8
            v_lshl_add_u32 v14, v7, 8, v8
            v_xor_b32 v15, 128, v14
            s_mov_b32 s40, s6
            s_mov_b32 s41, s7
            s_mov_b32 s42, 33554432
            s_mov_b32 s43, 0x00020000
            s_lshr_b32 s64, s29, 4
            s_lshl_b32 s64, s64, 3
            s_add_u32 s64, s64, s28
            s_lshl_b32 s64, s64, 21
            s_and_b32 s58, s29, 15
            s_lshl_b32 s58, s58, 15
            s_add_u32 s64, s64, s58
            s_add_u32 s64, s64, 1572864""")
            kphase()
            A("s_lshl_b32 s56, s67, 11")
        elif m == 'v':
            A(f"""s_mov_b32 s44, s8
            s_mov_b32 s45, s9
            s_mov_b32 s46, 33554432
            s_mov_b32 s47, 0x00020000""")
            if vsplit:
                A("""s_lshl_b32 s65, s61, 13
                s_and_b32 s66, s63, 3
                s_lshl_b32 s66, s66, 11
                s_or_b32 s56, s65, s66""")
            else:
                A("s_lshl_b32 s56, s67, 11")
        elif m == 'wo':
            A("""v_lshl_add_u32 v7, v4, 7, v5
            v_lshl_add_u32 v16, v7, 10, v9
            v_add_u32 v17, 15360, v16
            s_mov_b32 s48, s12
            s_mov_b32 s49, s13
            s_mov_b32 s50, 4194304
            s_mov_b32 s51, 0x00020000
            s_lshl_b32 s57, s28, 19
            s_lshl_b32 s58, s61, 15
            s_add_u32 s57, s57, s58
            s_lshl_b32 s58, s63, 7
            s_add_u32 s57, s57, s58""")
            A(dict(A="s_and_b32 s56, s29, 7\ns_lshl_b32 s56, s56, 11", Z="s_mov_b32 s56, 0", X="s_lshl_b32 s56, s28, 11", P="s_lshl_b32 s56, s28, 11")[wph])
        elif m == 'w2':
            A("""v_lshl_add_u32 v18, v6, 10, v9
            v_add_u32 v19, 3072, v18
            s_mov_b32 s52, s20
            s_mov_b32 s53, s21
            s_cmp_lt_u32 s62, 28
            s_cselect_b32 s54, 1835008, 0
            s_mov_b32 s55, 0x00020000
            s_lshl_b32 s57, s62, 16
            s_lshl_b32 s58, s63, 7
            s_add_u32 s57, s57, s58
            s_lshl_b32 s56, s61, 11""")
    issued = 2
    done_barrier = False
    flagged = set()
    stn = {F_WQ: 3, F_W1: 4, F_K: 5, F_V: 6, F_WO: 7, F_QA: 2, F_X: 8, F_W2: 9, F_QB: 10}
    def landed(n):
        for c in sorted(flag_at):
            if c <= n and c not in flagged:
                flagged.add(c)
                A("s_mov_b64 exec, 1")
                for f in flag_at[c]: A(f"ds_write_b32 v20, v20 offset:{f}")
                A("s_mov_b64 exec, -1")
                for f in flag_at[c]:
                    if f in stn: stamp(stn[f])
    for m in order:
        npair, srd, vo, lbase, _ = info[m]
        setup(m)
        for p in range(npair):
            d = depth
            if dsched:
                for (frm, dd) in dsched:
                    if issued >= frm: d = dd
            if issued + 2 > d:
                if not done_barrier:
                    A(f"v_mov_b32 v20, {L_FLG}\ns_barrier")
                    stamp(1)
                    done_barrier = True
                A(f"s_waitcnt vmcnt({d - 2})")
                landed(issued - (d - 2))
                if prof and (issued - (d - 2)) % 8 == 2: stamp(11 + (issued - (d - 2)) // 8)
            A(f"s_add_u32 m0, s56, {lbase}" if lbase else "s_mov_b32 m0, s56")
            if m == 'wq': A("s_lshl_b32 s58, s56, 6\ns_add_u32 s58, s58, s57")
            elif m == 'w1': A("s_mul_i32 s58, s56, 28\ns_add_u32 s58, s58, s57")
            elif m == 'w2': A("s_lshl_b32 s58, s56, 3\ns_add_u32 s58, s58, s57")
            elif m == 'wo': A("s_and_b32 s58, s56, s60\ns_lshl_b32 s58, s58, 7\ns_and_b32 s59, s56, 0x3000\ns_add_u32 s58, s58, s59\ns_add_u32 s58, s58, s57")
            else: A("s_add_u32 s58, s56, s64")
            fl = ntkv if m in ('k', 'v') else ntw
            A(f"buffer_load_dwordx4 v{vo}, s[{srd}:{srd+3}], s58 offen{fl} lds")
            A(f"buffer_load_dwordx4 v{vo+1}, s[{srd}:{srd+3}], s58 offen offset:1024{fl} lds")
            issued += 2
            if p != npair - 1:
                if m == 'v' and vsplit:
                    A("s_add_u32 s66, s66, s60\ns_and_b32 s66, s66, 0x1fff")
                    if p % 4 == 3: A("s_add_u32 s65, s65, 0x2000\ns_and_b32 s65, s65, 0x7fff")
                    A("s_or_b32 s56, s65, s66")
                else:
                    A(f"s_add_u32 s56, s56, s60\ns_and_b32 s56, s56, {npair * 2048 - 1}")
    pts = set(c for c in flag_at if c not in flagged)
    if prof: pts |= set(c for c in range(issued - depth + 4, issued + 1) if c % 8 == 2)
    for c in sorted(pts):
        A(f"s_waitcnt vmcnt({issued - c})")
        landed(c)
        if prof and c % 8 == 2: stamp(11 + c // 8)
    stamp0()
    dump_stamps()
    A("s_endpgm")

    A("L_notloader:")
    if loaderonly: A("s_barrier\ns_endpgm")
    A("s_cmp_eq_u32 s3, 1\ns_cbranch_scc0 L_compute")
    A(f"""s_and_b32 s61, s29, 3
    s_lshl_b32 s62, s61, 3
    s_add_u32 s62, s62, s28
    v_and_b32 v11, 7, v0
    v_lshlrev_b32 v11, 2, v11
    v_lshrrev_b32 v12, 5, v0
    v_lshl_add_u32 v11, v12, 1, v11
    v_bfe_u32 v12, v0, 4, 1
    v_add_u32 v11, v11, v12
    v_bfe_u32 v12, v0, 3, 1
    v_lshl_add_u32 v11, v12, 5, v11
    s_min_u32 s63, s62, 27
    s_lshl_b32 s63, s63, 6
    v_add_u32 v13, s63, v11
    v_lshlrev_b32 v13, 1, v13
    v_mov_b32 v20, {L_FLG}
    v_mov_b32 v40, 0
    v_mov_b32 v41, 0
    v_mov_b32 v19, 0
    s_mov_b32 s100, 0
    s_mov_b32 s101, 0
    s_getreg_b32 s64, hwreg(HW_REG_XCC_ID)
    s_lshl_b32 s65, s28, 17
    s_lshl_b32 s66, s29, 12
    s_add_u32 s66, s66, s65
    v_and_b32 v21, 31, v0
    v_lshlrev_b32 v21, 12, v21
    s_waitcnt lgkmcnt(0)
    s_load_dword s5, s[26:27], 0""")
    ws_srd(8)
    A(f"""s_barrier
    s_and_b32 s64, s64, 15
    s_waitcnt lgkmcnt(0)
    s_add_u32 s5, s5, 1
    s_lshl_b32 s6, s5, 4
    s_or_b32 s6, s6, s64
    v_mov_b32 v22, s6
    v_lshlrev_b32 v24, 2, v0
    s_mov_b32 exec_lo, {0 if nobeacon else (-1 if fullid else 1)}
    s_mov_b32 exec_hi, 0
    buffer_store_dword v22, v24, s[8:11], s66 offen offset:{B_ID}
    s_mov_b64 exec, -1
    global_load_ushort v14, v13, s[18:19]""")
    stamp0()
    wait_flag(20, F_X, 18)
    if nobeacon: A("s_mov_b32 s7, 0\ns_branch L_idok")
    l = lab("id")
    A(f"""s_mov_b32 s7, 0
    {l}:
    buffer_load_dword v23, v21, s[8:11], s65 offen offset:{B_ID} sc1
    s_waitcnt vmcnt(0)
    v_cmp_ne_u32 vcc, s6, v23
    s_cbranch_vccz L_idok
    s_add_u32 s7, s7, 1
    s_cmp_lt_u32 s7, {IDTRY}
    s_cbranch_scc1 {l}
    L_idok:
    s_cmp_eq_u32 s7, {IDTRY}
    s_cselect_b32 s7, 1, 0""")
    if forcemode is not None: A(f"s_mov_b32 s7, {forcemode}")
    A("v_mov_b32 v23, s7")
    set_flag(20, F_MODE, 23)
    stamp(1)
    A(f"""s_cmp_lt_u32 s62, 28
    s_cbranch_scc0 L_actw
    v_lshrrev_b32 v16, 3, v0
    v_lshlrev_b32 v16, 14, v16
    v_and_b32 v17, 7, v0
    v_lshl_add_u32 v16, v17, 4, v16
    s_lshl_b32 s31, s61, 12
    s_add_u32 s31, s31, s65""")
    if hpt: wait_flag(20, {'k': F_K, 'qb': F_QB, 'qa': F_QA}[hpt], 18)
    l = lab("hp")
    A(f"s_lshl_b32 s7, s7, 21\n{l}:\ns_xor_b32 s31, s31, s7")
    for i in range(4):
        b, half = i & 1, i >> 1
        A(f"buffer_load_dwordx4 v[{24+4*i}:{27+4*i}], v16, s[8:11], s31 offen offset:{B_HP + b*256 + half*128} sc1")
    A("s_waitcnt vmcnt(0)")
    bad_tag(range(24, 40), 44, 5, 19)
    gloop_back(l, sleep=4)
    stamp(2)
    for i in range(4):
        r = 24 + 4 * i
        A(f"""v_permlane32_swap_b32 v{r}, v{r+2}
        v_permlane32_swap_b32 v{r+1}, v{r+3}
        v_add_f32 v{r}, v{r}, v{r+2}
        v_add_f32 v{r+1}, v{r+1}, v{r+3}""")
    for i in range(4):
        r = 24 + 4 * i
        A(f"v_permlane16_swap_b32 v{r}, v{r+1}\nv_add_f32 v{r}, v{r}, v{r+1}")
    for i in range(4):
        r = 24 + 4 * i
        A(f"v_add_f32 v{r}, v{r}, v{r} row_ror:8")
    A("""v_and_b32 v18, 8, v0
    v_cmp_eq_u32 vcc, 0, v18
    v_cndmask_b32 v40, v32, v24, vcc
    v_cndmask_b32 v41, v36, v28, vcc
    v_lshlrev_b32 v14, 16, v14
    s_mov_b32 s32, 0x3fb8aa3b
    s_mov_b32 s33, 0x3f317218""")
    for h in (40, 41):
        t = 44
        bf16r(h, h)
        A(f"v_add_f32 v{h}, v{h}, v14")
        bf16r(h, h)
        A(f"v_mul_f32 v{t}, s32, v{h}\nv_exp_f32 v{t}, -abs(v{t})")
        bf16r(t, t)
        A(f"""v_add_f32 v{t+1}, 1.0, v{t}
        v_log_f32 v{t+2}, v{t+1}
        v_add_f32 v{t+3}, -1.0, v{t+1}
        v_rcp_f32 v{t+3}, v{t+3}
        v_mul_f32 v{t+2}, s33, v{t+2}
        v_mul_f32 v{t+2}, v{t+2}, v{t}
        v_mul_f32 v{t+2}, v{t+2}, v{t+3}
        v_cmp_eq_f32 vcc, 1.0, v{t+1}
        v_cndmask_b32 v{t+2}, v{t+2}, v{t}, vcc""")
        bf16r(t+2, t+2)
        A(f"v_max_f32 v{t+1}, 0, v{h}\nv_add_f32 v{t+2}, v{t+2}, v{t+1}")
        bf16r(t+2, t+2)
        A(f"""v_mul_f32 v{t}, -2.0, v{t+2}
        v_mul_f32 v{t+1}, s32, v{t}
        v_exp_f32 v{t+1}, v{t+1}
        v_log_f32 v{t+3}, v{t+1}
        v_add_f32 v{t+4}, -1.0, v{t+1}
        v_mul_f32 v{t+3}, s33, v{t+3}
        v_rcp_f32 v{t+3}, v{t+3}
        v_mul_f32 v{t+5}, v{t+4}, v{t}
        v_mul_f32 v{t+5}, v{t+5}, v{t+3}
        v_cmp_eq_f32 vcc, 1.0, v{t+1}
        v_cndmask_b32 v{t+5}, v{t+5}, v{t}, vcc
        v_cmp_gt_f32 vcc, 0.5, v{t+1}
        v_cndmask_b32 v{t+5}, v{t+5}, v{t+4}, vcc
        v_add_f32 v{t+4}, 2.0, v{t+5}
        v_rcp_f32 v{t+4}, v{t+4}
        v_mul_f32 v{t+5}, v{t+5}, v{t+4}
        v_sub_f32 v{t+5}, 0, v{t+5}""")
        bf16r(t+5, t+5)
        A(f"v_mul_f32 v{h}, v{h}, v{t+5}\nv_cvt_pk_bf16_f32 v{h}, v{h}, v{h}")
    A(f"""L_actw:
    v_lshlrev_b32 v11, 1, v11
    v_add_u32 v11, {L_ACT}, v11
    ds_write_b16 v11, v40
    ds_write_b16 v11, v41 offset:128""")
    set_flag(20, F_ACT, 20)
    stamp(3)
    A(f"""v_lshrrev_b32 v16, 2, v0
    v_and_b32 v17, 3, v0
    v_lshlrev_b32 v21, 12, v16
    v_lshl_add_u32 v21, v17, 3, v21
    s_add_u32 s66, s65, 65536
    v_and_b32 v18, 15, v0
    v_lshlrev_b32 v18, 4, v18
    v_lshrrev_b32 v22, 4, v0
    v_lshl_add_u32 v22, v22, 2, v18
    v_add_u32 v22, {L_AL}, v22
    s_movk_i32 s53, 0xff00
    s_mov_b32 s52, -2""")
    if mlt: wait_flag(20, {'v0': F_V0, 'v1': F_V1, 'v2': F_V2, 'v': F_V, 'k': F_K}[mlt], 18)
    l = lab("ml")
    A(f"""{l}:
    buffer_load_dwordx2 v[24:25], v21, s[8:11], s65 offen offset:{B_ML} sc1
    buffer_load_dwordx2 v[26:27], v21, s[8:11], s66 offen offset:{B_ML} sc1
    s_waitcnt vmcnt(0)""")
    bad_tag(range(24, 28), 44, 5, 19)
    gloop_back(l)
    stamp(4)
    A("""v_and_b32 v24, s53, v24
    v_and_b32 v26, s53, v26
    v_max_f32 v28, v24, v24 row_ror:4
    v_max_f32 v29, v26, v26 row_ror:4
    v_max_f32 v28, v28, v28 row_ror:8
    v_max_f32 v29, v29, v29 row_ror:8""")
    allred(28, 30, "v_max_f32"); allred(29, 31, "v_max_f32")
    A("""v_sub_f32 v24, v24, v28
    v_sub_f32 v26, v26, v29
    v_exp_f32 v24, v24
    v_exp_f32 v26, v26
    v_mul_f32 v24, v24, v25
    v_mul_f32 v26, v26, v27
    v_add_f32 v28, v24, v24 row_ror:4
    v_add_f32 v29, v26, v26 row_ror:4
    v_add_f32 v28, v28, v28 row_ror:8
    v_add_f32 v29, v29, v29 row_ror:8""")
    allred(28, 30, "v_add_f32"); allred(29, 31, "v_add_f32")
    A("""v_rcp_f32 v28, v28
    v_rcp_f32 v29, v29
    v_mul_f32 v24, v24, v28
    v_mul_f32 v26, v26, v29
    v_min_u32 v24, s52, v24
    v_min_u32 v26, s52, v26
    ds_write_b32 v22, v24
    ds_write_b32 v22, v26 offset:256""")
    stamp(5)
    dump_stamps()
    A("s_waitcnt lgkmcnt(0)\ns_endpgm")

    A("L_compute:")
    A(f"""s_sub_u32 s30, s3, 2
    v_lshlrev_b32 v2, 4, v0
    s_lshl_b32 s31, s30, 10
    s_add_u32 s31, s31, {L_S}
    v_add_u32 v3, s31, v2
    v_mov_b32 v4, -1
    v_mov_b32 v5, -1
    v_mov_b32 v6, -1
    v_mov_b32 v7, -1
    ds_write_b128 v3, v[4:7]
    s_mov_b32 s100, 0
    s_mov_b32 s101, 0
    s_waitcnt lgkmcnt(0)
    s_load_dword s54, s[26:27], 0
    s_barrier""")
    ws_srd(32)
    A(f"""s_mov_b32 s36, 0xffff0000
    v_and_b32 v4, 15, v0
    v_lshrrev_b32 v5, 4, v0
    v_mov_b32 v6, {L_FLG}
    v_bfe_u32 v96, v0, 2, 2
    v_and_b32 v17, 1, v5
    v_lshl_add_u32 v96, v17, 2, v96
    v_bfe_u32 v18, v0, 1, 1
    s_lshl_b32 s37, s30, 1
    v_add_u32 v18, s37, v18
    v_and_b32 v19, 6, v96
    v_xor_b32 v18, v18, v19
    v_lshlrev_b32 v18, 4, v18
    v_and_b32 v19, 1, v0
    v_lshl_add_u32 v18, v19, 3, v18
    v_lshrrev_b32 v17, 5, v0
    v_lshl_add_u32 v17, v17, 4, v96
    v_lshl_add_u32 v7, v17, 7, v18
    v_add_u32 v7, {L_WQ}, v7
    ; xn frag addresses v106 (wq rows), v105 (w1 rows)
    v_mul_u32_u24 v18, {XSTR}, v19
    v_lshl_add_u32 v18, v5, 4, v18
    s_lshr_b32 s37, s29, 3
    s_lshl_b32 s37, s37, 8
    s_add_u32 s37, s37, {L_XN}
    v_add_u32 v106, s37, v18
    s_lshr_b32 s37, s29, 2
    s_lshl_b32 s37, s37, 7
    s_add_u32 s37, s37, {L_XN}
    v_add_u32 v105, s37, v18
    s_lshl_b32 s37, s30, 6
    v_lshlrev_b32 v18, 8, v4
    v_lshl_add_u32 v18, v5, 4, v18
    v_add_u32 v107, s37, v18
    s_lshl_b32 s38, s28, 5
    s_add_u32 s38, s38, s29
    s_lshl_b32 s68, s38, 9
    s_lshl_b32 s38, s38, 12
    s_add_u32 s68, s68, {W_FP}
    v_add_u32 v3, {L_XN}, v2
    v_add_u32 v16, {L_XR}, v2
    s_mov_b32 s48, 0x00030003
    s_mov_b32 s49, 0x00030003
    s_mov_b32 s52, -2
    s_movk_i32 s53, 0xff00""")
    stamp(1)
    wait_flag(6, F_X, 17)
    A(f"""ds_read_b128 v[8:11], v16
    ds_read_b128 v[12:15], v16 offset:1024
    s_add_u32 s54, s54, 1
    s_and_b32 s55, s54, 0xff
    v_mov_b32 v122, s55
    s_waitcnt lgkmcnt(0)""")
    stamp0()
    stamp(2)
    for b in range(2):
        for i in range(4):
            A(f"v_lshlrev_b32 v{16+8*b+2*i}, 16, v{8+4*b+i}\nv_and_b32 v{17+8*b+2*i}, s36, v{8+4*b+i}")
    def red2(a, b, t):
        A(f"""v_permlane32_swap_b32 v{a}, v{b}
        v_add_f32 v{a}, v{a}, v{b}
        v_mov_b32 v{t}, v{a}
        v_permlane16_swap_b32 v{t}, v{a}
        v_add_f32 v{a}, v{a}, v{t}
        v_add_f32 v{a}, v{a}, v{a} row_ror:8
        v_add_f32 v{a}, v{a}, v{a} row_ror:4
        v_add_f32 v{a}, v{a}, v{a} row_ror:2
        v_add_f32 v{a}, v{a}, v{a} row_ror:1""")
    for b in range(2):
        f = 16 + 8 * b
        A(f"""v_pk_add_f32 v[{32+4*b}:{33+4*b}], v[{f}:{f+1}], v[{f+2}:{f+3}]
        v_pk_add_f32 v[{34+4*b}:{35+4*b}], v[{f+4}:{f+5}], v[{f+6}:{f+7}]""")
    for b in range(2):
        A(f"v_pk_add_f32 v[{32+4*b}:{33+4*b}], v[{32+4*b}:{33+4*b}], v[{34+4*b}:{35+4*b}]")
    A("v_add_f32 v32, v32, v33\nv_add_f32 v36, v36, v37")
    red2(32, 36, 33)
    A("""v_mul_f32 v32, 0x3b000000, v32
    v_readlane_b32 s60, v32, 0
    v_readlane_b32 s62, v32, 32""")
    for b in range(2):
        f = 16 + 8 * b
        for i in range(4):
            A(f"v_pk_add_f32 v[{40+8*b+2*i}:{41+8*b+2*i}], v[{f+2*i}:{f+2*i+1}], s[{60+2*b}:{61+2*b}] op_sel_hi:[1,0] neg_lo:[0,1] neg_hi:[0,1]")
    for b in range(2):
        d = 40 + 8 * b
        A(f"v_pk_mul_f32 v[{34+2*b}:{35+2*b}], v[{d}:{d+1}], v[{d}:{d+1}]")
    for i in range(1, 4):
        for b in range(2):
            d = 40 + 8 * b + 2 * i
            A(f"v_pk_fma_f32 v[{34+2*b}:{35+2*b}], v[{d}:{d+1}], v[{d}:{d+1}], v[{34+2*b}:{35+2*b}]")
    A("v_add_f32 v34, v34, v35\nv_add_f32 v36, v36, v37")
    red2(34, 36, 33)
    A("v_mul_f32 v34, 0x3b000000, v34")
    bf16r(34, 34)
    A("v_add_f32 v34, 0x3727c5ac, v34")
    bf16r(34, 34)
    A("v_sqrt_f32 v34, v34")
    bf16r(32, 32)
    bf16r(34, 34)
    A("v_rcp_f32 v34, v34")
    A("""v_readlane_b32 s60, v32, 0
    v_readlane_b32 s62, v32, 32
    v_readlane_b32 s64, v34, 0
    v_readlane_b32 s66, v34, 32""")
    for b in range(2):
        f = 16 + 8 * b
        for i in range(4):
            A(f"v_pk_add_f32 v[{f+2*i}:{f+2*i+1}], v[{f+2*i}:{f+2*i+1}], s[{60+2*b}:{61+2*b}] op_sel_hi:[1,0] neg_lo:[0,1] neg_hi:[0,1]")
    for i in range(8):
        A(f"v_cvt_pk_bf16_f32 v{8+i}, v{16+2*i}, v{17+2*i}")
    for i in range(8):
        A(f"v_lshlrev_b32 v{16+2*i}, 16, v{8+i}\nv_and_b32 v{17+2*i}, s36, v{8+i}")
    for b in range(2):
        f = 16 + 8 * b
        for i in range(4):
            A(f"v_pk_mul_f32 v[{f+2*i}:{f+2*i+1}], v[{f+2*i}:{f+2*i+1}], s[{64+2*b}:{65+2*b}] op_sel_hi:[1,0]")
    for i in range(8):
        A(f"v_cvt_pk_bf16_f32 v{8+i}, v{16+2*i}, v{17+2*i}")
    A(f"""ds_write_b128 v3, v[8:11]
    ds_write_b128 v3, v[12:15] offset:{XSTR}""")
    for r in range(88, 96): A(f"v_mov_b32 v{r}, 0")
    A("s_waitcnt lgkmcnt(0)")
    for kk in range(4): A(f"ds_read_b128 v[{24+4*kk}:{27+4*kk}], v106 offset:{64*kk}")
    for kk in range(2): A(f"ds_read_b128 v[{40+4*kk}:{43+4*kk}], v105 offset:{64*kk}")
    stamp(3)
    wait_flag(6, F_WQ, 16)
    stamp(4)
    def trw(base, nk, r0):
        for kk in range(nk):
            for u in range(2):
                A(f"ds_read_b64_tr_b16 v[{r0+4*kk+2*u}:{r0+4*kk+2*u+1}], v7 offset:{base - L_WQ + kk*4096 + u*1024}")
    def tag(regs):
        for r in regs: A(f"v_and_or_b32 v{r}, v{r}, s53, v122")
    trw(L_WQ, 4, 48)
    for kk in range(4):
        A(f"s_waitcnt lgkmcnt({6 - 2*kk})")
        A(f"v_mfma_f32_16x16x32_bf16 v[88:91], v[{48+4*kk}:{51+4*kk}], v[{24+4*kk}:{27+4*kk}], v[88:91]")
    tag(range(88, 92))
    A(f"""s_mov_b64 exec, s[48:49]
    buffer_store_dwordx4 v[88:91], v107, s[32:35], s38 offen offset:{B_QP}
    s_mov_b64 exec, -1""")
    stamp(5)
    wait_flag(6, F_W1, 16)
    trw(L_W1, 2, 48)
    A("s_waitcnt lgkmcnt(0)")
    for kk in range(2):
        A(f"v_mfma_f32_16x16x32_bf16 v[92:95], v[{48+4*kk}:{51+4*kk}], v[{40+4*kk}:{43+4*kk}], v[92:95]")
    A(f"""v_lshlrev_b32 v119, 15, v5
    v_lshl_add_u32 v119, v4, 4, v119
    s_lshl_b32 s39, s28, 17
    s_lshl_b32 s37, s30, 13
    s_add_u32 s39, s39, s37
    s_lshr_b32 s37, s29, 4
    s_lshl_b32 s37, s37, 8
    s_add_u32 s39, s39, s37
    s_add_u32 s40, s39, 4096
    v_lshlrev_b32 v118, 5, v5
    v_lshl_add_u32 v118, v4, 4, v118
    s_lshl_b32 s37, s30, 7
    v_add_u32 v118, s37, v118""")
    tag(range(92, 96))
    A(f"""s_mov_b64 exec, s[48:49]
    buffer_store_dwordx4 v[92:95], v107, s[32:35], s38 offen offset:{B_HP}""")
    if warmfp: A(f"buffer_load_dword v124, v118, s[32:35], s68 offen")
    A("s_mov_b64 exec, -1")
    wait_flag(6, F_QA, 20)
    stamp(6)
    def qloads(r):
        A(f"""buffer_load_dwordx4 v[{r}:{r+3}], v119, s[32:35], s39 offen offset:{B_QP} sc1
        buffer_load_dwordx4 v[{r+4}:{r+7}], v119, s[32:35], s40 offen offset:{B_QP} sc1""")
    qloads(24)
    A(f"""; ---- remaining addresses
    v_mov_b32 v123, 0
    v_and_b32 v19, 1, v0
    v_bfe_u32 v18, v0, 1, 1
    s_lshl_b32 s37, s30, 2
    v_add_u32 v18, s37, v18
    v_lshlrev_b32 v17, 1, v96
    v_xor_b32 v18, v18, v17
    v_lshlrev_b32 v18, 4, v18
    v_lshl_add_u32 v18, v19, 3, v18
    v_lshrrev_b32 v17, 2, v0
    v_lshl_add_u32 v100, v17, 8, v18
    v_and_b32 v17, 7, v0
    v_lshlrev_b32 v17, 1, v17
    v_xor_b32 v17, v17, v5
    v_lshlrev_b32 v17, 4, v17
    v_lshl_add_u32 v17, v4, 8, v17
    s_lshl_b32 s37, s30, 13
    v_add_u32 v102, s37, v17
    v_xor_b32 v103, 64, v102
    v_xor_b32 v104, 128, v102
    v_xor_b32 v105, 192, v102
    v_mul_u32_u24 v116, {OSTR}, v19
    v_lshl_add_u32 v116, v5, 4, v116
    v_add_u32 v116, {L_O}, v116
    v_lshlrev_b32 v117, 7, v19
    v_lshl_add_u32 v117, v5, 4, v117
    v_add_u32 v117, {L_ACT}, v117
    v_lshrrev_b32 v17, 5, v0
    v_lshlrev_b32 v17, 7, v17
    v_lshl_add_u32 v17, v4, 3, v17
    v_and_b32 v18, 1, v5
    v_lshl_add_u32 v17, v18, 2, v17
    s_mul_i32 s37, s30, {QSTR}
    s_add_u32 s37, s37, {L_Q}
    v_add_u32 v120, s37, v17
    v_and_b32 v19, 3, v0
    v_mul_u32_u24 v121, {QSTR}, v19
    v_lshl_add_u32 v121, v5, 4, v121
    v_add_u32 v121, {L_Q}, v121
    v_lshlrev_b32 v20, 6, v5
    v_lshl_add_u32 v20, v19, 4, v20
    v_add_u32 v108, {L_P}, v20
    s_lshl_b32 s37, s30, 8
    v_add_u32 v110, s37, v108
    s_lshl_b32 s37, s30, 9
    v_add_u32 v109, s37, v20
    s_and_b32 s41, s30, 1
    s_lshl_b32 s37, s41, 8
    s_add_u32 s37, s37, {L_AL}
    v_add_u32 v114, s37, v20
    v_lshlrev_b32 v111, 5, v19
    v_add_u32 v111, {L_ML}, v111
    s_lshl_b32 s37, s30, 3
    v_add_u32 v112, s37, v111
    v_lshlrev_b32 v106, 3, v4
    v_lshlrev_b32 v16, 12, v5
    v_lshl_add_u32 v113, v4, 4, v16
    s_and_b32 s43, s29, 3
    s_lshl_b32 s37, s43, 9
    s_lshr_b32 s42, s30, 1
    s_lshl_b32 s44, s42, 8
    s_add_u32 s37, s37, s44
    v_add_u32 v113, s37, v113
    s_lshl_b32 s44, s28, 17
    s_lshl_b32 s37, s41, 16
    s_add_u32 s44, s44, s37
    s_add_u32 s45, s44, 16384
    s_add_u32 s46, s44, 32768
    s_add_u32 s47, s44, 49152
    v_lshlrev_b32 v115, 4, v4
    v_lshl_add_u32 v115, v18, 2, v115
    s_mul_i32 s37, s41, {OSTR}
    s_lshl_b32 s42, s42, 3
    s_add_u32 s37, s37, s42
    s_add_u32 s37, s37, {L_O}
    v_add_u32 v115, s37, v115
    s_mov_b32 s50, 0x000f000f
    s_mov_b32 s51, 0x000f000f
    s_mov_b32 s58, 0x3db504f3
    s_mov_b32 s59, 0x3fb8aa3b
    s_lshl_b32 s70, s29, 9
    s_lshl_b32 s37, s30, 7
    s_add_u32 s70, s70, s37
    s_add_u32 s70, s70, {W_FP}
    v_lshrrev_b32 v17, 3, v0
    v_lshlrev_b32 v17, 14, v17
    v_and_b32 v16, 7, v0
    v_lshl_add_u32 v99, v16, 4, v17
    v_and_b32 v16, 1, v0
    v_lshlrev_b32 v16, 10, v16
    v_bfe_u32 v17, v0, 1, 2
    v_lshl_add_u32 v16, v17, 3, v16
    v_lshrrev_b32 v17, 5, v0
    v_lshl_add_u32 v16, v17, 2, v16
    s_lshl_b32 s37, s28, 7
    s_lshl_b32 s41, s30, 5
    s_add_u32 s37, s37, s41
    v_add_u32 v98, s37, v16
    v_add_u32 v17, {L_XR}, v98
    ds_read_b32 v97, v17""")
    for i in range(4):
        if vsplit:
            A(f"""s_add_u32 s37, s43, {i}
            s_and_b32 s37, s37, 3
            s_lshl_b32 s41, s37, 13
            v_add_u32 v{80+2*i}, s41, v100
            s_lshl_b32 s41, s37, 8
            v_add_u32 v{76+i}, s41, v108""")
        else:
            A(f"v_add_u32 v{80+2*i}, {i*8192}, v100\nv_add_u32 v{76+i}, {i*256}, v108")
        A(f"v_xor_b32 v{81+2*i}, 32, v{80+2*i}")
    if not noB:
        wait_flag(6, F_QB, 20)
        qloads(32)
    wait_flag(6, F_K, 20)
    for t in range(2):
        for kk in range(4):
            A(f"ds_read_b128 v[{44+16*t+4*kk}:{47+16*t+4*kk}], v{102+kk} offset:{L_K + t*4096}")
    for r in range(8, 16): A(f"v_mov_b32 v{r}, 0")
    A(f"s_mov_b32 s56, 0\ns_waitcnt vmcnt({0 if noB else 2})")
    bad_tag(range(24, 32), 16, 55, 123)
    A("s_cbranch_vccz L_qok\ns_waitcnt vmcnt(0)")
    if not noB:
        for r in range(8): A(f"v_mov_b32 v{24+r}, v{32+r}")
    A("s_branch L_qchk")
    def republish():
        A(f"""s_xor_b32 s37, s38, {W_B}
        s_mov_b64 exec, s[48:49]
        buffer_store_dwordx4 v[88:91], v107, s[32:35], s37 offen offset:{B_QP} sc1
        buffer_store_dwordx4 v[92:95], v107, s[32:35], s37 offen offset:{B_HP} sc1
        s_mov_b64 exec, -1
        s_mov_b32 s56, 1""")
    l = lab("qg")
    A(f"""{l}:
    ds_read_b32 v20, v6 offset:{F_MODE}
    s_waitcnt lgkmcnt(0)
    v_readfirstlane_b32 s57, v20
    s_xor_b32 s57, s57, 1
    s_or_b32 s57, s57, s56
    s_cbranch_scc1 L_norep""")
    republish()
    A(f"""L_norep:
    s_lshl_b32 s37, s56, 21
    s_xor_b32 s39, s39, s37
    s_xor_b32 s40, s40, s37""")
    qloads(24)
    A("s_waitcnt vmcnt(0)\nL_qchk:")
    bad_tag(range(24, 32), 16, 55, 123)
    gloop_back(l)
    A("L_qok:")
    stamp(7)
    for r in range(4): A(f"v_permlane32_swap_b32 v{24+r}, v{28+r}")
    A("v_pk_add_f32 v[24:25], v[24:25], v[28:29]\nv_pk_add_f32 v[26:27], v[26:27], v[30:31]")
    A("""v_permlane16_swap_b32 v24, v26
    v_permlane16_swap_b32 v25, v27
    v_pk_add_f32 v[24:25], v[24:25], v[26:27]
    v_cvt_pk_bf16_f32 v24, v24, v25
    v_min_u32 v24, s52, v24
    ds_write_b32 v120, v24""")
    l = lab("ql")
    A(f"{l}:")
    for kk in range(4): A(f"ds_read_b128 v[{16+4*kk}:{19+4*kk}], v121 offset:{64*kk}")
    A("s_waitcnt lgkmcnt(0)")
    any_sent(range(16, 32), 40)
    loop_back(l)
    stamp(8)
    for kk in range(4):
        for t in range(2):
            A(f"v_mfma_f32_16x16x32_bf16 v[{8+4*t}:{11+4*t}], v[{44+16*t+4*kk}:{47+16*t+4*kk}], v[{16+4*kk}:{19+4*kk}], v[{8+4*t}:{11+4*t}]")
    A(f"ds_read_b32 v42, v6 offset:{F_MODE}")
    for rnd in range(2):
        for i in range(4): A(f"v_cvt_pk_bf16_f32 v{24+i}, v{8+2*i}, v{9+2*i}")
        for i in range(4): A(f"v_lshlrev_b32 v{8+2*i}, 16, v{24+i}\nv_and_b32 v{9+2*i}, s36, v{24+i}")
        if rnd == 0:
            for i in range(4): A(f"v_pk_mul_f32 v[{8+2*i}:{9+2*i}], v[{8+2*i}:{9+2*i}], s[58:59] op_sel_hi:[1,0]")
    A("""v_max3_f32 v24, v8, v9, v10
    v_max3_f32 v25, v11, v12, v13
    v_max3_f32 v24, v24, v14, v15
    v_max_f32 v24, v24, v25""")
    allred(24, 25, "v_max_f32")
    A("v_mul_f32 v24, s59, v24")
    for i in range(8): A(f"v_fma_f32 v{8+i}, v{8+i}, s59, -v24")
    for i in range(8): A(f"v_exp_f32 v{8+i}, v{8+i}")
    A("""v_pk_add_f32 v[26:27], v[8:9], v[10:11]
    v_pk_add_f32 v[28:29], v[12:13], v[14:15]
    v_pk_add_f32 v[26:27], v[26:27], v[28:29]
    v_add_f32 v25, v26, v27""")
    allred(25, 26, "v_add_f32")
    A("""v_min_u32 v26, s52, v24
    v_min_u32 v27, s52, v25
    s_mov_b64 exec, 15
    ds_write_b64 v112, v[26:27]
    s_mov_b64 exec, -1""")
    l = lab("ml")
    A(f"""{l}:
    ds_read_b128 v[28:31], v111
    ds_read_b128 v[16:19], v111 offset:16
    s_waitcnt lgkmcnt(0)""")
    any_sent([28, 29, 30, 31, 16, 17, 18, 19], 20)
    loop_back(l)
    A("""v_max3_f32 v26, v28, v30, v16
    v_max_f32 v26, v26, v18
    v_and_b32 v26, s53, v26
    v_sub_f32 v24, v24, v26
    v_sub_f32 v28, v28, v26
    v_sub_f32 v30, v30, v26
    v_sub_f32 v16, v16, v26
    v_sub_f32 v18, v18, v26
    v_exp_f32 v24, v24
    v_exp_f32 v28, v28
    v_exp_f32 v30, v30
    v_exp_f32 v16, v16
    v_exp_f32 v18, v18
    v_mul_f32 v27, v28, v29
    v_fmac_f32 v27, v30, v31
    v_fmac_f32 v27, v16, v17
    v_fmac_f32 v27, v18, v19
    v_rcp_f32 v28, v27
    v_or_b32 v26, v26, v122
    v_mul_f32 v24, v24, v28""")
    for i in range(4): A(f"v_pk_mul_f32 v[{8+2*i}:{9+2*i}], v[{8+2*i}:{9+2*i}], v[24:25] op_sel_hi:[1,0]")
    for i in range(4): A(f"v_cvt_pk_bf16_f32 v{8+i}, v{8+2*i}, v{9+2*i}")
    for i in range(4): A(f"v_min_u32 v{8+i}, s52, v{8+i}")
    A(f"""s_mov_b64 exec, s[50:51]
    ds_write_b128 v110, v[8:11]
    s_mov_b64 exec, -1
    v_and_or_b32 v27, v27, s53, v122
    v_readfirstlane_b32 s57, v42
    s_cmp_eq_u32 s57, 0
    s_cbranch_scc1 L_modeok""")
    wait_flag(6, F_MODE, 42)
    A("""v_readfirstlane_b32 s57, v42
    s_xor_b32 s37, s57, 1
    s_or_b32 s37, s37, s56
    s_cbranch_scc1 L_modeok""")
    republish()
    A(f"""L_modeok:
    s_waitcnt vmcnt(0)
    s_cmp_eq_u32 s30, 0
    s_cbranch_scc0 L_noml
    s_mov_b64 exec, {0xffff if fullml else 15}
    s_cmp_eq_u32 s57, 0
    s_cbranch_scc1 L_mlf
    buffer_store_dwordx2 v[26:27], v106, s[32:35], s38 offen offset:{B_ML} sc1
    s_branch L_mle
    L_mlf:
    buffer_store_dwordx2 v[26:27], v106, s[32:35], s38 offen offset:{B_ML}
    L_mle:
    s_mov_b64 exec, -1
    L_noml:""")
    for r in range(8, 20): A(f"v_mov_b32 v{r}, 0")
    l = lab("pl")
    A(f"{l}:")
    for i in range(4): A(f"ds_read_b128 v[{44+4*i}:{47+4*i}], v{76+i}")
    A("s_waitcnt lgkmcnt(0)")
    any_sent(range(44, 60), 20)
    loop_back(l)
    stamp(9)
    def ffn2():
        wait_flag(6, F_W2, 22)
        trw(L_W2, 2, 60)
        wait_flag(6, F_ACT, 22)
        A("ds_read_b128 v[68:71], v117\nds_read_b128 v[72:75], v117 offset:64\ns_waitcnt lgkmcnt(0)")
        for kk in range(2):
            A(f"v_mfma_f32_16x16x32_bf16 v[8:11], v[{60+4*kk}:{63+4*kk}], v[{68+4*kk}:{71+4*kk}], v[8:11]")
    def wopre():
        wait_flag(6, F_WO, 22)
        trw(L_WO, 4, 60)
    iv = order.index('v')
    assert order.index('w2') < order.index('wo') or order.index('wo') < iv
    if order.index('w2') < iv: ffn2()
    def pvstep(i, waitcnt):
        for t in range(2):
            for u in range(2):
                r = 24 + 8 * (i & 1) + 4 * t + 2 * u
                A(f"ds_read_b64_tr_b16 v[{r}:{r+1}], v{80+2*i+t} offset:{L_V + u*4096}")
    def pvmfma(i):
        for t in range(2):
            r = 24 + 8 * (i & 1) + 4 * t
            A(f"v_mfma_f32_16x16x32_bf16 v[{12+4*t}:{15+4*t}], v[{r}:{r+3}], v[{44+4*i}:{47+4*i}], v[{12+4*t}:{15+4*t}]")
    if vsplit:
        A(f"""ds_read_b32 v20, v6 offset:{F_V}
        s_waitcnt lgkmcnt(0)
        v_cmp_eq_u32 vcc, -1, v20
        s_cbranch_vccz L_pvall""")
        for i, f in enumerate((F_V0, F_V1, F_V2, F_V)):
            wait_flag(6, f, 20)
            if i == 3: stamp(10)
            pvstep(i, 0)
            A("s_waitcnt lgkmcnt(0)")
            pvmfma(i)
        A("s_branch L_pvdone\nL_pvall:")
    else:
        wait_flag(6, F_V, 20)
    if True:
        stamp(10)
        pvstep(0, 0); pvstep(1, 0)
        A("s_waitcnt lgkmcnt(4)"); pvmfma(0); pvstep(2, 0)
        A("s_waitcnt lgkmcnt(4)"); pvmfma(1); pvstep(3, 0)
        A("s_waitcnt lgkmcnt(4)"); pvmfma(2)
        A("s_waitcnt lgkmcnt(0)"); pvmfma(3)
        A("L_pvdone:\ns_nop 7")
    tag(range(12, 20))
    A(f"""s_mov_b64 exec, s[50:51]
    s_cmp_eq_u32 s57, 0
    s_cbranch_scc0 L_opslow
    buffer_store_dwordx4 v[12:15], v109, s[32:35], s38 offen offset:{B_OP}
    buffer_store_dwordx4 v[16:19], v109, s[32:35], s38 offen offset:{B_OP + 256}
    L_opdone:
    s_mov_b64 exec, -1""")
    stamp(11)
    def op_loads():
        for i in range(4): A(f"buffer_load_dwordx4 v[{24+4*i}:{27+4*i}], v113, s[32:35], s{44+i} offen offset:{B_OP} sc1")
    op_loads()
    if order.index('w2') > iv: ffn2()
    wopre()
    l = lab("al")
    A(f"""{l}:
    ds_read_b128 v[40:43], v114
    s_waitcnt lgkmcnt(0)""")
    any_sent(range(40, 44), 22)
    loop_back(l)
    stamp(12)
    l = lab("og")
    A(f"s_branch L_ochk\n{l}:")
    op_loads()
    A("L_ochk:\ns_waitcnt vmcnt(0)")
    bad_tag(range(24, 40), 44, 55, 123)
    gloop_back(l)
    stamp(13)
    A("""v_pk_mul_f32 v[44:45], v[24:25], v[40:41] op_sel_hi:[1,0]
    v_pk_mul_f32 v[46:47], v[26:27], v[40:41] op_sel_hi:[1,0]
    v_pk_fma_f32 v[44:45], v[28:29], v[40:41], v[44:45] op_sel:[0,1,0] op_sel_hi:[1,1,1]
    v_pk_fma_f32 v[46:47], v[30:31], v[40:41], v[46:47] op_sel:[0,1,0] op_sel_hi:[1,1,1]
    v_pk_fma_f32 v[44:45], v[32:33], v[42:43], v[44:45] op_sel_hi:[1,0,1]
    v_pk_fma_f32 v[46:47], v[34:35], v[42:43], v[46:47] op_sel_hi:[1,0,1]
    v_pk_fma_f32 v[44:45], v[36:37], v[42:43], v[44:45] op_sel:[0,1,0] op_sel_hi:[1,1,1]
    v_pk_fma_f32 v[46:47], v[38:39], v[42:43], v[46:47] op_sel:[0,1,0] op_sel_hi:[1,1,1]
    v_permlane16_swap_b32 v44, v46
    v_permlane16_swap_b32 v45, v47
    v_pk_add_f32 v[44:45], v[44:45], v[46:47]
    v_mov_b32 v46, v44
    v_mov_b32 v47, v45
    v_permlane32_swap_b32 v46, v44
    v_permlane32_swap_b32 v47, v45
    v_pk_add_f32 v[44:45], v[44:45], v[46:47]
    v_cvt_pk_bf16_f32 v44, v44, v45
    v_min_u32 v44, s52, v44
    ds_write_b32 v115, v44""")
    l = lab("ol")
    A(f"{l}:")
    for kk in range(4): A(f"ds_read_b128 v[{24+4*kk}:{27+4*kk}], v116 offset:{64*kk}")
    A("s_waitcnt lgkmcnt(0)")
    any_sent(range(24, 40), 22)
    loop_back(l)
    for kk in range(4):
        A(f"v_mfma_f32_16x16x32_bf16 v[8:11], v[{60+4*kk}:{63+4*kk}], v[{24+4*kk}:{27+4*kk}], v[8:11]")
    A("s_lshl_b32 s37, s28, 2\ns_cmp_eq_u32 s29, s37")
    tag(range(8, 12))
    A(f"""s_mov_b64 exec, s[48:49]
    s_cbranch_scc1 L_final
    buffer_store_dwordx4 v[8:11], v118, s[32:35], s68 offen sc1""")
    if stamps:
        A("s_mov_b64 exec, -1")
        stamp(14)
        A("s_branch L_cend")
    else: A("s_endpgm")
    A(f"""L_opslow:
    buffer_store_dwordx4 v[12:15], v109, s[32:35], s38 offen offset:{B_OP} sc1
    buffer_store_dwordx4 v[16:19], v109, s[32:35], s38 offen offset:{B_OP + 256} sc1
    s_branch L_opdone""")
    A(f"""L_final:
    buffer_store_dwordx4 v[8:11], v118, s[32:35], s68 offen
    s_mov_b64 exec, -1""")
    stamp(14)
    if fdelay: A(f"s_sleep {fdelay}")
    l = lab("fg")
    A(f"{l}:")
    for i in range(4):
        A(f"buffer_load_dwordx4 v[{24+4*i}:{27+4*i}], v99, s[32:35], s70 offen offset:{512*i} sc1")
    A("s_waitcnt vmcnt(0)")
    bad_tag(range(24, 40), 40, 55, 123)
    gloop_back(l)
    stamp(16)
    A(f"""v_pk_add_f32 v[24:25], v[24:25], v[28:29]
    v_pk_add_f32 v[26:27], v[26:27], v[30:31]
    v_pk_add_f32 v[32:33], v[32:33], v[36:37]
    v_pk_add_f32 v[34:35], v[34:35], v[38:39]
    v_pk_add_f32 v[24:25], v[24:25], v[32:33]
    v_pk_add_f32 v[26:27], v[26:27], v[34:35]
    v_permlane32_swap_b32 v24, v26
    v_permlane32_swap_b32 v25, v27
    v_pk_add_f32 v[24:25], v[24:25], v[26:27]
    v_mov_b32 v26, v24
    v_mov_b32 v27, v25
    v_permlane16_swap_b32 v26, v24
    v_permlane16_swap_b32 v27, v25
    v_pk_add_f32 v[24:25], v[24:25], v[26:27]
    v_lshlrev_b32 v26, 16, v97
    v_and_b32 v27, s36, v97
    v_add_f32 v24, v24, v24 row_ror:8
    v_add_f32 v25, v25, v25 row_ror:8
    v_pk_add_f32 v[24:25], v[24:25], v[26:27]
    v_cvt_pk_bf16_f32 v24, v24, v25
    s_mov_b32 s40, 0xff
    s_mov_b32 s41, 0xff
    s_mov_b64 exec, s[40:41]
    global_store_dword v98, v24, s[22:23]
    s_or_b32 s37, s2, s30
    s_cbranch_scc1 L_cend
    v_mov_b32 v20, s54
    s_mov_b64 exec, 1
    global_store_dword v123, v20, s[26:27] sc1""")
    A("L_cend:")
    if stamps: A("s_mov_b64 exec, -1")
    stamp(15)
    if amp is not None:
        A(f"""s_cmp_eq_u32 s30, 0
        s_cbranch_scc0 L_end
        s_cmp_eq_u32 s2, {ampwg}
        s_cbranch_scc0 L_end
        v_readlane_b32 s37, v{VST}, {amp}
        s_nop 4
        s_sub_u32 s37, s37, s94
        s_mul_i32 s37, s37, 10
        s_add_u32 s37, s37, s98
        L_ampl:
        s_memrealtime s[40:41]
        s_waitcnt lgkmcnt(0)
        s_sub_u32 s40, s40, s37
        s_cmp_lt_i32 s40, 0
        s_cbranch_scc1 L_ampl""")
    dump_stamps()
    A("L_end:\ns_endpgm")
    A(f""".section .rodata,"a"
    .p2align 6
    .amdhsa_kernel {NAME}
    .amdhsa_next_free_vgpr 128
    .amdhsa_next_free_sgpr 102
    .amdhsa_accum_offset 128
    .amdhsa_group_segment_fixed_size 0
    .amdhsa_kernarg_size 96
    .amdhsa_user_sgpr_count 2
    .amdhsa_user_sgpr_kernarg_segment_ptr 1
    .amdhsa_system_sgpr_workgroup_id_x 1
    .amdhsa_float_denorm_mode_32 3
    .end_amdhsa_kernel""")
    return A.finish()

if __name__ == "__main__":
    out = sys.argv[1] if len(sys.argv) > 1 else "k.s"
    kw = {}
    for a in sys.argv[2:]:
        if '=' in a:
            k, v = a.split('=', 1); kw[k] = eval(v)
        else: kw[a] = True
    open(out, "w").write(gen(**kw))
```

```python
import sys
from asmlib import Asm

NAME = "parallel_sum__sliding_block_cached__dense_activation_mish__decode_kernel"

L_K, L_V, L_WQ, L_WO, L_W1, L_W2 = 0x0, 0x8000, 0x10000, 0x14000, 0x18000, 0x1A000
L_S = 0x1C000
L_Q, L_P, L_O, L_ML, L_FLG, L_AL = L_S, L_S + 0x500, L_S + 0x900, L_S + 0xB40, L_S + 0xC00, L_S + 0xD00
L_XN, L_ACT, L_XR = 0x1D000, 0x1D900, 0x1DA00
LDS_BYTES = 0x1E200
QSTR, XSTR, OSTR = 272, 1040, 272
F_WQ, F_W1, F_K, F_V, F_WO, F_W2, F_QA, F_QB, F_ACT, F_X, F_MODE, F_V0, F_V1, F_V2, F_XN = [4 * i for i in range(15)]
W_BLK = 0x10000
B_QP, B_HP, B_OP, B_ML, B_ID = 0, 512, 1024, 3072, 3200
W_FP = 0x100000
W_B = 0x200000
SPIN = 1 << 18
IDTRY = 48

def gen(depth=22, stamps=False, safe=False, amp=None, ampwg=0, order=('wq', 'w1', 'k', 'v', 'w2', 'wo'),
        qa=34, qb=44, hpt=None, pref=True, header="", warmfp=True, fdelay=0, loaderonly=False, vsplit=True,
        forcemode=None, mlt='k', nobeacon=False, noB=False, fullml=True, fullid=True, prof=False, dsched=None, kph='A', wph='A', ntw=' nt', ntkv=' nt', sa=4, sb=12, touchout=True, fpsets=1, op2=True, epsc='', b1early=True, idt='x', qsets=3, hs=12, deep=None, t0=95, slope=3.35, margin=25, chk=(18, 26, 34, 42, 50, 58, 66, 74, 82)):
    A = Asm()
    uid = [0]
    def lab(p):
        uid[0] += 1
        return f"L_{p}{uid[0]}"
    VST = 127
    def stamp(k):
        if stamps:
            A(f"s_memrealtime s[98:99]\ns_waitcnt lgkmcnt(0)\nv_writelane_b32 v{VST}, s98, {k}")
    def stamp0():
        if stamps: A(f"v_writelane_b32 v{VST}, s94, 0")
    def dump_stamps():
        if stamps and amp is None:
            A(f"""s_lshl_b32 s96, s2, 3
            s_add_u32 s96, s96, s3
            s_lshl_b32 s96, s96, 7
            s_add_u32 s96, s96, 0x8000000
            s_add_u32 s96, s26, s96
            s_addc_u32 s97, s27, 0
            s_mov_b32 exec_lo, -1
            s_mov_b32 exec_hi, 0
            v_mbcnt_lo_u32_b32 v126, -1, 0
            v_lshlrev_b32 v126, 2, v126
            global_store_dword v126, v{VST}, s[96:97]""")
    def loop_back(l):
        if safe:
            o = lab("out")
            A(f"""s_add_u32 s100, s100, 1
            s_bitcmp1_b32 s100, 21
            s_cbranch_scc1 {o}
            s_cbranch_vccnz {l}
            {o}:""")
        else:
            A(f"s_cbranch_vccnz {l}")
    def gloop_back(l, sleep=0):
        o = lab("ok")
        A(f"s_cbranch_vccz {o}")
        if sleep: A(f"s_sleep {sleep}")
        A(f"""s_add_u32 s101, s101, 1
        s_cmp_lt_u32 s101, {SPIN}
        s_cbranch_scc1 {l}
        {o}:""")
    def wait_flag(vaddr, off, vt):
        l = lab("wf")
        A(f"""{l}:
        ds_read_b32 v{vt}, v{vaddr} offset:{off}
        s_waitcnt lgkmcnt(0)
        v_cmp_eq_u32 vcc, -1, v{vt}""")
        loop_back(l)
    def set_flag(vaddr, off, vdata):
        A(f"""s_mov_b64 exec, 1
        ds_write_b32 v{vaddr}, v{vdata} offset:{off}
        s_mov_b64 exec, -1""")
    def any_sent(regs, vt):
        regs = list(regs)
        A(f"v_max3_u32 v{vt}, v{regs[0]}, v{regs[1]}, v{regs[2] if len(regs) > 2 else regs[1]}")
        rest = regs[3:]
        while rest:
            a = rest[0]; b = rest[1] if len(rest) > 1 else rest[0]
            A(f"v_max3_u32 v{vt}, v{vt}, v{a}, v{b}")
            rest = rest[2:]
        A(f"v_cmp_eq_u32 vcc, -1, v{vt}")
    def bad_tag(regs, t0, sT, vzero):
        regs = list(regs); n = len(regs) // 2
        for i in range(n):
            if isinstance(sT, list):
                a, b, t = sT[i]
                A(f"v_bitop3_b32 v{t0+i}, v{a}, v{b}, {t} bitop3:0x7e")
            else:
                g, r = i // 4, i % 4
                A(f"v_bitop3_b32 v{t0+i}, v{regs[8*g+r]}, v{regs[8*g+4+r]}, s{72+r} bitop3:0x7e")
        cur = [t0 + i for i in range(n)]
        while len(cur) > 1:
            if len(cur) >= 3:
                A(f"v_or3_b32 v{cur[0]}, v{cur[0]}, v{cur[1]}, v{cur[2]}"); cur = cur[3:] + [cur[0]]
            else:
                A(f"v_or_b32 v{cur[0]}, v{cur[0]}, v{cur[1]}"); cur = [cur[0]]
        A(f"v_cmp_ne_u32_sdwa vcc, v{cur[0]}, v{vzero} src0_sel:BYTE_0 src1_sel:DWORD")
    def mktags(se, lanebit):
        A(f"""s_mov_b32 s72, s{se}
        s_lshr_b32 s73, s{se}, 8
        s_lshr_b32 s74, s{se}, 16
        s_lshr_b32 s75, s{se}, 24
        v_mov_b32 v156, 0xff
        v_and_b32 v152, s72, v156
        v_and_b32 v153, s73, v156
        v_and_b32 v154, s74, v156
        v_and_b32 v155, s75, v156
        v_and_b32 v157, 1, v0
        v_cmp_eq_u32 vcc, 0, v157
        v_cndmask_b32 v156, v154, v152, vcc
        v_cndmask_b32 v157, v155, v153, vcc""")
    def bf16r(d, s):
        A(f"v_cvt_pk_bf16_f32 v{d}, v{s}, v{s}\nv_lshlrev_b32 v{d}, 16, v{d}")
    def ws_srd(d):
        A(f"""s_add_u32 s{d}, s26, {W_BLK}
        s_addc_u32 s{d+1}, s27, 0
        s_mov_b32 s{d+2}, 0x300000
        s_mov_b32 s{d+3}, 0x00020000""")
    def allred(v, t, op):
        A(f"""v_mov_b32 v{t}, v{v}
        v_permlane32_swap_b32 v{t}, v{v}
        {op} v{v}, v{v}, v{t}
        v_mov_b32 v{t}, v{v}
        v_permlane16_swap_b32 v{t}, v{v}
        {op} v{v}, v{v}, v{t}""")

    def allred2(v, t, w, u, op):
        for sw in ("v_permlane32_swap_b32", "v_permlane16_swap_b32"):
            A(f"""v_mov_b32 v{t}, v{v}
            v_mov_b32 v{u}, v{w}
            {sw} v{t}, v{v}
            {sw} v{u}, v{w}
            {op} v{v}, v{v}, v{t}
            {op} v{w}, v{w}, v{u}""")
    A(header)
    A(f"; @launch grid=(256,1,1) block=(384,1,1) lds={LDS_BYTES}")
    A(f""".amdgcn_target "amdgcn-amd-amdhsa--gfx950"
    .text
    .globl {NAME}
    .p2align 8
    .type {NAME},@function
    {NAME}:""")
    A("""s_load_dwordx16 s[4:19], s[0:1], 0
    s_load_dwordx8 s[20:27], s[0:1], 64""")
    if pref: A("s_getpc_b64 s[30:31]\nL_pc:")
    A("""s_cmp_ge_u32 s2, 256
    s_cbranch_scc1 L_end
    v_lshrrev_b32 v1, 6, v0""")
    if pref:
        A("""v_and_b32 v2, 31, v0
        v_lshl_add_u32 v2, v1, 5, v2
        v_lshlrev_b32 v2, 7, v2
        v_min_u32 v2, L_end-L_pc, v2
        s_mov_b32 exec_hi, 0
        global_load_dword v125, v2, s[30:31]
        s_mov_b64 exec, -1""")
    A("""v_readfirstlane_b32 s3, v1
    v_and_b32 v0, 63, v0
    s_and_b32 s28, s2, 7
    s_lshr_b32 s29, s2, 3""")
    if stamps:
        A(f"s_memrealtime s[94:95]\nv_mov_b32 v{VST}, 0")
    A("""s_cmp_eq_u32 s3, 0
    s_cbranch_scc0 L_notloader""")

    A("s_setprio 3")
    if deep: A("s_memrealtime s[72:73]")
    A(f"""v_lshlrev_b32 v21, 4, v0
    s_mov_b32 m0, {L_XR}
    v_lshrrev_b32 v2, 3, v0
    v_and_b32 v9, 6, v2
    v_xor_b32 v9, v9, v0
    v_and_b32 v9, 7, v9
    v_lshlrev_b32 v9, 4, v9
    v_lshrrev_b32 v4, 5, v0
    v_and_b32 v5, 3, v2
    v_lshl_add_u32 v6, v4, 3, v5
    v_lshl_add_u32 v10, v6, 13, v9
    v_add_u32 v11, 31744, v10
    s_mov_b32 s34, 4194304
    s_mov_b32 s35, 0x00020000
    s_movk_i32 s60, 0x800
    s_lshr_b32 s57, s29, 3
    s_lshl_b32 s57, s57, 20
    s_lshl_b32 s58, s28, 10
    s_add_u32 s57, s57, s58
    s_and_b32 s58, s29, 7
    {dict(A='s_lshl_b32 s56, s58, 11', Z='s_mov_b32 s56, 0', X='s_lshl_b32 s56, s28, 11', P='s_and_b32 s56, s58, 6' + chr(10) + 's_lshl_b32 s56, s56, 11')[wph]}
    s_lshl_b32 s58, s58, 7
    s_add_u32 s57, s57, s58
    s_and_b32 s61, s29, 3
    s_lshl_b32 s62, s61, 3
    s_add_u32 s62, s62, s28
    s_lshr_b32 s63, s29, 2
    s_waitcnt lgkmcnt(0)
    global_load_lds_dwordx4 v21, s[4:5]
    global_load_lds_dwordx4 v21, s[4:5] offset:1024
    s_mov_b32 s32, s10
    s_mov_b32 s33, s11""")
    info = dict(wq=(8, 32, 10, L_WQ, F_WQ), w1=(4, 36, 12, L_W1, F_W1), k=(16, 40, 14, L_K, F_K), v=(16, 44, 14, L_V, F_V),
                wo=(8, 48, 16, L_WO, F_WO), w2=(4, 52, 18, L_W2, F_W2))
    flag_at = {2: [F_X]}
    cum = 2
    for m in order:
        if m == 'v' and vsplit:
            for i, f in enumerate((F_V0, F_V1, F_V2)): flag_at.setdefault(cum + 8 * (i + 1), []).append(f)
        cum += 2 * info[m][0]
        flag_at.setdefault(cum, []).append(info[m][4])
    def kphase():
        if kph == 'A': A("s_and_b32 s67, s29, 15")
        elif kph == 'B': A("s_lshl_b32 s67, s28, 1\ns_lshr_b32 s59, s29, 4\ns_add_u32 s67, s67, s59")
        elif kph == 'C': A("s_lshl_b32 s67, s28, 1\ns_lshr_b32 s59, s29, 4\ns_add_u32 s67, s67, s59\ns_and_b32 s59, s29, 8\ns_add_u32 s67, s67, s59\ns_and_b32 s67, s67, 15")
        elif kph == 'D': A("s_lshl_b32 s67, s28, 1\ns_add_u32 s67, s67, s29\ns_and_b32 s67, s67, 15")
        elif kph == 'E': A("s_lshl_b32 s67, s28, 1\ns_lshr_b32 s59, s29, 2\ns_add_u32 s67, s67, s59\ns_and_b32 s67, s67, 15")
        elif kph == 'F': A("s_mul_i32 s67, s29, 5\ns_mul_i32 s59, s28, 3\ns_add_u32 s67, s67, s59\ns_and_b32 s67, s67, 15")
        elif kph == 'G': A("s_and_b32 s67, s29, 7\ns_lshl_b32 s67, s67, 1")
        elif kph == 'Z': A("s_mov_b32 s67, 0")
    def setup(m):
        if m == 'wq': return
        if m == 'w1':
            A("""v_mul_u32_u24 v12, 3584, v6
            v_add_u32 v12, v12, v9
            v_add_u32 v13, 13312, v12
            s_mov_b32 s36, s16
            s_mov_b32 s37, s17
            s_cmp_lt_u32 s62, 28
            s_cselect_b32 s38, 1835008, 0
            s_mov_b32 s39, 0x00020000
            s_mul_i32 s57, s63, 229376
            s_lshl_b32 s58, s62, 7
            s_add_u32 s57, s57, s58
            s_lshl_b32 s56, s61, 11""")
        elif m == 'k':
            A(f"""v_lshrrev_b32 v7, 4, v0
            v_lshlrev_b32 v8, 1, v7
            v_xor_b32 v8, v8, v0
            v_and_b32 v8, 15, v8
            v_lshlrev_b32 v8, 4, v8
            v_lshl_add_u32 v14, v7, 8, v8
            v_xor_b32 v15, 128, v14
            s_mov_b32 s40, s6
            s_mov_b32 s41, s7
            s_mov_b32 s42, 33554432
            s_mov_b32 s43, 0x00020000
            s_lshr_b32 s64, s29, 4
            s_lshl_b32 s64, s64, 3
            s_add_u32 s64, s64, s28
            s_lshl_b32 s64, s64, 21
            s_and_b32 s58, s29, 15
            s_lshl_b32 s58, s58, 15
            s_add_u32 s64, s64, s58
            s_add_u32 s64, s64, 1572864""")
            kphase()
            A("s_lshl_b32 s56, s67, 11")
        elif m == 'v':
            A(f"""s_mov_b32 s44, s8
            s_mov_b32 s45, s9
            s_mov_b32 s46, 33554432
            s_mov_b32 s47, 0x00020000""")
            if vsplit:
                A("""s_lshl_b32 s65, s61, 13
                s_and_b32 s66, s63, 3
                s_lshl_b32 s66, s66, 11
                s_or_b32 s56, s65, s66""")
            else:
                A("s_lshl_b32 s56, s67, 11")
        elif m == 'wo':
            A("""v_lshl_add_u32 v7, v4, 7, v5
            v_lshl_add_u32 v16, v7, 10, v9
            v_add_u32 v17, 15360, v16
            s_mov_b32 s48, s12
            s_mov_b32 s49, s13
            s_mov_b32 s50, 4194304
            s_mov_b32 s51, 0x00020000
            s_lshl_b32 s57, s28, 19
            s_lshl_b32 s58, s61, 15
            s_add_u32 s57, s57, s58
            s_lshl_b32 s58, s63, 7
            s_add_u32 s57, s57, s58""")
            A(dict(A="s_and_b32 s56, s29, 7\ns_lshl_b32 s56, s56, 11", Z="s_mov_b32 s56, 0", X="s_lshl_b32 s56, s28, 11", P="s_lshl_b32 s56, s28, 11")[wph])
        elif m == 'w2':
            A("""v_lshl_add_u32 v18, v6, 10, v9
            v_add_u32 v19, 3072, v18
            s_mov_b32 s52, s20
            s_mov_b32 s53, s21
            s_cmp_lt_u32 s62, 28
            s_cselect_b32 s54, 1835008, 0
            s_mov_b32 s55, 0x00020000
            s_lshl_b32 s57, s62, 16
            s_lshl_b32 s58, s63, 7
            s_add_u32 s57, s57, s58
            s_lshl_b32 s56, s61, 11""")
    stn = {F_WQ: 3, F_W1: 4, F_K: 5, F_V: 6, F_WO: 7, F_QA: 2, F_X: 8, F_W2: 9, F_QB: 10}
    def stream(depth, variant):
        issued = 2
        done_barrier = variant != 0
        flagged = set()
        live = variant == 0
        pending = False
        def landed(n):
            for c in sorted(flag_at):
                if c <= n and c not in flagged:
                    flagged.add(c)
                    if not live: continue
                    A("s_mov_b64 exec, 1")
                    for f in flag_at[c]: A(f"ds_write_b32 v20, v20 offset:{f}")
                    A("s_mov_b64 exec, -1")
                    for f in flag_at[c]:
                        if f in stn: stamp(stn[f])
        for m in order:
            npair, srd, vo, lbase, _ = info[m]
            if live: setup(m)
            for p in range(npair):
                d = depth
                if dsched and variant == 0:
                    for (frm, dd) in dsched:
                        if issued >= frm: d = dd
                if variant == 1 and (issued - (depth0 - 2)) in chk:
                    live = True
                    A(f"L_deep{issued}:")
                if issued + 2 > d:
                    if not done_barrier:
                        A(f"v_mov_b32 v20, {L_FLG}\ns_barrier")
                        stamp(1)
                        done_barrier = True
                    if live: A(f"s_waitcnt vmcnt({d - 2})")
                    landed(issued - (d - 2))
                    if prof and live and (issued - (d - 2)) % 8 == 2: stamp(11 + (issued - (d - 2)) // 8)
                    if variant == 0 and deep:
                        n = issued - (d - 2)
                        if n in chk:
                            thr = int(t0 + slope * (n - 2) + margin)
                            A(f"""s_memrealtime s[70:71]
                            s_waitcnt lgkmcnt(0)
                            s_sub_u32 s70, s70, s72
                            s_cmp_gt_u32 s70, {thr}
                            s_cbranch_scc1 L_deep{issued}""")
                if live:
                    A(f"s_add_u32 m0, s56, {lbase}" if lbase else "s_mov_b32 m0, s56")
                    if m == 'wq': A("s_lshl_b32 s58, s56, 6\ns_add_u32 s58, s58, s57")
                    elif m == 'w1': A("s_mul_i32 s58, s56, 28\ns_add_u32 s58, s58, s57")
                    elif m == 'w2': A("s_lshl_b32 s58, s56, 3\ns_add_u32 s58, s58, s57")
                    elif m == 'wo': A("s_and_b32 s58, s56, s60\ns_lshl_b32 s58, s58, 7\ns_and_b32 s59, s56, 0x3000\ns_add_u32 s58, s58, s59\ns_add_u32 s58, s58, s57")
                    else: A("s_add_u32 s58, s56, s64")
                    fl = ntkv if m in ('k', 'v') else ntw
                    A(f"buffer_load_dwordx4 v{vo}, s[{srd}:{srd+3}], s58 offen{fl} lds")
                    A(f"buffer_load_dwordx4 v{vo+1}, s[{srd}:{srd+3}], s58 offen offset:1024{fl} lds")
                issued += 2
                if p != npair - 1 and live:
                    if m == 'v' and vsplit:
                        A("s_add_u32 s66, s66, s60\ns_and_b32 s66, s66, 0x1fff")
                        if p % 4 == 3: A("s_add_u32 s65, s65, 0x2000\ns_and_b32 s65, s65, 0x7fff")
                        A("s_or_b32 s56, s65, s66")
                    else:
                        A(f"s_add_u32 s56, s56, s60\ns_and_b32 s56, s56, {npair * 2048 - 1}")
        pts = set(c for c in flag_at if c not in flagged)
        if prof: pts |= set(c for c in range(issued - depth + 4, issued + 1) if c % 8 == 2)
        for c in sorted(pts):
            A(f"s_waitcnt vmcnt({issued - c})")
            landed(c)
            if prof and c % 8 == 2: stamp(11 + c // 8)
        if stamps: A(f"s_mov_b32 s98, {variant + 1}\nv_writelane_b32 v{VST}, s98, 31")
        stamp0()
        dump_stamps()
        A("s_endpgm")
    depth0 = depth
    stream(depth, 0)
    if deep: stream(deep, 1)

    A("L_notloader:")
    if loaderonly: A("s_barrier\ns_endpgm")
    A("s_cmp_eq_u32 s3, 1\ns_cbranch_scc0 L_compute")
    A(f"""s_and_b32 s61, s29, 3
    s_lshl_b32 s62, s61, 3
    s_add_u32 s62, s62, s28
    v_and_b32 v11, 7, v0
    v_lshlrev_b32 v11, 2, v11
    v_lshrrev_b32 v12, 5, v0
    v_lshl_add_u32 v11, v12, 1, v11
    v_bfe_u32 v12, v0, 4, 1
    v_add_u32 v11, v11, v12
    v_bfe_u32 v12, v0, 3, 1
    v_lshl_add_u32 v11, v12, 5, v11
    s_min_u32 s63, s62, 27
    s_lshl_b32 s63, s63, 6
    v_add_u32 v13, s63, v11
    v_lshlrev_b32 v13, 1, v13
    v_mov_b32 v20, {L_FLG}
    v_mov_b32 v40, 0
    v_mov_b32 v41, 0
    v_mov_b32 v19, 0
    s_mov_b32 s100, 0
    s_mov_b32 s101, 0
    s_getreg_b32 s64, hwreg(HW_REG_XCC_ID)
    s_lshl_b32 s65, s28, 17
    s_lshl_b32 s66, s29, 12
    s_add_u32 s66, s66, s65
    v_and_b32 v21, 31, v0
    v_lshlrev_b32 v21, 12, v21
    s_waitcnt lgkmcnt(0)
    s_load_dword s5, s[26:27], 0""")
    if b1early: A("global_load_ushort v14, v13, s[18:19]")
    ws_srd(8)
    A(f"""s_barrier
    s_and_b32 s64, s64, 15
    s_waitcnt lgkmcnt(0)
    s_add_u32 s5, s5, 1
    s_lshl_b32 s6, s5, 4
    s_or_b32 s6, s6, s64
    v_mov_b32 v22, s6
    v_lshlrev_b32 v24, 2, v0
    s_mov_b32 exec_lo, {0 if nobeacon else (-1 if fullid else 1)}
    s_mov_b32 exec_hi, 0
    buffer_store_dword v22, v24, s[8:11], s66 offen offset:{B_ID}
    s_mov_b64 exec, -1""")
    if not b1early: A("global_load_ushort v14, v13, s[18:19]")
    stamp0()
    A(f"""v_lshrrev_b32 v5, 4, v0
    v_and_b32 v4, 15, v0
    v_bfe_u32 v60, v0, 2, 2
    v_and_b32 v17, 1, v5
    v_lshl_add_u32 v60, v17, 2, v60
    v_bfe_u32 v18, v0, 1, 1
    v_and_b32 v61, 6, v60
    v_xor_b32 v18, v18, v61
    v_lshlrev_b32 v18, 4, v18
    v_and_b32 v61, 1, v0
    v_lshl_add_u32 v18, v61, 3, v18
    v_lshrrev_b32 v17, 5, v0
    v_lshl_add_u32 v17, v17, 4, v60
    v_lshl_add_u32 v62, v17, 7, v18
    v_add_u32 v62, {L_W1}, v62
    v_xor_b32 v63, 32, v62
    v_xor_b32 v64, 64, v62
    v_xor_b32 v65, 96, v62
    v_mul_u32_u24 v18, {XSTR}, v61
    v_lshl_add_u32 v18, v5, 4, v18
    s_lshr_b32 s37, s29, 2
    s_lshl_b32 s37, s37, 7
    s_add_u32 s37, s37, {L_XN}
    v_add_u32 v66, s37, v18
    v_lshlrev_b32 v67, 8, v4
    v_lshl_add_u32 v67, v5, 4, v67
    s_movk_i32 s53, 0xff00
    s_mov_b32 s48, 0x00030003
    s_mov_b32 s49, 0x00030003""")
    mktags(5, 0)
    for r in range(104, 120): A(f"v_mov_b32 v{r}, 0")
    wait_flag(20, F_XN, 18)
    if not nobeacon: A(f"buffer_load_dword v23, v21, s[8:11], s65 offen offset:{B_ID} sc1")
    A("ds_read_b128 v[24:27], v66\nds_read_b128 v[28:31], v66 offset:64")
    wait_flag(20, F_W1, 18)
    for t in range(4):
        for kk in range(2):
            for u in range(2):
                r = 72 + 8 * t + 4 * kk + 2 * u
                A(f"ds_read_b64_tr_b16 v[{r}:{r+1}], v{62+t} offset:{kk*4096 + u*1024}")
    for t in range(4):
        A(f"s_waitcnt lgkmcnt({12 - 4*t})")
        for kk in range(2):
            r = 72 + 8 * t + 4 * kk
            A(f"v_mfma_f32_16x16x32_bf16 v[{104+4*t}:{107+4*t}], v[{r}:{r+3}], v[{24+4*kk}:{27+4*kk}], v[{104+4*t}:{107+4*t}]")
    for r in range(104, 120): A(f"v_and_or_b32 v{r}, v{r}, s53, v{152 + r % 4}")
    A("s_mov_b64 exec, s[48:49]")
    for t in range(4): A(f"buffer_store_dwordx4 v[{104+4*t}:{107+4*t}], v67, s[8:11], s66 offen offset:{B_HP + 64*t}")
    A("s_mov_b64 exec, -1\ns_mov_b32 s7, 0")
    stamp(6)
    if nobeacon: A("s_branch L_idok")
    l = lab("id")
    A(f"""s_waitcnt vmcnt(4)
    s_branch L_idchk
    {l}:
    buffer_load_dword v23, v21, s[8:11], s65 offen offset:{B_ID} sc1
    s_waitcnt vmcnt(0)
    L_idchk:
    v_cmp_ne_u32 vcc, s6, v23
    s_cbranch_vccz L_idok
    s_add_u32 s7, s7, 1
    s_cmp_lt_u32 s7, {IDTRY}
    s_cbranch_scc1 {l}
    L_idok:
    s_cmp_eq_u32 s7, {IDTRY}
    s_cselect_b32 s7, 1, 0""")
    if forcemode is not None: A(f"s_mov_b32 s7, {forcemode}")
    A("v_mov_b32 v23, s7")
    set_flag(20, F_MODE, 23)
    stamp(1)
    A(f"""s_cmp_eq_u32 s7, 0
    s_cbranch_scc1 L_hpfast
    s_xor_b32 s37, s66, {W_B}
    s_mov_b64 exec, s[48:49]""")
    for t in range(4): A(f"buffer_store_dwordx4 v[{104+4*t}:{107+4*t}], v67, s[8:11], s37 offen offset:{B_HP + 64*t} sc1")
    A("s_mov_b64 exec, -1\nL_hpfast:")
    A(f"""s_cmp_lt_u32 s62, 28
    s_cbranch_scc0 L_actw
    v_lshrrev_b32 v16, 3, v0
    v_lshlrev_b32 v16, 14, v16
    v_and_b32 v17, 7, v0
    v_lshl_add_u32 v16, v17, 4, v16
    s_lshl_b32 s31, s61, 12
    s_add_u32 s31, s31, s65""")
    if hpt: wait_flag(20, {'k': F_K}[hpt], 18)
    elif hs: A(f"s_sleep {hs}")
    l = lab("hp")
    A(f"s_lshl_b32 s7, s7, 21\n{l}:\ns_xor_b32 s31, s31, s7")
    for i in range(4):
        b, half = i & 1, i >> 1
        A(f"buffer_load_dwordx4 v[{24+4*i}:{27+4*i}], v16, s[8:11], s31 offen offset:{B_HP + b*256 + half*128} sc1")
    A("s_waitcnt vmcnt(0)")
    bad_tag(range(24, 40), 44, 5, 19)
    gloop_back(l, sleep=4)
    stamp(2)
    for i in range(4):
        r = 24 + 4 * i
        A(f"""v_permlane32_swap_b32 v{r}, v{r+2}
        v_permlane32_swap_b32 v{r+1}, v{r+3}
        v_add_f32 v{r}, v{r}, v{r+2}
        v_add_f32 v{r+1}, v{r+1}, v{r+3}""")
    for i in range(4):
        r = 24 + 4 * i
        A(f"v_permlane16_swap_b32 v{r}, v{r+1}\nv_add_f32 v{r}, v{r}, v{r+1}")
    for i in range(4):
        r = 24 + 4 * i
        A(f"v_add_f32 v{r}, v{r}, v{r} row_ror:8")
    A("""v_and_b32 v18, 8, v0
    v_cmp_eq_u32 vcc, 0, v18
    v_cndmask_b32 v40, v32, v24, vcc
    v_cndmask_b32 v41, v36, v28, vcc
    v_lshlrev_b32 v14, 16, v14
    s_mov_b32 s32, 0x3fb8aa3b
    s_mov_b32 s33, 0x3f317218""")
    for h in (40, 41):
        t = 44
        bf16r(h, h)
        A(f"v_add_f32 v{h}, v{h}, v14")
        bf16r(h, h)
        A(f"v_mul_f32 v{t}, s32, v{h}\nv_exp_f32 v{t}, -abs(v{t})")
        bf16r(t, t)
        A(f"""v_add_f32 v{t+1}, 1.0, v{t}
        v_log_f32 v{t+2}, v{t+1}
        v_add_f32 v{t+3}, -1.0, v{t+1}
        v_rcp_f32 v{t+3}, v{t+3}
        v_mul_f32 v{t+2}, s33, v{t+2}
        v_mul_f32 v{t+2}, v{t+2}, v{t}
        v_mul_f32 v{t+2}, v{t+2}, v{t+3}
        v_cmp_eq_f32 vcc, 1.0, v{t+1}
        v_cndmask_b32 v{t+2}, v{t+2}, v{t}, vcc""")
        bf16r(t+2, t+2)
        A(f"v_max_f32 v{t+1}, 0, v{h}\nv_add_f32 v{t+2}, v{t+2}, v{t+1}")
        bf16r(t+2, t+2)
        A(f"""v_mul_f32 v{t}, -2.0, v{t+2}
        v_mul_f32 v{t+1}, s32, v{t}
        v_exp_f32 v{t+1}, v{t+1}
        v_log_f32 v{t+3}, v{t+1}
        v_add_f32 v{t+4}, -1.0, v{t+1}
        v_mul_f32 v{t+3}, s33, v{t+3}
        v_rcp_f32 v{t+3}, v{t+3}
        v_mul_f32 v{t+5}, v{t+4}, v{t}
        v_mul_f32 v{t+5}, v{t+5}, v{t+3}
        v_cmp_eq_f32 vcc, 1.0, v{t+1}
        v_cndmask_b32 v{t+5}, v{t+5}, v{t}, vcc
        v_cmp_gt_f32 vcc, 0.5, v{t+1}
        v_cndmask_b32 v{t+5}, v{t+5}, v{t+4}, vcc
        v_add_f32 v{t+4}, 2.0, v{t+5}
        v_rcp_f32 v{t+4}, v{t+4}
        v_mul_f32 v{t+5}, v{t+5}, v{t+4}
        v_sub_f32 v{t+5}, 0, v{t+5}""")
        bf16r(t+5, t+5)
        A(f"v_mul_f32 v{h}, v{h}, v{t+5}\nv_cvt_pk_bf16_f32 v{h}, v{h}, v{h}")
    A(f"""L_actw:
    v_lshlrev_b32 v11, 1, v11
    v_add_u32 v11, {L_ACT}, v11
    ds_write_b16 v11, v40
    ds_write_b16 v11, v41 offset:128""")
    set_flag(20, F_ACT, 20)
    stamp(3)
    A(f"""v_lshrrev_b32 v16, 2, v0
    v_and_b32 v17, 3, v0
    v_lshlrev_b32 v21, 12, v16
    v_lshl_add_u32 v21, v17, 3, v21
    s_add_u32 s66, s65, 65536
    v_and_b32 v18, 15, v0
    v_lshlrev_b32 v18, 4, v18
    v_lshrrev_b32 v22, 4, v0
    v_lshl_add_u32 v22, v22, 2, v18
    v_add_u32 v22, {L_AL}, v22
    s_movk_i32 s53, 0xff00
    s_mov_b32 s52, -2""")
    if mlt: wait_flag(20, {'v0': F_V0, 'v1': F_V1, 'v2': F_V2, 'v': F_V, 'k': F_K}[mlt], 18)
    l = lab("ml")
    A(f"""{l}:
    buffer_load_dwordx2 v[24:25], v21, s[8:11], s65 offen offset:{B_ML} sc1
    buffer_load_dwordx2 v[26:27], v21, s[8:11], s66 offen offset:{B_ML} sc1
    s_waitcnt vmcnt(0)""")
    bad_tag(range(24, 28), 44, [(24, 26, "v156"), (25, 27, "v157")], 19)
    gloop_back(l)
    stamp(4)
    A("""v_and_b32 v24, s53, v24
    v_and_b32 v26, s53, v26
    v_max_f32 v28, v24, v24 row_ror:4
    v_max_f32 v29, v26, v26 row_ror:4
    v_max_f32 v28, v28, v28 row_ror:8
    v_max_f32 v29, v29, v29 row_ror:8""")
    allred2(28, 30, 29, 31, "v_max_f32")
    A("""v_sub_f32 v24, v24, v28
    v_sub_f32 v26, v26, v29
    v_exp_f32 v24, v24
    v_exp_f32 v26, v26
    v_mul_f32 v24, v24, v25
    v_mul_f32 v26, v26, v27
    v_add_f32 v28, v24, v24 row_ror:4
    v_add_f32 v29, v26, v26 row_ror:4
    v_add_f32 v28, v28, v28 row_ror:8
    v_add_f32 v29, v29, v29 row_ror:8""")
    allred2(28, 30, 29, 31, "v_add_f32")
    A("""v_rcp_f32 v28, v28
    v_rcp_f32 v29, v29
    v_mul_f32 v24, v24, v28
    v_mul_f32 v26, v26, v29
    v_min_u32 v24, s52, v24
    v_min_u32 v26, s52, v26
    ds_write_b32 v22, v24
    ds_write_b32 v22, v26 offset:256""")
    stamp(5)
    dump_stamps()
    A("s_waitcnt lgkmcnt(0)\ns_endpgm")

    A("L_compute:")
    A(f"""s_sub_u32 s30, s3, 2
    v_lshlrev_b32 v2, 4, v0
    s_lshl_b32 s31, s30, 10
    s_add_u32 s31, s31, {L_S}
    v_add_u32 v3, s31, v2
    v_mov_b32 v4, -1
    v_mov_b32 v5, -1
    v_mov_b32 v6, -1
    v_mov_b32 v7, -1
    ds_write_b128 v3, v[4:7]
    s_mov_b32 s100, 0
    s_mov_b32 s101, 0
    s_waitcnt lgkmcnt(0)
    s_load_dword s54, s[26:27], 0
    s_barrier""")
    ws_srd(32)
    A(f"""s_mov_b32 s36, 0xffff0000
    v_and_b32 v4, 15, v0
    v_lshrrev_b32 v5, 4, v0
    v_mov_b32 v6, {L_FLG}
    v_bfe_u32 v96, v0, 2, 2
    v_and_b32 v17, 1, v5
    v_lshl_add_u32 v96, v17, 2, v96
    v_bfe_u32 v18, v0, 1, 1
    s_lshl_b32 s37, s30, 1
    v_add_u32 v18, s37, v18
    v_and_b32 v19, 6, v96
    v_xor_b32 v18, v18, v19
    v_lshlrev_b32 v18, 4, v18
    v_and_b32 v19, 1, v0
    v_lshl_add_u32 v18, v19, 3, v18
    v_lshrrev_b32 v17, 5, v0
    v_lshl_add_u32 v17, v17, 4, v96
    v_lshl_add_u32 v7, v17, 7, v18
    v_add_u32 v7, {L_WQ}, v7
    ; xn frag addresses v106 (wq rows), v105 (w1 rows)
    v_mul_u32_u24 v18, {XSTR}, v19
    v_lshl_add_u32 v18, v5, 4, v18
    s_lshr_b32 s37, s29, 3
    s_lshl_b32 s37, s37, 8
    s_add_u32 s37, s37, {L_XN}
    v_add_u32 v106, s37, v18
    s_lshl_b32 s37, s30, 6
    v_lshlrev_b32 v18, 8, v4
    v_lshl_add_u32 v18, v5, 4, v18
    v_add_u32 v107, s37, v18
    s_lshl_b32 s38, s28, 5
    s_add_u32 s38, s38, s29
    s_lshl_b32 s68, s38, 9
    s_lshl_b32 s38, s38, 12
    s_add_u32 s68, s68, {W_FP}
    v_add_u32 v3, {L_XN}, v2
    v_add_u32 v16, {L_XR}, v2
    s_mov_b32 s48, 0x00030003
    s_mov_b32 s49, 0x00030003
    s_mov_b32 s52, -2
    s_movk_i32 s53, 0xff00""")
    stamp(1)
    wait_flag(6, F_X, 17)
    A(f"""ds_read_b128 v[8:11], v16
    ds_read_b128 v[12:15], v16 offset:1024
    s_add_u32 s54, s54, 1
    s_waitcnt lgkmcnt(0)""")
    stamp0()
    stamp(2)
    for b in range(2):
        for i in range(4):
            A(f"v_lshlrev_b32 v{16+8*b+2*i}, 16, v{8+4*b+i}\nv_and_b32 v{17+8*b+2*i}, s36, v{8+4*b+i}")
    def red2(a, b, t):
        A(f"""v_permlane32_swap_b32 v{a}, v{b}
        v_add_f32 v{a}, v{a}, v{b}
        v_mov_b32 v{t}, v{a}
        v_permlane16_swap_b32 v{t}, v{a}
        v_add_f32 v{a}, v{a}, v{t}
        v_add_f32 v{a}, v{a}, v{a} row_ror:8
        v_add_f32 v{a}, v{a}, v{a} row_ror:4
        v_add_f32 v{a}, v{a}, v{a} row_ror:2
        v_add_f32 v{a}, v{a}, v{a} row_ror:1""")
    for b in range(2):
        f = 16 + 8 * b
        A(f"""v_pk_add_f32 v[{32+4*b}:{33+4*b}], v[{f}:{f+1}], v[{f+2}:{f+3}]
        v_pk_add_f32 v[{34+4*b}:{35+4*b}], v[{f+4}:{f+5}], v[{f+6}:{f+7}]""")
    for b in range(2):
        A(f"v_pk_add_f32 v[{32+4*b}:{33+4*b}], v[{32+4*b}:{33+4*b}], v[{34+4*b}:{35+4*b}]")
    A("v_add_f32 v32, v32, v33\nv_add_f32 v36, v36, v37")
    red2(32, 36, 33)
    A("""v_mul_f32 v32, 0x3b000000, v32
    v_readlane_b32 s60, v32, 0
    v_readlane_b32 s62, v32, 32""")
    for b in range(2):
        f = 16 + 8 * b
        for i in range(4):
            A(f"v_pk_add_f32 v[{40+8*b+2*i}:{41+8*b+2*i}], v[{f+2*i}:{f+2*i+1}], s[{60+2*b}:{61+2*b}] op_sel_hi:[1,0] neg_lo:[0,1] neg_hi:[0,1]")
    for b in range(2):
        d = 40 + 8 * b
        A(f"v_pk_mul_f32 v[{34+2*b}:{35+2*b}], v[{d}:{d+1}], v[{d}:{d+1}]")
    for i in range(1, 4):
        for b in range(2):
            d = 40 + 8 * b + 2 * i
            A(f"v_pk_fma_f32 v[{34+2*b}:{35+2*b}], v[{d}:{d+1}], v[{d}:{d+1}], v[{34+2*b}:{35+2*b}]")
    A("v_add_f32 v34, v34, v35\nv_add_f32 v36, v36, v37")
    red2(34, 36, 33)
    A("v_mul_f32 v34, 0x3b000000, v34")
    bf16r(34, 34)
    A("v_add_f32 v34, 0x3727c5ac, v34")
    bf16r(34, 34)
    A("v_sqrt_f32 v34, v34")
    bf16r(32, 32)
    bf16r(34, 34)
    A("v_rcp_f32 v34, v34")
    A("""v_readlane_b32 s60, v32, 0
    v_readlane_b32 s62, v32, 32
    v_readlane_b32 s64, v34, 0
    v_readlane_b32 s66, v34, 32""")
    for b in range(2):
        f = 16 + 8 * b
        for i in range(4):
            A(f"v_pk_add_f32 v[{f+2*i}:{f+2*i+1}], v[{f+2*i}:{f+2*i+1}], s[{60+2*b}:{61+2*b}] op_sel_hi:[1,0] neg_lo:[0,1] neg_hi:[0,1]")
    for i in range(8):
        A(f"v_cvt_pk_bf16_f32 v{8+i}, v{16+2*i}, v{17+2*i}")
    for i in range(8):
        A(f"v_lshlrev_b32 v{16+2*i}, 16, v{8+i}\nv_and_b32 v{17+2*i}, s36, v{8+i}")
    for b in range(2):
        f = 16 + 8 * b
        for i in range(4):
            A(f"v_pk_mul_f32 v[{f+2*i}:{f+2*i+1}], v[{f+2*i}:{f+2*i+1}], s[{64+2*b}:{65+2*b}] op_sel_hi:[1,0]")
    for i in range(8):
        A(f"v_cvt_pk_bf16_f32 v{8+i}, v{16+2*i}, v{17+2*i}")
    A(f"""ds_write_b128 v3, v[8:11]
    ds_write_b128 v3, v[12:15] offset:{XSTR}""")
    set_flag(6, F_XN, 6)
    mktags(54, 0)
    for r in range(88, 92): A(f"v_mov_b32 v{r}, 0")
    A("s_waitcnt lgkmcnt(0)")
    for kk in range(4): A(f"ds_read_b128 v[{24+4*kk}:{27+4*kk}], v106 offset:{64*kk}")
    stamp(3)
    wait_flag(6, F_WQ, 16)
    stamp(4)
    def trw(base, nk, r0):
        for kk in range(nk):
            for u in range(2):
                A(f"ds_read_b64_tr_b16 v[{r0+4*kk+2*u}:{r0+4*kk+2*u+1}], v7 offset:{base - L_WQ + kk*4096 + u*1024}")
    def tag(regs):
        for r in regs: A(f"v_and_or_b32 v{r}, v{r}, s53, v{152 + r % 4}")
    trw(L_WQ, 4, 48)
    for kk in range(4):
        A(f"s_waitcnt lgkmcnt({6 - 2*kk})")
        A(f"v_mfma_f32_16x16x32_bf16 v[88:91], v[{48+4*kk}:{51+4*kk}], v[{24+4*kk}:{27+4*kk}], v[88:91]")
    tag(range(88, 92))
    A(f"""s_mov_b64 exec, s[48:49]
    buffer_store_dwordx4 v[88:91], v107, s[32:35], s38 offen offset:{B_QP}
    s_mov_b64 exec, -1""")
    stamp(5)
    A(f"""v_lshlrev_b32 v119, 15, v5
    v_lshl_add_u32 v119, v4, 4, v119
    s_lshl_b32 s39, s28, 17
    s_lshl_b32 s37, s30, 13
    s_add_u32 s39, s39, s37
    s_lshr_b32 s37, s29, 4
    s_lshl_b32 s37, s37, 8
    s_add_u32 s39, s39, s37
    s_add_u32 s40, s39, 4096
    v_lshlrev_b32 v118, 5, v5
    v_lshl_add_u32 v118, v4, 4, v118
    s_lshl_b32 s37, s30, 7
    v_add_u32 v118, s37, v118""")
    def qloads(r):
        A(f"""buffer_load_dwordx4 v[{r}:{r+3}], v119, s[32:35], s39 offen offset:{B_QP} sc1
        buffer_load_dwordx4 v[{r+4}:{r+7}], v119, s[32:35], s40 offen offset:{B_QP} sc1""")
    A(f"""; ---- remaining addresses
    v_mov_b32 v123, 0
    v_and_b32 v19, 1, v0
    v_bfe_u32 v18, v0, 1, 1
    s_lshl_b32 s37, s30, 2
    v_add_u32 v18, s37, v18
    v_lshlrev_b32 v17, 1, v96
    v_xor_b32 v18, v18, v17
    v_lshlrev_b32 v18, 4, v18
    v_lshl_add_u32 v18, v19, 3, v18
    v_lshrrev_b32 v17, 2, v0
    v_lshl_add_u32 v100, v17, 8, v18
    v_and_b32 v17, 7, v0
    v_lshlrev_b32 v17, 1, v17
    v_xor_b32 v17, v17, v5
    v_lshlrev_b32 v17, 4, v17
    v_lshl_add_u32 v17, v4, 8, v17
    s_lshl_b32 s37, s30, 13
    v_add_u32 v102, s37, v17
    v_xor_b32 v103, 64, v102
    v_xor_b32 v104, 128, v102
    v_xor_b32 v105, 192, v102
    v_mul_u32_u24 v116, {OSTR}, v19
    v_lshl_add_u32 v116, v5, 4, v116
    v_add_u32 v116, {L_O}, v116
    v_lshlrev_b32 v117, 7, v19
    v_lshl_add_u32 v117, v5, 4, v117
    v_add_u32 v117, {L_ACT}, v117
    v_lshrrev_b32 v17, 5, v0
    v_lshlrev_b32 v17, 7, v17
    v_lshl_add_u32 v17, v4, 3, v17
    v_and_b32 v18, 1, v5
    v_lshl_add_u32 v17, v18, 2, v17
    s_mul_i32 s37, s30, {QSTR}
    s_add_u32 s37, s37, {L_Q}
    v_add_u32 v120, s37, v17
    v_and_b32 v19, 3, v0
    v_mul_u32_u24 v121, {QSTR}, v19
    v_lshl_add_u32 v121, v5, 4, v121
    v_add_u32 v121, {L_Q}, v121
    v_lshlrev_b32 v20, 6, v5
    v_lshl_add_u32 v20, v19, 4, v20
    v_add_u32 v108, {L_P}, v20
    s_lshl_b32 s37, s30, 8
    v_add_u32 v110, s37, v108
    s_lshl_b32 s37, s30, 9
    v_add_u32 v109, s37, v20
    s_and_b32 s41, s30, 1
    s_lshl_b32 s37, s41, 8
    s_add_u32 s37, s37, {L_AL}
    v_add_u32 v114, s37, v20
    v_lshlrev_b32 v111, 5, v19
    v_add_u32 v111, {L_ML}, v111
    s_lshl_b32 s37, s30, 3
    v_add_u32 v112, s37, v111
    v_lshlrev_b32 v106, 3, v4
    v_lshlrev_b32 v16, 12, v5
    v_lshl_add_u32 v113, v4, 4, v16
    s_and_b32 s43, s29, 3
    s_lshl_b32 s37, s43, 9
    s_lshr_b32 s42, s30, 1
    s_lshl_b32 s44, s42, 8
    s_add_u32 s37, s37, s44
    v_add_u32 v113, s37, v113
    s_lshl_b32 s44, s28, 17
    s_lshl_b32 s37, s41, 16
    s_add_u32 s44, s44, s37
    s_add_u32 s45, s44, 16384
    s_add_u32 s46, s44, 32768
    s_add_u32 s47, s44, 49152
    v_lshlrev_b32 v115, 4, v4
    v_lshl_add_u32 v115, v18, 2, v115
    s_mul_i32 s37, s41, {OSTR}
    s_lshl_b32 s42, s42, 3
    s_add_u32 s37, s37, s42
    s_add_u32 s37, s37, {L_O}
    v_add_u32 v115, s37, v115
    s_mov_b32 s50, 0x000f000f
    s_mov_b32 s51, 0x000f000f
    s_mov_b32 s58, 0x3db504f3
    s_mov_b32 s59, 0x3fb8aa3b
    s_lshl_b32 s70, s29, 9
    s_lshl_b32 s37, s30, 7
    s_add_u32 s70, s70, s37
    s_add_u32 s70, s70, {W_FP}
    v_lshrrev_b32 v17, 3, v0
    v_lshlrev_b32 v17, 14, v17
    v_and_b32 v16, 7, v0
    v_lshl_add_u32 v99, v16, 4, v17
    v_and_b32 v16, 1, v0
    v_lshlrev_b32 v16, 10, v16
    v_bfe_u32 v17, v0, 1, 2
    v_lshl_add_u32 v16, v17, 3, v16
    v_lshrrev_b32 v17, 5, v0
    v_lshl_add_u32 v16, v17, 2, v16
    s_lshl_b32 s37, s28, 7
    s_lshl_b32 s41, s30, 5
    s_add_u32 s37, s37, s41
    v_add_u32 v98, s37, v16
    v_add_u32 v17, {L_XR}, v98
    ds_read_b32 v97, v17""")
    for i in range(4):
        if vsplit:
            A(f"""s_add_u32 s37, s43, {i}
            s_and_b32 s37, s37, 3
            s_lshl_b32 s41, s37, 13
            v_add_u32 v{80+2*i}, s41, v100
            s_lshl_b32 s41, s37, 8
            v_add_u32 v{76+i}, s41, v108""")
        else:
            A(f"v_add_u32 v{80+2*i}, {i*8192}, v100\nv_add_u32 v{76+i}, {i*256}, v108")
        A(f"v_xor_b32 v{81+2*i}, 32, v{80+2*i}")
    if touchout: A("global_load_dword v124, v98, s[22:23]")
    if warmfp: A(f"s_mov_b64 exec, s[48:49]\nbuffer_load_dword v124, v118, s[32:35], s68 offen\ns_mov_b64 exec, -1")
    for r in range(8, 16): A(f"v_mov_b32 v{r}, 0")
    A("s_mov_b32 s56, 0")
    if sa: A(f"s_sleep {sa}")
    stamp(6)
    def republish():
        A(f"""s_xor_b32 s37, s38, {W_B}
        s_mov_b64 exec, s[48:49]
        buffer_store_dwordx4 v[88:91], v107, s[32:35], s37 offen offset:{B_QP} sc1
        s_mov_b64 exec, -1
        s_mov_b32 s56, 1""")
    qs = [128, 136, 144][:qsets]
    for k, r in enumerate(qs):
        qloads(r)
        if k + 1 < len(qs) and sb: A(f"s_sleep {sb}")
    A("L_qp:")
    for k, r in enumerate(qs):
        A(f"s_waitcnt vmcnt({2*(len(qs)-1)})")
        bad_tag(range(r, r + 8), 40, 55, 123)
        A(f"s_cbranch_vccz L_qok{k}")
        qloads(r)
    A(f"""ds_read_b32 v40, v6 offset:{F_MODE}
    s_waitcnt lgkmcnt(0)
    v_readfirstlane_b32 s57, v40
    s_xor_b32 s57, s57, 1
    s_or_b32 s57, s57, s56
    s_cbranch_scc1 L_norep""")
    republish()
    A(f"""s_waitcnt vmcnt(0)""")
    for r in qs: qloads(r)
    A(f"""L_norep:
    s_lshl_b32 s37, s56, 21
    s_xor_b32 s39, s39, s37
    s_xor_b32 s40, s40, s37
    s_add_u32 s101, s101, 1
    s_cmp_lt_u32 s101, {SPIN}
    s_cbranch_scc1 L_qp""")
    for k, r in reversed(list(enumerate(qs))):
        A(f"L_qok{k}:")
        for i in range(4): A(f"v_permlane32_swap_b32 v{r+i}, v{r+4+i}")
        A(f"v_pk_add_f32 v[40:41], v[{r}:{r+1}], v[{r+4}:{r+5}]\nv_pk_add_f32 v[42:43], v[{r+2}:{r+3}], v[{r+6}:{r+7}]")
        if k: A("s_branch L_qj")
    A("L_qj:")
    stamp(7)
    A("""v_permlane16_swap_b32 v40, v42
    v_permlane16_swap_b32 v41, v43
    v_pk_add_f32 v[40:41], v[40:41], v[42:43]
    v_cvt_pk_bf16_f32 v40, v40, v41
    v_min_u32 v40, s52, v40
    ds_write_b32 v120, v40""")
    wait_flag(6, F_K, 41)
    for t in range(2):
        for kk in range(4):
            A(f"ds_read_b128 v[{44+16*t+4*kk}:{47+16*t+4*kk}], v{102+kk} offset:{L_K + t*4096}")
    l = lab("ql")
    A(f"{l}:")
    for kk in range(4): A(f"ds_read_b128 v[{16+4*kk}:{19+4*kk}], v121 offset:{64*kk}")
    A("s_waitcnt lgkmcnt(0)")
    any_sent(range(16, 32), 40)
    loop_back(l)
    stamp(8)
    for kk in range(4):
        for t in range(2):
            A(f"v_mfma_f32_16x16x32_bf16 v[{8+4*t}:{11+4*t}], v[{44+16*t+4*kk}:{47+16*t+4*kk}], v[{16+4*kk}:{19+4*kk}], v[{8+4*t}:{11+4*t}]")
    A(f"ds_read_b32 v42, v6 offset:{F_MODE}")
    for rnd in range(2):
        for i in range(4): A(f"v_cvt_pk_bf16_f32 v{24+i}, v{8+2*i}, v{9+2*i}")
        for i in range(4): A(f"v_lshlrev_b32 v{8+2*i}, 16, v{24+i}\nv_and_b32 v{9+2*i}, s36, v{24+i}")
        if rnd == 0:
            for i in range(4): A(f"v_pk_mul_f32 v[{8+2*i}:{9+2*i}], v[{8+2*i}:{9+2*i}], s[58:59] op_sel_hi:[1,0]")
    A("""v_max3_f32 v24, v8, v9, v10
    v_max3_f32 v25, v11, v12, v13
    v_max3_f32 v24, v24, v14, v15
    v_max_f32 v24, v24, v25""")
    allred(24, 25, "v_max_f32")
    A("v_mul_f32 v24, s59, v24")
    for i in range(8): A(f"v_fma_f32 v{8+i}, v{8+i}, s59, -v24")
    for i in range(8): A(f"v_exp_f32 v{8+i}, v{8+i}")
    A("""v_pk_add_f32 v[26:27], v[8:9], v[10:11]
    v_pk_add_f32 v[28:29], v[12:13], v[14:15]
    v_pk_add_f32 v[26:27], v[26:27], v[28:29]
    v_add_f32 v25, v26, v27""")
    allred(25, 26, "v_add_f32")
    A("""v_min_u32 v26, s52, v24
    v_min_u32 v27, s52, v25
    s_mov_b64 exec, 15
    ds_write_b64 v112, v[26:27]
    s_mov_b64 exec, -1""")
    l = lab("ml")
    A(f"""{l}:
    ds_read_b128 v[28:31], v111
    ds_read_b128 v[16:19], v111 offset:16
    s_waitcnt lgkmcnt(0)""")
    any_sent([28, 29, 30, 31, 16, 17, 18, 19], 20)
    loop_back(l)
    A("""v_max3_f32 v26, v28, v30, v16
    v_max_f32 v26, v26, v18
    v_and_b32 v26, s53, v26
    v_sub_f32 v24, v24, v26
    v_sub_f32 v28, v28, v26
    v_sub_f32 v30, v30, v26
    v_sub_f32 v16, v16, v26
    v_sub_f32 v18, v18, v26
    v_exp_f32 v24, v24
    v_exp_f32 v28, v28
    v_exp_f32 v30, v30
    v_exp_f32 v16, v16
    v_exp_f32 v18, v18
    v_mul_f32 v27, v28, v29
    v_fmac_f32 v27, v30, v31
    v_fmac_f32 v27, v16, v17
    v_fmac_f32 v27, v18, v19
    v_rcp_f32 v28, v27
    v_or_b32 v26, v26, v156
    v_mul_f32 v24, v24, v28""")
    for i in range(4): A(f"v_pk_mul_f32 v[{8+2*i}:{9+2*i}], v[{8+2*i}:{9+2*i}], v[24:25] op_sel_hi:[1,0]")
    for i in range(4): A(f"v_cvt_pk_bf16_f32 v{8+i}, v{8+2*i}, v{9+2*i}")
    for i in range(4): A(f"v_min_u32 v{8+i}, s52, v{8+i}")
    A(f"""s_mov_b64 exec, s[50:51]
    ds_write_b128 v110, v[8:11]
    s_mov_b64 exec, -1
    v_and_or_b32 v27, v27, s53, v157
    v_readfirstlane_b32 s57, v42
    s_cmp_eq_u32 s57, 0
    s_cbranch_scc1 L_modeok""")
    wait_flag(6, F_MODE, 42)
    A("""v_readfirstlane_b32 s57, v42
    s_xor_b32 s37, s57, 1
    s_or_b32 s37, s37, s56
    s_cbranch_scc1 L_modeok""")
    republish()
    A(f"""L_modeok:
    s_cmp_eq_u32 s30, 0
    s_cbranch_scc0 L_noml
    s_mov_b64 exec, {0xffff if fullml else 15}
    s_cmp_eq_u32 s57, 0
    s_cbranch_scc1 L_mlf
    buffer_store_dwordx2 v[26:27], v106, s[32:35], s38 offen offset:{B_ML} sc1
    s_branch L_mle
    L_mlf:
    buffer_store_dwordx2 v[26:27], v106, s[32:35], s38 offen offset:{B_ML}
    L_mle:
    s_mov_b64 exec, -1
    L_noml:""")
    for r in range(8, 20): A(f"v_mov_b32 v{r}, 0")
    l = lab("pl")
    A(f"{l}:")
    for i in range(4): A(f"ds_read_b128 v[{44+4*i}:{47+4*i}], v{76+i}")
    A("s_waitcnt lgkmcnt(0)")
    any_sent(range(44, 60), 20)
    loop_back(l)
    stamp(9)
    def ffn2():
        wait_flag(6, F_W2, 22)
        trw(L_W2, 2, 60)
        wait_flag(6, F_ACT, 22)
        A("ds_read_b128 v[68:71], v117\nds_read_b128 v[72:75], v117 offset:64\ns_waitcnt lgkmcnt(0)")
        for kk in range(2):
            A(f"v_mfma_f32_16x16x32_bf16 v[8:11], v[{60+4*kk}:{63+4*kk}], v[{68+4*kk}:{71+4*kk}], v[8:11]")
    def wopre():
        wait_flag(6, F_WO, 22)
        if op2: op_loads(44)
        trw(L_WO, 4, 60)
    iv = order.index('v')
    assert order.index('w2') < order.index('wo') or order.index('wo') < iv
    if order.index('w2') < iv: ffn2()
    def pvstep(i, waitcnt):
        for t in range(2):
            for u in range(2):
                r = 24 + 8 * (i & 1) + 4 * t + 2 * u
                A(f"ds_read_b64_tr_b16 v[{r}:{r+1}], v{80+2*i+t} offset:{L_V + u*4096}")
    def pvmfma(i):
        for t in range(2):
            r = 24 + 8 * (i & 1) + 4 * t
            A(f"v_mfma_f32_16x16x32_bf16 v[{12+4*t}:{15+4*t}], v[{r}:{r+3}], v[{44+4*i}:{47+4*i}], v[{12+4*t}:{15+4*t}]")
    if vsplit:
        A(f"""ds_read_b32 v20, v6 offset:{F_V}
        s_waitcnt lgkmcnt(0)
        v_cmp_eq_u32 vcc, -1, v20
        s_cbranch_vccz L_pvall""")
        for i, f in enumerate((F_V0, F_V1, F_V2, F_V)):
            wait_flag(6, f, 20)
            if i == 3: stamp(10)
            pvstep(i, 0)
            A("s_waitcnt lgkmcnt(0)")
            pvmfma(i)
        A("s_branch L_pvdone\nL_pvall:")
    else:
        wait_flag(6, F_V, 20)
    if True:
        stamp(10)
        pvstep(0, 0); pvstep(1, 0)
        A("s_waitcnt lgkmcnt(4)"); pvmfma(0); pvstep(2, 0)
        A("s_waitcnt lgkmcnt(4)"); pvmfma(1); pvstep(3, 0)
        A("s_waitcnt lgkmcnt(4)"); pvmfma(2)
        A("s_waitcnt lgkmcnt(0)"); pvmfma(3)
        A("L_pvdone:\ns_nop 7")
    tag(range(12, 20))
    A(f"""s_mov_b64 exec, s[50:51]
    s_cmp_eq_u32 s57, 0
    s_cbranch_scc0 L_opslow
    buffer_store_dwordx4 v[12:15], v109, s[32:35], s38 offen offset:{B_OP}
    buffer_store_dwordx4 v[16:19], v109, s[32:35], s38 offen offset:{B_OP + 256}
    L_opdone:
    s_mov_b64 exec, -1""")
    stamp(11)
    def op_loads(r=24):
        for i in range(4): A(f"buffer_load_dwordx4 v[{r+4*i}:{r+3+4*i}], v113, s[32:35], s{44+i} offen offset:{B_OP} sc1")
    op_loads()
    if order.index('w2') > iv: ffn2()
    wopre()
    stamp(12)
    def alpha_wait(tagl):
        A("s_waitcnt lgkmcnt(0)")
        any_sent(range(40, 44), 22)
        A(f"s_cbranch_vccz L_alok{tagl}")
        l = lab("al")
        A(f"""{l}:
        ds_read_b128 v[40:43], v114
        s_waitcnt lgkmcnt(0)""")
        any_sent(range(40, 44), 22)
        loop_back(l)
        A(f"L_alok{tagl}:")
    def wsum(r):
        A(f"""v_pk_mul_f32 v[12:13], v[{r}:{r+1}], v[40:41] op_sel_hi:[1,0]
        v_pk_mul_f32 v[14:15], v[{r+2}:{r+3}], v[40:41] op_sel_hi:[1,0]
        v_pk_fma_f32 v[12:13], v[{r+4}:{r+5}], v[40:41], v[12:13] op_sel:[0,1,0] op_sel_hi:[1,1,1]
        v_pk_fma_f32 v[14:15], v[{r+6}:{r+7}], v[40:41], v[14:15] op_sel:[0,1,0] op_sel_hi:[1,1,1]
        v_pk_fma_f32 v[12:13], v[{r+8}:{r+9}], v[42:43], v[12:13] op_sel_hi:[1,0,1]
        v_pk_fma_f32 v[14:15], v[{r+10}:{r+11}], v[42:43], v[14:15] op_sel_hi:[1,0,1]
        v_pk_fma_f32 v[12:13], v[{r+12}:{r+13}], v[42:43], v[12:13] op_sel:[0,1,0] op_sel_hi:[1,1,1]
        v_pk_fma_f32 v[14:15], v[{r+14}:{r+15}], v[42:43], v[14:15] op_sel:[0,1,0] op_sel_hi:[1,1,1]""")
    if op2:
        A("L_opA:\nds_read_b128 v[40:43], v114\ns_waitcnt vmcnt(4)")
        bad_tag(range(24, 40), 88, 55, 123)
        A("s_cbranch_vccz L_opAok")
        op_loads(24)
        A("s_waitcnt vmcnt(4)")
        bad_tag(range(44, 60), 88, 55, 123)
        A("s_cbranch_vccz L_opBok")
        op_loads(44)
        A(f"""s_add_u32 s101, s101, 1
        s_cmp_lt_u32 s101, {SPIN}
        s_cbranch_scc1 L_opA
        L_opBok:""")
        stamp(13)
        alpha_wait("B"); wsum(44)
        A("s_branch L_opJ\nL_opAok:")
        stamp(13)
        alpha_wait("A"); wsum(24)
        A("L_opJ:")
    else:
        l = lab("og")
        A(f"s_branch L_ochk\n{l}:")
        op_loads()
        A("L_ochk:\nds_read_b128 v[40:43], v114\ns_waitcnt vmcnt(0)")
        bad_tag(range(24, 40), 88, 55, 123)
        gloop_back(l)
        stamp(13)
        alpha_wait("A"); wsum(24)
    stamp(17)
    A("""v_permlane16_swap_b32 v12, v14
    v_permlane16_swap_b32 v13, v15
    v_pk_add_f32 v[12:13], v[12:13], v[14:15]
    v_mov_b32 v14, v12
    v_mov_b32 v15, v13
    v_permlane32_swap_b32 v14, v12
    v_permlane32_swap_b32 v15, v13
    v_pk_add_f32 v[12:13], v[12:13], v[14:15]
    v_cvt_pk_bf16_f32 v12, v12, v13
    v_min_u32 v12, s52, v12
    ds_write_b32 v115, v12""")
    l = lab("ol")
    A(f"{l}:")
    for kk in range(4): A(f"ds_read_b128 v[{76+4*kk}:{79+4*kk}], v116 offset:{64*kk}")
    A("s_waitcnt lgkmcnt(0)")
    any_sent(range(76, 92), 22)
    loop_back(l)
    for kk in range(4):
        A(f"v_mfma_f32_16x16x32_bf16 v[8:11], v[{60+4*kk}:{63+4*kk}], v[{76+4*kk}:{79+4*kk}], v[8:11]")
    A("s_lshl_b32 s37, s28, 2\ns_cmp_eq_u32 s29, s37")
    tag(range(8, 12))
    A(f"""s_mov_b64 exec, s[48:49]
    s_cbranch_scc1 L_final
    buffer_store_dwordx4 v[8:11], v118, s[32:35], s68 offen sc1""")
    if stamps:
        A("s_mov_b64 exec, -1")
        stamp(14)
        A("s_branch L_cend")
    else: A("s_endpgm")
    A(f"""L_opslow:
    buffer_store_dwordx4 v[12:15], v109, s[32:35], s38 offen offset:{B_OP} sc1
    buffer_store_dwordx4 v[16:19], v109, s[32:35], s38 offen offset:{B_OP + 256} sc1
    s_branch L_opdone""")
    A(f"""L_final:
    buffer_store_dwordx4 v[8:11], v118, s[32:35], s68 offen
    s_mov_b64 exec, -1""")
    stamp(14)
    if fdelay: A(f"s_sleep {fdelay}")
    def fp_loads(r):
        for i in range(4):
            A(f"buffer_load_dwordx4 v[{r+4*i}:{r+3+4*i}], v99, s[32:35], s70 offen offset:{512*i} sc1")
    sets = [24, 44, 60][:fpsets]
    for r in sets: fp_loads(r)
    A("L_fp:")
    for k, r in enumerate(sets):
        A(f"s_waitcnt vmcnt({4*(len(sets)-1)})")
        bad_tag(range(r, r + 16), 76, 55, 123)
        A(f"s_cbranch_vccz L_fpok{k}")
        fp_loads(r)
    A(f"""s_add_u32 s101, s101, 1
    s_cmp_lt_u32 s101, {SPIN}
    s_cbranch_scc1 L_fp""")
    for k, r in reversed(list(enumerate(sets))):
        A(f"L_fpok{k}:")
        stamp(16)
        A(f"""v_pk_add_f32 v[12:13], v[{r}:{r+1}], v[{r+4}:{r+5}]
        v_pk_add_f32 v[14:15], v[{r+2}:{r+3}], v[{r+6}:{r+7}]
        v_pk_add_f32 v[16:17], v[{r+8}:{r+9}], v[{r+12}:{r+13}]
        v_pk_add_f32 v[18:19], v[{r+10}:{r+11}], v[{r+14}:{r+15}]""")
        if k: A("s_branch L_fpj")
    A(f"""L_fpj:
    v_pk_add_f32 v[12:13], v[12:13], v[16:17]
    v_pk_add_f32 v[14:15], v[14:15], v[18:19]
    v_permlane32_swap_b32 v12, v14
    v_permlane32_swap_b32 v13, v15
    v_pk_add_f32 v[12:13], v[12:13], v[14:15]
    v_mov_b32 v14, v12
    v_mov_b32 v15, v13
    v_permlane16_swap_b32 v14, v12
    v_permlane16_swap_b32 v15, v13
    v_pk_add_f32 v[12:13], v[12:13], v[14:15]
    v_lshlrev_b32 v14, 16, v97
    v_and_b32 v15, s36, v97
    v_add_f32 v12, v12, v12 row_ror:8
    v_add_f32 v13, v13, v13 row_ror:8
    v_pk_add_f32 v[12:13], v[12:13], v[14:15]
    v_cvt_pk_bf16_f32 v12, v12, v13
    s_mov_b32 s40, 0xff
    s_mov_b32 s41, 0xff
    s_mov_b64 exec, s[40:41]
    global_store_dword v98, v12, s[22:23]
    s_or_b32 s37, s2, s30
    s_cbranch_scc1 L_cend
    v_mov_b32 v20, s54
    s_mov_b64 exec, 1
    global_store_dword v123, v20, s[26:27]{epsc}""")
    A("L_cend:")
    if stamps: A("s_mov_b64 exec, -1")
    stamp(15)
    if amp is not None:
        A(f"""s_cmp_eq_u32 s30, 0
        s_cbranch_scc0 L_end
        s_cmp_eq_u32 s2, {ampwg}
        s_cbranch_scc0 L_end
        v_readlane_b32 s37, v{VST}, {amp}
        s_nop 4
        s_sub_u32 s37, s37, s94
        s_mul_i32 s37, s37, 10
        s_add_u32 s37, s37, s98
        L_ampl:
        s_memrealtime s[40:41]
        s_waitcnt lgkmcnt(0)
        s_sub_u32 s40, s40, s37
        s_cmp_lt_i32 s40, 0
        s_cbranch_scc1 L_ampl""")
    dump_stamps()
    A("L_end:\ns_endpgm")
    A(f""".section .rodata,"a"
    .p2align 6
    .amdhsa_kernel {NAME}
    .amdhsa_next_free_vgpr 160
    .amdhsa_next_free_sgpr 102
    .amdhsa_accum_offset 160
    .amdhsa_group_segment_fixed_size 0
    .amdhsa_kernarg_size 96
    .amdhsa_user_sgpr_count 2
    .amdhsa_user_sgpr_kernarg_segment_ptr 1
    .amdhsa_system_sgpr_workgroup_id_x 1
    .amdhsa_float_denorm_mode_32 3
    .end_amdhsa_kernel""")
    return A.finish()

if __name__ == "__main__":
    out = sys.argv[1] if len(sys.argv) > 1 else "k.s"
    kw = {}
    for a in sys.argv[2:]:
        if '=' in a:
            k, v = a.split('=', 1); kw[k] = eval(v)
        else: kw[a] = True
    open(out, "w").write(gen(**kw))
```

```python
import sys
from asmlib import Asm

NAME = "parallel_sum__sliding_block_cached__dense_activation_mish__decode_kernel"

L_K, L_V, L_WQ, L_WO, L_W1, L_W2 = 0x0, 0x8000, 0x10000, 0x14000, 0x18000, 0x1A000
L_S = 0x1C000
L_Q, L_P, L_O, L_ML, L_FLG, L_AL = L_S, L_S + 0x500, L_S + 0x900, L_S + 0xB40, L_S + 0xC00, L_S + 0xD00
L_XN, L_ACT, L_XR = 0x1D000, 0x1D900, 0x1DA00
LDS_BYTES = 0x1E200
QSTR, XSTR, OSTR = 272, 1040, 272
F_WQ, F_W1, F_K, F_V, F_WO, F_W2, F_QA, F_QB, F_ACT, F_X, F_MODE, F_V0, F_V1, F_V2, F_XN, F_PRE = [4 * i for i in range(16)]
F_OPD = 64
W_BLK = 0x10000
B_QP, B_HP, B_OP, B_ML, B_ID = 0, 512, 1024, 3072, 3200
W_FP = 0x100000
W_B = 0x200000
SPIN = 1 << 18
IDTRY = 48

def gen(depth=22, stamps=False, safe=False, amp=None, ampwg=0, order=('wq', 'w1', 'k', 'v', 'w2', 'wo'),
        qa=34, qb=44, hpt=None, pref=True, header="", warmfp=True, fdelay=0, loaderonly=False, vsplit=True,
        forcemode=None, mlt='k', nobeacon=False, noB=False, fullml=True, fullid=True, prof=False, dsched=None, kph='A', wph='A', ntw=' nt', ntkv=' nt', sa=4, sb=12, touchout=False, fpsets=1, op2=False, epsc='', b1early=True, idt='x', qsets=3, hs=12, opmask=False, fpmask=False, opearly=False, hold=0, presl=0, early=False, free=(18, 26, 20, 28), mlpipe=0, mlsl=3, prew=0, pre=0, olate=False, opsl=0, xdirty=0, fsl=0, pst='', outst='', mlpre=0, touch=0, tfl='', tlate=False, wfl='', deep=None, t0=95, slope=3.35, margin=25, chk=(18, 26, 34, 42, 50, 58, 66, 74, 82)):
    A = Asm()
    uid = [0]
    def lab(p):
        uid[0] += 1
        return f"L_{p}{uid[0]}"
    VST = 127
    def stamp(k):
        if stamps:
            A(f"s_memrealtime s[98:99]\ns_waitcnt lgkmcnt(0)\nv_writelane_b32 v{VST}, s98, {k}")
    def stamp0():
        if stamps: A(f"v_writelane_b32 v{VST}, s94, 0")
    def dump_stamps():
        if stamps and amp is None:
            A(f"""s_lshl_b32 s96, s2, 3
            s_add_u32 s96, s96, s3
            s_lshl_b32 s96, s96, 7
            s_add_u32 s96, s96, 0x8000000
            s_add_u32 s96, s26, s96
            s_addc_u32 s97, s27, 0
            s_mov_b32 exec_lo, -1
            s_mov_b32 exec_hi, 0
            v_mbcnt_lo_u32_b32 v126, -1, 0
            v_lshlrev_b32 v126, 2, v126
            global_store_dword v126, v{VST}, s[96:97]""")
    def loop_back(l):
        if safe:
            o = lab("out")
            A(f"""s_add_u32 s100, s100, 1
            s_bitcmp1_b32 s100, 21
            s_cbranch_scc1 {o}
            s_cbranch_vccnz {l}
            {o}:""")
        else:
            A(f"s_cbranch_vccnz {l}")
    def gloop_back(l, sleep=0):
        o = lab("ok")
        A(f"s_cbranch_vccz {o}")
        if sleep: A(f"s_sleep {sleep}")
        A(f"""s_add_u32 s101, s101, 1
        s_cmp_lt_u32 s101, {SPIN}
        s_cbranch_scc1 {l}
        {o}:""")
    def wait_flag(vaddr, off, vt):
        l = lab("wf")
        A(f"""{l}:
        ds_read_b32 v{vt}, v{vaddr} offset:{off}
        s_waitcnt lgkmcnt(0)
        v_cmp_eq_u32 vcc, -1, v{vt}""")
        loop_back(l)
    def set_flag(vaddr, off, vdata):
        A(f"""s_mov_b64 exec, 1
        ds_write_b32 v{vaddr}, v{vdata} offset:{off}
        s_mov_b64 exec, -1""")
    def any_sent(regs, vt):
        regs = list(regs)
        A(f"v_max3_u32 v{vt}, v{regs[0]}, v{regs[1]}, v{regs[2] if len(regs) > 2 else regs[1]}")
        rest = regs[3:]
        while rest:
            a = rest[0]; b = rest[1] if len(rest) > 1 else rest[0]
            A(f"v_max3_u32 v{vt}, v{vt}, v{a}, v{b}")
            rest = rest[2:]
        A(f"v_cmp_eq_u32 vcc, -1, v{vt}")
    def bad_tag(regs, t0, sT, vzero):
        regs = list(regs); n = len(regs) // 2
        for i in range(n):
            if isinstance(sT, list):
                a, b, t = sT[i]
                A(f"v_bitop3_b32 v{t0+i}, v{a}, v{b}, {t} bitop3:0x7e")
            else:
                g, r = i // 4, i % 4
                A(f"v_bitop3_b32 v{t0+i}, v{regs[8*g+r]}, v{regs[8*g+4+r]}, s{72+r} bitop3:0x7e")
        cur = [t0 + i for i in range(n)]
        while len(cur) > 1:
            if len(cur) >= 3:
                A(f"v_or3_b32 v{cur[0]}, v{cur[0]}, v{cur[1]}, v{cur[2]}"); cur = cur[3:] + [cur[0]]
            else:
                A(f"v_or_b32 v{cur[0]}, v{cur[0]}, v{cur[1]}"); cur = [cur[0]]
        A(f"v_cmp_ne_u32_sdwa vcc, v{cur[0]}, v{vzero} src0_sel:BYTE_0 src1_sel:DWORD")
    def mktags(se, lanebit):
        A(f"""s_mov_b32 s72, s{se}
        s_lshr_b32 s73, s{se}, 8
        s_lshr_b32 s74, s{se}, 16
        s_lshr_b32 s75, s{se}, 24
        v_mov_b32 v156, 0xff
        v_and_b32 v152, s72, v156
        v_and_b32 v153, s73, v156
        v_and_b32 v154, s74, v156
        v_and_b32 v155, s75, v156
        v_and_b32 v157, 1, v0
        v_cmp_eq_u32 vcc, 0, v157
        v_cndmask_b32 v156, v154, v152, vcc
        v_cndmask_b32 v157, v155, v153, vcc""")
    def rgmap(r, t):
        if tuple(free) == (28, 29, 30, 31): return
        mask = 0xffffffff
        for f in free: mask &= ~(1 << f)
        A(f"""s_bfm_b32 s{t}, s{r}, 0
        s_and_b32 s{t}, s{t}, {mask}
        s_bcnt1_i32_b32 s{t}, s{t}
        s_bitcmp1_b32 {mask}, s{r}
        s_cselect_b32 s{r}, s{t}, 28""")
    def bf16r(d, s):
        A(f"v_cvt_pk_bf16_f32 v{d}, v{s}, v{s}\nv_lshlrev_b32 v{d}, 16, v{d}")
    def ws_srd(d):
        A(f"""s_add_u32 s{d}, s26, {W_BLK}
        s_addc_u32 s{d+1}, s27, 0
        s_mov_b32 s{d+2}, 0x300000
        s_mov_b32 s{d+3}, 0x00020000""")
    def allred(v, t, op):
        A(f"""v_mov_b32 v{t}, v{v}
        v_permlane32_swap_b32 v{t}, v{v}
        {op} v{v}, v{v}, v{t}
        v_mov_b32 v{t}, v{v}
        v_permlane16_swap_b32 v{t}, v{v}
        {op} v{v}, v{v}, v{t}""")

    def allred2(v, t, w, u, op):
        for sw in ("v_permlane32_swap_b32", "v_permlane16_swap_b32"):
            A(f"""v_mov_b32 v{t}, v{v}
            v_mov_b32 v{u}, v{w}
            {sw} v{t}, v{v}
            {sw} v{u}, v{w}
            {op} v{v}, v{v}, v{t}
            {op} v{w}, v{w}, v{u}""")
    A(header)
    A(f"; @launch grid=(256,1,1) block=(384,1,1) lds={LDS_BYTES}")
    A(f""".amdgcn_target "amdgcn-amd-amdhsa--gfx950"
    .text
    .globl {NAME}
    .p2align 8
    .type {NAME},@function
    {NAME}:""")
    if early: A("s_memrealtime s[92:93]")
    A(f"""s_load_dwordx16 s[4:19], s[0:1], 0
    s_load_dwordx8 s[20:27], s[0:1], 64
    s_getpc_b64 s[30:31]
    L_pc:
    s_cmpk_ge_u32 s2, 256
    s_cbranch_scc1 L_end
    v_xor_b32 v2, 0x140, v0
    v_readfirstlane_b32 s3, v0
    v_lshlrev_b32 v2, 7, v2
    v_min_u32 v2, L_end-L_pc, v2
    global_load_dword v125, v2, s[30:31]""")
    if stamps: A("s_memrealtime s[94:95]")
    A(f"""s_cmp_eq_u32 s3, 0
    s_cbranch_scc0 L_notloader
    v_lshrrev_b32 v2, 3, v0
    v_and_b32 v9, 6, v2
    v_xor_b32 v9, v9, v0
    v_and_b32 v9, 7, v9
    v_lshlrev_b32 v9, 4, v9
    v_lshrrev_b32 v4, 5, v0
    v_and_b32 v5, 3, v2
    v_lshl_add_u32 v6, v4, 3, v5
    v_lshl_add_u32 v10, v6, 13, v9
    v_add_u32 v11, 31744, v10
    v_lshlrev_b32 v21, 4, v0
    s_mov_b32 s34, -1
    s_mov_b32 s35, 0x00020000
    s_movk_i32 s60, 0x800
    s_and_b32 s28, s2, 7
    s_lshr_b32 s29, s2, 3
    s_lshr_b32 s57, s2, 6
    s_lshl_b32 s57, s57, 10
    s_or_b32 s57, s57, s28
    s_lshl_b32 s57, s57, 3
    s_and_b32 s58, s29, 7
    s_or_b32 s57, s57, s58
    s_lshl_b32 s57, s57, 7
    s_lshl_b32 s59, s60, 6
    s_mov_b32 m0, {L_XR}
    {'s_memrealtime s[76:77]' if early else ''}
    s_waitcnt lgkmcnt(0)
    {'s_memrealtime s[78:79]' if early else ''}
    global_load_lds_dwordx4 v21, s[4:5]
    global_load_lds_dwordx4 v21, s[4:5] offset:1024
    s_mov_b64 s[32:33], s[10:11]
    s_lshl_b32 m0, s60, 5
    s_mov_b32 s58, 8
    L_wq:
    buffer_load_dwordx4 v10, s[32:35], s57 offen nt lds
    buffer_load_dwordx4 v11, s[32:35], s57 offen offset:1024 nt lds
    s_add_u32 m0, m0, s60
    s_add_u32 s57, s57, s59
    s_sub_u32 s58, s58, 1
    s_cbranch_scc0 L_wq""".replace("s_mov_b32 s58, 8", "s_mov_b32 s58, 7"))
    A("L_after256:")
    if early: A("s_memrealtime s[82:83]\ns_mov_b32 s80, s82")
    if stamps: A(f"v_mov_b32 v{VST}, 0")
    A("""s_setprio 3
    s_and_b32 s61, s29, 3
    s_lshl_b32 s62, s61, 3
    s_add_u32 s62, s62, s28
    s_lshr_b32 s63, s29, 2""")
    rgmap(62, 58)
    if deep: A("s_memrealtime s[72:73]")
    assert order[0] == 'wq' and L_WQ == 0x10000
    info = dict(wq=(8, 32, 10, L_WQ, F_WQ), w1=(4, 36, 12, L_W1, F_W1), k=(16, 40, 14, L_K, F_K), v=(16, 44, 14, L_V, F_V),
                wo=(8, 48, 16, L_WO, F_WO), w2=(4, 52, 18, L_W2, F_W2))
    flag_at = {2: [F_X]}
    cum = 2
    for m in order:
        if m == 'v' and vsplit:
            for i, f in enumerate((F_V0, F_V1, F_V2)): flag_at.setdefault(cum + 8 * (i + 1), []).append(f)
        cum += 2 * info[m][0]
        flag_at.setdefault(cum, []).append(info[m][4])
    def kphase():
        if kph == 'A': A("s_and_b32 s67, s29, 15")
        elif kph == 'B': A("s_lshl_b32 s67, s28, 1\ns_lshr_b32 s59, s29, 4\ns_add_u32 s67, s67, s59")
        elif kph == 'C': A("s_lshl_b32 s67, s28, 1\ns_lshr_b32 s59, s29, 4\ns_add_u32 s67, s67, s59\ns_and_b32 s59, s29, 8\ns_add_u32 s67, s67, s59\ns_and_b32 s67, s67, 15")
        elif kph == 'D': A("s_lshl_b32 s67, s28, 1\ns_add_u32 s67, s67, s29\ns_and_b32 s67, s67, 15")
        elif kph == 'E': A("s_lshl_b32 s67, s28, 1\ns_lshr_b32 s59, s29, 2\ns_add_u32 s67, s67, s59\ns_and_b32 s67, s67, 15")
        elif kph == 'F': A("s_mul_i32 s67, s29, 5\ns_mul_i32 s59, s28, 3\ns_add_u32 s67, s67, s59\ns_and_b32 s67, s67, 15")
        elif kph == 'G': A("s_and_b32 s67, s29, 7\ns_lshl_b32 s67, s67, 1")
        elif kph == 'Z': A("s_mov_b32 s67, 0")
    def setup(m):
        if m == 'wq': return
        if m == 'w1':
            A("""v_mul_u32_u24 v12, 3584, v6
            v_add_u32 v12, v12, v9
            v_add_u32 v13, 13312, v12
            s_mov_b32 s36, s16
            s_mov_b32 s37, s17
            s_cmp_lt_u32 s62, 28
            s_cselect_b32 s38, 1835008, 0
            s_mov_b32 s39, 0x00020000
            s_mul_i32 s57, s63, 229376
            s_lshl_b32 s58, s62, 7
            s_add_u32 s57, s57, s58
            s_lshl_b32 s56, s61, 11""")
        elif m == 'k':
            A(f"""v_lshrrev_b32 v7, 4, v0
            v_lshlrev_b32 v8, 1, v7
            v_xor_b32 v8, v8, v0
            v_and_b32 v8, 15, v8
            v_lshlrev_b32 v8, 4, v8
            v_lshl_add_u32 v14, v7, 8, v8
            v_xor_b32 v15, 128, v14
            s_mov_b32 s40, s6
            s_mov_b32 s41, s7
            s_mov_b32 s42, 33554432
            s_mov_b32 s43, 0x00020000
            s_lshr_b32 s64, s29, 4
            s_lshl_b32 s64, s64, 3
            s_add_u32 s64, s64, s28
            s_lshl_b32 s64, s64, 21
            s_and_b32 s58, s29, 15
            s_lshl_b32 s58, s58, 15
            s_add_u32 s64, s64, s58
            s_add_u32 s64, s64, 1572864""")
            kphase()
            A("s_lshl_b32 s56, s67, 11")
        elif m == 'v':
            A(f"""s_mov_b32 s44, s8
            s_mov_b32 s45, s9
            s_mov_b32 s46, 33554432
            s_mov_b32 s47, 0x00020000""")
            if vsplit:
                A("""s_lshl_b32 s65, s61, 13
                s_and_b32 s66, s63, 3
                s_lshl_b32 s66, s66, 11
                s_or_b32 s56, s65, s66""")
            else:
                A("s_lshl_b32 s56, s67, 11")
        elif m == 'wo':
            A("""v_lshl_add_u32 v7, v4, 7, v5
            v_lshl_add_u32 v16, v7, 10, v9
            v_add_u32 v17, 15360, v16
            s_mov_b32 s48, s12
            s_mov_b32 s49, s13
            s_mov_b32 s50, 4194304
            s_mov_b32 s51, 0x00020000
            s_lshl_b32 s57, s28, 19
            s_lshl_b32 s58, s61, 15
            s_add_u32 s57, s57, s58
            s_lshl_b32 s58, s63, 7
            s_add_u32 s57, s57, s58""")
            A(dict(A="s_and_b32 s56, s29, 7\ns_lshl_b32 s56, s56, 11", Z="s_mov_b32 s56, 0", X="s_lshl_b32 s56, s28, 11", P="s_lshl_b32 s56, s28, 11")[wph])
        elif m == 'w2':
            A("""v_lshl_add_u32 v18, v6, 10, v9
            v_add_u32 v19, 3072, v18
            s_mov_b32 s52, s20
            s_mov_b32 s53, s21
            s_cmp_lt_u32 s62, 28
            s_cselect_b32 s54, 1835008, 0
            s_mov_b32 s55, 0x00020000
            s_lshl_b32 s57, s62, 16
            s_lshl_b32 s58, s63, 7
            s_add_u32 s57, s57, s58
            s_lshl_b32 s56, s61, 11""")
    total = cum
    if hold or pre: flag_at.setdefault(total - (hold or pre), []).append(F_PRE)
    if mlpre: flag_at.setdefault(total - mlpre, []).append(F_QA)
    stn = {F_PRE: 10, F_WQ: 3, F_W1: 4, F_K: 5, F_V: 6, F_WO: 7, F_QA: 2, F_X: 8, F_W2: 9}
    def stream(depth, variant):
        issued = 2
        done_barrier = variant != 0
        flagged = set()
        live = variant == 0
        pending = False
        def landed(n):
            for c in sorted(flag_at):
                if c <= n and c not in flagged:
                    flagged.add(c)
                    if not live: continue
                    A("s_mov_b64 exec, 1")
                    for f in flag_at[c]: A(f"ds_write_b32 v20, v20 offset:{f}")
                    A("s_mov_b64 exec, -1")
                    for f in flag_at[c]:
                        if f in stn: stamp(stn[f])
        for m in order:
            npair, srd, vo, lbase, _ = info[m]
            if m == 'wq':
                issued += 16
                continue
            if live: setup(m)
            for p in range(npair):
                d = depth
                if dsched and variant == 0:
                    for (frm, dd) in dsched:
                        if issued >= frm: d = dd
                if variant == 1 and (issued - (depth0 - 2)) in chk:
                    live = True
                    A(f"L_deep{issued}:")
                if hold and issued >= total - hold:
                    if issued == total - hold and live:
                        cv = [c for c in flag_at if F_V in flag_at[c]][0]
                        for c in sorted(flag_at):
                            if c <= cv and c not in flagged:
                                A(f"s_waitcnt vmcnt({issued - c})")
                                landed(c)
                        l = lab("hold")
                        A(f"""{l}:
                        ds_read_b128 v[24:27], v20 offset:{F_OPD}
                        s_waitcnt lgkmcnt(0)
                        v_max3_u32 v24, v24, v25, v26
                        v_max_u32 v24, v24, v27
                        v_cmp_eq_u32 vcc, -1, v24
                        s_cbranch_vccnz {l}""")
                elif issued + 2 > d:
                    if not done_barrier:
                        A(f"v_mov_b32 v20, {L_FLG}\ns_barrier")
                        stamp(1)
                        done_barrier = True
                    if live: A(f"s_waitcnt vmcnt({d - 2})")
                    landed(issued - (d - 2))
                    if prof and live and (issued - (d - 2)) % 8 == 2: stamp(11 + (issued - (d - 2)) // 8)
                    if variant == 0 and deep:
                        n = issued - (d - 2)
                        if n in chk:
                            thr = int(t0 + slope * (n - 2) + margin)
                            A(f"""s_memrealtime s[70:71]
                            s_waitcnt lgkmcnt(0)
                            s_sub_u32 s70, s70, s72
                            s_cmp_gt_u32 s70, {thr}
                            s_cbranch_scc1 L_deep{issued}""")
                if live:
                    A(f"s_add_u32 m0, s56, {lbase}" if lbase else "s_mov_b32 m0, s56")
                    if m == 'wq': A("s_lshl_b32 s58, s56, 6\ns_add_u32 s58, s58, s57")
                    elif m == 'w1': A("s_mul_i32 s58, s56, 28\ns_add_u32 s58, s58, s57")
                    elif m == 'w2': A("s_lshl_b32 s58, s56, 3\ns_add_u32 s58, s58, s57")
                    elif m == 'wo': A("s_and_b32 s58, s56, s60\ns_lshl_b32 s58, s58, 7\ns_and_b32 s59, s56, 0x3000\ns_add_u32 s58, s58, s59\ns_add_u32 s58, s58, s57")
                    else: A("s_add_u32 s58, s56, s64")
                    fl = ntkv if m in ('k', 'v') else ntw
                    A(f"buffer_load_dwordx4 v{vo}, s[{srd}:{srd+3}], s58 offen{fl} lds")
                    A(f"buffer_load_dwordx4 v{vo+1}, s[{srd}:{srd+3}], s58 offen offset:1024{fl} lds")
                issued += 2
                if p != npair - 1 and live:
                    if m == 'v' and vsplit:
                        A("s_add_u32 s66, s66, s60\ns_and_b32 s66, s66, 0x1fff")
                        if p % 4 == 3: A("s_add_u32 s65, s65, 0x2000\ns_and_b32 s65, s65, 0x7fff")
                        A("s_or_b32 s56, s65, s66")
                    else:
                        A(f"s_add_u32 s56, s56, s60\ns_and_b32 s56, s56, {npair * 2048 - 1}")
        pts = set(c for c in flag_at if c not in flagged)
        if prof: pts |= set(c for c in range(issued - depth + 4, issued + 1) if c % 8 == 2)
        for c in sorted(pts):
            A(f"s_waitcnt vmcnt({issued - c})")
            landed(c)
            if prof and c % 8 == 2: stamp(11 + c // 8)
        if early:
            for k, r in ((11, 76), (12, 78), (13, 80), (14, 82), (15, 92)): A(f"v_writelane_b32 v{VST}, s{r}, {k}")
        if stamps: A(f"s_mov_b32 s98, {variant + 1}\nv_writelane_b32 v{VST}, s98, 31")
        stamp0()
        dump_stamps()
        A("s_endpgm")
    depth0 = depth
    stream(depth, 0)
    if deep: stream(deep, 1)

    A("L_notloader:")
    A("""s_lshr_b32 s3, s3, 6
    v_and_b32 v0, 63, v0
    s_and_b32 s28, s2, 7
    s_lshr_b32 s29, s2, 3""")
    if stamps: A(f"v_mov_b32 v{VST}, 0")
    if loaderonly: A("s_barrier\ns_endpgm")
    A("s_cmp_eq_u32 s3, 1\ns_cbranch_scc0 L_compute")
    A(f"""s_and_b32 s61, s29, 3
    s_lshl_b32 s62, s61, 3
    s_add_u32 s62, s62, s28""")
    rgmap(62, 63)
    A(f"""v_and_b32 v11, 7, v0
    v_lshlrev_b32 v11, 2, v11
    v_lshrrev_b32 v12, 5, v0
    v_lshl_add_u32 v11, v12, 1, v11
    v_bfe_u32 v12, v0, 4, 1
    v_add_u32 v11, v11, v12
    v_bfe_u32 v12, v0, 3, 1
    v_lshl_add_u32 v11, v12, 5, v11
    s_min_u32 s63, s62, 27
    s_lshl_b32 s63, s63, 6
    v_add_u32 v13, s63, v11
    v_lshlrev_b32 v13, 1, v13
    v_mov_b32 v20, {L_FLG}
    v_mov_b32 v40, 0
    v_mov_b32 v41, 0
    v_mov_b32 v19, 0
    s_mov_b32 s100, 0
    s_mov_b32 s101, 0
    s_getreg_b32 s64, hwreg(HW_REG_XCC_ID)
    s_lshl_b32 s65, s28, 17
    s_lshl_b32 s66, s29, 12
    s_add_u32 s66, s66, s65
    v_and_b32 v21, 31, v0
    v_lshlrev_b32 v21, 12, v21
    s_waitcnt lgkmcnt(0)
    s_load_dword s5, s[26:27], 0""")
    if b1early: A("global_load_ushort v14, v13, s[18:19]")
    ws_srd(8)
    def dotouch():
        A(f"""v_lshlrev_b32 v25, 7, v0
        s_mov_b32 exec_lo, {touch}
        s_mov_b32 exec_hi, 0
        buffer_load_dword v124, v25, s[8:11], s66 offen{tfl}
        s_mov_b64 exec, -1""")
    if touch and not tlate: dotouch()
    A(f"""s_barrier
    s_and_b32 s64, s64, 15
    s_waitcnt lgkmcnt(0)
    s_add_u32 s5, s5, 1
    s_lshl_b32 s6, s5, 4
    s_or_b32 s6, s6, s64
    v_mov_b32 v22, s6
    v_lshlrev_b32 v24, 2, v0
    s_mov_b32 exec_lo, {0 if nobeacon else (-1 if fullid else 1)}
    s_mov_b32 exec_hi, 0
    buffer_store_dword v22, v24, s[8:11], s66 offen offset:{B_ID}
    s_mov_b64 exec, -1""")
    if prew:
        A("""s_not_b32 s34, s5
        v_mov_b32 v28, s34
        v_mov_b32 v29, s34
        v_mov_b32 v30, s34
        v_mov_b32 v31, s34
        v_lshlrev_b32 v25, 4, v0""")
        for o in ([0] if prew & 1 else []) + ([1024, 2048] if prew & 2 else []):
            A(f"buffer_store_dwordx4 v[28:31], v25, s[8:11], s66 offen offset:{o}")
        if prew & 4: A(f"s_mov_b64 exec, 0xff\nbuffer_store_dwordx4 v[28:31], v25, s[8:11], s66 offen offset:{B_ML}\ns_mov_b64 exec, -1")
    if xdirty:
        A(f"v_lshlrev_b32 v25, 4, v0\ns_xor_b32 s34, s66, {W_B}")
        for o in range(xdirty): A(f"buffer_store_dwordx4 v[28:31], v25, s[8:11], s34 offen offset:{1024*o}")
    if not b1early: A("global_load_ushort v14, v13, s[18:19]")
    stamp0()
    A(f"""v_lshrrev_b32 v5, 4, v0
    v_and_b32 v4, 15, v0
    v_bfe_u32 v60, v0, 2, 2
    v_and_b32 v17, 1, v5
    v_lshl_add_u32 v60, v17, 2, v60
    v_bfe_u32 v18, v0, 1, 1
    v_and_b32 v61, 6, v60
    v_xor_b32 v18, v18, v61
    v_lshlrev_b32 v18, 4, v18
    v_and_b32 v61, 1, v0
    v_lshl_add_u32 v18, v61, 3, v18
    v_lshrrev_b32 v17, 5, v0
    v_lshl_add_u32 v17, v17, 4, v60
    v_lshl_add_u32 v62, v17, 7, v18
    v_add_u32 v62, {L_W1}, v62
    v_xor_b32 v63, 32, v62
    v_xor_b32 v64, 64, v62
    v_xor_b32 v65, 96, v62
    v_mul_u32_u24 v18, {XSTR}, v61
    v_lshl_add_u32 v18, v5, 4, v18
    s_lshr_b32 s37, s29, 2
    s_lshl_b32 s37, s37, 7
    s_add_u32 s37, s37, {L_XN}
    v_add_u32 v66, s37, v18
    v_lshlrev_b32 v67, 8, v4
    v_lshl_add_u32 v67, v5, 4, v67
    s_movk_i32 s53, 0xff00
    s_mov_b32 s48, 0x00030003
    s_mov_b32 s49, 0x00030003""")
    mktags(5, 0)
    for r in range(104, 120): A(f"v_mov_b32 v{r}, 0")
    wait_flag(20, F_XN, 18)
    if not nobeacon: A(f"buffer_load_dword v23, v21, s[8:11], s65 offen offset:{B_ID} sc1")
    A("ds_read_b128 v[24:27], v66\nds_read_b128 v[28:31], v66 offset:64")
    wait_flag(20, F_W1, 18)
    for t in range(4):
        for kk in range(2):
            for u in range(2):
                r = 72 + 8 * t + 4 * kk + 2 * u
                A(f"ds_read_b64_tr_b16 v[{r}:{r+1}], v{62+t} offset:{kk*4096 + u*1024}")
    for t in range(4):
        A(f"s_waitcnt lgkmcnt({12 - 4*t})")
        for kk in range(2):
            r = 72 + 8 * t + 4 * kk
            A(f"v_mfma_f32_16x16x32_bf16 v[{104+4*t}:{107+4*t}], v[{r}:{r+3}], v[{24+4*kk}:{27+4*kk}], v[{104+4*t}:{107+4*t}]")
    for r in range(104, 120): A(f"v_and_or_b32 v{r}, v{r}, s53, v{152 + r % 4}")
    A("s_mov_b64 exec, s[48:49]")
    for t in range(4): A(f"buffer_store_dwordx4 v[{104+4*t}:{107+4*t}], v67, s[8:11], s66 offen offset:{B_HP + 64*t}{pst}")
    A("s_mov_b64 exec, -1\ns_mov_b32 s7, 0")
    stamp(6)
    if nobeacon: A("s_branch L_idok")
    l = lab("id")
    A(f"""s_waitcnt vmcnt(4)
    s_branch L_idchk
    {l}:
    buffer_load_dword v23, v21, s[8:11], s65 offen offset:{B_ID} sc1
    s_waitcnt vmcnt(0)
    L_idchk:
    v_cmp_ne_u32 vcc, s6, v23
    s_cbranch_vccz L_idok
    s_add_u32 s7, s7, 1
    s_cmp_lt_u32 s7, {IDTRY}
    s_cbranch_scc1 {l}
    L_idok:
    s_cmp_eq_u32 s7, {IDTRY}
    s_cselect_b32 s7, 1, 0""")
    if forcemode is not None: A(f"s_mov_b32 s7, {forcemode}")
    A("v_mov_b32 v23, s7")
    set_flag(20, F_MODE, 23)
    if touch and tlate: dotouch()
    stamp(1)
    A(f"""s_cmp_eq_u32 s7, 0
    s_cbranch_scc1 L_hpfast
    s_xor_b32 s37, s66, {W_B}
    s_mov_b64 exec, s[48:49]""")
    for t in range(4): A(f"buffer_store_dwordx4 v[{104+4*t}:{107+4*t}], v67, s[8:11], s37 offen offset:{B_HP + 64*t} sc1")
    A("s_mov_b64 exec, -1\nL_hpfast:")
    A(f"""s_cmp_lt_u32 s62, 28
    s_cbranch_scc0 L_actw
    v_lshrrev_b32 v16, 3, v0
    v_lshlrev_b32 v16, 14, v16
    v_and_b32 v17, 7, v0
    v_lshl_add_u32 v16, v17, 4, v16
    s_lshl_b32 s31, s61, 12
    s_add_u32 s31, s31, s65""")
    if hpt: wait_flag(20, {'k': F_K}[hpt], 18)
    elif hs: A(f"s_sleep {hs}")
    l = lab("hp")
    A(f"s_lshl_b32 s7, s7, 21\n{l}:\ns_xor_b32 s31, s31, s7")
    for i in range(4):
        b, half = i & 1, i >> 1
        A(f"buffer_load_dwordx4 v[{24+4*i}:{27+4*i}], v16, s[8:11], s31 offen offset:{B_HP + b*256 + half*128} sc1")
    A("s_waitcnt vmcnt(0)")
    bad_tag(range(24, 40), 44, 5, 19)
    gloop_back(l, sleep=4)
    stamp(2)
    for i in range(4):
        r = 24 + 4 * i
        A(f"""v_permlane32_swap_b32 v{r}, v{r+2}
        v_permlane32_swap_b32 v{r+1}, v{r+3}
        v_add_f32 v{r}, v{r}, v{r+2}
        v_add_f32 v{r+1}, v{r+1}, v{r+3}""")
    for i in range(4):
        r = 24 + 4 * i
        A(f"v_permlane16_swap_b32 v{r}, v{r+1}\nv_add_f32 v{r}, v{r}, v{r+1}")
    for i in range(4):
        r = 24 + 4 * i
        A(f"v_add_f32 v{r}, v{r}, v{r} row_ror:8")
    A("""v_and_b32 v18, 8, v0
    v_cmp_eq_u32 vcc, 0, v18
    v_cndmask_b32 v40, v32, v24, vcc
    v_cndmask_b32 v41, v36, v28, vcc
    v_lshlrev_b32 v14, 16, v14
    s_mov_b32 s32, 0x3fb8aa3b
    s_mov_b32 s33, 0x3f317218""")
    for h in (40, 41):
        t = 44
        bf16r(h, h)
        A(f"v_add_f32 v{h}, v{h}, v14")
        bf16r(h, h)
        A(f"v_mul_f32 v{t}, s32, v{h}\nv_exp_f32 v{t}, -abs(v{t})")
        bf16r(t, t)
        A(f"""v_add_f32 v{t+1}, 1.0, v{t}
        v_log_f32 v{t+2}, v{t+1}
        v_add_f32 v{t+3}, -1.0, v{t+1}
        v_rcp_f32 v{t+3}, v{t+3}
        v_mul_f32 v{t+2}, s33, v{t+2}
        v_mul_f32 v{t+2}, v{t+2}, v{t}
        v_mul_f32 v{t+2}, v{t+2}, v{t+3}
        v_cmp_eq_f32 vcc, 1.0, v{t+1}
        v_cndmask_b32 v{t+2}, v{t+2}, v{t}, vcc""")
        bf16r(t+2, t+2)
        A(f"v_max_f32 v{t+1}, 0, v{h}\nv_add_f32 v{t+2}, v{t+2}, v{t+1}")
        bf16r(t+2, t+2)
        A(f"""v_mul_f32 v{t}, -2.0, v{t+2}
        v_mul_f32 v{t+1}, s32, v{t}
        v_exp_f32 v{t+1}, v{t+1}
        v_log_f32 v{t+3}, v{t+1}
        v_add_f32 v{t+4}, -1.0, v{t+1}
        v_mul_f32 v{t+3}, s33, v{t+3}
        v_rcp_f32 v{t+3}, v{t+3}
        v_mul_f32 v{t+5}, v{t+4}, v{t}
        v_mul_f32 v{t+5}, v{t+5}, v{t+3}
        v_cmp_eq_f32 vcc, 1.0, v{t+1}
        v_cndmask_b32 v{t+5}, v{t+5}, v{t}, vcc
        v_cmp_gt_f32 vcc, 0.5, v{t+1}
        v_cndmask_b32 v{t+5}, v{t+5}, v{t+4}, vcc
        v_add_f32 v{t+4}, 2.0, v{t+5}
        v_rcp_f32 v{t+4}, v{t+4}
        v_mul_f32 v{t+5}, v{t+5}, v{t+4}
        v_sub_f32 v{t+5}, 0, v{t+5}""")
        bf16r(t+5, t+5)
        A(f"v_mul_f32 v{h}, v{h}, v{t+5}\nv_cvt_pk_bf16_f32 v{h}, v{h}, v{h}")
    A(f"""L_actw:
    v_lshlrev_b32 v11, 1, v11
    v_add_u32 v11, {L_ACT}, v11
    ds_write_b16 v11, v40
    ds_write_b16 v11, v41 offset:128""")
    set_flag(20, F_ACT, 20)
    stamp(3)
    A(f"""v_lshrrev_b32 v16, 2, v0
    v_and_b32 v17, 3, v0
    v_lshlrev_b32 v21, 12, v16
    v_lshl_add_u32 v21, v17, 3, v21
    s_add_u32 s66, s65, 65536
    v_and_b32 v18, 15, v0
    v_lshlrev_b32 v18, 4, v18
    v_lshrrev_b32 v22, 4, v0
    v_lshl_add_u32 v22, v22, 2, v18
    v_add_u32 v22, {L_AL}, v22
    s_movk_i32 s53, 0xff00
    s_mov_b32 s52, -2""")
    if mlpre: wait_flag(20, F_QA, 18)
    elif mlt: wait_flag(20, {'v0': F_V0, 'v1': F_V1, 'v2': F_V2, 'v': F_V, 'k': F_K}[mlt], 18)
    l = lab("ml")
    if mlpipe: A("v_not_b32 v24, v156\nv_not_b32 v26, v156\ns_waitcnt vmcnt(0)")
    A(f"""{l}:
    buffer_load_dwordx2 v[24:25], v21, s[8:11], s65 offen offset:{B_ML} sc1
    buffer_load_dwordx2 v[26:27], v21, s[8:11], s66 offen offset:{B_ML} sc1""")
    if mlpipe and mlsl: A(f"s_sleep {mlsl}")
    A(f"""s_waitcnt vmcnt({2 * mlpipe})
    v_mov_b32 v32, v24
    v_mov_b32 v33, v25
    v_mov_b32 v34, v26
    v_mov_b32 v35, v27""")
    bad_tag(range(32, 36), 44, [(32, 34, "v156"), (33, 35, "v157")], 19)
    gloop_back(l)
    stamp(4)
    A("""v_and_b32 v32, s53, v32
    v_and_b32 v34, s53, v34
    v_max_f32 v28, v32, v32 row_ror:4
    v_max_f32 v29, v34, v34 row_ror:4
    v_max_f32 v28, v28, v28 row_ror:8
    v_max_f32 v29, v29, v29 row_ror:8""")
    allred2(28, 30, 29, 31, "v_max_f32")
    A("""v_sub_f32 v32, v32, v28
    v_sub_f32 v34, v34, v29
    v_exp_f32 v32, v32
    v_exp_f32 v34, v34
    v_mul_f32 v32, v32, v33
    v_mul_f32 v34, v34, v35
    v_add_f32 v28, v32, v32 row_ror:4
    v_add_f32 v29, v34, v34 row_ror:4
    v_add_f32 v28, v28, v28 row_ror:8
    v_add_f32 v29, v29, v29 row_ror:8""")
    allred2(28, 30, 29, 31, "v_add_f32")
    A("""v_rcp_f32 v28, v28
    v_rcp_f32 v29, v29
    v_mul_f32 v32, v32, v28
    v_mul_f32 v34, v34, v29
    v_min_u32 v32, s52, v32
    v_min_u32 v34, s52, v34
    ds_write_b32 v22, v32
    ds_write_b32 v22, v34 offset:256""")
    stamp(5)
    dump_stamps()
    A("s_waitcnt lgkmcnt(0)\ns_endpgm")

    A("L_compute:")
    A(f"""s_sub_u32 s30, s3, 2
    v_lshlrev_b32 v2, 4, v0
    s_lshl_b32 s31, s30, 10
    s_add_u32 s31, s31, {L_S}
    v_add_u32 v3, s31, v2
    v_mov_b32 v4, -1
    v_mov_b32 v5, -1
    v_mov_b32 v6, -1
    v_mov_b32 v7, -1
    ds_write_b128 v3, v[4:7]
    s_mov_b32 s100, 0
    s_mov_b32 s101, 0
    s_waitcnt lgkmcnt(0)
    s_load_dword s54, s[26:27], 0
    s_barrier""")
    ws_srd(32)
    A(f"""s_mov_b32 s36, 0xffff0000
    v_and_b32 v4, 15, v0
    v_lshrrev_b32 v5, 4, v0
    v_mov_b32 v6, {L_FLG}
    v_bfe_u32 v96, v0, 2, 2
    v_and_b32 v17, 1, v5
    v_lshl_add_u32 v96, v17, 2, v96
    v_bfe_u32 v18, v0, 1, 1
    s_lshl_b32 s37, s30, 1
    v_add_u32 v18, s37, v18
    v_and_b32 v19, 6, v96
    v_xor_b32 v18, v18, v19
    v_lshlrev_b32 v18, 4, v18
    v_and_b32 v19, 1, v0
    v_lshl_add_u32 v18, v19, 3, v18
    v_lshrrev_b32 v17, 5, v0
    v_lshl_add_u32 v17, v17, 4, v96
    v_lshl_add_u32 v7, v17, 7, v18
    v_add_u32 v7, {L_WQ}, v7
    ; xn frag addresses v106 (wq rows), v105 (w1 rows)
    v_mul_u32_u24 v18, {XSTR}, v19
    v_lshl_add_u32 v18, v5, 4, v18
    s_lshr_b32 s37, s29, 3
    s_lshl_b32 s37, s37, 8
    s_add_u32 s37, s37, {L_XN}
    v_add_u32 v106, s37, v18
    s_lshl_b32 s37, s30, 6
    v_lshlrev_b32 v18, 8, v4
    v_lshl_add_u32 v18, v5, 4, v18
    v_add_u32 v107, s37, v18
    s_lshl_b32 s38, s28, 5
    s_add_u32 s38, s38, s29
    s_lshl_b32 s68, s38, 9
    s_lshl_b32 s38, s38, 12
    s_add_u32 s68, s68, {W_FP}
    v_add_u32 v3, {L_XN}, v2
    v_add_u32 v16, {L_XR}, v2
    s_mov_b32 s48, 0x00030003
    s_mov_b32 s49, 0x00030003
    s_mov_b32 s52, -2
    s_movk_i32 s53, 0xff00""")
    stamp(1)
    wait_flag(6, F_X, 17)
    A(f"""ds_read_b128 v[8:11], v16
    ds_read_b128 v[12:15], v16 offset:1024
    s_add_u32 s54, s54, 1
    s_waitcnt lgkmcnt(0)""")
    stamp0()
    stamp(2)
    for b in range(2):
        for i in range(4):
            A(f"v_lshlrev_b32 v{16+8*b+2*i}, 16, v{8+4*b+i}\nv_and_b32 v{17+8*b+2*i}, s36, v{8+4*b+i}")
    def red2(a, b, t):
        A(f"""v_permlane32_swap_b32 v{a}, v{b}
        v_add_f32 v{a}, v{a}, v{b}
        v_mov_b32 v{t}, v{a}
        v_permlane16_swap_b32 v{t}, v{a}
        v_add_f32 v{a}, v{a}, v{t}
        v_add_f32 v{a}, v{a}, v{a} row_ror:8
        v_add_f32 v{a}, v{a}, v{a} row_ror:4
        v_add_f32 v{a}, v{a}, v{a} row_ror:2
        v_add_f32 v{a}, v{a}, v{a} row_ror:1""")
    for b in range(2):
        f = 16 + 8 * b
        A(f"""v_pk_add_f32 v[{32+4*b}:{33+4*b}], v[{f}:{f+1}], v[{f+2}:{f+3}]
        v_pk_add_f32 v[{34+4*b}:{35+4*b}], v[{f+4}:{f+5}], v[{f+6}:{f+7}]""")
    for b in range(2):
        A(f"v_pk_add_f32 v[{32+4*b}:{33+4*b}], v[{32+4*b}:{33+4*b}], v[{34+4*b}:{35+4*b}]")
    A("v_add_f32 v32, v32, v33\nv_add_f32 v36, v36, v37")
    red2(32, 36, 33)
    A("""v_mul_f32 v32, 0x3b000000, v32
    v_readlane_b32 s60, v32, 0
    v_readlane_b32 s62, v32, 32""")
    for b in range(2):
        f = 16 + 8 * b
        for i in range(4):
            A(f"v_pk_add_f32 v[{40+8*b+2*i}:{41+8*b+2*i}], v[{f+2*i}:{f+2*i+1}], s[{60+2*b}:{61+2*b}] op_sel_hi:[1,0] neg_lo:[0,1] neg_hi:[0,1]")
    for b in range(2):
        d = 40 + 8 * b
        A(f"v_pk_mul_f32 v[{34+2*b}:{35+2*b}], v[{d}:{d+1}], v[{d}:{d+1}]")
    for i in range(1, 4):
        for b in range(2):
            d = 40 + 8 * b + 2 * i
            A(f"v_pk_fma_f32 v[{34+2*b}:{35+2*b}], v[{d}:{d+1}], v[{d}:{d+1}], v[{34+2*b}:{35+2*b}]")
    A("v_add_f32 v34, v34, v35\nv_add_f32 v36, v36, v37")
    red2(34, 36, 33)
    A("v_mul_f32 v34, 0x3b000000, v34")
    bf16r(34, 34)
    A("v_add_f32 v34, 0x3727c5ac, v34")
    bf16r(34, 34)
    A("v_sqrt_f32 v34, v34")
    bf16r(32, 32)
    bf16r(34, 34)
    A("v_rcp_f32 v34, v34")
    A("""v_readlane_b32 s60, v32, 0
    v_readlane_b32 s62, v32, 32
    v_readlane_b32 s64, v34, 0
    v_readlane_b32 s66, v34, 32""")
    for b in range(2):
        f = 16 + 8 * b
        for i in range(4):
            A(f"v_pk_add_f32 v[{f+2*i}:{f+2*i+1}], v[{f+2*i}:{f+2*i+1}], s[{60+2*b}:{61+2*b}] op_sel_hi:[1,0] neg_lo:[0,1] neg_hi:[0,1]")
    for i in range(8):
        A(f"v_cvt_pk_bf16_f32 v{8+i}, v{16+2*i}, v{17+2*i}")
    for i in range(8):
        A(f"v_lshlrev_b32 v{16+2*i}, 16, v{8+i}\nv_and_b32 v{17+2*i}, s36, v{8+i}")
    for b in range(2):
        f = 16 + 8 * b
        for i in range(4):
            A(f"v_pk_mul_f32 v[{f+2*i}:{f+2*i+1}], v[{f+2*i}:{f+2*i+1}], s[{64+2*b}:{65+2*b}] op_sel_hi:[1,0]")
    for i in range(8):
        A(f"v_cvt_pk_bf16_f32 v{8+i}, v{16+2*i}, v{17+2*i}")
    A(f"""ds_write_b128 v3, v[8:11]
    ds_write_b128 v3, v[12:15] offset:{XSTR}""")
    set_flag(6, F_XN, 6)
    mktags(54, 0)
    for r in range(88, 92): A(f"v_mov_b32 v{r}, 0")
    A("s_waitcnt lgkmcnt(0)")
    for kk in range(4): A(f"ds_read_b128 v[{24+4*kk}:{27+4*kk}], v106 offset:{64*kk}")
    stamp(3)
    wait_flag(6, F_WQ, 16)
    stamp(4)
    def trw(base, nk, r0):
        for kk in range(nk):
            for u in range(2):
                A(f"ds_read_b64_tr_b16 v[{r0+4*kk+2*u}:{r0+4*kk+2*u+1}], v7 offset:{base - L_WQ + kk*4096 + u*1024}")
    def tag(regs):
        for r in regs: A(f"v_and_or_b32 v{r}, v{r}, s53, v{152 + r % 4}")
    trw(L_WQ, 4, 48)
    for kk in range(4):
        A(f"s_waitcnt lgkmcnt({6 - 2*kk})")
        A(f"v_mfma_f32_16x16x32_bf16 v[88:91], v[{48+4*kk}:{51+4*kk}], v[{24+4*kk}:{27+4*kk}], v[88:91]")
    tag(range(88, 92))
    A(f"""s_mov_b64 exec, s[48:49]
    buffer_store_dwordx4 v[88:91], v107, s[32:35], s38 offen offset:{B_QP}{pst}
    s_mov_b64 exec, -1""")
    stamp(5)
    A(f"""v_lshlrev_b32 v119, 15, v5
    v_lshl_add_u32 v119, v4, 4, v119
    s_lshl_b32 s39, s28, 17
    s_lshl_b32 s37, s30, 13
    s_add_u32 s39, s39, s37
    s_lshr_b32 s37, s29, 4
    s_lshl_b32 s37, s37, 8
    s_add_u32 s39, s39, s37
    s_add_u32 s40, s39, 4096
    v_lshlrev_b32 v118, 5, v5
    v_lshl_add_u32 v118, v4, 4, v118
    s_lshl_b32 s37, s30, 7
    v_add_u32 v118, s37, v118""")
    def qloads(r):
        A(f"""buffer_load_dwordx4 v[{r}:{r+3}], v119, s[32:35], s39 offen offset:{B_QP} sc1
        buffer_load_dwordx4 v[{r+4}:{r+7}], v119, s[32:35], s40 offen offset:{B_QP} sc1""")
    A(f"""; ---- remaining addresses
    v_mov_b32 v123, 0
    v_and_b32 v19, 1, v0
    v_bfe_u32 v18, v0, 1, 1
    s_lshl_b32 s37, s30, 2
    v_add_u32 v18, s37, v18
    v_lshlrev_b32 v17, 1, v96
    v_xor_b32 v18, v18, v17
    v_lshlrev_b32 v18, 4, v18
    v_lshl_add_u32 v18, v19, 3, v18
    v_lshrrev_b32 v17, 2, v0
    v_lshl_add_u32 v100, v17, 8, v18
    s_lshl_b32 s37, s30, 2
    v_add_u32 v101, s37, v6
    v_and_b32 v17, 7, v0
    v_lshlrev_b32 v17, 1, v17
    v_xor_b32 v17, v17, v5
    v_lshlrev_b32 v17, 4, v17
    v_lshl_add_u32 v17, v4, 8, v17
    s_lshl_b32 s37, s30, 13
    v_add_u32 v102, s37, v17
    v_xor_b32 v103, 64, v102
    v_xor_b32 v104, 128, v102
    v_xor_b32 v105, 192, v102
    v_mul_u32_u24 v116, {OSTR}, v19
    v_lshl_add_u32 v116, v5, 4, v116
    v_add_u32 v116, {L_O}, v116
    v_lshlrev_b32 v117, 7, v19
    v_lshl_add_u32 v117, v5, 4, v117
    v_add_u32 v117, {L_ACT}, v117
    v_lshrrev_b32 v17, 5, v0
    v_lshlrev_b32 v17, 7, v17
    v_lshl_add_u32 v17, v4, 3, v17
    v_and_b32 v18, 1, v5
    v_lshl_add_u32 v17, v18, 2, v17
    s_mul_i32 s37, s30, {QSTR}
    s_add_u32 s37, s37, {L_Q}
    v_add_u32 v120, s37, v17
    v_and_b32 v19, 3, v0
    v_mul_u32_u24 v121, {QSTR}, v19
    v_lshl_add_u32 v121, v5, 4, v121
    v_add_u32 v121, {L_Q}, v121
    v_lshlrev_b32 v20, 6, v5
    v_lshl_add_u32 v20, v19, 4, v20
    v_add_u32 v108, {L_P}, v20
    s_lshl_b32 s37, s30, 8
    v_add_u32 v110, s37, v108
    s_lshl_b32 s37, s30, 9
    v_add_u32 v109, s37, v20
    s_and_b32 s41, s30, 1
    s_lshl_b32 s37, s41, 8
    s_add_u32 s37, s37, {L_AL}
    v_add_u32 v114, s37, v20
    v_lshlrev_b32 v111, 5, v19
    v_add_u32 v111, {L_ML}, v111
    s_lshl_b32 s37, s30, 3
    v_add_u32 v112, s37, v111
    v_lshlrev_b32 v106, 3, v4
    v_lshlrev_b32 v16, 12, v5
    v_lshl_add_u32 v113, v4, 4, v16
    s_and_b32 s43, s29, 3
    s_lshl_b32 s37, s43, 9
    s_lshr_b32 s42, s30, 1
    s_lshl_b32 s44, s42, 8
    s_add_u32 s37, s37, s44
    v_add_u32 v113, s37, v113
    s_lshl_b32 s44, s28, 17
    s_lshl_b32 s37, s41, 16
    s_add_u32 s44, s44, s37
    s_add_u32 s45, s44, 16384
    s_add_u32 s46, s44, 32768
    s_add_u32 s47, s44, 49152
    v_lshlrev_b32 v115, 4, v4
    v_lshl_add_u32 v115, v18, 2, v115
    s_mul_i32 s37, s41, {OSTR}
    s_lshl_b32 s42, s42, 3
    s_add_u32 s37, s37, s42
    s_add_u32 s37, s37, {L_O}
    v_add_u32 v115, s37, v115
    s_mov_b32 s50, 0x000f000f
    s_mov_b32 s51, 0x000f000f
    s_mov_b32 s58, 0x3db504f3
    s_mov_b32 s59, 0x3fb8aa3b
    s_lshl_b32 s70, s29, 9
    s_lshl_b32 s37, s30, 7
    s_add_u32 s70, s70, s37
    s_add_u32 s70, s70, {W_FP}
    v_lshrrev_b32 v17, 3, v0
    v_lshlrev_b32 v17, 14, v17
    v_and_b32 v16, 7, v0
    v_lshl_add_u32 v99, v16, 4, v17
    v_and_b32 v16, 1, v0
    v_lshlrev_b32 v16, 10, v16
    v_bfe_u32 v17, v0, 1, 2
    v_lshl_add_u32 v16, v17, 3, v16
    v_lshrrev_b32 v17, 5, v0
    v_lshl_add_u32 v16, v17, 2, v16
    s_lshl_b32 s37, s28, 7
    s_lshl_b32 s41, s30, 5
    s_add_u32 s37, s37, s41
    v_add_u32 v98, s37, v16
    v_add_u32 v17, {L_XR}, v98
    ds_read_b32 v97, v17""")
    for i in range(4):
        if vsplit:
            A(f"""s_add_u32 s37, s43, {i}
            s_and_b32 s37, s37, 3
            s_lshl_b32 s41, s37, 13
            v_add_u32 v{80+2*i}, s41, v100
            s_lshl_b32 s41, s37, 8
            v_add_u32 v{76+i}, s41, v108""")
        else:
            A(f"v_add_u32 v{80+2*i}, {i*8192}, v100\nv_add_u32 v{76+i}, {i*256}, v108")
        A(f"v_xor_b32 v{81+2*i}, 32, v{80+2*i}")
    if touchout: A("global_load_dword v124, v98, s[22:23]")
    if warmfp: A(f"s_mov_b64 exec, s[48:49]\nbuffer_load_dword v124, v118, s[32:35], s68 offen{wfl}\ns_mov_b64 exec, -1")
    for r in range(8, 16): A(f"v_mov_b32 v{r}, 0")
    A("s_mov_b32 s56, 0")
    if sa: A(f"s_sleep {sa}")
    stamp(6)
    def republish():
        A(f"""s_xor_b32 s37, s38, {W_B}
        s_mov_b64 exec, s[48:49]
        buffer_store_dwordx4 v[88:91], v107, s[32:35], s37 offen offset:{B_QP} sc1
        s_mov_b64 exec, -1
        s_mov_b32 s56, 1""")
    qs = [128, 136, 144][:qsets]
    for k, r in enumerate(qs):
        qloads(r)
        if k + 1 < len(qs) and sb: A(f"s_sleep {sb}")
    A("L_qp:")
    for k, r in enumerate(qs):
        A(f"s_waitcnt vmcnt({2*(len(qs)-1)})")
        bad_tag(range(r, r + 8), 40, 55, 123)
        A(f"s_cbranch_vccz L_qok{k}")
        qloads(r)
    A(f"""ds_read_b32 v40, v6 offset:{F_MODE}
    s_waitcnt lgkmcnt(0)
    v_readfirstlane_b32 s57, v40
    s_xor_b32 s57, s57, 1
    s_or_b32 s57, s57, s56
    s_cbranch_scc1 L_norep""")
    republish()
    A(f"""s_waitcnt vmcnt(0)""")
    for r in qs: qloads(r)
    A(f"""L_norep:
    s_lshl_b32 s37, s56, 21
    s_xor_b32 s39, s39, s37
    s_xor_b32 s40, s40, s37
    s_add_u32 s101, s101, 1
    s_cmp_lt_u32 s101, {SPIN}
    s_cbranch_scc1 L_qp""")
    for k, r in reversed(list(enumerate(qs))):
        A(f"L_qok{k}:")
        for i in range(4): A(f"v_permlane32_swap_b32 v{r+i}, v{r+4+i}")
        A(f"v_pk_add_f32 v[40:41], v[{r}:{r+1}], v[{r+4}:{r+5}]\nv_pk_add_f32 v[42:43], v[{r+2}:{r+3}], v[{r+6}:{r+7}]")
        if k: A("s_branch L_qj")
    A("L_qj:")
    stamp(7)
    A("""v_permlane16_swap_b32 v40, v42
    v_permlane16_swap_b32 v41, v43
    v_pk_add_f32 v[40:41], v[40:41], v[42:43]
    v_cvt_pk_bf16_f32 v40, v40, v41
    v_min_u32 v40, s52, v40
    ds_write_b32 v120, v40""")
    wait_flag(6, F_K, 41)
    for t in range(2):
        for kk in range(4):
            A(f"ds_read_b128 v[{44+16*t+4*kk}:{47+16*t+4*kk}], v{102+kk} offset:{L_K + t*4096}")
    l = lab("ql")
    A(f"{l}:")
    for kk in range(4): A(f"ds_read_b128 v[{16+4*kk}:{19+4*kk}], v121 offset:{64*kk}")
    A("s_waitcnt lgkmcnt(0)")
    any_sent(range(16, 32), 40)
    loop_back(l)
    stamp(8)
    for kk in range(4):
        for t in range(2):
            A(f"v_mfma_f32_16x16x32_bf16 v[{8+4*t}:{11+4*t}], v[{44+16*t+4*kk}:{47+16*t+4*kk}], v[{16+4*kk}:{19+4*kk}], v[{8+4*t}:{11+4*t}]")
    A(f"ds_read_b32 v42, v6 offset:{F_MODE}")
    for rnd in range(2):
        for i in range(4): A(f"v_cvt_pk_bf16_f32 v{24+i}, v{8+2*i}, v{9+2*i}")
        for i in range(4): A(f"v_lshlrev_b32 v{8+2*i}, 16, v{24+i}\nv_and_b32 v{9+2*i}, s36, v{24+i}")
        if rnd == 0:
            for i in range(4): A(f"v_pk_mul_f32 v[{8+2*i}:{9+2*i}], v[{8+2*i}:{9+2*i}], s[58:59] op_sel_hi:[1,0]")
    A("""v_max3_f32 v24, v8, v9, v10
    v_max3_f32 v25, v11, v12, v13
    v_max3_f32 v24, v24, v14, v15
    v_max_f32 v24, v24, v25""")
    allred(24, 25, "v_max_f32")
    A("v_mul_f32 v24, s59, v24")
    for i in range(8): A(f"v_fma_f32 v{8+i}, v{8+i}, s59, -v24")
    for i in range(8): A(f"v_exp_f32 v{8+i}, v{8+i}")
    A("""v_pk_add_f32 v[26:27], v[8:9], v[10:11]
    v_pk_add_f32 v[28:29], v[12:13], v[14:15]
    v_pk_add_f32 v[26:27], v[26:27], v[28:29]
    v_add_f32 v25, v26, v27""")
    allred(25, 26, "v_add_f32")
    A("""v_min_u32 v26, s52, v24
    v_min_u32 v27, s52, v25
    s_mov_b64 exec, 15
    ds_write_b64 v112, v[26:27]
    s_mov_b64 exec, -1""")
    l = lab("ml")
    A(f"""{l}:
    ds_read_b128 v[28:31], v111
    ds_read_b128 v[16:19], v111 offset:16
    s_waitcnt lgkmcnt(0)""")
    any_sent([28, 29, 30, 31, 16, 17, 18, 19], 20)
    loop_back(l)
    A("""v_max3_f32 v26, v28, v30, v16
    v_max_f32 v26, v26, v18
    v_and_b32 v26, s53, v26
    v_sub_f32 v24, v24, v26
    v_sub_f32 v28, v28, v26
    v_sub_f32 v30, v30, v26
    v_sub_f32 v16, v16, v26
    v_sub_f32 v18, v18, v26
    v_exp_f32 v24, v24
    v_exp_f32 v28, v28
    v_exp_f32 v30, v30
    v_exp_f32 v16, v16
    v_exp_f32 v18, v18
    v_mul_f32 v27, v28, v29
    v_fmac_f32 v27, v30, v31
    v_fmac_f32 v27, v16, v17
    v_fmac_f32 v27, v18, v19
    v_rcp_f32 v28, v27
    v_or_b32 v26, v26, v156
    v_mul_f32 v24, v24, v28""")
    for i in range(4): A(f"v_pk_mul_f32 v[{8+2*i}:{9+2*i}], v[{8+2*i}:{9+2*i}], v[24:25] op_sel_hi:[1,0]")
    for i in range(4): A(f"v_cvt_pk_bf16_f32 v{8+i}, v{8+2*i}, v{9+2*i}")
    for i in range(4): A(f"v_min_u32 v{8+i}, s52, v{8+i}")
    A(f"""s_mov_b64 exec, s[50:51]
    ds_write_b128 v110, v[8:11]
    s_mov_b64 exec, -1
    v_and_or_b32 v27, v27, s53, v157
    v_readfirstlane_b32 s57, v42
    s_cmp_eq_u32 s57, 0
    s_cbranch_scc1 L_modeok""")
    wait_flag(6, F_MODE, 42)
    A("""v_readfirstlane_b32 s57, v42
    s_xor_b32 s37, s57, 1
    s_or_b32 s37, s37, s56
    s_cbranch_scc1 L_modeok""")
    republish()
    A(f"""L_modeok:
    s_cmp_eq_u32 s30, 0
    s_cbranch_scc0 L_noml
    s_mov_b64 exec, {0xffff if fullml else 15}
    s_cmp_eq_u32 s57, 0
    s_cbranch_scc1 L_mlf
    buffer_store_dwordx2 v[26:27], v106, s[32:35], s38 offen offset:{B_ML} sc1
    s_branch L_mle
    L_mlf:
    buffer_store_dwordx2 v[26:27], v106, s[32:35], s38 offen offset:{B_ML}
    L_mle:
    s_mov_b64 exec, -1
    L_noml:""")
    for r in range(8, 20): A(f"v_mov_b32 v{r}, 0")
    l = lab("pl")
    A(f"{l}:")
    for i in range(4): A(f"ds_read_b128 v[{44+4*i}:{47+4*i}], v{76+i}")
    A("s_waitcnt lgkmcnt(0)")
    any_sent(range(44, 60), 20)
    loop_back(l)
    stamp(9)
    def ffn2():
        wait_flag(6, F_W2, 22)
        trw(L_W2, 2, 60)
        wait_flag(6, F_ACT, 22)
        A("ds_read_b128 v[68:71], v117\nds_read_b128 v[72:75], v117 offset:64\ns_waitcnt lgkmcnt(0)")
        for kk in range(2):
            A(f"v_mfma_f32_16x16x32_bf16 v[8:11], v[{60+4*kk}:{63+4*kk}], v[{68+4*kk}:{71+4*kk}], v[8:11]")
    def wopre():
        wait_flag(6, F_WO, 22)
        if op2: op_loads(44)
        if not opearly: op_loads()
        trw(L_WO, 4, 60)
    iv = order.index('v')
    assert order.index('w2') < order.index('wo') or order.index('wo') < iv
    if order.index('w2') < iv: ffn2()
    def pvstep(i, waitcnt):
        for t in range(2):
            for u in range(2):
                r = 24 + 8 * (i & 1) + 4 * t + 2 * u
                A(f"ds_read_b64_tr_b16 v[{r}:{r+1}], v{80+2*i+t} offset:{L_V + u*4096}")
    def pvmfma(i):
        for t in range(2):
            r = 24 + 8 * (i & 1) + 4 * t
            A(f"v_mfma_f32_16x16x32_bf16 v[{12+4*t}:{15+4*t}], v[{r}:{r+3}], v[{44+4*i}:{47+4*i}], v[{12+4*t}:{15+4*t}]")
    if vsplit:
        A(f"""ds_read_b32 v20, v6 offset:{F_V}
        s_waitcnt lgkmcnt(0)
        v_cmp_eq_u32 vcc, -1, v20
        s_cbranch_vccz L_pvall""")
        for i, f in enumerate((F_V0, F_V1, F_V2, F_V)):
            wait_flag(6, f, 20)
            if i == 3: stamp(10)
            pvstep(i, 0)
            A("s_waitcnt lgkmcnt(0)")
            pvmfma(i)
        A("s_branch L_pvdone\nL_pvall:")
    else:
        wait_flag(6, F_V, 20)
    if True:
        stamp(10)
        pvstep(0, 0); pvstep(1, 0)
        A("s_waitcnt lgkmcnt(4)"); pvmfma(0); pvstep(2, 0)
        A("s_waitcnt lgkmcnt(4)"); pvmfma(1); pvstep(3, 0)
        A("s_waitcnt lgkmcnt(4)"); pvmfma(2)
        A("s_waitcnt lgkmcnt(0)"); pvmfma(3)
        A("L_pvdone:\ns_nop 7")
    tag(range(12, 20))
    A(f"""s_mov_b64 exec, s[50:51]
    s_cmp_eq_u32 s57, 0
    s_cbranch_scc0 L_opslow
    buffer_store_dwordx4 v[12:15], v109, s[32:35], s38 offen offset:{B_OP}{pst}
    buffer_store_dwordx4 v[16:19], v109, s[32:35], s38 offen offset:{B_OP + 256}{pst}
    L_opdone:""")
    if hold: A(f"ds_write_b32 v101, v6 offset:{F_OPD}")
    A("s_mov_b64 exec, -1")
    stamp(11)
    def op_loads(r=24):
        for i in range(4): A(f"buffer_load_dwordx4 v[{r+4*i}:{r+3+4*i}], v113, s[32:35], s{44+i} offen offset:{B_OP} sc1")
    if opearly and not hold and not pre: op_loads()
    if order.index('w2') > iv: ffn2()
    if hold or pre:
        wait_flag(6, F_PRE, 22)
        if presl: A(f"s_sleep {presl}")
        op_loads()
    if not olate: wopre()
    else:
        assert not op2 and not hold and not pre
        if opsl: A(f"s_sleep {opsl}")
        if not opearly: op_loads()
    stamp(12)
    def alpha_wait(tagl):
        A("s_waitcnt lgkmcnt(0)")
        any_sent(range(40, 44), 22)
        A(f"s_cbranch_vccz L_alok{tagl}")
        l = lab("al")
        A(f"""{l}:
        ds_read_b128 v[40:43], v114
        s_waitcnt lgkmcnt(0)""")
        any_sent(range(40, 44), 22)
        loop_back(l)
        A(f"L_alok{tagl}:")
    def wsum(r):
        A(f"""v_pk_mul_f32 v[12:13], v[{r}:{r+1}], v[40:41] op_sel_hi:[1,0]
        v_pk_mul_f32 v[14:15], v[{r+2}:{r+3}], v[40:41] op_sel_hi:[1,0]
        v_pk_fma_f32 v[12:13], v[{r+4}:{r+5}], v[40:41], v[12:13] op_sel:[0,1,0] op_sel_hi:[1,1,1]
        v_pk_fma_f32 v[14:15], v[{r+6}:{r+7}], v[40:41], v[14:15] op_sel:[0,1,0] op_sel_hi:[1,1,1]
        v_pk_fma_f32 v[12:13], v[{r+8}:{r+9}], v[42:43], v[12:13] op_sel_hi:[1,0,1]
        v_pk_fma_f32 v[14:15], v[{r+10}:{r+11}], v[42:43], v[14:15] op_sel_hi:[1,0,1]
        v_pk_fma_f32 v[12:13], v[{r+12}:{r+13}], v[42:43], v[12:13] op_sel:[0,1,0] op_sel_hi:[1,1,1]
        v_pk_fma_f32 v[14:15], v[{r+14}:{r+15}], v[42:43], v[14:15] op_sel:[0,1,0] op_sel_hi:[1,1,1]""")
    if op2:
        A("L_opA:\nds_read_b128 v[40:43], v114\ns_waitcnt vmcnt(4)")
        bad_tag(range(24, 40), 88, 55, 123)
        A("s_cbranch_vccz L_opAok")
        op_loads(24)
        A("s_waitcnt vmcnt(4)")
        bad_tag(range(44, 60), 88, 55, 123)
        A("s_cbranch_vccz L_opBok")
        op_loads(44)
        A(f"""s_add_u32 s101, s101, 1
        s_cmp_lt_u32 s101, {SPIN}
        s_cbranch_scc1 L_opA
        L_opBok:""")
        stamp(13)
        alpha_wait("B"); wsum(44)
        A("s_branch L_opJ\nL_opAok:")
        stamp(13)
        alpha_wait("A"); wsum(24)
        A("L_opJ:")
    else:
        l = lab("og")
        A(f"s_branch L_ochk\n{l}:")
        op_loads()
        A("L_ochk:\nds_read_b128 v[40:43], v114\ns_waitcnt vmcnt(0)")
        bad_tag(range(24, 40), 88, 55, 123)
        if opmask:
            A(f"""s_cbranch_vccz L_opok
            s_mov_b64 exec, vcc
            L_opr:""")
            op_loads()
            A("s_waitcnt vmcnt(0)")
            bad_tag(range(24, 40), 88, 55, 123)
            A(f"""s_cbranch_vccz L_opdn
            s_mov_b64 exec, vcc
            s_add_u32 s101, s101, 1
            s_cmp_lt_u32 s101, {SPIN}
            s_cbranch_scc1 L_opr
            L_opdn:
            s_mov_b64 exec, -1
            ds_read_b128 v[40:43], v114
            L_opok:""")
        else:
            gloop_back(l)
        stamp(13)
        alpha_wait("A"); wsum(24)
    stamp(17)
    A("""v_permlane16_swap_b32 v12, v14
    v_permlane16_swap_b32 v13, v15
    v_pk_add_f32 v[12:13], v[12:13], v[14:15]
    v_mov_b32 v14, v12
    v_mov_b32 v15, v13
    v_permlane32_swap_b32 v14, v12
    v_permlane32_swap_b32 v15, v13
    v_pk_add_f32 v[12:13], v[12:13], v[14:15]
    v_cvt_pk_bf16_f32 v12, v12, v13
    v_min_u32 v12, s52, v12
    ds_write_b32 v115, v12""")
    l = lab("ol")
    A(f"{l}:")
    for kk in range(4): A(f"ds_read_b128 v[{76+4*kk}:{79+4*kk}], v116 offset:{64*kk}")
    A("s_waitcnt lgkmcnt(0)")
    any_sent(range(76, 92), 22)
    loop_back(l)
    if olate:
        stamp(18)
        wait_flag(6, F_WO, 22)
        trw(L_WO, 4, 60)
    for kk in range(4):
        if olate: A(f"s_waitcnt lgkmcnt({6 - 2*kk})")
        A(f"v_mfma_f32_16x16x32_bf16 v[8:11], v[{60+4*kk}:{63+4*kk}], v[{76+4*kk}:{79+4*kk}], v[8:11]")
    A("s_lshl_b32 s37, s28, 2\ns_cmp_eq_u32 s29, s37")
    tag(range(8, 12))
    A(f"""s_mov_b64 exec, s[48:49]
    s_cbranch_scc1 L_final
    buffer_store_dwordx4 v[8:11], v118, s[32:35], s68 offen sc1""")
    if stamps:
        A("s_mov_b64 exec, -1")
        stamp(14)
        A("s_branch L_cend")
    else: A("s_endpgm")
    A(f"""L_opslow:
    buffer_store_dwordx4 v[12:15], v109, s[32:35], s38 offen offset:{B_OP} sc1
    buffer_store_dwordx4 v[16:19], v109, s[32:35], s38 offen offset:{B_OP + 256} sc1
    s_branch L_opdone""")
    A(f"""L_final:
    buffer_store_dwordx4 v[8:11], v118, s[32:35], s68 offen
    s_mov_b64 exec, -1""")
    stamp(14)
    if fdelay: A(f"s_sleep {fdelay}")
    def fp_loads(r):
        for i in range(4):
            A(f"buffer_load_dwordx4 v[{r+4*i}:{r+3+4*i}], v99, s[32:35], s70 offen offset:{512*i} sc1")
    sets = [24, 44, 60][:fpsets]
    for r in sets: fp_loads(r)
    A("L_fp:")
    for k, r in enumerate(sets):
        A(f"s_waitcnt vmcnt({4*(len(sets)-1)})")
        bad_tag(range(r, r + 16), 76, 55, 123)
        A(f"s_cbranch_vccz L_fpok{k}")
        if fpmask and fpsets == 1: A("s_mov_b64 exec, vcc")
        if fsl: A(f"s_sleep {fsl}")
        fp_loads(r)
    A(f"""s_add_u32 s101, s101, 1
    s_cmp_lt_u32 s101, {SPIN}
    s_cbranch_scc1 L_fp""")
    for k, r in reversed(list(enumerate(sets))):
        A(f"L_fpok{k}:")
        if fpmask and fpsets == 1: A("s_mov_b64 exec, -1")
        stamp(16)
        A(f"""v_pk_add_f32 v[12:13], v[{r}:{r+1}], v[{r+4}:{r+5}]
        v_pk_add_f32 v[14:15], v[{r+2}:{r+3}], v[{r+6}:{r+7}]
        v_pk_add_f32 v[16:17], v[{r+8}:{r+9}], v[{r+12}:{r+13}]
        v_pk_add_f32 v[18:19], v[{r+10}:{r+11}], v[{r+14}:{r+15}]""")
        if k: A("s_branch L_fpj")
    A(f"""L_fpj:
    v_pk_add_f32 v[12:13], v[12:13], v[16:17]
    v_pk_add_f32 v[14:15], v[14:15], v[18:19]
    v_permlane32_swap_b32 v12, v14
    v_permlane32_swap_b32 v13, v15
    v_pk_add_f32 v[12:13], v[12:13], v[14:15]
    v_mov_b32 v14, v12
    v_mov_b32 v15, v13
    v_permlane16_swap_b32 v14, v12
    v_permlane16_swap_b32 v15, v13
    v_pk_add_f32 v[12:13], v[12:13], v[14:15]
    v_lshlrev_b32 v14, 16, v97
    v_and_b32 v15, s36, v97
    v_add_f32 v12, v12, v12 row_ror:8
    v_add_f32 v13, v13, v13 row_ror:8
    v_pk_add_f32 v[12:13], v[12:13], v[14:15]
    v_cvt_pk_bf16_f32 v12, v12, v13
    s_mov_b32 s40, 0xff
    s_mov_b32 s41, 0xff
    s_mov_b64 exec, s[40:41]
    global_store_dword v98, v12, s[22:23]{outst}
    s_or_b32 s37, s2, s30
    s_cbranch_scc1 L_cend
    v_mov_b32 v20, s54
    s_mov_b64 exec, 1
    global_store_dword v123, v20, s[26:27]{epsc}""")
    A("L_cend:")
    if stamps: A("s_mov_b64 exec, -1")
    stamp(15)
    if amp is not None:
        A(f"""s_cmp_eq_u32 s30, 0
        s_cbranch_scc0 L_end
        s_cmp_eq_u32 s2, {ampwg}
        s_cbranch_scc0 L_end
        v_readlane_b32 s37, v{VST}, {amp}
        s_nop 4
        s_sub_u32 s37, s37, s94
        s_mul_i32 s37, s37, 10
        s_add_u32 s37, s37, s98
        L_ampl:
        s_memrealtime s[40:41]
        s_waitcnt lgkmcnt(0)
        s_sub_u32 s40, s40, s37
        s_cmp_lt_i32 s40, 0
        s_cbranch_scc1 L_ampl""")
    dump_stamps()
    A("L_end:\ns_endpgm")
    A(f""".section .rodata,"a"
    .p2align 6
    .amdhsa_kernel {NAME}
    .amdhsa_next_free_vgpr 160
    .amdhsa_next_free_sgpr 102
    .amdhsa_accum_offset 160
    .amdhsa_group_segment_fixed_size 0
    .amdhsa_kernarg_size 96
    .amdhsa_user_sgpr_count 2
    .amdhsa_user_sgpr_kernarg_segment_ptr 1
    .amdhsa_system_sgpr_workgroup_id_x 1
    .amdhsa_float_denorm_mode_32 3
    .end_amdhsa_kernel""")
    return A.finish()

if __name__ == "__main__":
    out = sys.argv[1] if len(sys.argv) > 1 else "k.s"
    kw = {}
    for a in sys.argv[2:]:
        if '=' in a:
            k, v = a.split('=', 1); kw[k] = eval(v)
        else: kw[a] = True
    open(out, "w").write(gen(**kw))
```

```python
import sys
from asmlib import Asm

NAME = "parallel_sum__sliding_block_cached__dense_activation_mish__decode_kernel"

L_K, L_V, L_WQ, L_WO, L_W1, L_W2 = 0x0, 0x8000, 0x10000, 0x14000, 0x18000, 0x1A000
L_S = 0x1C000
L_Q, L_P, L_O, L_ML, L_FLG, L_AL = L_S, L_S + 0x500, L_S + 0x900, L_S + 0xB40, L_S + 0xC00, L_S + 0xD00
L_XN, L_ACT, L_XR = 0x1D000, 0x1D900, 0x1DA00
LDS_BYTES = 0x1E200
QSTR, XSTR, OSTR = 272, 1040, 272
F_WQ, F_W1, F_K, F_V, F_WO, F_W2, F_QA, F_QB, F_ACT, F_X, F_MODE, F_V0, F_V1, F_V2, F_XN, F_PRE = [4 * i for i in range(16)]
F_OPD = 64
W_BLK = 0x10000
B_QP, B_HP, B_OP, B_ML, B_ID = 0, 512, 1024, 3072, 3200
W_FP = 0x100000
W_B = 0x200000
SPIN = 1 << 18
IDTRY = 48

def gen(depth=22, stamps=False, safe=False, amp=None, ampwg=0, order=('wq', 'w1', 'k', 'v', 'w2', 'wo'),
        qa=34, qb=44, hpt=None, pref=True, header="", warmfp=True, fdelay=0, loaderonly=False, vsplit=True,
        forcemode=None, mlt='k', nobeacon=False, noB=False, fullml=True, fullid=True, prof=False, dsched=None, kph='A', wph='A', ntw=' nt', ntkv=' nt', sa=4, sb=12, touchout=False, fpsets=1, op2=False, epsc='', b1early=True, idt='x', qsets=3, hs=12, opmask=False, fpmask=False, opearly=False, hold=0, presl=0, early=False, free=(18, 26, 20, 28), mlpipe=0, mlsl=3, prew=0, pre=0, olate=False, opsl=0, xdirty=0, fsl=0, pst='', outst='', mlpre=0, touch=0, tfl='', tlate=False, wfl='', lamp=False, deep=None, t0=95, slope=3.35, margin=25, chk=(18, 26, 34, 42, 50, 58, 66, 74, 82)):
    A = Asm()
    uid = [0]
    def lab(p):
        uid[0] += 1
        return f"L_{p}{uid[0]}"
    VST = 127
    def stamp(k):
        if stamps:
            A(f"s_memrealtime s[98:99]\ns_waitcnt lgkmcnt(0)\nv_writelane_b32 v{VST}, s98, {k}")
    def stamp0():
        if stamps: A(f"v_writelane_b32 v{VST}, s94, 0")
    def dump_stamps():
        if stamps and amp is None:
            A(f"""s_lshl_b32 s96, s2, 3
            s_add_u32 s96, s96, s3
            s_lshl_b32 s96, s96, 7
            s_add_u32 s96, s96, 0x8000000
            s_add_u32 s96, s26, s96
            s_addc_u32 s97, s27, 0
            s_mov_b32 exec_lo, -1
            s_mov_b32 exec_hi, 0
            v_mbcnt_lo_u32_b32 v126, -1, 0
            v_lshlrev_b32 v126, 2, v126
            global_store_dword v126, v{VST}, s[96:97]""")
    def loop_back(l):
        if safe:
            o = lab("out")
            A(f"""s_add_u32 s100, s100, 1
            s_bitcmp1_b32 s100, 21
            s_cbranch_scc1 {o}
            s_cbranch_vccnz {l}
            {o}:""")
        else:
            A(f"s_cbranch_vccnz {l}")
    def gloop_back(l, sleep=0):
        o = lab("ok")
        A(f"s_cbranch_vccz {o}")
        if sleep: A(f"s_sleep {sleep}")
        A(f"""s_add_u32 s101, s101, 1
        s_cmp_lt_u32 s101, {SPIN}
        s_cbranch_scc1 {l}
        {o}:""")
    def wait_flag(vaddr, off, vt):
        l = lab("wf")
        A(f"""{l}:
        ds_read_b32 v{vt}, v{vaddr} offset:{off}
        s_waitcnt lgkmcnt(0)
        v_cmp_eq_u32 vcc, -1, v{vt}""")
        loop_back(l)
    def set_flag(vaddr, off, vdata):
        A(f"""s_mov_b64 exec, 1
        ds_write_b32 v{vaddr}, v{vdata} offset:{off}
        s_mov_b64 exec, -1""")
    def any_sent(regs, vt):
        regs = list(regs)
        A(f"v_max3_u32 v{vt}, v{regs[0]}, v{regs[1]}, v{regs[2] if len(regs) > 2 else regs[1]}")
        rest = regs[3:]
        while rest:
            a = rest[0]; b = rest[1] if len(rest) > 1 else rest[0]
            A(f"v_max3_u32 v{vt}, v{vt}, v{a}, v{b}")
            rest = rest[2:]
        A(f"v_cmp_eq_u32 vcc, -1, v{vt}")
    def bad_tag(regs, t0, sT, vzero):
        regs = list(regs); n = len(regs) // 2
        for i in range(n):
            if isinstance(sT, list):
                a, b, t = sT[i]
                A(f"v_bitop3_b32 v{t0+i}, v{a}, v{b}, {t} bitop3:0x7e")
            else:
                g, r = i // 4, i % 4
                A(f"v_bitop3_b32 v{t0+i}, v{regs[8*g+r]}, v{regs[8*g+4+r]}, s{72+r} bitop3:0x7e")
        cur = [t0 + i for i in range(n)]
        while len(cur) > 1:
            if len(cur) >= 3:
                A(f"v_or3_b32 v{cur[0]}, v{cur[0]}, v{cur[1]}, v{cur[2]}"); cur = cur[3:] + [cur[0]]
            else:
                A(f"v_or_b32 v{cur[0]}, v{cur[0]}, v{cur[1]}"); cur = [cur[0]]
        A(f"v_cmp_ne_u32_sdwa vcc, v{cur[0]}, v{vzero} src0_sel:BYTE_0 src1_sel:DWORD")
    def mktags(se, lanebit):
        A(f"""s_mov_b32 s72, s{se}
        s_lshr_b32 s73, s{se}, 8
        s_lshr_b32 s74, s{se}, 16
        s_lshr_b32 s75, s{se}, 24
        v_mov_b32 v156, 0xff
        v_and_b32 v152, s72, v156
        v_and_b32 v153, s73, v156
        v_and_b32 v154, s74, v156
        v_and_b32 v155, s75, v156
        v_and_b32 v157, 1, v0
        v_cmp_eq_u32 vcc, 0, v157
        v_cndmask_b32 v156, v154, v152, vcc
        v_cndmask_b32 v157, v155, v153, vcc""")
    def rgmap(r, t):
        if tuple(free) == (28, 29, 30, 31): return
        mask = 0xffffffff
        for f in free: mask &= ~(1 << f)
        A(f"""s_bfm_b32 s{t}, s{r}, 0
        s_and_b32 s{t}, s{t}, {mask}
        s_bcnt1_i32_b32 s{t}, s{t}
        s_bitcmp1_b32 {mask}, s{r}
        s_cselect_b32 s{r}, s{t}, 28""")
    def bf16r(d, s):
        A(f"v_cvt_pk_bf16_f32 v{d}, v{s}, v{s}\nv_lshlrev_b32 v{d}, 16, v{d}")
    def ws_srd(d):
        A(f"""s_add_u32 s{d}, s26, {W_BLK}
        s_addc_u32 s{d+1}, s27, 0
        s_mov_b32 s{d+2}, 0x300000
        s_mov_b32 s{d+3}, 0x00020000""")
    def allred(v, t, op):
        A(f"""v_mov_b32 v{t}, v{v}
        v_permlane32_swap_b32 v{t}, v{v}
        {op} v{v}, v{v}, v{t}
        v_mov_b32 v{t}, v{v}
        v_permlane16_swap_b32 v{t}, v{v}
        {op} v{v}, v{v}, v{t}""")

    def allred2(v, t, w, u, op):
        for sw in ("v_permlane32_swap_b32", "v_permlane16_swap_b32"):
            A(f"""v_mov_b32 v{t}, v{v}
            v_mov_b32 v{u}, v{w}
            {sw} v{t}, v{v}
            {sw} v{u}, v{w}
            {op} v{v}, v{v}, v{t}
            {op} v{w}, v{w}, v{u}""")
    A(header)
    A(f"; @launch grid=(256,1,1) block=(384,1,1) lds={LDS_BYTES}")
    A(f""".amdgcn_target "amdgcn-amd-amdhsa--gfx950"
    .text
    .globl {NAME}
    .p2align 8
    .type {NAME},@function
    {NAME}:""")
    if early: A("s_memrealtime s[92:93]")
    A(f"""s_load_dwordx16 s[4:19], s[0:1], 0
    s_load_dwordx8 s[20:27], s[0:1], 64
    s_getpc_b64 s[30:31]
    L_pc:
    s_cmpk_ge_u32 s2, 256
    s_cbranch_scc1 L_end
    v_xor_b32 v2, 0x140, v0
    v_readfirstlane_b32 s3, v0
    v_lshlrev_b32 v2, 7, v2
    v_min_u32 v2, L_end-L_pc, v2
    global_load_dword v125, v2, s[30:31]""")
    if stamps or lamp: A("s_memrealtime s[94:95]")
    A(f"""s_cmp_eq_u32 s3, 0
    s_cbranch_scc0 L_notloader
    v_lshrrev_b32 v2, 3, v0
    v_and_b32 v9, 6, v2
    v_xor_b32 v9, v9, v0
    v_and_b32 v9, 7, v9
    v_lshlrev_b32 v9, 4, v9
    v_lshrrev_b32 v4, 5, v0
    v_and_b32 v5, 3, v2
    v_lshl_add_u32 v6, v4, 3, v5
    v_lshl_add_u32 v10, v6, 13, v9
    v_add_u32 v11, 31744, v10
    v_lshlrev_b32 v21, 4, v0
    s_mov_b32 s34, -1
    s_mov_b32 s35, 0x00020000
    s_movk_i32 s60, 0x800
    s_and_b32 s28, s2, 7
    s_lshr_b32 s29, s2, 3
    s_lshr_b32 s57, s2, 6
    s_lshl_b32 s57, s57, 10
    s_or_b32 s57, s57, s28
    s_lshl_b32 s57, s57, 3
    s_and_b32 s58, s29, 7
    s_or_b32 s57, s57, s58
    s_lshl_b32 s57, s57, 7
    s_lshl_b32 s59, s60, 6
    s_mov_b32 m0, {L_XR}
    {'s_memrealtime s[76:77]' if early else ''}
    s_waitcnt lgkmcnt(0)
    {'s_memrealtime s[78:79]' if early else ''}
    global_load_lds_dwordx4 v21, s[4:5]
    global_load_lds_dwordx4 v21, s[4:5] offset:1024
    s_lshl_b32 m0, s60, 5
    s_mov_b64 s[32:33], s[10:11]
    L_wq:
    buffer_load_dwordx4 v10, s[32:35], s57 offen nt lds
    buffer_load_dwordx4 v11, s[32:35], s57 offen offset:1024 nt lds
    s_add_u32 m0, m0, s60
    s_add_u32 s57, s57, s59
    s_bitcmp0_b32 m0, 14
    s_cbranch_scc1 L_wq""")
    A("L_after256:")
    if early: A("s_memrealtime s[82:83]\ns_mov_b32 s80, s82")
    if stamps: A(f"v_mov_b32 v{VST}, 0")
    A("""s_setprio 3
    s_and_b32 s61, s29, 3
    s_lshl_b32 s62, s61, 3
    s_add_u32 s62, s62, s28
    s_lshr_b32 s63, s29, 2""")
    rgmap(62, 58)
    if deep: A("s_memrealtime s[72:73]")
    assert order[0] == 'wq' and L_WQ == 0x10000
    info = dict(wq=(8, 32, 10, L_WQ, F_WQ), w1=(4, 36, 12, L_W1, F_W1), k=(16, 40, 14, L_K, F_K), v=(16, 44, 14, L_V, F_V),
                wo=(8, 48, 16, L_WO, F_WO), w2=(4, 52, 18, L_W2, F_W2))
    flag_at = {2: [F_X]}
    cum = 2
    for m in order:
        if m == 'v' and vsplit:
            for i, f in enumerate((F_V0, F_V1, F_V2)): flag_at.setdefault(cum + 8 * (i + 1), []).append(f)
        cum += 2 * info[m][0]
        flag_at.setdefault(cum, []).append(info[m][4])
    def kphase():
        if kph == 'A': A("s_and_b32 s67, s29, 15")
        elif kph == 'B': A("s_lshl_b32 s67, s28, 1\ns_lshr_b32 s59, s29, 4\ns_add_u32 s67, s67, s59")
        elif kph == 'C': A("s_lshl_b32 s67, s28, 1\ns_lshr_b32 s59, s29, 4\ns_add_u32 s67, s67, s59\ns_and_b32 s59, s29, 8\ns_add_u32 s67, s67, s59\ns_and_b32 s67, s67, 15")
        elif kph == 'D': A("s_lshl_b32 s67, s28, 1\ns_add_u32 s67, s67, s29\ns_and_b32 s67, s67, 15")
        elif kph == 'E': A("s_lshl_b32 s67, s28, 1\ns_lshr_b32 s59, s29, 2\ns_add_u32 s67, s67, s59\ns_and_b32 s67, s67, 15")
        elif kph == 'F': A("s_mul_i32 s67, s29, 5\ns_mul_i32 s59, s28, 3\ns_add_u32 s67, s67, s59\ns_and_b32 s67, s67, 15")
        elif kph == 'G': A("s_and_b32 s67, s29, 7\ns_lshl_b32 s67, s67, 1")
        elif kph == 'Z': A("s_mov_b32 s67, 0")
    def setup(m):
        if m == 'wq': return
        if m == 'w1':
            A("""v_mul_u32_u24 v12, 3584, v6
            v_add_u32 v12, v12, v9
            v_add_u32 v13, 13312, v12
            s_mov_b32 s36, s16
            s_mov_b32 s37, s17
            s_cmp_lt_u32 s62, 28
            s_cselect_b32 s38, 1835008, 0
            s_mov_b32 s39, 0x00020000
            s_mul_i32 s57, s63, 229376
            s_lshl_b32 s58, s62, 7
            s_add_u32 s57, s57, s58
            s_lshl_b32 s56, s61, 11""")
        elif m == 'k':
            A(f"""v_lshrrev_b32 v7, 4, v0
            v_lshlrev_b32 v8, 1, v7
            v_xor_b32 v8, v8, v0
            v_and_b32 v8, 15, v8
            v_lshlrev_b32 v8, 4, v8
            v_lshl_add_u32 v14, v7, 8, v8
            v_xor_b32 v15, 128, v14
            s_mov_b32 s40, s6
            s_mov_b32 s41, s7
            s_mov_b32 s42, 33554432
            s_mov_b32 s43, 0x00020000
            s_lshr_b32 s64, s29, 4
            s_lshl_b32 s64, s64, 3
            s_add_u32 s64, s64, s28
            s_lshl_b32 s64, s64, 21
            s_and_b32 s58, s29, 15
            s_lshl_b32 s58, s58, 15
            s_add_u32 s64, s64, s58
            s_add_u32 s64, s64, 1572864""")
            kphase()
            A("s_lshl_b32 s56, s67, 11")
        elif m == 'v':
            A(f"""s_mov_b32 s44, s8
            s_mov_b32 s45, s9
            s_mov_b32 s46, 33554432
            s_mov_b32 s47, 0x00020000""")
            if vsplit:
                A("""s_lshl_b32 s65, s61, 13
                s_and_b32 s66, s63, 3
                s_lshl_b32 s66, s66, 11
                s_or_b32 s56, s65, s66""")
            else:
                A("s_lshl_b32 s56, s67, 11")
        elif m == 'wo':
            A("""v_lshl_add_u32 v7, v4, 7, v5
            v_lshl_add_u32 v16, v7, 10, v9
            v_add_u32 v17, 15360, v16
            s_mov_b32 s48, s12
            s_mov_b32 s49, s13
            s_mov_b32 s50, 4194304
            s_mov_b32 s51, 0x00020000
            s_lshl_b32 s57, s28, 19
            s_lshl_b32 s58, s61, 15
            s_add_u32 s57, s57, s58
            s_lshl_b32 s58, s63, 7
            s_add_u32 s57, s57, s58""")
            A(dict(A="s_and_b32 s56, s29, 7\ns_lshl_b32 s56, s56, 11", Z="s_mov_b32 s56, 0", X="s_lshl_b32 s56, s28, 11", P="s_lshl_b32 s56, s28, 11")[wph])
        elif m == 'w2':
            A("""v_lshl_add_u32 v18, v6, 10, v9
            v_add_u32 v19, 3072, v18
            s_mov_b32 s52, s20
            s_mov_b32 s53, s21
            s_cmp_lt_u32 s62, 28
            s_cselect_b32 s54, 1835008, 0
            s_mov_b32 s55, 0x00020000
            s_lshl_b32 s57, s62, 16
            s_lshl_b32 s58, s63, 7
            s_add_u32 s57, s57, s58
            s_lshl_b32 s56, s61, 11""")
    total = cum
    if hold or pre: flag_at.setdefault(total - (hold or pre), []).append(F_PRE)
    if mlpre: flag_at.setdefault(total - mlpre, []).append(F_QA)
    stn = {F_PRE: 10, F_WQ: 3, F_W1: 4, F_K: 5, F_V: 6, F_WO: 7, F_QA: 2, F_X: 8, F_W2: 9}
    def stream(depth, variant):
        issued = 2
        done_barrier = variant != 0
        flagged = set()
        live = variant == 0
        pending = False
        def landed(n):
            for c in sorted(flag_at):
                if c <= n and c not in flagged:
                    flagged.add(c)
                    if not live: continue
                    A("s_mov_b64 exec, 1")
                    for f in flag_at[c]: A(f"ds_write_b32 v20, v20 offset:{f}")
                    A("s_mov_b64 exec, -1")
                    for f in flag_at[c]:
                        if f in stn: stamp(stn[f])
        for m in order:
            npair, srd, vo, lbase, _ = info[m]
            if m == 'wq':
                issued += 16
                continue
            if live: setup(m)
            for p in range(npair):
                d = depth
                if dsched and variant == 0:
                    for (frm, dd) in dsched:
                        if issued >= frm: d = dd
                if variant == 1 and (issued - (depth0 - 2)) in chk:
                    live = True
                    A(f"L_deep{issued}:")
                if hold and issued >= total - hold:
                    if issued == total - hold and live:
                        cv = [c for c in flag_at if F_V in flag_at[c]][0]
                        for c in sorted(flag_at):
                            if c <= cv and c not in flagged:
                                A(f"s_waitcnt vmcnt({issued - c})")
                                landed(c)
                        l = lab("hold")
                        A(f"""{l}:
                        ds_read_b128 v[24:27], v20 offset:{F_OPD}
                        s_waitcnt lgkmcnt(0)
                        v_max3_u32 v24, v24, v25, v26
                        v_max_u32 v24, v24, v27
                        v_cmp_eq_u32 vcc, -1, v24
                        s_cbranch_vccnz {l}""")
                elif issued + 2 > d:
                    if not done_barrier:
                        A(f"v_mov_b32 v20, {L_FLG}\ns_barrier")
                        stamp(1)
                        done_barrier = True
                    if live: A(f"s_waitcnt vmcnt({d - 2})")
                    landed(issued - (d - 2))
                    if prof and live and (issued - (d - 2)) % 8 == 2: stamp(11 + (issued - (d - 2)) // 8)
                    if variant == 0 and deep:
                        n = issued - (d - 2)
                        if n in chk:
                            thr = int(t0 + slope * (n - 2) + margin)
                            A(f"""s_memrealtime s[70:71]
                            s_waitcnt lgkmcnt(0)
                            s_sub_u32 s70, s70, s72
                            s_cmp_gt_u32 s70, {thr}
                            s_cbranch_scc1 L_deep{issued}""")
                if live:
                    A(f"s_add_u32 m0, s56, {lbase}" if lbase else "s_mov_b32 m0, s56")
                    if m == 'wq': A("s_lshl_b32 s58, s56, 6\ns_add_u32 s58, s58, s57")
                    elif m == 'w1': A("s_mul_i32 s58, s56, 28\ns_add_u32 s58, s58, s57")
                    elif m == 'w2': A("s_lshl_b32 s58, s56, 3\ns_add_u32 s58, s58, s57")
                    elif m == 'wo': A("s_and_b32 s58, s56, s60\ns_lshl_b32 s58, s58, 7\ns_and_b32 s59, s56, 0x3000\ns_add_u32 s58, s58, s59\ns_add_u32 s58, s58, s57")
                    else: A("s_add_u32 s58, s56, s64")
                    fl = ntkv if m in ('k', 'v') else ntw
                    A(f"buffer_load_dwordx4 v{vo}, s[{srd}:{srd+3}], s58 offen{fl} lds")
                    A(f"buffer_load_dwordx4 v{vo+1}, s[{srd}:{srd+3}], s58 offen offset:1024{fl} lds")
                issued += 2
                if p != npair - 1 and live:
                    if m == 'v' and vsplit:
                        A("s_add_u32 s66, s66, s60\ns_and_b32 s66, s66, 0x1fff")
                        if p % 4 == 3: A("s_add_u32 s65, s65, 0x2000\ns_and_b32 s65, s65, 0x7fff")
                        A("s_or_b32 s56, s65, s66")
                    else:
                        A(f"s_add_u32 s56, s56, s60\ns_and_b32 s56, s56, {npair * 2048 - 1}")
        pts = set(c for c in flag_at if c not in flagged)
        if prof: pts |= set(c for c in range(issued - depth + 4, issued + 1) if c % 8 == 2)
        for c in sorted(pts):
            A(f"s_waitcnt vmcnt({issued - c})")
            landed(c)
            if prof and c % 8 == 2: stamp(11 + c // 8)
        if early:
            for k, r in ((11, 76), (12, 78), (13, 80), (14, 82), (15, 92)): A(f"v_writelane_b32 v{VST}, s{r}, {k}")
        if stamps: A(f"s_mov_b32 s98, {variant + 1}\nv_writelane_b32 v{VST}, s98, 31")
        stamp0()
        dump_stamps()
        A("s_endpgm")
    depth0 = depth
    stream(depth, 0)
    if deep: stream(deep, 1)

    A("L_notloader:")
    A("""s_lshr_b32 s3, s3, 6
    v_and_b32 v0, 63, v0
    s_and_b32 s28, s2, 7
    s_lshr_b32 s29, s2, 3""")
    if stamps: A(f"v_mov_b32 v{VST}, 0")
    if loaderonly: A("s_barrier\ns_endpgm")
    A("s_cmp_eq_u32 s3, 1\ns_cbranch_scc0 L_compute")
    A(f"""s_and_b32 s61, s29, 3
    s_lshl_b32 s62, s61, 3
    s_add_u32 s62, s62, s28""")
    rgmap(62, 63)
    A(f"""v_and_b32 v11, 7, v0
    v_lshlrev_b32 v11, 2, v11
    v_lshrrev_b32 v12, 5, v0
    v_lshl_add_u32 v11, v12, 1, v11
    v_bfe_u32 v12, v0, 4, 1
    v_add_u32 v11, v11, v12
    v_bfe_u32 v12, v0, 3, 1
    v_lshl_add_u32 v11, v12, 5, v11
    s_min_u32 s63, s62, 27
    s_lshl_b32 s63, s63, 6
    v_add_u32 v13, s63, v11
    v_lshlrev_b32 v13, 1, v13
    v_mov_b32 v20, {L_FLG}
    v_mov_b32 v40, 0
    v_mov_b32 v41, 0
    v_mov_b32 v19, 0
    s_mov_b32 s100, 0
    s_mov_b32 s101, 0
    s_getreg_b32 s64, hwreg(HW_REG_XCC_ID)
    s_lshl_b32 s65, s28, 17
    s_lshl_b32 s66, s29, 12
    s_add_u32 s66, s66, s65
    v_and_b32 v21, 31, v0
    v_lshlrev_b32 v21, 12, v21
    s_waitcnt lgkmcnt(0)
    s_load_dword s5, s[26:27], 0""")
    if b1early: A("global_load_ushort v14, v13, s[18:19]")
    ws_srd(8)
    def dotouch():
        A(f"""v_lshlrev_b32 v25, 7, v0
        s_mov_b32 exec_lo, {touch}
        s_mov_b32 exec_hi, 0
        buffer_load_dword v124, v25, s[8:11], s66 offen{tfl}
        s_mov_b64 exec, -1""")
    if touch and not tlate: dotouch()
    A(f"""s_barrier
    s_and_b32 s64, s64, 15
    s_waitcnt lgkmcnt(0)
    s_add_u32 s5, s5, 1
    s_lshl_b32 s6, s5, 4
    s_or_b32 s6, s6, s64
    v_mov_b32 v22, s6
    v_lshlrev_b32 v24, 2, v0
    s_mov_b32 exec_lo, {0 if nobeacon else (-1 if fullid else 1)}
    s_mov_b32 exec_hi, 0
    buffer_store_dword v22, v24, s[8:11], s66 offen offset:{B_ID}
    s_mov_b64 exec, -1""")
    if prew:
        A("""s_not_b32 s34, s5
        v_mov_b32 v28, s34
        v_mov_b32 v29, s34
        v_mov_b32 v30, s34
        v_mov_b32 v31, s34
        v_lshlrev_b32 v25, 4, v0""")
        for o in ([0] if prew & 1 else []) + ([1024, 2048] if prew & 2 else []):
            A(f"buffer_store_dwordx4 v[28:31], v25, s[8:11], s66 offen offset:{o}")
        if prew & 4: A(f"s_mov_b64 exec, 0xff\nbuffer_store_dwordx4 v[28:31], v25, s[8:11], s66 offen offset:{B_ML}\ns_mov_b64 exec, -1")
    if xdirty:
        A(f"v_lshlrev_b32 v25, 4, v0\ns_xor_b32 s34, s66, {W_B}")
        for o in range(xdirty): A(f"buffer_store_dwordx4 v[28:31], v25, s[8:11], s34 offen offset:{1024*o}")
    if not b1early: A("global_load_ushort v14, v13, s[18:19]")
    stamp0()
    A(f"""v_lshrrev_b32 v5, 4, v0
    v_and_b32 v4, 15, v0
    v_bfe_u32 v60, v0, 2, 2
    v_and_b32 v17, 1, v5
    v_lshl_add_u32 v60, v17, 2, v60
    v_bfe_u32 v18, v0, 1, 1
    v_and_b32 v61, 6, v60
    v_xor_b32 v18, v18, v61
    v_lshlrev_b32 v18, 4, v18
    v_and_b32 v61, 1, v0
    v_lshl_add_u32 v18, v61, 3, v18
    v_lshrrev_b32 v17, 5, v0
    v_lshl_add_u32 v17, v17, 4, v60
    v_lshl_add_u32 v62, v17, 7, v18
    v_add_u32 v62, {L_W1}, v62
    v_xor_b32 v63, 32, v62
    v_xor_b32 v64, 64, v62
    v_xor_b32 v65, 96, v62
    v_mul_u32_u24 v18, {XSTR}, v61
    v_lshl_add_u32 v18, v5, 4, v18
    s_lshr_b32 s37, s29, 2
    s_lshl_b32 s37, s37, 7
    s_add_u32 s37, s37, {L_XN}
    v_add_u32 v66, s37, v18
    v_lshlrev_b32 v67, 8, v4
    v_lshl_add_u32 v67, v5, 4, v67
    s_movk_i32 s53, 0xff00
    s_mov_b32 s48, 0x00030003
    s_mov_b32 s49, 0x00030003""")
    mktags(5, 0)
    for r in range(104, 120): A(f"v_mov_b32 v{r}, 0")
    wait_flag(20, F_XN, 18)
    if not nobeacon: A(f"buffer_load_dword v23, v21, s[8:11], s65 offen offset:{B_ID} sc1")
    A("ds_read_b128 v[24:27], v66\nds_read_b128 v[28:31], v66 offset:64")
    wait_flag(20, F_W1, 18)
    for t in range(4):
        for kk in range(2):
            for u in range(2):
                r = 72 + 8 * t + 4 * kk + 2 * u
                A(f"ds_read_b64_tr_b16 v[{r}:{r+1}], v{62+t} offset:{kk*4096 + u*1024}")
    for t in range(4):
        A(f"s_waitcnt lgkmcnt({12 - 4*t})")
        for kk in range(2):
            r = 72 + 8 * t + 4 * kk
            A(f"v_mfma_f32_16x16x32_bf16 v[{104+4*t}:{107+4*t}], v[{r}:{r+3}], v[{24+4*kk}:{27+4*kk}], v[{104+4*t}:{107+4*t}]")
    for r in range(104, 120): A(f"v_and_or_b32 v{r}, v{r}, s53, v{152 + r % 4}")
    A("s_mov_b64 exec, s[48:49]")
    for t in range(4): A(f"buffer_store_dwordx4 v[{104+4*t}:{107+4*t}], v67, s[8:11], s66 offen offset:{B_HP + 64*t}{pst}")
    A("s_mov_b64 exec, -1\ns_mov_b32 s7, 0")
    stamp(6)
    if nobeacon: A("s_branch L_idok")
    l = lab("id")
    A(f"""s_waitcnt vmcnt(4)
    s_branch L_idchk
    {l}:
    buffer_load_dword v23, v21, s[8:11], s65 offen offset:{B_ID} sc1
    s_waitcnt vmcnt(0)
    L_idchk:
    v_cmp_ne_u32 vcc, s6, v23
    s_cbranch_vccz L_idok
    s_add_u32 s7, s7, 1
    s_cmp_lt_u32 s7, {IDTRY}
    s_cbranch_scc1 {l}
    L_idok:
    s_cmp_eq_u32 s7, {IDTRY}
    s_cselect_b32 s7, 1, 0""")
    if forcemode is not None: A(f"s_mov_b32 s7, {forcemode}")
    A("v_mov_b32 v23, s7")
    set_flag(20, F_MODE, 23)
    if touch and tlate: dotouch()
    stamp(1)
    A(f"""s_cmp_eq_u32 s7, 0
    s_cbranch_scc1 L_hpfast
    s_xor_b32 s37, s66, {W_B}
    s_mov_b64 exec, s[48:49]""")
    for t in range(4): A(f"buffer_store_dwordx4 v[{104+4*t}:{107+4*t}], v67, s[8:11], s37 offen offset:{B_HP + 64*t} sc1")
    A("s_mov_b64 exec, -1\nL_hpfast:")
    A(f"""s_cmp_lt_u32 s62, 28
    s_cbranch_scc0 L_actw
    v_lshrrev_b32 v16, 3, v0
    v_lshlrev_b32 v16, 14, v16
    v_and_b32 v17, 7, v0
    v_lshl_add_u32 v16, v17, 4, v16
    s_lshl_b32 s31, s61, 12
    s_add_u32 s31, s31, s65""")
    if hpt: wait_flag(20, {'k': F_K}[hpt], 18)
    elif hs: A(f"s_sleep {hs}")
    l = lab("hp")
    A(f"s_lshl_b32 s7, s7, 21\n{l}:\ns_xor_b32 s31, s31, s7")
    for i in range(4):
        b, half = i & 1, i >> 1
        A(f"buffer_load_dwordx4 v[{24+4*i}:{27+4*i}], v16, s[8:11], s31 offen offset:{B_HP + b*256 + half*128} sc1")
    A("s_waitcnt vmcnt(0)")
    bad_tag(range(24, 40), 44, 5, 19)
    gloop_back(l, sleep=4)
    stamp(2)
    for i in range(4):
        r = 24 + 4 * i
        A(f"""v_permlane32_swap_b32 v{r}, v{r+2}
        v_permlane32_swap_b32 v{r+1}, v{r+3}
        v_add_f32 v{r}, v{r}, v{r+2}
        v_add_f32 v{r+1}, v{r+1}, v{r+3}""")
    for i in range(4):
        r = 24 + 4 * i
        A(f"v_permlane16_swap_b32 v{r}, v{r+1}\nv_add_f32 v{r}, v{r}, v{r+1}")
    for i in range(4):
        r = 24 + 4 * i
        A(f"v_add_f32 v{r}, v{r}, v{r} row_ror:8")
    A("""v_and_b32 v18, 8, v0
    v_cmp_eq_u32 vcc, 0, v18
    v_cndmask_b32 v40, v32, v24, vcc
    v_cndmask_b32 v41, v36, v28, vcc
    v_lshlrev_b32 v14, 16, v14
    s_mov_b32 s32, 0x3fb8aa3b
    s_mov_b32 s33, 0x3f317218""")
    for h in (40, 41):
        t = 44
        bf16r(h, h)
        A(f"v_add_f32 v{h}, v{h}, v14")
        bf16r(h, h)
        A(f"v_mul_f32 v{t}, s32, v{h}\nv_exp_f32 v{t}, -abs(v{t})")
        bf16r(t, t)
        A(f"""v_add_f32 v{t+1}, 1.0, v{t}
        v_log_f32 v{t+2}, v{t+1}
        v_add_f32 v{t+3}, -1.0, v{t+1}
        v_rcp_f32 v{t+3}, v{t+3}
        v_mul_f32 v{t+2}, s33, v{t+2}
        v_mul_f32 v{t+2}, v{t+2}, v{t}
        v_mul_f32 v{t+2}, v{t+2}, v{t+3}
        v_cmp_eq_f32 vcc, 1.0, v{t+1}
        v_cndmask_b32 v{t+2}, v{t+2}, v{t}, vcc""")
        bf16r(t+2, t+2)
        A(f"v_max_f32 v{t+1}, 0, v{h}\nv_add_f32 v{t+2}, v{t+2}, v{t+1}")
        bf16r(t+2, t+2)
        A(f"""v_mul_f32 v{t}, -2.0, v{t+2}
        v_mul_f32 v{t+1}, s32, v{t}
        v_exp_f32 v{t+1}, v{t+1}
        v_log_f32 v{t+3}, v{t+1}
        v_add_f32 v{t+4}, -1.0, v{t+1}
        v_mul_f32 v{t+3}, s33, v{t+3}
        v_rcp_f32 v{t+3}, v{t+3}
        v_mul_f32 v{t+5}, v{t+4}, v{t}
        v_mul_f32 v{t+5}, v{t+5}, v{t+3}
        v_cmp_eq_f32 vcc, 1.0, v{t+1}
        v_cndmask_b32 v{t+5}, v{t+5}, v{t}, vcc
        v_cmp_gt_f32 vcc, 0.5, v{t+1}
        v_cndmask_b32 v{t+5}, v{t+5}, v{t+4}, vcc
        v_add_f32 v{t+4}, 2.0, v{t+5}
        v_rcp_f32 v{t+4}, v{t+4}
        v_mul_f32 v{t+5}, v{t+5}, v{t+4}
        v_sub_f32 v{t+5}, 0, v{t+5}""")
        bf16r(t+5, t+5)
        A(f"v_mul_f32 v{h}, v{h}, v{t+5}\nv_cvt_pk_bf16_f32 v{h}, v{h}, v{h}")
    A(f"""L_actw:
    v_lshlrev_b32 v11, 1, v11
    v_add_u32 v11, {L_ACT}, v11
    ds_write_b16 v11, v40
    ds_write_b16 v11, v41 offset:128""")
    set_flag(20, F_ACT, 20)
    stamp(3)
    A(f"""v_lshrrev_b32 v16, 2, v0
    v_and_b32 v17, 3, v0
    v_lshlrev_b32 v21, 12, v16
    v_lshl_add_u32 v21, v17, 3, v21
    s_add_u32 s66, s65, 65536
    v_and_b32 v18, 15, v0
    v_lshlrev_b32 v18, 4, v18
    v_lshrrev_b32 v22, 4, v0
    v_lshl_add_u32 v22, v22, 2, v18
    v_add_u32 v22, {L_AL}, v22
    s_movk_i32 s53, 0xff00
    s_mov_b32 s52, -2""")
    if mlpre: wait_flag(20, F_QA, 18)
    elif mlt: wait_flag(20, {'v0': F_V0, 'v1': F_V1, 'v2': F_V2, 'v': F_V, 'k': F_K}[mlt], 18)
    l = lab("ml")
    if mlpipe: A("v_not_b32 v24, v156\nv_not_b32 v26, v156\ns_waitcnt vmcnt(0)")
    A(f"""{l}:
    buffer_load_dwordx2 v[24:25], v21, s[8:11], s65 offen offset:{B_ML} sc1
    buffer_load_dwordx2 v[26:27], v21, s[8:11], s66 offen offset:{B_ML} sc1""")
    if mlpipe and mlsl: A(f"s_sleep {mlsl}")
    A(f"""s_waitcnt vmcnt({2 * mlpipe})
    v_mov_b32 v32, v24
    v_mov_b32 v33, v25
    v_mov_b32 v34, v26
    v_mov_b32 v35, v27""")
    bad_tag(range(32, 36), 44, [(32, 34, "v156"), (33, 35, "v157")], 19)
    gloop_back(l)
    stamp(4)
    A("""v_and_b32 v32, s53, v32
    v_and_b32 v34, s53, v34
    v_max_f32 v28, v32, v32 row_ror:4
    v_max_f32 v29, v34, v34 row_ror:4
    v_max_f32 v28, v28, v28 row_ror:8
    v_max_f32 v29, v29, v29 row_ror:8""")
    allred2(28, 30, 29, 31, "v_max_f32")
    A("""v_sub_f32 v32, v32, v28
    v_sub_f32 v34, v34, v29
    v_exp_f32 v32, v32
    v_exp_f32 v34, v34
    v_mul_f32 v32, v32, v33
    v_mul_f32 v34, v34, v35
    v_add_f32 v28, v32, v32 row_ror:4
    v_add_f32 v29, v34, v34 row_ror:4
    v_add_f32 v28, v28, v28 row_ror:8
    v_add_f32 v29, v29, v29 row_ror:8""")
    allred2(28, 30, 29, 31, "v_add_f32")
    A("""v_rcp_f32 v28, v28
    v_rcp_f32 v29, v29
    v_mul_f32 v32, v32, v28
    v_mul_f32 v34, v34, v29
    v_min_u32 v32, s52, v32
    v_min_u32 v34, s52, v34
    ds_write_b32 v22, v32
    ds_write_b32 v22, v34 offset:256""")
    stamp(5)
    dump_stamps()
    A("s_waitcnt lgkmcnt(0)\ns_endpgm")

    A("L_compute:")
    A(f"""s_sub_u32 s30, s3, 2
    v_lshlrev_b32 v2, 4, v0
    s_lshl_b32 s31, s30, 10
    s_add_u32 s31, s31, {L_S}
    v_add_u32 v3, s31, v2
    v_mov_b32 v4, -1
    v_mov_b32 v5, -1
    v_mov_b32 v6, -1
    v_mov_b32 v7, -1
    ds_write_b128 v3, v[4:7]
    s_mov_b32 s100, 0
    s_mov_b32 s101, 0
    s_waitcnt lgkmcnt(0)
    s_load_dword s54, s[26:27], 0
    s_barrier""")
    ws_srd(32)
    A(f"""s_mov_b32 s36, 0xffff0000
    v_and_b32 v4, 15, v0
    v_lshrrev_b32 v5, 4, v0
    v_mov_b32 v6, {L_FLG}
    v_bfe_u32 v96, v0, 2, 2
    v_and_b32 v17, 1, v5
    v_lshl_add_u32 v96, v17, 2, v96
    v_bfe_u32 v18, v0, 1, 1
    s_lshl_b32 s37, s30, 1
    v_add_u32 v18, s37, v18
    v_and_b32 v19, 6, v96
    v_xor_b32 v18, v18, v19
    v_lshlrev_b32 v18, 4, v18
    v_and_b32 v19, 1, v0
    v_lshl_add_u32 v18, v19, 3, v18
    v_lshrrev_b32 v17, 5, v0
    v_lshl_add_u32 v17, v17, 4, v96
    v_lshl_add_u32 v7, v17, 7, v18
    v_add_u32 v7, {L_WQ}, v7
    ; xn frag addresses v106 (wq rows), v105 (w1 rows)
    v_mul_u32_u24 v18, {XSTR}, v19
    v_lshl_add_u32 v18, v5, 4, v18
    s_lshr_b32 s37, s29, 3
    s_lshl_b32 s37, s37, 8
    s_add_u32 s37, s37, {L_XN}
    v_add_u32 v106, s37, v18
    s_lshl_b32 s37, s30, 6
    v_lshlrev_b32 v18, 8, v4
    v_lshl_add_u32 v18, v5, 4, v18
    v_add_u32 v107, s37, v18
    s_lshl_b32 s38, s28, 5
    s_add_u32 s38, s38, s29
    s_lshl_b32 s68, s38, 9
    s_lshl_b32 s38, s38, 12
    s_add_u32 s68, s68, {W_FP}
    v_add_u32 v3, {L_XN}, v2
    v_add_u32 v16, {L_XR}, v2
    s_mov_b32 s48, 0x00030003
    s_mov_b32 s49, 0x00030003
    s_mov_b32 s52, -2
    s_movk_i32 s53, 0xff00""")
    stamp(1)
    wait_flag(6, F_X, 17)
    A(f"""ds_read_b128 v[8:11], v16
    ds_read_b128 v[12:15], v16 offset:1024
    s_add_u32 s54, s54, 1
    s_waitcnt lgkmcnt(0)""")
    stamp0()
    stamp(2)
    for b in range(2):
        for i in range(4):
            A(f"v_lshlrev_b32 v{16+8*b+2*i}, 16, v{8+4*b+i}\nv_and_b32 v{17+8*b+2*i}, s36, v{8+4*b+i}")
    def red2(a, b, t):
        A(f"""v_permlane32_swap_b32 v{a}, v{b}
        v_add_f32 v{a}, v{a}, v{b}
        v_mov_b32 v{t}, v{a}
        v_permlane16_swap_b32 v{t}, v{a}
        v_add_f32 v{a}, v{a}, v{t}
        v_add_f32 v{a}, v{a}, v{a} row_ror:8
        v_add_f32 v{a}, v{a}, v{a} row_ror:4
        v_add_f32 v{a}, v{a}, v{a} row_ror:2
        v_add_f32 v{a}, v{a}, v{a} row_ror:1""")
    for b in range(2):
        f = 16 + 8 * b
        A(f"""v_pk_add_f32 v[{32+4*b}:{33+4*b}], v[{f}:{f+1}], v[{f+2}:{f+3}]
        v_pk_add_f32 v[{34+4*b}:{35+4*b}], v[{f+4}:{f+5}], v[{f+6}:{f+7}]""")
    for b in range(2):
        A(f"v_pk_add_f32 v[{32+4*b}:{33+4*b}], v[{32+4*b}:{33+4*b}], v[{34+4*b}:{35+4*b}]")
    A("v_add_f32 v32, v32, v33\nv_add_f32 v36, v36, v37")
    red2(32, 36, 33)
    A("""v_mul_f32 v32, 0x3b000000, v32
    v_readlane_b32 s60, v32, 0
    v_readlane_b32 s62, v32, 32""")
    for b in range(2):
        f = 16 + 8 * b
        for i in range(4):
            A(f"v_pk_add_f32 v[{40+8*b+2*i}:{41+8*b+2*i}], v[{f+2*i}:{f+2*i+1}], s[{60+2*b}:{61+2*b}] op_sel_hi:[1,0] neg_lo:[0,1] neg_hi:[0,1]")
    for b in range(2):
        d = 40 + 8 * b
        A(f"v_pk_mul_f32 v[{34+2*b}:{35+2*b}], v[{d}:{d+1}], v[{d}:{d+1}]")
    for i in range(1, 4):
        for b in range(2):
            d = 40 + 8 * b + 2 * i
            A(f"v_pk_fma_f32 v[{34+2*b}:{35+2*b}], v[{d}:{d+1}], v[{d}:{d+1}], v[{34+2*b}:{35+2*b}]")
    A("v_add_f32 v34, v34, v35\nv_add_f32 v36, v36, v37")
    red2(34, 36, 33)
    A("v_mul_f32 v34, 0x3b000000, v34")
    bf16r(34, 34)
    A("v_add_f32 v34, 0x3727c5ac, v34")
    bf16r(34, 34)
    A("v_sqrt_f32 v34, v34")
    bf16r(32, 32)
    bf16r(34, 34)
    A("v_rcp_f32 v34, v34")
    A("""v_readlane_b32 s60, v32, 0
    v_readlane_b32 s62, v32, 32
    v_readlane_b32 s64, v34, 0
    v_readlane_b32 s66, v34, 32""")
    for b in range(2):
        f = 16 + 8 * b
        for i in range(4):
            A(f"v_pk_add_f32 v[{f+2*i}:{f+2*i+1}], v[{f+2*i}:{f+2*i+1}], s[{60+2*b}:{61+2*b}] op_sel_hi:[1,0] neg_lo:[0,1] neg_hi:[0,1]")
    for i in range(8):
        A(f"v_cvt_pk_bf16_f32 v{8+i}, v{16+2*i}, v{17+2*i}")
    for i in range(8):
        A(f"v_lshlrev_b32 v{16+2*i}, 16, v{8+i}\nv_and_b32 v{17+2*i}, s36, v{8+i}")
    for b in range(2):
        f = 16 + 8 * b
        for i in range(4):
            A(f"v_pk_mul_f32 v[{f+2*i}:{f+2*i+1}], v[{f+2*i}:{f+2*i+1}], s[{64+2*b}:{65+2*b}] op_sel_hi:[1,0]")
    for i in range(8):
        A(f"v_cvt_pk_bf16_f32 v{8+i}, v{16+2*i}, v{17+2*i}")
    A(f"""ds_write_b128 v3, v[8:11]
    ds_write_b128 v3, v[12:15] offset:{XSTR}""")
    set_flag(6, F_XN, 6)
    mktags(54, 0)
    for r in range(88, 92): A(f"v_mov_b32 v{r}, 0")
    A("s_waitcnt lgkmcnt(0)")
    for kk in range(4): A(f"ds_read_b128 v[{24+4*kk}:{27+4*kk}], v106 offset:{64*kk}")
    stamp(3)
    wait_flag(6, F_WQ, 16)
    stamp(4)
    def trw(base, nk, r0):
        for kk in range(nk):
            for u in range(2):
                A(f"ds_read_b64_tr_b16 v[{r0+4*kk+2*u}:{r0+4*kk+2*u+1}], v7 offset:{base - L_WQ + kk*4096 + u*1024}")
    def tag(regs):
        for r in regs: A(f"v_and_or_b32 v{r}, v{r}, s53, v{152 + r % 4}")
    trw(L_WQ, 4, 48)
    for kk in range(4):
        A(f"s_waitcnt lgkmcnt({6 - 2*kk})")
        A(f"v_mfma_f32_16x16x32_bf16 v[88:91], v[{48+4*kk}:{51+4*kk}], v[{24+4*kk}:{27+4*kk}], v[88:91]")
    tag(range(88, 92))
    A(f"""s_mov_b64 exec, s[48:49]
    buffer_store_dwordx4 v[88:91], v107, s[32:35], s38 offen offset:{B_QP}{pst}
    s_mov_b64 exec, -1""")
    stamp(5)
    A(f"""v_lshlrev_b32 v119, 15, v5
    v_lshl_add_u32 v119, v4, 4, v119
    s_lshl_b32 s39, s28, 17
    s_lshl_b32 s37, s30, 13
    s_add_u32 s39, s39, s37
    s_lshr_b32 s37, s29, 4
    s_lshl_b32 s37, s37, 8
    s_add_u32 s39, s39, s37
    s_add_u32 s40, s39, 4096
    v_lshlrev_b32 v118, 5, v5
    v_lshl_add_u32 v118, v4, 4, v118
    s_lshl_b32 s37, s30, 7
    v_add_u32 v118, s37, v118""")
    def qloads(r):
        A(f"""buffer_load_dwordx4 v[{r}:{r+3}], v119, s[32:35], s39 offen offset:{B_QP} sc1
        buffer_load_dwordx4 v[{r+4}:{r+7}], v119, s[32:35], s40 offen offset:{B_QP} sc1""")
    A(f"""; ---- remaining addresses
    v_mov_b32 v123, 0
    v_and_b32 v19, 1, v0
    v_bfe_u32 v18, v0, 1, 1
    s_lshl_b32 s37, s30, 2
    v_add_u32 v18, s37, v18
    v_lshlrev_b32 v17, 1, v96
    v_xor_b32 v18, v18, v17
    v_lshlrev_b32 v18, 4, v18
    v_lshl_add_u32 v18, v19, 3, v18
    v_lshrrev_b32 v17, 2, v0
    v_lshl_add_u32 v100, v17, 8, v18
    s_lshl_b32 s37, s30, 2
    v_add_u32 v101, s37, v6
    v_and_b32 v17, 7, v0
    v_lshlrev_b32 v17, 1, v17
    v_xor_b32 v17, v17, v5
    v_lshlrev_b32 v17, 4, v17
    v_lshl_add_u32 v17, v4, 8, v17
    s_lshl_b32 s37, s30, 13
    v_add_u32 v102, s37, v17
    v_xor_b32 v103, 64, v102
    v_xor_b32 v104, 128, v102
    v_xor_b32 v105, 192, v102
    v_mul_u32_u24 v116, {OSTR}, v19
    v_lshl_add_u32 v116, v5, 4, v116
    v_add_u32 v116, {L_O}, v116
    v_lshlrev_b32 v117, 7, v19
    v_lshl_add_u32 v117, v5, 4, v117
    v_add_u32 v117, {L_ACT}, v117
    v_lshrrev_b32 v17, 5, v0
    v_lshlrev_b32 v17, 7, v17
    v_lshl_add_u32 v17, v4, 3, v17
    v_and_b32 v18, 1, v5
    v_lshl_add_u32 v17, v18, 2, v17
    s_mul_i32 s37, s30, {QSTR}
    s_add_u32 s37, s37, {L_Q}
    v_add_u32 v120, s37, v17
    v_and_b32 v19, 3, v0
    v_mul_u32_u24 v121, {QSTR}, v19
    v_lshl_add_u32 v121, v5, 4, v121
    v_add_u32 v121, {L_Q}, v121
    v_lshlrev_b32 v20, 6, v5
    v_lshl_add_u32 v20, v19, 4, v20
    v_add_u32 v108, {L_P}, v20
    s_lshl_b32 s37, s30, 8
    v_add_u32 v110, s37, v108
    s_lshl_b32 s37, s30, 9
    v_add_u32 v109, s37, v20
    s_and_b32 s41, s30, 1
    s_lshl_b32 s37, s41, 8
    s_add_u32 s37, s37, {L_AL}
    v_add_u32 v114, s37, v20
    v_lshlrev_b32 v111, 5, v19
    v_add_u32 v111, {L_ML}, v111
    s_lshl_b32 s37, s30, 3
    v_add_u32 v112, s37, v111
    v_lshlrev_b32 v106, 3, v4
    v_lshlrev_b32 v16, 12, v5
    v_lshl_add_u32 v113, v4, 4, v16
    s_and_b32 s43, s29, 3
    s_lshl_b32 s37, s43, 9
    s_lshr_b32 s42, s30, 1
    s_lshl_b32 s44, s42, 8
    s_add_u32 s37, s37, s44
    v_add_u32 v113, s37, v113
    s_lshl_b32 s44, s28, 17
    s_lshl_b32 s37, s41, 16
    s_add_u32 s44, s44, s37
    s_add_u32 s45, s44, 16384
    s_add_u32 s46, s44, 32768
    s_add_u32 s47, s44, 49152
    v_lshlrev_b32 v115, 4, v4
    v_lshl_add_u32 v115, v18, 2, v115
    s_mul_i32 s37, s41, {OSTR}
    s_lshl_b32 s42, s42, 3
    s_add_u32 s37, s37, s42
    s_add_u32 s37, s37, {L_O}
    v_add_u32 v115, s37, v115
    s_mov_b32 s50, 0x000f000f
    s_mov_b32 s51, 0x000f000f
    s_mov_b32 s58, 0x3db504f3
    s_mov_b32 s59, 0x3fb8aa3b
    s_lshl_b32 s70, s29, 9
    s_lshl_b32 s37, s30, 7
    s_add_u32 s70, s70, s37
    s_add_u32 s70, s70, {W_FP}
    v_lshrrev_b32 v17, 3, v0
    v_lshlrev_b32 v17, 14, v17
    v_and_b32 v16, 7, v0
    v_lshl_add_u32 v99, v16, 4, v17
    v_and_b32 v16, 1, v0
    v_lshlrev_b32 v16, 10, v16
    v_bfe_u32 v17, v0, 1, 2
    v_lshl_add_u32 v16, v17, 3, v16
    v_lshrrev_b32 v17, 5, v0
    v_lshl_add_u32 v16, v17, 2, v16
    s_lshl_b32 s37, s28, 7
    s_lshl_b32 s41, s30, 5
    s_add_u32 s37, s37, s41
    v_add_u32 v98, s37, v16
    v_add_u32 v17, {L_XR}, v98
    ds_read_b32 v97, v17""")
    for i in range(4):
        if vsplit:
            A(f"""s_add_u32 s37, s43, {i}
            s_and_b32 s37, s37, 3
            s_lshl_b32 s41, s37, 13
            v_add_u32 v{80+2*i}, s41, v100
            s_lshl_b32 s41, s37, 8
            v_add_u32 v{76+i}, s41, v108""")
        else:
            A(f"v_add_u32 v{80+2*i}, {i*8192}, v100\nv_add_u32 v{76+i}, {i*256}, v108")
        A(f"v_xor_b32 v{81+2*i}, 32, v{80+2*i}")
    if touchout: A("global_load_dword v124, v98, s[22:23]")
    if warmfp: A(f"s_mov_b64 exec, s[48:49]\nbuffer_load_dword v124, v118, s[32:35], s68 offen{wfl}\ns_mov_b64 exec, -1")
    for r in range(8, 16): A(f"v_mov_b32 v{r}, 0")
    A("s_mov_b32 s56, 0")
    if sa: A(f"s_sleep {sa}")
    stamp(6)
    def republish():
        A(f"""s_xor_b32 s37, s38, {W_B}
        s_mov_b64 exec, s[48:49]
        buffer_store_dwordx4 v[88:91], v107, s[32:35], s37 offen offset:{B_QP} sc1
        s_mov_b64 exec, -1
        s_mov_b32 s56, 1""")
    qs = [128, 136, 144][:qsets]
    for k, r in enumerate(qs):
        qloads(r)
        if k + 1 < len(qs) and sb: A(f"s_sleep {sb}")
    A("L_qp:")
    for k, r in enumerate(qs):
        A(f"s_waitcnt vmcnt({2*(len(qs)-1)})")
        bad_tag(range(r, r + 8), 40, 55, 123)
        A(f"s_cbranch_vccz L_qok{k}")
        qloads(r)
    A(f"""ds_read_b32 v40, v6 offset:{F_MODE}
    s_waitcnt lgkmcnt(0)
    v_readfirstlane_b32 s57, v40
    s_xor_b32 s57, s57, 1
    s_or_b32 s57, s57, s56
    s_cbranch_scc1 L_norep""")
    republish()
    A(f"""s_waitcnt vmcnt(0)""")
    for r in qs: qloads(r)
    A(f"""L_norep:
    s_lshl_b32 s37, s56, 21
    s_xor_b32 s39, s39, s37
    s_xor_b32 s40, s40, s37
    s_add_u32 s101, s101, 1
    s_cmp_lt_u32 s101, {SPIN}
    s_cbranch_scc1 L_qp""")
    for k, r in reversed(list(enumerate(qs))):
        A(f"L_qok{k}:")
        for i in range(4): A(f"v_permlane32_swap_b32 v{r+i}, v{r+4+i}")
        A(f"v_pk_add_f32 v[40:41], v[{r}:{r+1}], v[{r+4}:{r+5}]\nv_pk_add_f32 v[42:43], v[{r+2}:{r+3}], v[{r+6}:{r+7}]")
        if k: A("s_branch L_qj")
    A("L_qj:")
    stamp(7)
    A("""v_permlane16_swap_b32 v40, v42
    v_permlane16_swap_b32 v41, v43
    v_pk_add_f32 v[40:41], v[40:41], v[42:43]
    v_cvt_pk_bf16_f32 v40, v40, v41
    v_min_u32 v40, s52, v40
    ds_write_b32 v120, v40""")
    wait_flag(6, F_K, 41)
    for t in range(2):
        for kk in range(4):
            A(f"ds_read_b128 v[{44+16*t+4*kk}:{47+16*t+4*kk}], v{102+kk} offset:{L_K + t*4096}")
    l = lab("ql")
    A(f"{l}:")
    for kk in range(4): A(f"ds_read_b128 v[{16+4*kk}:{19+4*kk}], v121 offset:{64*kk}")
    A("s_waitcnt lgkmcnt(0)")
    any_sent(range(16, 32), 40)
    loop_back(l)
    stamp(8)
    for kk in range(4):
        for t in range(2):
            A(f"v_mfma_f32_16x16x32_bf16 v[{8+4*t}:{11+4*t}], v[{44+16*t+4*kk}:{47+16*t+4*kk}], v[{16+4*kk}:{19+4*kk}], v[{8+4*t}:{11+4*t}]")
    A(f"ds_read_b32 v42, v6 offset:{F_MODE}")
    for rnd in range(2):
        for i in range(4): A(f"v_cvt_pk_bf16_f32 v{24+i}, v{8+2*i}, v{9+2*i}")
        for i in range(4): A(f"v_lshlrev_b32 v{8+2*i}, 16, v{24+i}\nv_and_b32 v{9+2*i}, s36, v{24+i}")
        if rnd == 0:
            for i in range(4): A(f"v_pk_mul_f32 v[{8+2*i}:{9+2*i}], v[{8+2*i}:{9+2*i}], s[58:59] op_sel_hi:[1,0]")
    A("""v_max3_f32 v24, v8, v9, v10
    v_max3_f32 v25, v11, v12, v13
    v_max3_f32 v24, v24, v14, v15
    v_max_f32 v24, v24, v25""")
    allred(24, 25, "v_max_f32")
    A("v_mul_f32 v24, s59, v24")
    for i in range(8): A(f"v_fma_f32 v{8+i}, v{8+i}, s59, -v24")
    for i in range(8): A(f"v_exp_f32 v{8+i}, v{8+i}")
    A("""v_pk_add_f32 v[26:27], v[8:9], v[10:11]
    v_pk_add_f32 v[28:29], v[12:13], v[14:15]
    v_pk_add_f32 v[26:27], v[26:27], v[28:29]
    v_add_f32 v25, v26, v27""")
    allred(25, 26, "v_add_f32")
    A("""v_min_u32 v26, s52, v24
    v_min_u32 v27, s52, v25
    s_mov_b64 exec, 15
    ds_write_b64 v112, v[26:27]
    s_mov_b64 exec, -1""")
    l = lab("ml")
    A(f"""{l}:
    ds_read_b128 v[28:31], v111
    ds_read_b128 v[16:19], v111 offset:16
    s_waitcnt lgkmcnt(0)""")
    any_sent([28, 29, 30, 31, 16, 17, 18, 19], 20)
    loop_back(l)
    A("""v_max3_f32 v26, v28, v30, v16
    v_max_f32 v26, v26, v18
    v_and_b32 v26, s53, v26
    v_sub_f32 v24, v24, v26
    v_sub_f32 v28, v28, v26
    v_sub_f32 v30, v30, v26
    v_sub_f32 v16, v16, v26
    v_sub_f32 v18, v18, v26
    v_exp_f32 v24, v24
    v_exp_f32 v28, v28
    v_exp_f32 v30, v30
    v_exp_f32 v16, v16
    v_exp_f32 v18, v18
    v_mul_f32 v27, v28, v29
    v_fmac_f32 v27, v30, v31
    v_fmac_f32 v27, v16, v17
    v_fmac_f32 v27, v18, v19
    v_rcp_f32 v28, v27
    v_or_b32 v26, v26, v156
    v_mul_f32 v24, v24, v28""")
    for i in range(4): A(f"v_pk_mul_f32 v[{8+2*i}:{9+2*i}], v[{8+2*i}:{9+2*i}], v[24:25] op_sel_hi:[1,0]")
    for i in range(4): A(f"v_cvt_pk_bf16_f32 v{8+i}, v{8+2*i}, v{9+2*i}")
    for i in range(4): A(f"v_min_u32 v{8+i}, s52, v{8+i}")
    A(f"""s_mov_b64 exec, s[50:51]
    ds_write_b128 v110, v[8:11]
    s_mov_b64 exec, -1
    v_and_or_b32 v27, v27, s53, v157
    v_readfirstlane_b32 s57, v42
    s_cmp_eq_u32 s57, 0
    s_cbranch_scc1 L_modeok""")
    wait_flag(6, F_MODE, 42)
    A("""v_readfirstlane_b32 s57, v42
    s_xor_b32 s37, s57, 1
    s_or_b32 s37, s37, s56
    s_cbranch_scc1 L_modeok""")
    republish()
    A(f"""L_modeok:
    s_cmp_eq_u32 s30, 0
    s_cbranch_scc0 L_noml
    s_mov_b64 exec, {0xffff if fullml else 15}
    s_cmp_eq_u32 s57, 0
    s_cbranch_scc1 L_mlf
    buffer_store_dwordx2 v[26:27], v106, s[32:35], s38 offen offset:{B_ML} sc1
    s_branch L_mle
    L_mlf:
    buffer_store_dwordx2 v[26:27], v106, s[32:35], s38 offen offset:{B_ML}
    L_mle:
    s_mov_b64 exec, -1
    L_noml:""")
    for r in range(8, 20): A(f"v_mov_b32 v{r}, 0")
    l = lab("pl")
    A(f"{l}:")
    for i in range(4): A(f"ds_read_b128 v[{44+4*i}:{47+4*i}], v{76+i}")
    A("s_waitcnt lgkmcnt(0)")
    any_sent(range(44, 60), 20)
    loop_back(l)
    stamp(9)
    def ffn2():
        wait_flag(6, F_W2, 22)
        trw(L_W2, 2, 60)
        wait_flag(6, F_ACT, 22)
        A("ds_read_b128 v[68:71], v117\nds_read_b128 v[72:75], v117 offset:64\ns_waitcnt lgkmcnt(0)")
        for kk in range(2):
            A(f"v_mfma_f32_16x16x32_bf16 v[8:11], v[{60+4*kk}:{63+4*kk}], v[{68+4*kk}:{71+4*kk}], v[8:11]")
    def wopre():
        wait_flag(6, F_WO, 22)
        if op2: op_loads(44)
        if not opearly: op_loads()
        trw(L_WO, 4, 60)
    iv = order.index('v')
    assert order.index('w2') < order.index('wo') or order.index('wo') < iv
    if order.index('w2') < iv: ffn2()
    def pvstep(i, waitcnt):
        for t in range(2):
            for u in range(2):
                r = 24 + 8 * (i & 1) + 4 * t + 2 * u
                A(f"ds_read_b64_tr_b16 v[{r}:{r+1}], v{80+2*i+t} offset:{L_V + u*4096}")
    def pvmfma(i):
        for t in range(2):
            r = 24 + 8 * (i & 1) + 4 * t
            A(f"v_mfma_f32_16x16x32_bf16 v[{12+4*t}:{15+4*t}], v[{r}:{r+3}], v[{44+4*i}:{47+4*i}], v[{12+4*t}:{15+4*t}]")
    if vsplit:
        A(f"""ds_read_b32 v20, v6 offset:{F_V}
        s_waitcnt lgkmcnt(0)
        v_cmp_eq_u32 vcc, -1, v20
        s_cbranch_vccz L_pvall""")
        for i, f in enumerate((F_V0, F_V1, F_V2, F_V)):
            wait_flag(6, f, 20)
            if i == 3: stamp(10)
            pvstep(i, 0)
            A("s_waitcnt lgkmcnt(0)")
            pvmfma(i)
        A("s_branch L_pvdone\nL_pvall:")
    else:
        wait_flag(6, F_V, 20)
    if True:
        stamp(10)
        pvstep(0, 0); pvstep(1, 0)
        A("s_waitcnt lgkmcnt(4)"); pvmfma(0); pvstep(2, 0)
        A("s_waitcnt lgkmcnt(4)"); pvmfma(1); pvstep(3, 0)
        A("s_waitcnt lgkmcnt(4)"); pvmfma(2)
        A("s_waitcnt lgkmcnt(0)"); pvmfma(3)
        A("L_pvdone:\ns_nop 7")
    tag(range(12, 20))
    A(f"""s_mov_b64 exec, s[50:51]
    s_cmp_eq_u32 s57, 0
    s_cbranch_scc0 L_opslow
    buffer_store_dwordx4 v[12:15], v109, s[32:35], s38 offen offset:{B_OP}{pst}
    buffer_store_dwordx4 v[16:19], v109, s[32:35], s38 offen offset:{B_OP + 256}{pst}
    L_opdone:""")
    if hold: A(f"ds_write_b32 v101, v6 offset:{F_OPD}")
    A("s_mov_b64 exec, -1")
    stamp(11)
    def op_loads(r=24):
        for i in range(4): A(f"buffer_load_dwordx4 v[{r+4*i}:{r+3+4*i}], v113, s[32:35], s{44+i} offen offset:{B_OP} sc1")
    if opearly and not hold and not pre: op_loads()
    if order.index('w2') > iv: ffn2()
    if hold or pre:
        wait_flag(6, F_PRE, 22)
        if presl: A(f"s_sleep {presl}")
        op_loads()
    if not olate: wopre()
    else:
        assert not op2 and not hold and not pre
        if opsl: A(f"s_sleep {opsl}")
        if not opearly: op_loads()
    stamp(12)
    def alpha_wait(tagl):
        A("s_waitcnt lgkmcnt(0)")
        any_sent(range(40, 44), 22)
        A(f"s_cbranch_vccz L_alok{tagl}")
        l = lab("al")
        A(f"""{l}:
        ds_read_b128 v[40:43], v114
        s_waitcnt lgkmcnt(0)""")
        any_sent(range(40, 44), 22)
        loop_back(l)
        A(f"L_alok{tagl}:")
    def wsum(r):
        A(f"""v_pk_mul_f32 v[12:13], v[{r}:{r+1}], v[40:41] op_sel_hi:[1,0]
        v_pk_mul_f32 v[14:15], v[{r+2}:{r+3}], v[40:41] op_sel_hi:[1,0]
        v_pk_fma_f32 v[12:13], v[{r+4}:{r+5}], v[40:41], v[12:13] op_sel:[0,1,0] op_sel_hi:[1,1,1]
        v_pk_fma_f32 v[14:15], v[{r+6}:{r+7}], v[40:41], v[14:15] op_sel:[0,1,0] op_sel_hi:[1,1,1]
        v_pk_fma_f32 v[12:13], v[{r+8}:{r+9}], v[42:43], v[12:13] op_sel_hi:[1,0,1]
        v_pk_fma_f32 v[14:15], v[{r+10}:{r+11}], v[42:43], v[14:15] op_sel_hi:[1,0,1]
        v_pk_fma_f32 v[12:13], v[{r+12}:{r+13}], v[42:43], v[12:13] op_sel:[0,1,0] op_sel_hi:[1,1,1]
        v_pk_fma_f32 v[14:15], v[{r+14}:{r+15}], v[42:43], v[14:15] op_sel:[0,1,0] op_sel_hi:[1,1,1]""")
    if op2:
        A("L_opA:\nds_read_b128 v[40:43], v114\ns_waitcnt vmcnt(4)")
        bad_tag(range(24, 40), 88, 55, 123)
        A("s_cbranch_vccz L_opAok")
        op_loads(24)
        A("s_waitcnt vmcnt(4)")
        bad_tag(range(44, 60), 88, 55, 123)
        A("s_cbranch_vccz L_opBok")
        op_loads(44)
        A(f"""s_add_u32 s101, s101, 1
        s_cmp_lt_u32 s101, {SPIN}
        s_cbranch_scc1 L_opA
        L_opBok:""")
        stamp(13)
        alpha_wait("B"); wsum(44)
        A("s_branch L_opJ\nL_opAok:")
        stamp(13)
        alpha_wait("A"); wsum(24)
        A("L_opJ:")
    else:
        l = lab("og")
        A(f"s_branch L_ochk\n{l}:")
        op_loads()
        A("L_ochk:\nds_read_b128 v[40:43], v114\ns_waitcnt vmcnt(0)")
        bad_tag(range(24, 40), 88, 55, 123)
        if opmask:
            A(f"""s_cbranch_vccz L_opok
            s_mov_b64 exec, vcc
            L_opr:""")
            op_loads()
            A("s_waitcnt vmcnt(0)")
            bad_tag(range(24, 40), 88, 55, 123)
            A(f"""s_cbranch_vccz L_opdn
            s_mov_b64 exec, vcc
            s_add_u32 s101, s101, 1
            s_cmp_lt_u32 s101, {SPIN}
            s_cbranch_scc1 L_opr
            L_opdn:
            s_mov_b64 exec, -1
            ds_read_b128 v[40:43], v114
            L_opok:""")
        else:
            gloop_back(l)
        stamp(13)
        alpha_wait("A"); wsum(24)
    stamp(17)
    A("""v_permlane16_swap_b32 v12, v14
    v_permlane16_swap_b32 v13, v15
    v_pk_add_f32 v[12:13], v[12:13], v[14:15]
    v_mov_b32 v14, v12
    v_mov_b32 v15, v13
    v_permlane32_swap_b32 v14, v12
    v_permlane32_swap_b32 v15, v13
    v_pk_add_f32 v[12:13], v[12:13], v[14:15]
    v_cvt_pk_bf16_f32 v12, v12, v13
    v_min_u32 v12, s52, v12
    ds_write_b32 v115, v12""")
    l = lab("ol")
    A(f"{l}:")
    for kk in range(4): A(f"ds_read_b128 v[{76+4*kk}:{79+4*kk}], v116 offset:{64*kk}")
    A("s_waitcnt lgkmcnt(0)")
    any_sent(range(76, 92), 22)
    loop_back(l)
    if olate:
        stamp(18)
        wait_flag(6, F_WO, 22)
        trw(L_WO, 4, 60)
    for kk in range(4):
        if olate: A(f"s_waitcnt lgkmcnt({6 - 2*kk})")
        A(f"v_mfma_f32_16x16x32_bf16 v[8:11], v[{60+4*kk}:{63+4*kk}], v[{76+4*kk}:{79+4*kk}], v[8:11]")
    A("s_lshl_b32 s37, s28, 2\ns_cmp_eq_u32 s29, s37")
    tag(range(8, 12))
    A(f"""s_mov_b64 exec, s[48:49]
    s_cbranch_scc1 L_final
    buffer_store_dwordx4 v[8:11], v118, s[32:35], s68 offen sc1""")
    if stamps:
        A("s_mov_b64 exec, -1")
        stamp(14)
        A("s_branch L_cend")
    else: A("s_endpgm")
    A(f"""L_opslow:
    buffer_store_dwordx4 v[12:15], v109, s[32:35], s38 offen offset:{B_OP} sc1
    buffer_store_dwordx4 v[16:19], v109, s[32:35], s38 offen offset:{B_OP + 256} sc1
    s_branch L_opdone""")
    A(f"""L_final:
    buffer_store_dwordx4 v[8:11], v118, s[32:35], s68 offen
    s_mov_b64 exec, -1""")
    stamp(14)
    if fdelay: A(f"s_sleep {fdelay}")
    def fp_loads(r):
        for i in range(4):
            A(f"buffer_load_dwordx4 v[{r+4*i}:{r+3+4*i}], v99, s[32:35], s70 offen offset:{512*i} sc1")
    sets = [24, 44, 60][:fpsets]
    for r in sets: fp_loads(r)
    A("L_fp:")
    for k, r in enumerate(sets):
        A(f"s_waitcnt vmcnt({4*(len(sets)-1)})")
        bad_tag(range(r, r + 16), 76, 55, 123)
        A(f"s_cbranch_vccz L_fpok{k}")
        if fpmask and fpsets == 1: A("s_mov_b64 exec, vcc")
        if fsl: A(f"s_sleep {fsl}")
        fp_loads(r)
    A(f"""s_add_u32 s101, s101, 1
    s_cmp_lt_u32 s101, {SPIN}
    s_cbranch_scc1 L_fp""")
    for k, r in reversed(list(enumerate(sets))):
        A(f"L_fpok{k}:")
        if fpmask and fpsets == 1: A("s_mov_b64 exec, -1")
        stamp(16)
        A(f"""v_pk_add_f32 v[12:13], v[{r}:{r+1}], v[{r+4}:{r+5}]
        v_pk_add_f32 v[14:15], v[{r+2}:{r+3}], v[{r+6}:{r+7}]
        v_pk_add_f32 v[16:17], v[{r+8}:{r+9}], v[{r+12}:{r+13}]
        v_pk_add_f32 v[18:19], v[{r+10}:{r+11}], v[{r+14}:{r+15}]""")
        if k: A("s_branch L_fpj")
    A(f"""L_fpj:
    v_pk_add_f32 v[12:13], v[12:13], v[16:17]
    v_pk_add_f32 v[14:15], v[14:15], v[18:19]
    v_permlane32_swap_b32 v12, v14
    v_permlane32_swap_b32 v13, v15
    v_pk_add_f32 v[12:13], v[12:13], v[14:15]
    v_mov_b32 v14, v12
    v_mov_b32 v15, v13
    v_permlane16_swap_b32 v14, v12
    v_permlane16_swap_b32 v15, v13
    v_pk_add_f32 v[12:13], v[12:13], v[14:15]
    v_lshlrev_b32 v14, 16, v97
    v_and_b32 v15, s36, v97
    v_add_f32 v12, v12, v12 row_ror:8
    v_add_f32 v13, v13, v13 row_ror:8
    v_pk_add_f32 v[12:13], v[12:13], v[14:15]
    v_cvt_pk_bf16_f32 v12, v12, v13
    s_mov_b32 s40, 0xff
    s_mov_b32 s41, 0xff
    s_mov_b64 exec, s[40:41]
    global_store_dword v98, v12, s[22:23]{outst}
    s_or_b32 s37, s2, s30
    s_cbranch_scc1 L_cend
    v_mov_b32 v20, s54
    s_mov_b64 exec, 1
    global_store_dword v123, v20, s[26:27]{epsc}""")
    A("L_cend:")
    if stamps: A("s_mov_b64 exec, -1")
    stamp(15)
    if lamp:
        A(f"""s_memrealtime s[98:99]
        s_waitcnt lgkmcnt(0)
        s_sub_u32 s37, s98, s94
        s_mul_i32 s37, s37, 10
        s_add_u32 s37, s37, s98
        L_ampl:
        s_memrealtime s[40:41]
        s_waitcnt lgkmcnt(0)
        s_sub_u32 s40, s40, s37
        s_cmp_lt_i32 s40, 0
        s_cbranch_scc1 L_ampl""")
    if amp is not None:
        A(f"""s_cmp_eq_u32 s30, 0
        s_cbranch_scc0 L_end
        s_cmp_eq_u32 s2, {ampwg}
        s_cbranch_scc0 L_end
        v_readlane_b32 s37, v{VST}, {amp}
        s_nop 4
        s_sub_u32 s37, s37, s94
        s_mul_i32 s37, s37, 10
        s_add_u32 s37, s37, s98
        L_ampl:
        s_memrealtime s[40:41]
        s_waitcnt lgkmcnt(0)
        s_sub_u32 s40, s40, s37
        s_cmp_lt_i32 s40, 0
        s_cbranch_scc1 L_ampl""")
    dump_stamps()
    A("L_end:\ns_endpgm")
    A(f""".section .rodata,"a"
    .p2align 6
    .amdhsa_kernel {NAME}
    .amdhsa_next_free_vgpr 160
    .amdhsa_next_free_sgpr 102
    .amdhsa_accum_offset 160
    .amdhsa_group_segment_fixed_size 0
    .amdhsa_kernarg_size 96
    .amdhsa_user_sgpr_count 2
    .amdhsa_user_sgpr_kernarg_segment_ptr 1
    .amdhsa_system_sgpr_workgroup_id_x 1
    .amdhsa_float_denorm_mode_32 3
    .end_amdhsa_kernel""")
    return A.finish()

if __name__ == "__main__":
    out = sys.argv[1] if len(sys.argv) > 1 else "k.s"
    kw = {}
    for a in sys.argv[2:]:
        if '=' in a:
            k, v = a.split('=', 1); kw[k] = eval(v)
        else: kw[a] = True
    open(out, "w").write(gen(**kw))
```

```python
import sys
from asmlib import Asm

NAME = "parallel_sum__sliding_block_cached__dense_activation_mish__decode_kernel"

L_K, L_V, L_WQ, L_WO, L_W1, L_W2 = 0x0, 0x8000, 0x10000, 0x14000, 0x18000, 0x1A000
L_S = 0x1C000
L_Q, L_P, L_O, L_ML, L_FLG, L_AL = L_S, L_S + 0x500, L_S + 0x900, L_S + 0xB40, L_S + 0xC00, L_S + 0xD00
L_XN, L_ACT, L_XR = 0x1D000, 0x1D900, 0x1DA00
LDS_BYTES = 0x1E200
QSTR, XSTR, OSTR = 272, 1040, 272
F_WQ, F_W1, F_K, F_V, F_WO, F_W2, F_QA, F_QB, F_ACT, F_X, F_MODE, F_V0, F_V1, F_V2, F_XN, F_PRE = [4 * i for i in range(16)]
F_OPD = 64
W_BLK = 0x10000
B_QP, B_HP, B_OP, B_ML, B_ID = 0, 512, 1024, 3072, 3200
W_FP = 0x100000
W_B = 0x200000
SPIN = 1 << 18
IDTRY = 48

def gen(depth=22, stamps=False, safe=False, amp=None, ampwg=0, order=('wq', 'w1', 'k', 'v', 'w2', 'wo'),
        qa=34, qb=44, hpt=None, pref=True, header="", warmfp=True, fdelay=0, loaderonly=False, vsplit=True,
        forcemode=None, mlt='k', nobeacon=False, noB=False, fullml=True, fullid=True, prof=False, dsched=None, kph='A', wph='A', ntw=' nt', ntkv=' nt', sa=4, sb=12, touchout=False, fpsets=1, op2=False, epsc='', b1early=True, idt='x', qsets=3, hs=12, opmask=False, fpmask=False, opearly=False, hold=0, presl=0, early=False, free=(18, 26, 20, 28), mlpipe=0, mlsl=3, prew=0, pre=0, olate=False, opsl=0, xdirty=0, fsl=0, pst='', outst='', mlpre=0, touch=0x1ffff00, tfl='', tlate=True, wfl='', lamp=False, cprio=2, kpre=True, deep=None, t0=95, slope=3.35, margin=25, chk=(18, 26, 34, 42, 50, 58, 66, 74, 82)):
    A = Asm()
    uid = [0]
    def lab(p):
        uid[0] += 1
        return f"L_{p}{uid[0]}"
    VST = 127
    def stamp(k):
        if stamps:
            A(f"s_memrealtime s[98:99]\ns_waitcnt lgkmcnt(0)\nv_writelane_b32 v{VST}, s98, {k}")
    def stamp0():
        if stamps: A(f"v_writelane_b32 v{VST}, s94, 0")
    def dump_stamps():
        if stamps and amp is None:
            A(f"""s_lshl_b32 s96, s2, 3
            s_add_u32 s96, s96, s3
            s_lshl_b32 s96, s96, 7
            s_add_u32 s96, s96, 0x8000000
            s_add_u32 s96, s26, s96
            s_addc_u32 s97, s27, 0
            s_mov_b32 exec_lo, -1
            s_mov_b32 exec_hi, 0
            v_mbcnt_lo_u32_b32 v126, -1, 0
            v_lshlrev_b32 v126, 2, v126
            global_store_dword v126, v{VST}, s[96:97]""")
    def loop_back(l):
        if safe:
            o = lab("out")
            A(f"""s_add_u32 s100, s100, 1
            s_bitcmp1_b32 s100, 21
            s_cbranch_scc1 {o}
            s_cbranch_vccnz {l}
            {o}:""")
        else:
            A(f"s_cbranch_vccnz {l}")
    def gloop_back(l, sleep=0):
        o = lab("ok")
        A(f"s_cbranch_vccz {o}")
        if sleep: A(f"s_sleep {sleep}")
        A(f"""s_add_u32 s101, s101, 1
        s_cmp_lt_u32 s101, {SPIN}
        s_cbranch_scc1 {l}
        {o}:""")
    def wait_flag(vaddr, off, vt):
        l = lab("wf")
        A(f"""{l}:
        ds_read_b32 v{vt}, v{vaddr} offset:{off}
        s_waitcnt lgkmcnt(0)
        v_cmp_eq_u32 vcc, -1, v{vt}""")
        loop_back(l)
    def set_flag(vaddr, off, vdata):
        A(f"""s_mov_b64 exec, 1
        ds_write_b32 v{vaddr}, v{vdata} offset:{off}
        s_mov_b64 exec, -1""")
    def any_sent(regs, vt):
        regs = list(regs)
        A(f"v_max3_u32 v{vt}, v{regs[0]}, v{regs[1]}, v{regs[2] if len(regs) > 2 else regs[1]}")
        rest = regs[3:]
        while rest:
            a = rest[0]; b = rest[1] if len(rest) > 1 else rest[0]
            A(f"v_max3_u32 v{vt}, v{vt}, v{a}, v{b}")
            rest = rest[2:]
        A(f"v_cmp_eq_u32 vcc, -1, v{vt}")
    def bad_tag(regs, t0, sT, vzero):
        regs = list(regs); n = len(regs) // 2
        for i in range(n):
            if isinstance(sT, list):
                a, b, t = sT[i]
                A(f"v_bitop3_b32 v{t0+i}, v{a}, v{b}, {t} bitop3:0x7e")
            else:
                g, r = i // 4, i % 4
                A(f"v_bitop3_b32 v{t0+i}, v{regs[8*g+r]}, v{regs[8*g+4+r]}, s{72+r} bitop3:0x7e")
        cur = [t0 + i for i in range(n)]
        while len(cur) > 1:
            if len(cur) >= 3:
                A(f"v_or3_b32 v{cur[0]}, v{cur[0]}, v{cur[1]}, v{cur[2]}"); cur = cur[3:] + [cur[0]]
            else:
                A(f"v_or_b32 v{cur[0]}, v{cur[0]}, v{cur[1]}"); cur = [cur[0]]
        A(f"v_cmp_ne_u32_sdwa vcc, v{cur[0]}, v{vzero} src0_sel:BYTE_0 src1_sel:DWORD")
    def mktags(se, lanebit):
        A(f"""s_mov_b32 s72, s{se}
        s_lshr_b32 s73, s{se}, 8
        s_lshr_b32 s74, s{se}, 16
        s_lshr_b32 s75, s{se}, 24
        v_mov_b32 v156, 0xff
        v_and_b32 v152, s72, v156
        v_and_b32 v153, s73, v156
        v_and_b32 v154, s74, v156
        v_and_b32 v155, s75, v156
        v_and_b32 v157, 1, v0
        v_cmp_eq_u32 vcc, 0, v157
        v_cndmask_b32 v156, v154, v152, vcc
        v_cndmask_b32 v157, v155, v153, vcc""")
    def rgmap(r, t):
        if tuple(free) == (28, 29, 30, 31): return
        mask = 0xffffffff
        for f in free: mask &= ~(1 << f)
        A(f"""s_bfm_b32 s{t}, s{r}, 0
        s_and_b32 s{t}, s{t}, {mask}
        s_bcnt1_i32_b32 s{t}, s{t}
        s_bitcmp1_b32 {mask}, s{r}
        s_cselect_b32 s{r}, s{t}, 28""")
    def bf16r(d, s):
        A(f"v_cvt_pk_bf16_f32 v{d}, v{s}, v{s}\nv_lshlrev_b32 v{d}, 16, v{d}")
    def ws_srd(d):
        A(f"""s_add_u32 s{d}, s26, {W_BLK}
        s_addc_u32 s{d+1}, s27, 0
        s_mov_b32 s{d+2}, 0x300000
        s_mov_b32 s{d+3}, 0x00020000""")
    def allred(v, t, op):
        A(f"""v_mov_b32 v{t}, v{v}
        v_permlane32_swap_b32 v{t}, v{v}
        {op} v{v}, v{v}, v{t}
        v_mov_b32 v{t}, v{v}
        v_permlane16_swap_b32 v{t}, v{v}
        {op} v{v}, v{v}, v{t}""")

    def allred2(v, t, w, u, op):
        for sw in ("v_permlane32_swap_b32", "v_permlane16_swap_b32"):
            A(f"""v_mov_b32 v{t}, v{v}
            v_mov_b32 v{u}, v{w}
            {sw} v{t}, v{v}
            {sw} v{u}, v{w}
            {op} v{v}, v{v}, v{t}
            {op} v{w}, v{w}, v{u}""")
    A(header)
    A(f"; @launch grid=(256,1,1) block=(384,1,1) lds={LDS_BYTES}")
    A(f""".amdgcn_target "amdgcn-amd-amdhsa--gfx950"
    .text
    .globl {NAME}
    .p2align 8
    .type {NAME},@function
    {NAME}:""")
    if early: A("s_memrealtime s[92:93]")
    A(f"""s_load_dwordx16 s[4:19], s[0:1], 0
    s_load_dwordx8 s[20:27], s[0:1], 64
    s_getpc_b64 s[30:31]
    L_pc:
    s_cmpk_ge_u32 s2, 256
    s_cbranch_scc1 L_end
    v_xor_b32 v2, 0x140, v0
    v_readfirstlane_b32 s3, v0
    v_lshlrev_b32 v2, 7, v2
    v_min_u32 v2, L_end-L_pc, v2
    global_load_dword v125, v2, s[30:31]""")
    if stamps or lamp: A("s_memrealtime s[94:95]")
    A(f"""s_cmp_eq_u32 s3, 0
    s_cbranch_scc0 L_notloader
    v_lshrrev_b32 v2, 3, v0
    v_and_b32 v9, 6, v2
    v_xor_b32 v9, v9, v0
    v_and_b32 v9, 7, v9
    v_lshlrev_b32 v9, 4, v9
    v_lshrrev_b32 v4, 5, v0
    v_and_b32 v5, 3, v2
    v_lshl_add_u32 v6, v4, 3, v5
    v_lshl_add_u32 v10, v6, 13, v9
    v_add_u32 v11, 31744, v10
    v_lshlrev_b32 v21, 4, v0
    s_mov_b32 s34, -1
    s_mov_b32 s35, 0x00020000
    s_movk_i32 s60, 0x800
    s_and_b32 s28, s2, 7
    s_lshr_b32 s29, s2, 3
    s_lshr_b32 s57, s2, 6
    s_lshl_b32 s57, s57, 10
    s_or_b32 s57, s57, s28
    s_lshl_b32 s57, s57, 3
    s_and_b32 s58, s29, 7
    s_or_b32 s57, s57, s58
    s_lshl_b32 s57, s57, 7
    s_lshl_b32 s59, s60, 6
    s_mov_b32 m0, {L_XR}
    {'s_memrealtime s[76:77]' if early else ''}
    s_waitcnt lgkmcnt(0)
    {'s_memrealtime s[78:79]' if early else ''}
    global_load_lds_dwordx4 v21, s[4:5]
    global_load_lds_dwordx4 v21, s[4:5] offset:1024
    s_lshl_b32 m0, s60, 5
    s_mov_b64 s[32:33], s[10:11]
    L_wq:
    buffer_load_dwordx4 v10, s[32:35], s57 offen nt lds
    buffer_load_dwordx4 v11, s[32:35], s57 offen offset:1024 nt lds
    s_add_u32 m0, m0, s60
    s_add_u32 s57, s57, s59
    s_bitcmp0_b32 m0, 14
    s_cbranch_scc1 L_wq""")
    A("L_after256:")
    if early: A("s_memrealtime s[82:83]\ns_mov_b32 s80, s82")
    if stamps: A(f"v_mov_b32 v{VST}, 0")
    A("""s_setprio 3
    s_and_b32 s61, s29, 3
    s_lshl_b32 s62, s61, 3
    s_add_u32 s62, s62, s28
    s_lshr_b32 s63, s29, 2""")
    rgmap(62, 58)
    if deep: A("s_memrealtime s[72:73]")
    assert order[0] == 'wq' and L_WQ == 0x10000
    info = dict(wq=(8, 32, 10, L_WQ, F_WQ), w1=(4, 36, 12, L_W1, F_W1), k=(16, 40, 14, L_K, F_K), v=(16, 44, 14, L_V, F_V),
                wo=(8, 48, 16, L_WO, F_WO), w2=(4, 52, 18, L_W2, F_W2))
    flag_at = {2: [F_X]}
    cum = 2
    for m in order:
        if m == 'v' and vsplit:
            for i, f in enumerate((F_V0, F_V1, F_V2)): flag_at.setdefault(cum + 8 * (i + 1), []).append(f)
        cum += 2 * info[m][0]
        flag_at.setdefault(cum, []).append(info[m][4])
    def kphase():
        if kph == 'A': A("s_and_b32 s67, s29, 15")
        elif kph == 'B': A("s_lshl_b32 s67, s28, 1\ns_lshr_b32 s59, s29, 4\ns_add_u32 s67, s67, s59")
        elif kph == 'C': A("s_lshl_b32 s67, s28, 1\ns_lshr_b32 s59, s29, 4\ns_add_u32 s67, s67, s59\ns_and_b32 s59, s29, 8\ns_add_u32 s67, s67, s59\ns_and_b32 s67, s67, 15")
        elif kph == 'D': A("s_lshl_b32 s67, s28, 1\ns_add_u32 s67, s67, s29\ns_and_b32 s67, s67, 15")
        elif kph == 'E': A("s_lshl_b32 s67, s28, 1\ns_lshr_b32 s59, s29, 2\ns_add_u32 s67, s67, s59\ns_and_b32 s67, s67, 15")
        elif kph == 'F': A("s_mul_i32 s67, s29, 5\ns_mul_i32 s59, s28, 3\ns_add_u32 s67, s67, s59\ns_and_b32 s67, s67, 15")
        elif kph == 'G': A("s_and_b32 s67, s29, 7\ns_lshl_b32 s67, s67, 1")
        elif kph == 'Z': A("s_mov_b32 s67, 0")
    def setup(m):
        if m == 'wq': return
        if m == 'w1':
            A("""v_mul_u32_u24 v12, 3584, v6
            v_add_u32 v12, v12, v9
            v_add_u32 v13, 13312, v12
            s_mov_b32 s36, s16
            s_mov_b32 s37, s17
            s_cmp_lt_u32 s62, 28
            s_cselect_b32 s38, 1835008, 0
            s_mov_b32 s39, 0x00020000
            s_mul_i32 s57, s63, 229376
            s_lshl_b32 s58, s62, 7
            s_add_u32 s57, s57, s58
            s_lshl_b32 s56, s61, 11""")
        elif m == 'k':
            A(f"""v_lshrrev_b32 v7, 4, v0
            v_lshlrev_b32 v8, 1, v7
            v_xor_b32 v8, v8, v0
            v_and_b32 v8, 15, v8
            v_lshlrev_b32 v8, 4, v8
            v_lshl_add_u32 v14, v7, 8, v8
            v_xor_b32 v15, 128, v14
            s_mov_b32 s40, s6
            s_mov_b32 s41, s7
            s_mov_b32 s42, 33554432
            s_mov_b32 s43, 0x00020000
            s_lshr_b32 s64, s29, 4
            s_lshl_b32 s64, s64, 3
            s_add_u32 s64, s64, s28
            s_lshl_b32 s64, s64, 21
            s_and_b32 s58, s29, 15
            s_lshl_b32 s58, s58, 15
            s_add_u32 s64, s64, s58
            s_add_u32 s64, s64, 1572864""")
            kphase()
            A("s_lshl_b32 s56, s67, 11")
        elif m == 'v':
            A(f"""s_mov_b32 s44, s8
            s_mov_b32 s45, s9
            s_mov_b32 s46, 33554432
            s_mov_b32 s47, 0x00020000""")
            if vsplit:
                A("""s_lshl_b32 s65, s61, 13
                s_and_b32 s66, s63, 3
                s_lshl_b32 s66, s66, 11
                s_or_b32 s56, s65, s66""")
            else:
                A("s_lshl_b32 s56, s67, 11")
        elif m == 'wo':
            A("""v_lshl_add_u32 v7, v4, 7, v5
            v_lshl_add_u32 v16, v7, 10, v9
            v_add_u32 v17, 15360, v16
            s_mov_b32 s48, s12
            s_mov_b32 s49, s13
            s_mov_b32 s50, 4194304
            s_mov_b32 s51, 0x00020000
            s_lshl_b32 s57, s28, 19
            s_lshl_b32 s58, s61, 15
            s_add_u32 s57, s57, s58
            s_lshl_b32 s58, s63, 7
            s_add_u32 s57, s57, s58""")
            A(dict(A="s_and_b32 s56, s29, 7\ns_lshl_b32 s56, s56, 11", Z="s_mov_b32 s56, 0", X="s_lshl_b32 s56, s28, 11", P="s_lshl_b32 s56, s28, 11")[wph])
        elif m == 'w2':
            A("""v_lshl_add_u32 v18, v6, 10, v9
            v_add_u32 v19, 3072, v18
            s_mov_b32 s52, s20
            s_mov_b32 s53, s21
            s_cmp_lt_u32 s62, 28
            s_cselect_b32 s54, 1835008, 0
            s_mov_b32 s55, 0x00020000
            s_lshl_b32 s57, s62, 16
            s_lshl_b32 s58, s63, 7
            s_add_u32 s57, s57, s58
            s_lshl_b32 s56, s61, 11""")
    total = cum
    if hold or pre: flag_at.setdefault(total - (hold or pre), []).append(F_PRE)
    if mlpre: flag_at.setdefault(total - mlpre, []).append(F_QA)
    stn = {F_PRE: 10, F_WQ: 3, F_W1: 4, F_K: 5, F_V: 6, F_WO: 7, F_QA: 2, F_X: 8, F_W2: 9}
    def stream(depth, variant):
        issued = 2
        done_barrier = variant != 0
        flagged = set()
        live = variant == 0
        pending = False
        def landed(n):
            for c in sorted(flag_at):
                if c <= n and c not in flagged:
                    flagged.add(c)
                    if not live: continue
                    A("s_mov_b64 exec, 1")
                    for f in flag_at[c]: A(f"ds_write_b32 v20, v20 offset:{f}")
                    A("s_mov_b64 exec, -1")
                    for f in flag_at[c]:
                        if f in stn: stamp(stn[f])
        for m in order:
            npair, srd, vo, lbase, _ = info[m]
            if m == 'wq':
                issued += 16
                continue
            if live: setup(m)
            for p in range(npair):
                d = depth
                if dsched and variant == 0:
                    for (frm, dd) in dsched:
                        if issued >= frm: d = dd
                if variant == 1 and (issued - (depth0 - 2)) in chk:
                    live = True
                    A(f"L_deep{issued}:")
                if hold and issued >= total - hold:
                    if issued == total - hold and live:
                        cv = [c for c in flag_at if F_V in flag_at[c]][0]
                        for c in sorted(flag_at):
                            if c <= cv and c not in flagged:
                                A(f"s_waitcnt vmcnt({issued - c})")
                                landed(c)
                        l = lab("hold")
                        A(f"""{l}:
                        ds_read_b128 v[24:27], v20 offset:{F_OPD}
                        s_waitcnt lgkmcnt(0)
                        v_max3_u32 v24, v24, v25, v26
                        v_max_u32 v24, v24, v27
                        v_cmp_eq_u32 vcc, -1, v24
                        s_cbranch_vccnz {l}""")
                elif issued + 2 > d:
                    if not done_barrier:
                        A(f"v_mov_b32 v20, {L_FLG}\ns_barrier")
                        stamp(1)
                        done_barrier = True
                    if live: A(f"s_waitcnt vmcnt({d - 2})")
                    landed(issued - (d - 2))
                    if prof and live and (issued - (d - 2)) % 8 == 2: stamp(11 + (issued - (d - 2)) // 8)
                    if variant == 0 and deep:
                        n = issued - (d - 2)
                        if n in chk:
                            thr = int(t0 + slope * (n - 2) + margin)
                            A(f"""s_memrealtime s[70:71]
                            s_waitcnt lgkmcnt(0)
                            s_sub_u32 s70, s70, s72
                            s_cmp_gt_u32 s70, {thr}
                            s_cbranch_scc1 L_deep{issued}""")
                if live:
                    A(f"s_add_u32 m0, s56, {lbase}" if lbase else "s_mov_b32 m0, s56")
                    if m == 'wq': A("s_lshl_b32 s58, s56, 6\ns_add_u32 s58, s58, s57")
                    elif m == 'w1': A("s_mul_i32 s58, s56, 28\ns_add_u32 s58, s58, s57")
                    elif m == 'w2': A("s_lshl_b32 s58, s56, 3\ns_add_u32 s58, s58, s57")
                    elif m == 'wo': A("s_and_b32 s58, s56, s60\ns_lshl_b32 s58, s58, 7\ns_and_b32 s59, s56, 0x3000\ns_add_u32 s58, s58, s59\ns_add_u32 s58, s58, s57")
                    else: A("s_add_u32 s58, s56, s64")
                    fl = ntkv if m in ('k', 'v') else ntw
                    A(f"buffer_load_dwordx4 v{vo}, s[{srd}:{srd+3}], s58 offen{fl} lds")
                    A(f"buffer_load_dwordx4 v{vo+1}, s[{srd}:{srd+3}], s58 offen offset:1024{fl} lds")
                issued += 2
                if p != npair - 1 and live:
                    if m == 'v' and vsplit:
                        A("s_add_u32 s66, s66, s60\ns_and_b32 s66, s66, 0x1fff")
                        if p % 4 == 3: A("s_add_u32 s65, s65, 0x2000\ns_and_b32 s65, s65, 0x7fff")
                        A("s_or_b32 s56, s65, s66")
                    else:
                        A(f"s_add_u32 s56, s56, s60\ns_and_b32 s56, s56, {npair * 2048 - 1}")
        pts = set(c for c in flag_at if c not in flagged)
        if prof: pts |= set(c for c in range(issued - depth + 4, issued + 1) if c % 8 == 2)
        for c in sorted(pts):
            A(f"s_waitcnt vmcnt({issued - c})")
            landed(c)
            if prof and c % 8 == 2: stamp(11 + c // 8)
        if early:
            for k, r in ((11, 76), (12, 78), (13, 80), (14, 82), (15, 92)): A(f"v_writelane_b32 v{VST}, s{r}, {k}")
        if stamps: A(f"s_mov_b32 s98, {variant + 1}\nv_writelane_b32 v{VST}, s98, 31")
        stamp0()
        dump_stamps()
        A("s_endpgm")
    depth0 = depth
    stream(depth, 0)
    if deep: stream(deep, 1)

    A("L_notloader:")
    A("""s_lshr_b32 s3, s3, 6
    v_and_b32 v0, 63, v0
    s_and_b32 s28, s2, 7
    s_lshr_b32 s29, s2, 3""")
    if stamps: A(f"v_mov_b32 v{VST}, 0")
    if loaderonly: A("s_barrier\ns_endpgm")
    A("s_cmp_eq_u32 s3, 1\ns_cbranch_scc0 L_compute")
    A(f"""s_and_b32 s61, s29, 3
    s_lshl_b32 s62, s61, 3
    s_add_u32 s62, s62, s28""")
    rgmap(62, 63)
    A(f"""v_and_b32 v11, 7, v0
    v_lshlrev_b32 v11, 2, v11
    v_lshrrev_b32 v12, 5, v0
    v_lshl_add_u32 v11, v12, 1, v11
    v_bfe_u32 v12, v0, 4, 1
    v_add_u32 v11, v11, v12
    v_bfe_u32 v12, v0, 3, 1
    v_lshl_add_u32 v11, v12, 5, v11
    s_min_u32 s63, s62, 27
    s_lshl_b32 s63, s63, 6
    v_add_u32 v13, s63, v11
    v_lshlrev_b32 v13, 1, v13
    v_mov_b32 v20, {L_FLG}
    v_mov_b32 v40, 0
    v_mov_b32 v41, 0
    v_mov_b32 v19, 0
    s_mov_b32 s100, 0
    s_mov_b32 s101, 0
    s_getreg_b32 s64, hwreg(HW_REG_XCC_ID)
    s_lshl_b32 s65, s28, 17
    s_lshl_b32 s66, s29, 12
    s_add_u32 s66, s66, s65
    v_and_b32 v21, 31, v0
    v_lshlrev_b32 v21, 12, v21
    s_waitcnt lgkmcnt(0)
    s_load_dword s5, s[26:27], 0""")
    if b1early: A("global_load_ushort v14, v13, s[18:19]")
    ws_srd(8)
    def dotouch():
        A(f"""v_lshlrev_b32 v25, 7, v0
        s_mov_b32 exec_lo, {touch}
        s_mov_b32 exec_hi, 0
        buffer_load_dword v124, v25, s[8:11], s66 offen{tfl}
        s_mov_b64 exec, -1""")
    if touch and not tlate: dotouch()
    A(f"""s_barrier
    s_and_b32 s64, s64, 15
    s_waitcnt lgkmcnt(0)
    s_add_u32 s5, s5, 1
    s_lshl_b32 s6, s5, 4
    s_or_b32 s6, s6, s64
    v_mov_b32 v22, s6
    v_lshlrev_b32 v24, 2, v0
    s_mov_b32 exec_lo, {0 if nobeacon else (-1 if fullid else 1)}
    s_mov_b32 exec_hi, 0
    buffer_store_dword v22, v24, s[8:11], s66 offen offset:{B_ID}
    s_mov_b64 exec, -1""")
    if prew:
        A("""s_not_b32 s34, s5
        v_mov_b32 v28, s34
        v_mov_b32 v29, s34
        v_mov_b32 v30, s34
        v_mov_b32 v31, s34
        v_lshlrev_b32 v25, 4, v0""")
        for o in ([0] if prew & 1 else []) + ([1024, 2048] if prew & 2 else []):
            A(f"buffer_store_dwordx4 v[28:31], v25, s[8:11], s66 offen offset:{o}")
        if prew & 4: A(f"s_mov_b64 exec, 0xff\nbuffer_store_dwordx4 v[28:31], v25, s[8:11], s66 offen offset:{B_ML}\ns_mov_b64 exec, -1")
    if xdirty:
        A(f"v_lshlrev_b32 v25, 4, v0\ns_xor_b32 s34, s66, {W_B}")
        for o in range(xdirty): A(f"buffer_store_dwordx4 v[28:31], v25, s[8:11], s34 offen offset:{1024*o}")
    if not b1early: A("global_load_ushort v14, v13, s[18:19]")
    stamp0()
    A(f"""v_lshrrev_b32 v5, 4, v0
    v_and_b32 v4, 15, v0
    v_bfe_u32 v60, v0, 2, 2
    v_and_b32 v17, 1, v5
    v_lshl_add_u32 v60, v17, 2, v60
    v_bfe_u32 v18, v0, 1, 1
    v_and_b32 v61, 6, v60
    v_xor_b32 v18, v18, v61
    v_lshlrev_b32 v18, 4, v18
    v_and_b32 v61, 1, v0
    v_lshl_add_u32 v18, v61, 3, v18
    v_lshrrev_b32 v17, 5, v0
    v_lshl_add_u32 v17, v17, 4, v60
    v_lshl_add_u32 v62, v17, 7, v18
    v_add_u32 v62, {L_W1}, v62
    v_xor_b32 v63, 32, v62
    v_xor_b32 v64, 64, v62
    v_xor_b32 v65, 96, v62
    v_mul_u32_u24 v18, {XSTR}, v61
    v_lshl_add_u32 v18, v5, 4, v18
    s_lshr_b32 s37, s29, 2
    s_lshl_b32 s37, s37, 7
    s_add_u32 s37, s37, {L_XN}
    v_add_u32 v66, s37, v18
    v_lshlrev_b32 v67, 8, v4
    v_lshl_add_u32 v67, v5, 4, v67
    s_movk_i32 s53, 0xff00
    s_mov_b32 s48, 0x00030003
    s_mov_b32 s49, 0x00030003""")
    mktags(5, 0)
    wait_flag(20, F_XN, 18)
    if not nobeacon: A(f"buffer_load_dword v23, v21, s[8:11], s65 offen offset:{B_ID} sc1")
    A("ds_read_b128 v[24:27], v66\nds_read_b128 v[28:31], v66 offset:64")
    wait_flag(20, F_W1, 18)
    for t in range(4):
        for kk in range(2):
            for u in range(2):
                r = 72 + 8 * t + 4 * kk + 2 * u
                A(f"ds_read_b64_tr_b16 v[{r}:{r+1}], v{62+t} offset:{kk*4096 + u*1024}")
    for t in range(4):
        A(f"s_waitcnt lgkmcnt({12 - 4*t})")
        for kk in range(2):
            r = 72 + 8 * t + 4 * kk
            A(f"v_mfma_f32_16x16x32_bf16 v[{104+4*t}:{107+4*t}], v[{r}:{r+3}], v[{24+4*kk}:{27+4*kk}], {f'v[{104+4*t}:{107+4*t}]' if kk else 0}")
    for r in range(104, 120): A(f"v_and_or_b32 v{r}, v{r}, s53, v{152 + r % 4}")
    A("s_mov_b64 exec, s[48:49]")
    for t in range(4): A(f"buffer_store_dwordx4 v[{104+4*t}:{107+4*t}], v67, s[8:11], s66 offen offset:{B_HP + 64*t}{pst}")
    A("s_mov_b64 exec, -1\ns_mov_b32 s7, 0")
    stamp(6)
    if nobeacon: A("s_branch L_idok")
    l = lab("id")
    A(f"""s_waitcnt vmcnt(4)
    s_branch L_idchk
    {l}:
    buffer_load_dword v23, v21, s[8:11], s65 offen offset:{B_ID} sc1
    s_waitcnt vmcnt(0)
    L_idchk:
    v_cmp_ne_u32 vcc, s6, v23
    s_cbranch_vccz L_idok
    s_add_u32 s7, s7, 1
    s_cmp_lt_u32 s7, {IDTRY}
    s_cbranch_scc1 {l}
    L_idok:
    s_cmp_eq_u32 s7, {IDTRY}
    s_cselect_b32 s7, 1, 0""")
    if forcemode is not None: A(f"s_mov_b32 s7, {forcemode}")
    A("v_mov_b32 v23, s7")
    set_flag(20, F_MODE, 23)
    if touch and tlate: dotouch()
    stamp(1)
    A(f"""s_cmp_eq_u32 s7, 0
    s_cbranch_scc1 L_hpfast
    s_xor_b32 s37, s66, {W_B}
    s_mov_b64 exec, s[48:49]""")
    for t in range(4): A(f"buffer_store_dwordx4 v[{104+4*t}:{107+4*t}], v67, s[8:11], s37 offen offset:{B_HP + 64*t} sc1")
    A("s_mov_b64 exec, -1\nL_hpfast:")
    A(f"""s_cmp_lt_u32 s62, 28
    s_cbranch_scc0 L_actw
    v_lshrrev_b32 v16, 3, v0
    v_lshlrev_b32 v16, 14, v16
    v_and_b32 v17, 7, v0
    v_lshl_add_u32 v16, v17, 4, v16
    s_lshl_b32 s31, s61, 12
    s_add_u32 s31, s31, s65""")
    if hpt: wait_flag(20, {'k': F_K}[hpt], 18)
    elif hs: A(f"s_sleep {hs}")
    l = lab("hp")
    A(f"s_lshl_b32 s7, s7, 21\n{l}:\ns_xor_b32 s31, s31, s7")
    for i in range(4):
        b, half = i & 1, i >> 1
        A(f"buffer_load_dwordx4 v[{24+4*i}:{27+4*i}], v16, s[8:11], s31 offen offset:{B_HP + b*256 + half*128} sc1")
    A("s_waitcnt vmcnt(0)")
    bad_tag(range(24, 40), 44, 5, 19)
    gloop_back(l, sleep=4)
    stamp(2)
    for i in range(4):
        r = 24 + 4 * i
        A(f"""v_permlane32_swap_b32 v{r}, v{r+2}
        v_permlane32_swap_b32 v{r+1}, v{r+3}
        v_add_f32 v{r}, v{r}, v{r+2}
        v_add_f32 v{r+1}, v{r+1}, v{r+3}""")
    for i in range(4):
        r = 24 + 4 * i
        A(f"v_permlane16_swap_b32 v{r}, v{r+1}\nv_add_f32 v{r}, v{r}, v{r+1}")
    for i in range(4):
        r = 24 + 4 * i
        A(f"v_add_f32 v{r}, v{r}, v{r} row_ror:8")
    A("""v_and_b32 v18, 8, v0
    v_cmp_eq_u32 vcc, 0, v18
    v_cndmask_b32 v40, v32, v24, vcc
    v_cndmask_b32 v41, v36, v28, vcc
    v_lshlrev_b32 v14, 16, v14
    s_mov_b32 s32, 0x3fb8aa3b
    s_mov_b32 s33, 0x3f317218""")
    for h in (40, 41):
        t = 44
        bf16r(h, h)
        A(f"v_add_f32 v{h}, v{h}, v14")
        bf16r(h, h)
        A(f"v_mul_f32 v{t}, s32, v{h}\nv_exp_f32 v{t}, -abs(v{t})")
        bf16r(t, t)
        A(f"""v_add_f32 v{t+1}, 1.0, v{t}
        v_log_f32 v{t+2}, v{t+1}
        v_add_f32 v{t+3}, -1.0, v{t+1}
        v_rcp_f32 v{t+3}, v{t+3}
        v_mul_f32 v{t+2}, s33, v{t+2}
        v_mul_f32 v{t+2}, v{t+2}, v{t}
        v_mul_f32 v{t+2}, v{t+2}, v{t+3}
        v_cmp_eq_f32 vcc, 1.0, v{t+1}
        v_cndmask_b32 v{t+2}, v{t+2}, v{t}, vcc""")
        bf16r(t+2, t+2)
        A(f"v_max_f32 v{t+1}, 0, v{h}\nv_add_f32 v{t+2}, v{t+2}, v{t+1}")
        bf16r(t+2, t+2)
        A(f"""v_mul_f32 v{t}, -2.0, v{t+2}
        v_mul_f32 v{t+1}, s32, v{t}
        v_exp_f32 v{t+1}, v{t+1}
        v_log_f32 v{t+3}, v{t+1}
        v_add_f32 v{t+4}, -1.0, v{t+1}
        v_mul_f32 v{t+3}, s33, v{t+3}
        v_rcp_f32 v{t+3}, v{t+3}
        v_mul_f32 v{t+5}, v{t+4}, v{t}
        v_mul_f32 v{t+5}, v{t+5}, v{t+3}
        v_cmp_eq_f32 vcc, 1.0, v{t+1}
        v_cndmask_b32 v{t+5}, v{t+5}, v{t}, vcc
        v_cmp_gt_f32 vcc, 0.5, v{t+1}
        v_cndmask_b32 v{t+5}, v{t+5}, v{t+4}, vcc
        v_add_f32 v{t+4}, 2.0, v{t+5}
        v_rcp_f32 v{t+4}, v{t+4}
        v_mul_f32 v{t+5}, v{t+5}, v{t+4}
        v_sub_f32 v{t+5}, 0, v{t+5}""")
        bf16r(t+5, t+5)
        A(f"v_mul_f32 v{h}, v{h}, v{t+5}\nv_cvt_pk_bf16_f32 v{h}, v{h}, v{h}")
    A(f"""L_actw:
    v_lshlrev_b32 v11, 1, v11
    v_add_u32 v11, {L_ACT}, v11
    ds_write_b16 v11, v40
    ds_write_b16 v11, v41 offset:128""")
    set_flag(20, F_ACT, 20)
    stamp(3)
    A(f"""v_lshrrev_b32 v16, 2, v0
    v_and_b32 v17, 3, v0
    v_lshlrev_b32 v21, 12, v16
    v_lshl_add_u32 v21, v17, 3, v21
    s_add_u32 s66, s65, 65536
    v_and_b32 v18, 15, v0
    v_lshlrev_b32 v18, 4, v18
    v_lshrrev_b32 v22, 4, v0
    v_lshl_add_u32 v22, v22, 2, v18
    v_add_u32 v22, {L_AL}, v22
    s_movk_i32 s53, 0xff00
    s_mov_b32 s52, -2""")
    if mlpre: wait_flag(20, F_QA, 18)
    elif mlt: wait_flag(20, {'v0': F_V0, 'v1': F_V1, 'v2': F_V2, 'v': F_V, 'k': F_K}[mlt], 18)
    l = lab("ml")
    if mlpipe: A("v_not_b32 v24, v156\nv_not_b32 v26, v156\ns_waitcnt vmcnt(0)")
    A(f"""{l}:
    buffer_load_dwordx2 v[24:25], v21, s[8:11], s65 offen offset:{B_ML} sc1
    buffer_load_dwordx2 v[26:27], v21, s[8:11], s66 offen offset:{B_ML} sc1""")
    if mlpipe and mlsl: A(f"s_sleep {mlsl}")
    A(f"""s_waitcnt vmcnt({2 * mlpipe})
    v_mov_b32 v32, v24
    v_mov_b32 v33, v25
    v_mov_b32 v34, v26
    v_mov_b32 v35, v27""")
    bad_tag(range(32, 36), 44, [(32, 34, "v156"), (33, 35, "v157")], 19)
    gloop_back(l)
    stamp(4)
    A("""v_and_b32 v32, s53, v32
    v_and_b32 v34, s53, v34
    v_max_f32 v28, v32, v32 row_ror:4
    v_max_f32 v29, v34, v34 row_ror:4
    v_max_f32 v28, v28, v28 row_ror:8
    v_max_f32 v29, v29, v29 row_ror:8""")
    allred2(28, 30, 29, 31, "v_max_f32")
    A("""v_sub_f32 v32, v32, v28
    v_sub_f32 v34, v34, v29
    v_exp_f32 v32, v32
    v_exp_f32 v34, v34
    v_mul_f32 v33, v32, v33
    v_mul_f32 v35, v34, v35
    v_add_f32 v28, v33, v33 row_ror:4
    v_add_f32 v29, v35, v35 row_ror:4
    v_add_f32 v28, v28, v28 row_ror:8
    v_add_f32 v29, v29, v29 row_ror:8""")
    allred2(28, 30, 29, 31, "v_add_f32")
    A("""v_rcp_f32 v28, v28
    v_rcp_f32 v29, v29
    v_mul_f32 v32, v32, v28
    v_mul_f32 v34, v34, v29
    v_min_u32 v32, s52, v32
    v_min_u32 v34, s52, v34
    ds_write_b32 v22, v32
    ds_write_b32 v22, v34 offset:256""")
    stamp(5)
    dump_stamps()
    A("s_waitcnt lgkmcnt(0)\ns_endpgm")

    A("L_compute:")
    if cprio: A(f"s_setprio {cprio}")
    A(f"""s_sub_u32 s30, s3, 2
    v_lshlrev_b32 v2, 4, v0
    s_lshl_b32 s31, s30, 10
    s_add_u32 s31, s31, {L_S}
    v_add_u32 v3, s31, v2
    v_mov_b32 v4, -1
    v_mov_b32 v5, -1
    v_mov_b32 v6, -1
    v_mov_b32 v7, -1
    ds_write_b128 v3, v[4:7]
    s_mov_b32 s100, 0
    s_mov_b32 s101, 0
    s_waitcnt lgkmcnt(0)
    s_load_dword s54, s[26:27], 0
    s_barrier""")
    ws_srd(32)
    A(f"""s_mov_b32 s36, 0xffff0000
    v_and_b32 v4, 15, v0
    v_lshrrev_b32 v5, 4, v0
    v_mov_b32 v6, {L_FLG}
    v_bfe_u32 v96, v0, 2, 2
    v_and_b32 v17, 1, v5
    v_lshl_add_u32 v96, v17, 2, v96
    v_bfe_u32 v18, v0, 1, 1
    s_lshl_b32 s37, s30, 1
    v_add_u32 v18, s37, v18
    v_and_b32 v19, 6, v96
    v_xor_b32 v18, v18, v19
    v_lshlrev_b32 v18, 4, v18
    v_and_b32 v19, 1, v0
    v_lshl_add_u32 v18, v19, 3, v18
    v_lshrrev_b32 v17, 5, v0
    v_lshl_add_u32 v17, v17, 4, v96
    v_lshl_add_u32 v7, v17, 7, v18
    v_add_u32 v7, {L_WQ}, v7
    ; xn frag addresses v106 (wq rows), v105 (w1 rows)
    v_mul_u32_u24 v18, {XSTR}, v19
    v_lshl_add_u32 v18, v5, 4, v18
    s_lshr_b32 s37, s29, 3
    s_lshl_b32 s37, s37, 8
    s_add_u32 s37, s37, {L_XN}
    v_add_u32 v106, s37, v18
    s_lshl_b32 s37, s30, 6
    v_lshlrev_b32 v18, 8, v4
    v_lshl_add_u32 v18, v5, 4, v18
    v_add_u32 v107, s37, v18
    s_lshl_b32 s38, s28, 5
    s_add_u32 s38, s38, s29
    s_lshl_b32 s68, s38, 9
    s_lshl_b32 s38, s38, 12
    s_add_u32 s68, s68, {W_FP}
    v_add_u32 v3, {L_XN}, v2
    v_add_u32 v16, {L_XR}, v2
    s_mov_b32 s48, 0x00030003
    s_mov_b32 s49, 0x00030003
    s_mov_b32 s52, -2
    s_movk_i32 s53, 0xff00""")
    stamp(1)
    wait_flag(6, F_X, 17)
    A(f"""ds_read_b128 v[8:11], v16
    ds_read_b128 v[12:15], v16 offset:1024
    s_add_u32 s54, s54, 1
    s_waitcnt lgkmcnt(0)""")
    stamp0()
    stamp(2)
    for b in range(2):
        for i in range(4):
            A(f"v_lshlrev_b32 v{16+8*b+2*i}, 16, v{8+4*b+i}\nv_and_b32 v{17+8*b+2*i}, s36, v{8+4*b+i}")
    def red2(a, b, t):
        A(f"""v_permlane32_swap_b32 v{a}, v{b}
        v_add_f32 v{a}, v{a}, v{b}
        v_mov_b32 v{t}, v{a}
        v_permlane16_swap_b32 v{t}, v{a}
        v_add_f32 v{a}, v{a}, v{t}
        v_add_f32 v{a}, v{a}, v{a} row_ror:8
        v_add_f32 v{a}, v{a}, v{a} row_ror:4
        v_add_f32 v{a}, v{a}, v{a} row_ror:2
        v_add_f32 v{a}, v{a}, v{a} row_ror:1""")
    for b in range(2):
        f = 16 + 8 * b
        A(f"""v_pk_add_f32 v[{32+4*b}:{33+4*b}], v[{f}:{f+1}], v[{f+2}:{f+3}]
        v_pk_add_f32 v[{34+4*b}:{35+4*b}], v[{f+4}:{f+5}], v[{f+6}:{f+7}]""")
    for b in range(2):
        A(f"v_pk_add_f32 v[{32+4*b}:{33+4*b}], v[{32+4*b}:{33+4*b}], v[{34+4*b}:{35+4*b}]")
    A("v_add_f32 v32, v32, v33\nv_add_f32 v36, v36, v37")
    red2(32, 36, 33)
    A("""v_mul_f32 v32, 0x3b000000, v32
    v_readlane_b32 s60, v32, 0
    v_readlane_b32 s62, v32, 32""")
    for b in range(2):
        f = 16 + 8 * b
        for i in range(4):
            A(f"v_pk_add_f32 v[{40+8*b+2*i}:{41+8*b+2*i}], v[{f+2*i}:{f+2*i+1}], s[{60+2*b}:{61+2*b}] op_sel_hi:[1,0] neg_lo:[0,1] neg_hi:[0,1]")
    for b in range(2):
        d = 40 + 8 * b
        A(f"v_pk_mul_f32 v[{34+2*b}:{35+2*b}], v[{d}:{d+1}], v[{d}:{d+1}]")
    for i in range(1, 4):
        for b in range(2):
            d = 40 + 8 * b + 2 * i
            A(f"v_pk_fma_f32 v[{34+2*b}:{35+2*b}], v[{d}:{d+1}], v[{d}:{d+1}], v[{34+2*b}:{35+2*b}]")
    A("v_add_f32 v34, v34, v35\nv_add_f32 v36, v36, v37")
    red2(34, 36, 33)
    A("v_mul_f32 v34, 0x3b000000, v34")
    bf16r(34, 34)
    A("v_add_f32 v34, 0x3727c5ac, v34")
    bf16r(34, 34)
    A("v_sqrt_f32 v34, v34")
    bf16r(32, 32)
    bf16r(34, 34)
    A("v_rcp_f32 v34, v34")
    A("""v_readlane_b32 s60, v32, 0
    v_readlane_b32 s62, v32, 32
    v_readlane_b32 s64, v34, 0
    v_readlane_b32 s66, v34, 32""")
    for b in range(2):
        f = 16 + 8 * b
        for i in range(4):
            A(f"v_pk_add_f32 v[{f+2*i}:{f+2*i+1}], v[{f+2*i}:{f+2*i+1}], s[{60+2*b}:{61+2*b}] op_sel_hi:[1,0] neg_lo:[0,1] neg_hi:[0,1]")
    for i in range(8):
        A(f"v_cvt_pk_bf16_f32 v{8+i}, v{16+2*i}, v{17+2*i}")
    for i in range(8):
        A(f"v_lshlrev_b32 v{16+2*i}, 16, v{8+i}\nv_and_b32 v{17+2*i}, s36, v{8+i}")
    for b in range(2):
        f = 16 + 8 * b
        for i in range(4):
            A(f"v_pk_mul_f32 v[{f+2*i}:{f+2*i+1}], v[{f+2*i}:{f+2*i+1}], s[{64+2*b}:{65+2*b}] op_sel_hi:[1,0]")
    for i in range(8):
        A(f"v_cvt_pk_bf16_f32 v{8+i}, v{16+2*i}, v{17+2*i}")
    A(f"""ds_write_b128 v3, v[8:11]
    ds_write_b128 v3, v[12:15] offset:{XSTR}""")
    set_flag(6, F_XN, 6)
    mktags(54, 0)
    A("s_waitcnt lgkmcnt(0)")
    for kk in range(4): A(f"ds_read_b128 v[{24+4*kk}:{27+4*kk}], v106 offset:{64*kk}")
    stamp(3)
    wait_flag(6, F_WQ, 16)
    stamp(4)
    def trw(base, nk, r0):
        for kk in range(nk):
            for u in range(2):
                A(f"ds_read_b64_tr_b16 v[{r0+4*kk+2*u}:{r0+4*kk+2*u+1}], v7 offset:{base - L_WQ + kk*4096 + u*1024}")
    def tag(regs):
        for r in regs: A(f"v_and_or_b32 v{r}, v{r}, s53, v{152 + r % 4}")
    trw(L_WQ, 4, 48)
    for kk in range(4):
        A(f"s_waitcnt lgkmcnt({6 - 2*kk})")
        A(f"v_mfma_f32_16x16x32_bf16 v[88:91], v[{48+4*kk}:{51+4*kk}], v[{24+4*kk}:{27+4*kk}], {'v[88:91]' if kk else 0}")
    tag(range(88, 92))
    A(f"""s_mov_b64 exec, s[48:49]
    buffer_store_dwordx4 v[88:91], v107, s[32:35], s38 offen offset:{B_QP}{pst}
    s_mov_b64 exec, -1""")
    stamp(5)
    A(f"""v_lshlrev_b32 v119, 15, v5
    v_lshl_add_u32 v119, v4, 4, v119
    s_lshl_b32 s39, s28, 17
    s_lshl_b32 s37, s30, 13
    s_add_u32 s39, s39, s37
    s_lshr_b32 s37, s29, 4
    s_lshl_b32 s37, s37, 8
    s_add_u32 s39, s39, s37
    s_add_u32 s40, s39, 4096
    v_lshlrev_b32 v118, 5, v5
    v_lshl_add_u32 v118, v4, 4, v118
    s_lshl_b32 s37, s30, 7
    v_add_u32 v118, s37, v118""")
    def qloads(r):
        A(f"""buffer_load_dwordx4 v[{r}:{r+3}], v119, s[32:35], s39 offen offset:{B_QP} sc1
        buffer_load_dwordx4 v[{r+4}:{r+7}], v119, s[32:35], s40 offen offset:{B_QP} sc1""")
    A(f"""; ---- remaining addresses
    v_mov_b32 v123, 0
    v_and_b32 v19, 1, v0
    v_bfe_u32 v18, v0, 1, 1
    s_lshl_b32 s37, s30, 2
    v_add_u32 v18, s37, v18
    v_lshlrev_b32 v17, 1, v96
    v_xor_b32 v18, v18, v17
    v_lshlrev_b32 v18, 4, v18
    v_lshl_add_u32 v18, v19, 3, v18
    v_lshrrev_b32 v17, 2, v0
    v_lshl_add_u32 v100, v17, 8, v18
    s_lshl_b32 s37, s30, 2
    v_add_u32 v101, s37, v6
    v_and_b32 v17, 7, v0
    v_lshlrev_b32 v17, 1, v17
    v_xor_b32 v17, v17, v5
    v_lshlrev_b32 v17, 4, v17
    v_lshl_add_u32 v17, v4, 8, v17
    s_lshl_b32 s37, s30, 13
    v_add_u32 v102, s37, v17
    v_xor_b32 v103, 64, v102
    v_xor_b32 v104, 128, v102
    v_xor_b32 v105, 192, v102
    v_mul_u32_u24 v116, {OSTR}, v19
    v_lshl_add_u32 v116, v5, 4, v116
    v_add_u32 v116, {L_O}, v116
    v_lshlrev_b32 v117, 7, v19
    v_lshl_add_u32 v117, v5, 4, v117
    v_add_u32 v117, {L_ACT}, v117
    v_lshrrev_b32 v17, 5, v0
    v_lshlrev_b32 v17, 7, v17
    v_lshl_add_u32 v17, v4, 3, v17
    v_and_b32 v18, 1, v5
    v_lshl_add_u32 v17, v18, 2, v17
    s_mul_i32 s37, s30, {QSTR}
    s_add_u32 s37, s37, {L_Q}
    v_add_u32 v120, s37, v17
    v_and_b32 v19, 3, v0
    v_mul_u32_u24 v121, {QSTR}, v19
    v_lshl_add_u32 v121, v5, 4, v121
    v_add_u32 v121, {L_Q}, v121
    v_lshlrev_b32 v20, 6, v5
    v_lshl_add_u32 v20, v19, 4, v20
    v_add_u32 v108, {L_P}, v20
    s_lshl_b32 s37, s30, 8
    v_add_u32 v110, s37, v108
    s_lshl_b32 s37, s30, 9
    v_add_u32 v109, s37, v20
    s_and_b32 s41, s30, 1
    s_lshl_b32 s37, s41, 8
    s_add_u32 s37, s37, {L_AL}
    v_add_u32 v114, s37, v20
    v_lshlrev_b32 v111, 5, v19
    v_add_u32 v111, {L_ML}, v111
    s_lshl_b32 s37, s30, 2
    v_add_u32 v112, s37, v111
    v_lshlrev_b32 v106, 3, v4
    v_lshlrev_b32 v16, 12, v5
    v_lshl_add_u32 v113, v4, 4, v16
    s_and_b32 s43, s29, 3
    s_lshl_b32 s37, s43, 9
    s_lshr_b32 s42, s30, 1
    s_lshl_b32 s44, s42, 8
    s_add_u32 s37, s37, s44
    v_add_u32 v113, s37, v113
    s_lshl_b32 s44, s28, 17
    s_lshl_b32 s37, s41, 16
    s_add_u32 s44, s44, s37
    s_add_u32 s45, s44, 16384
    s_add_u32 s46, s44, 32768
    s_add_u32 s47, s44, 49152
    v_lshlrev_b32 v115, 4, v4
    v_lshl_add_u32 v115, v18, 2, v115
    s_mul_i32 s37, s41, {OSTR}
    s_lshl_b32 s42, s42, 3
    s_add_u32 s37, s37, s42
    s_add_u32 s37, s37, {L_O}
    v_add_u32 v115, s37, v115
    s_mov_b32 s50, 0x000f000f
    s_mov_b32 s51, 0x000f000f
    s_mov_b32 s58, 0x3db504f3
    s_mov_b32 s59, 0x3fb8aa3b
    s_lshl_b32 s70, s29, 9
    s_lshl_b32 s37, s30, 7
    s_add_u32 s70, s70, s37
    s_add_u32 s70, s70, {W_FP}
    v_lshrrev_b32 v17, 3, v0
    v_lshlrev_b32 v17, 14, v17
    v_and_b32 v16, 7, v0
    v_lshl_add_u32 v99, v16, 4, v17
    v_and_b32 v16, 1, v0
    v_lshlrev_b32 v16, 10, v16
    v_bfe_u32 v17, v0, 1, 2
    v_lshl_add_u32 v16, v17, 3, v16
    v_lshrrev_b32 v17, 5, v0
    v_lshl_add_u32 v16, v17, 2, v16
    s_lshl_b32 s37, s28, 7
    s_lshl_b32 s41, s30, 5
    s_add_u32 s37, s37, s41
    v_add_u32 v98, s37, v16
    v_add_u32 v17, {L_XR}, v98
    ds_read_b32 v97, v17""")
    for i in range(4):
        if vsplit:
            A(f"""s_add_u32 s37, s43, {i}
            s_and_b32 s37, s37, 3
            s_lshl_b32 s41, s37, 13
            v_add_u32 v{80+2*i}, s41, v100
            s_lshl_b32 s41, s37, 8
            v_add_u32 v{76+i}, s41, v108""")
        else:
            A(f"v_add_u32 v{80+2*i}, {i*8192}, v100\nv_add_u32 v{76+i}, {i*256}, v108")
        A(f"v_xor_b32 v{81+2*i}, 32, v{80+2*i}")
    if touchout: A("global_load_dword v124, v98, s[22:23]")
    if warmfp: A(f"s_mov_b64 exec, s[48:49]\nbuffer_load_dword v124, v118, s[32:35], s68 offen{wfl}\ns_mov_b64 exec, -1")
    A("s_mov_b32 s56, 0")
    if sa: A(f"s_sleep {sa}")
    stamp(6)
    def republish():
        A(f"""s_xor_b32 s37, s38, {W_B}
        s_mov_b64 exec, s[48:49]
        buffer_store_dwordx4 v[88:91], v107, s[32:35], s37 offen offset:{B_QP} sc1
        s_mov_b64 exec, -1
        s_mov_b32 s56, 1""")
    qs = [128, 136, 144][:qsets]
    for k, r in enumerate(qs):
        qloads(r)
        if k + 1 < len(qs) and sb: A(f"s_sleep {sb}")
    def kread():
        wait_flag(6, F_K, 41)
        for t in range(2):
            for kk in range(4):
                A(f"ds_read_b128 v[{44+16*t+4*kk}:{47+16*t+4*kk}], v{102+kk} offset:{L_K + t*4096}")
    if kpre: kread()
    A("L_qp:")
    for k, r in enumerate(qs):
        A(f"s_waitcnt vmcnt({2*(len(qs)-1)})")
        bad_tag(range(r, r + 8), 40, 55, 123)
        A(f"s_cbranch_vccz L_qok{k}")
        qloads(r)
    A(f"""ds_read_b32 v40, v6 offset:{F_MODE}
    s_waitcnt lgkmcnt(0)
    v_readfirstlane_b32 s57, v40
    s_xor_b32 s57, s57, 1
    s_or_b32 s57, s57, s56
    s_cbranch_scc1 L_norep""")
    republish()
    A(f"""s_waitcnt vmcnt(0)""")
    for r in qs: qloads(r)
    A(f"""L_norep:
    s_lshl_b32 s37, s56, 21
    s_xor_b32 s39, s39, s37
    s_xor_b32 s40, s40, s37
    s_add_u32 s101, s101, 1
    s_cmp_lt_u32 s101, {SPIN}
    s_cbranch_scc1 L_qp""")
    for k, r in reversed(list(enumerate(qs))):
        A(f"L_qok{k}:")
        for i in range(4): A(f"v_permlane32_swap_b32 v{r+i}, v{r+4+i}")
        A(f"v_pk_add_f32 v[40:41], v[{r}:{r+1}], v[{r+4}:{r+5}]\nv_pk_add_f32 v[42:43], v[{r+2}:{r+3}], v[{r+6}:{r+7}]")
        if k: A("s_branch L_qj")
    A("L_qj:")
    stamp(7)
    A("""v_permlane16_swap_b32 v40, v42
    v_permlane16_swap_b32 v41, v43
    v_pk_add_f32 v[40:41], v[40:41], v[42:43]
    v_cvt_pk_bf16_f32 v40, v40, v41
    v_min_u32 v40, s52, v40
    ds_write_b32 v120, v40""")
    if not kpre: kread()
    l = lab("ql")
    A(f"{l}:")
    for kk in range(4): A(f"ds_read_b128 v[{16+4*kk}:{19+4*kk}], v121 offset:{64*kk}")
    A("s_waitcnt lgkmcnt(0)")
    any_sent(range(16, 32), 40)
    loop_back(l)
    stamp(8)
    for kk in range(4):
        for t in range(2):
            A(f"v_mfma_f32_16x16x32_bf16 v[{8+4*t}:{11+4*t}], v[{44+16*t+4*kk}:{47+16*t+4*kk}], v[{16+4*kk}:{19+4*kk}], {f'v[{8+4*t}:{11+4*t}]' if kk else 0}")
    A(f"ds_read_b32 v42, v6 offset:{F_MODE}")
    for rnd in range(2):
        for i in range(4): A(f"v_cvt_pk_bf16_f32 v{24+i}, v{8+2*i}, v{9+2*i}")
        for i in range(4): A(f"v_lshlrev_b32 v{8+2*i}, 16, v{24+i}\nv_and_b32 v{9+2*i}, s36, v{24+i}")
        if rnd == 0:
            for i in range(4): A(f"v_pk_mul_f32 v[{8+2*i}:{9+2*i}], v[{8+2*i}:{9+2*i}], s[58:59] op_sel_hi:[1,0]")
    A("""v_max3_f32 v24, v8, v9, v10
    v_max3_f32 v25, v11, v12, v13
    v_max3_f32 v24, v24, v14, v15
    v_max_f32 v24, v24, v25""")
    allred(24, 25, "v_max_f32")
    A("""v_min_u32 v25, s52, v24
    s_mov_b64 exec, 15
    ds_write_b32 v112, v25
    s_mov_b64 exec, -1""")
    l = lab("ml")
    A(f"""{l}:
    ds_read_b128 v[28:31], v111
    s_waitcnt lgkmcnt(0)""")
    any_sent([28, 29, 30, 31], 20)
    loop_back(l)
    A("""v_max3_f32 v26, v28, v29, v30
    v_max_f32 v26, v26, v31
    v_mul_f32 v26, s59, v26
    v_and_b32 v26, s53, v26""")
    for i in range(8): A(f"v_fma_f32 v{8+i}, v{8+i}, s59, -v26")
    for i in range(8): A(f"v_exp_f32 v{8+i}, v{8+i}")
    for i in range(4): A(f"v_cvt_pk_bf16_f32 v{16+i}, v{8+2*i}, v{9+2*i}")
    for i in range(4): A(f"v_min_u32 v{16+i}, s52, v{16+i}")
    A(f"""s_mov_b64 exec, s[50:51]
    ds_write_b128 v110, v[16:19]
    s_mov_b64 exec, -1
    v_pk_add_f32 v[28:29], v[8:9], v[10:11]
    v_pk_add_f32 v[30:31], v[12:13], v[14:15]
    v_pk_add_f32 v[28:29], v[28:29], v[30:31]
    v_add_f32 v25, v28, v29""")
    allred(25, 27, "v_add_f32")
    A(f"""v_min_u32 v25, s52, v25
    s_mov_b64 exec, 15
    ds_write_b32 v112, v25 offset:16
    s_mov_b64 exec, -1
    v_readfirstlane_b32 s57, v42
    s_cmp_eq_u32 s57, 0
    s_cbranch_scc1 L_modeok""")
    wait_flag(6, F_MODE, 42)
    A("""v_readfirstlane_b32 s57, v42
    s_xor_b32 s37, s57, 1
    s_or_b32 s37, s37, s56
    s_cbranch_scc1 L_modeok""")
    republish()
    A(f"""L_modeok:
    s_cmp_eq_u32 s30, 0
    s_cbranch_scc0 L_noml""")
    l = lab("ll")
    A(f"""{l}:
    ds_read_b128 v[28:31], v111 offset:16
    s_waitcnt lgkmcnt(0)""")
    any_sent([28, 29, 30, 31], 20)
    loop_back(l)
    A(f"""v_pk_add_f32 v[28:29], v[28:29], v[30:31]
    v_or_b32 v26, v26, v156
    v_add_f32 v27, v28, v29
    v_and_or_b32 v27, v27, s53, v157
    s_mov_b64 exec, {0xffff if fullml else 15}
    s_cmp_eq_u32 s57, 0
    s_cbranch_scc1 L_mlf
    buffer_store_dwordx2 v[26:27], v106, s[32:35], s38 offen offset:{B_ML} sc1
    s_branch L_mle
    L_mlf:
    buffer_store_dwordx2 v[26:27], v106, s[32:35], s38 offen offset:{B_ML}
    L_mle:
    s_mov_b64 exec, -1
    L_noml:""")
    l = lab("pl")
    A(f"{l}:")
    for i in range(4): A(f"ds_read_b128 v[{44+4*i}:{47+4*i}], v{76+i}")
    A("s_waitcnt lgkmcnt(0)")
    any_sent(range(44, 60), 20)
    loop_back(l)
    stamp(9)
    def ffn2():
        wait_flag(6, F_W2, 22)
        trw(L_W2, 2, 60)
        wait_flag(6, F_ACT, 22)
        A("ds_read_b128 v[68:71], v117\nds_read_b128 v[72:75], v117 offset:64\ns_waitcnt lgkmcnt(0)")
        for kk in range(2):
            A(f"v_mfma_f32_16x16x32_bf16 v[8:11], v[{60+4*kk}:{63+4*kk}], v[{68+4*kk}:{71+4*kk}], {'v[8:11]' if kk else 0}")
    def wopre():
        wait_flag(6, F_WO, 22)
        if op2: op_loads(44)
        if not opearly: op_loads()
        trw(L_WO, 4, 60)
    iv = order.index('v')
    assert order.index('w2') < order.index('wo') or order.index('wo') < iv
    if order.index('w2') < iv: ffn2()
    def pvstep(i, waitcnt):
        for t in range(2):
            for u in range(2):
                r = 24 + 8 * (i & 1) + 4 * t + 2 * u
                A(f"ds_read_b64_tr_b16 v[{r}:{r+1}], v{80+2*i+t} offset:{L_V + u*4096}")
    def pvmfma(i):
        for t in range(2):
            r = 24 + 8 * (i & 1) + 4 * t
            A(f"v_mfma_f32_16x16x32_bf16 v[{12+4*t}:{15+4*t}], v[{r}:{r+3}], v[{44+4*i}:{47+4*i}], {f'v[{12+4*t}:{15+4*t}]' if i else 0}")
    if vsplit:
        A(f"""ds_read_b32 v20, v6 offset:{F_V}
        s_waitcnt lgkmcnt(0)
        v_cmp_eq_u32 vcc, -1, v20
        s_cbranch_vccz L_pvall""")
        for i, f in enumerate((F_V0, F_V1, F_V2, F_V)):
            wait_flag(6, f, 20)
            if i == 3: stamp(10)
            pvstep(i, 0)
            A("s_waitcnt lgkmcnt(0)")
            pvmfma(i)
        A("s_branch L_pvdone\nL_pvall:")
    else:
        wait_flag(6, F_V, 20)
    if True:
        stamp(10)
        pvstep(0, 0); pvstep(1, 0)
        A("s_waitcnt lgkmcnt(4)"); pvmfma(0); pvstep(2, 0)
        A("s_waitcnt lgkmcnt(4)"); pvmfma(1); pvstep(3, 0)
        A("s_waitcnt lgkmcnt(4)"); pvmfma(2)
        A("s_waitcnt lgkmcnt(0)"); pvmfma(3)
        A("L_pvdone:\ns_nop 7")
    tag(range(12, 20))
    A(f"""s_mov_b64 exec, s[50:51]
    s_cmp_eq_u32 s57, 0
    s_cbranch_scc0 L_opslow
    buffer_store_dwordx4 v[12:15], v109, s[32:35], s38 offen offset:{B_OP}{pst}
    buffer_store_dwordx4 v[16:19], v109, s[32:35], s38 offen offset:{B_OP + 256}{pst}
    L_opdone:""")
    if hold: A(f"ds_write_b32 v101, v6 offset:{F_OPD}")
    A("s_mov_b64 exec, -1")
    stamp(11)
    def op_loads(r=24):
        for i in range(4): A(f"buffer_load_dwordx4 v[{r+4*i}:{r+3+4*i}], v113, s[32:35], s{44+i} offen offset:{B_OP} sc1")
    if opearly and not hold and not pre: op_loads()
    if order.index('w2') > iv: ffn2()
    if hold or pre:
        wait_flag(6, F_PRE, 22)
        if presl: A(f"s_sleep {presl}")
        op_loads()
    if not olate: wopre()
    else:
        assert not op2 and not hold and not pre
        if opsl: A(f"s_sleep {opsl}")
        if not opearly: op_loads()
    stamp(12)
    def alpha_wait(tagl):
        A("s_waitcnt lgkmcnt(0)")
        any_sent(range(40, 44), 22)
        A(f"s_cbranch_vccz L_alok{tagl}")
        l = lab("al")
        A(f"""{l}:
        ds_read_b128 v[40:43], v114
        s_waitcnt lgkmcnt(0)""")
        any_sent(range(40, 44), 22)
        loop_back(l)
        A(f"L_alok{tagl}:")
    def wsum(r):
        A(f"""v_pk_mul_f32 v[12:13], v[{r}:{r+1}], v[40:41] op_sel_hi:[1,0]
        v_pk_mul_f32 v[14:15], v[{r+2}:{r+3}], v[40:41] op_sel_hi:[1,0]
        v_pk_fma_f32 v[12:13], v[{r+4}:{r+5}], v[40:41], v[12:13] op_sel:[0,1,0] op_sel_hi:[1,1,1]
        v_pk_fma_f32 v[14:15], v[{r+6}:{r+7}], v[40:41], v[14:15] op_sel:[0,1,0] op_sel_hi:[1,1,1]
        v_pk_fma_f32 v[12:13], v[{r+8}:{r+9}], v[42:43], v[12:13] op_sel_hi:[1,0,1]
        v_pk_fma_f32 v[14:15], v[{r+10}:{r+11}], v[42:43], v[14:15] op_sel_hi:[1,0,1]
        v_pk_fma_f32 v[12:13], v[{r+12}:{r+13}], v[42:43], v[12:13] op_sel:[0,1,0] op_sel_hi:[1,1,1]
        v_pk_fma_f32 v[14:15], v[{r+14}:{r+15}], v[42:43], v[14:15] op_sel:[0,1,0] op_sel_hi:[1,1,1]""")
    if op2:
        A("L_opA:\nds_read_b128 v[40:43], v114\ns_waitcnt vmcnt(4)")
        bad_tag(range(24, 40), 88, 55, 123)
        A("s_cbranch_vccz L_opAok")
        op_loads(24)
        A("s_waitcnt vmcnt(4)")
        bad_tag(range(44, 60), 88, 55, 123)
        A("s_cbranch_vccz L_opBok")
        op_loads(44)
        A(f"""s_add_u32 s101, s101, 1
        s_cmp_lt_u32 s101, {SPIN}
        s_cbranch_scc1 L_opA
        L_opBok:""")
        stamp(13)
        alpha_wait("B"); wsum(44)
        A("s_branch L_opJ\nL_opAok:")
        stamp(13)
        alpha_wait("A"); wsum(24)
        A("L_opJ:")
    else:
        l = lab("og")
        A(f"s_branch L_ochk\n{l}:")
        op_loads()
        A("L_ochk:\nds_read_b128 v[40:43], v114\ns_waitcnt vmcnt(0)")
        bad_tag(range(24, 40), 88, 55, 123)
        if opmask:
            A(f"""s_cbranch_vccz L_opok
            s_mov_b64 exec, vcc
            L_opr:""")
            op_loads()
            A("s_waitcnt vmcnt(0)")
            bad_tag(range(24, 40), 88, 55, 123)
            A(f"""s_cbranch_vccz L_opdn
            s_mov_b64 exec, vcc
            s_add_u32 s101, s101, 1
            s_cmp_lt_u32 s101, {SPIN}
            s_cbranch_scc1 L_opr
            L_opdn:
            s_mov_b64 exec, -1
            ds_read_b128 v[40:43], v114
            L_opok:""")
        else:
            gloop_back(l)
        stamp(13)
        alpha_wait("A"); wsum(24)
    stamp(17)
    A("""v_permlane16_swap_b32 v12, v14
    v_permlane16_swap_b32 v13, v15
    v_pk_add_f32 v[12:13], v[12:13], v[14:15]
    v_mov_b32 v14, v12
    v_mov_b32 v15, v13
    v_permlane32_swap_b32 v14, v12
    v_permlane32_swap_b32 v15, v13
    v_pk_add_f32 v[12:13], v[12:13], v[14:15]
    v_cvt_pk_bf16_f32 v12, v12, v13
    v_min_u32 v12, s52, v12
    ds_write_b32 v115, v12""")
    l = lab("ol")
    A(f"{l}:")
    for kk in range(4): A(f"ds_read_b128 v[{76+4*kk}:{79+4*kk}], v116 offset:{64*kk}")
    A("s_waitcnt lgkmcnt(0)")
    any_sent(range(76, 92), 22)
    loop_back(l)
    if olate:
        stamp(18)
        wait_flag(6, F_WO, 22)
        trw(L_WO, 4, 60)
    for kk in range(4):
        if olate: A(f"s_waitcnt lgkmcnt({6 - 2*kk})")
        A(f"v_mfma_f32_16x16x32_bf16 v[8:11], v[{60+4*kk}:{63+4*kk}], v[{76+4*kk}:{79+4*kk}], v[8:11]")
    A("s_lshl_b32 s37, s28, 2\ns_cmp_eq_u32 s29, s37")
    tag(range(8, 12))
    A(f"""s_mov_b64 exec, s[48:49]
    s_cbranch_scc1 L_final
    buffer_store_dwordx4 v[8:11], v118, s[32:35], s68 offen sc1""")
    if stamps:
        A("s_mov_b64 exec, -1")
        stamp(14)
        A("s_branch L_cend")
    else: A("s_endpgm")
    A(f"""L_opslow:
    buffer_store_dwordx4 v[12:15], v109, s[32:35], s38 offen offset:{B_OP} sc1
    buffer_store_dwordx4 v[16:19], v109, s[32:35], s38 offen offset:{B_OP + 256} sc1
    s_branch L_opdone""")
    A(f"""L_final:
    buffer_store_dwordx4 v[8:11], v118, s[32:35], s68 offen
    s_mov_b64 exec, -1""")
    stamp(14)
    if fdelay: A(f"s_sleep {fdelay}")
    def fp_loads(r):
        for i in range(4):
            A(f"buffer_load_dwordx4 v[{r+4*i}:{r+3+4*i}], v99, s[32:35], s70 offen offset:{512*i} sc1")
    sets = [24, 44, 60][:fpsets]
    for r in sets: fp_loads(r)
    A("L_fp:")
    for k, r in enumerate(sets):
        A(f"s_waitcnt vmcnt({4*(len(sets)-1)})")
        bad_tag(range(r, r + 16), 76, 55, 123)
        A(f"s_cbranch_vccz L_fpok{k}")
        if fpmask and fpsets == 1: A("s_mov_b64 exec, vcc")
        if fsl: A(f"s_sleep {fsl}")
        fp_loads(r)
    A(f"""s_add_u32 s101, s101, 1
    s_cmp_lt_u32 s101, {SPIN}
    s_cbranch_scc1 L_fp""")
    for k, r in reversed(list(enumerate(sets))):
        A(f"L_fpok{k}:")
        if fpmask and fpsets == 1: A("s_mov_b64 exec, -1")
        stamp(16)
        A(f"""v_pk_add_f32 v[12:13], v[{r}:{r+1}], v[{r+4}:{r+5}]
        v_pk_add_f32 v[14:15], v[{r+2}:{r+3}], v[{r+6}:{r+7}]
        v_pk_add_f32 v[16:17], v[{r+8}:{r+9}], v[{r+12}:{r+13}]
        v_pk_add_f32 v[18:19], v[{r+10}:{r+11}], v[{r+14}:{r+15}]""")
        if k: A("s_branch L_fpj")
    A(f"""L_fpj:
    v_pk_add_f32 v[12:13], v[12:13], v[16:17]
    v_pk_add_f32 v[14:15], v[14:15], v[18:19]
    v_permlane32_swap_b32 v12, v14
    v_permlane32_swap_b32 v13, v15
    v_pk_add_f32 v[12:13], v[12:13], v[14:15]
    v_mov_b32 v14, v12
    v_mov_b32 v15, v13
    v_permlane16_swap_b32 v14, v12
    v_permlane16_swap_b32 v15, v13
    v_pk_add_f32 v[12:13], v[12:13], v[14:15]
    v_lshlrev_b32 v14, 16, v97
    v_and_b32 v15, s36, v97
    v_add_f32 v12, v12, v12 row_ror:8
    v_add_f32 v13, v13, v13 row_ror:8
    v_pk_add_f32 v[12:13], v[12:13], v[14:15]
    v_cvt_pk_bf16_f32 v12, v12, v13
    s_mov_b32 s40, 0xff
    s_mov_b32 s41, 0xff
    s_mov_b64 exec, s[40:41]
    global_store_dword v98, v12, s[22:23]{outst}
    s_or_b32 s37, s2, s30
    s_cbranch_scc1 L_cend
    v_mov_b32 v20, s54
    s_mov_b64 exec, 1
    global_store_dword v123, v20, s[26:27]{epsc}""")
    A("L_cend:")
    if stamps: A("s_mov_b64 exec, -1")
    stamp(15)
    if lamp:
        A(f"""s_or_b32 s37, s2, s30
        s_cbranch_scc1 L_end
        s_memrealtime s[98:99]
        s_waitcnt lgkmcnt(0)
        s_sub_u32 s37, s98, s94
        s_mul_i32 s37, s37, 10
        s_add_u32 s37, s37, s98
        L_ampl:
        s_memrealtime s[40:41]
        s_waitcnt lgkmcnt(0)
        s_sub_u32 s40, s40, s37
        s_cmp_lt_i32 s40, 0
        s_cbranch_scc1 L_ampl""")
    if amp is not None:
        A(f"""s_cmp_eq_u32 s30, 0
        s_cbranch_scc0 L_end
        s_cmp_eq_u32 s2, {ampwg}
        s_cbranch_scc0 L_end
        v_readlane_b32 s37, v{VST}, {amp}
        s_nop 4
        s_sub_u32 s37, s37, s94
        s_mul_i32 s37, s37, 10
        s_add_u32 s37, s37, s98
        L_ampl:
        s_memrealtime s[40:41]
        s_waitcnt lgkmcnt(0)
        s_sub_u32 s40, s40, s37
        s_cmp_lt_i32 s40, 0
        s_cbranch_scc1 L_ampl""")
    dump_stamps()
    A("L_end:\ns_endpgm")
    A(f""".section .rodata,"a"
    .p2align 6
    .amdhsa_kernel {NAME}
    .amdhsa_next_free_vgpr 160
    .amdhsa_next_free_sgpr 102
    .amdhsa_accum_offset 160
    .amdhsa_group_segment_fixed_size 0
    .amdhsa_kernarg_size 96
    .amdhsa_user_sgpr_count 2
    .amdhsa_user_sgpr_kernarg_segment_ptr 1
    .amdhsa_system_sgpr_workgroup_id_x 1
    .amdhsa_float_denorm_mode_32 3
    .end_amdhsa_kernel""")
    return A.finish()

if __name__ == "__main__":
    out = sys.argv[1] if len(sys.argv) > 1 else "k.s"
    kw = {}
    for a in sys.argv[2:]:
        if '=' in a:
            k, v = a.split('=', 1); kw[k] = eval(v)
        else: kw[a] = True
    open(out, "w").write(gen(**kw))
```

```python
import sys
from asmlib import Asm

NAME = "parallel_sum__sliding_block_cached__dense_activation_mish__decode_kernel"

L_K, L_V, L_WQ, L_WO, L_W1, L_W2 = 0x0, 0x8000, 0x10000, 0x14000, 0x18000, 0x1A000
L_S = 0x1C000
L_Q, L_P, L_O, L_ML, L_FLG, L_AL = L_S, L_S + 0x500, L_S + 0x900, L_S + 0xB40, L_S + 0xC00, L_S + 0xD00
L_XN, L_ACT, L_XR = 0x1D000, 0x1D900, 0x1DA00
LDS_BYTES = 0x1E200
QSTR, XSTR, OSTR = 272, 1040, 272
F_WQ, F_W1, F_K, F_V, F_WO, F_W2, F_QA, F_QB, F_ACT, F_X, F_MODE, F_V0, F_V1, F_V2, F_XN, F_PRE = [4 * i for i in range(16)]
F_OPD = 64
W_BLK = 0x10000
B_QP, B_HP, B_OP, B_ML, B_ID = 0, 512, 1024, 3072, 3200
W_FP = 0x100000
W_ST = 0x120000
F_RED = F_QB
W_B = 0x200000
SPIN = 1 << 18
IDTRY = 48

def gen(depth=22, stamps=False, safe=False, amp=None, ampwg=0, order=('wq', 'w1', 'k', 'v', 'w2', 'wo'),
        qa=34, qb=44, hpt=None, pref=True, header="", warmfp=True, fdelay=0, loaderonly=False, vsplit=True,
        forcemode=None, mlt='k', nobeacon=False, noB=False, fullml=True, fullid=True, prof=False, dsched=None, kph='A', wph='A', ntw=' nt', ntkv=' nt', sa=4, sb=12, touchout=False, fpsets=1, op2=False, epsc='', b1early=True, idt='x', qsets=3, hs=12, opmask=False, fpmask=False, opearly=False, hold=0, presl=0, early=False, free=(18, 26, 20, 28), mlpipe=0, mlsl=3, prew=0, pre=0, olate=False, opsl=0, xdirty=0, fsl=0, pst='', outst='', mlpre=0, touch=0x1ffff00, tfl='', tlate=True, wfl='', lamp=False, lst=False, dyn=True, forcer=None, xmask=None, cprio=2, kpre=True, deep=None, t0=95, slope=3.35, margin=25, chk=(18, 26, 34, 42, 50, 58, 66, 74, 82)):
    A = Asm()
    uid = [0]
    def lab(p):
        uid[0] += 1
        return f"L_{p}{uid[0]}"
    VST = 127
    def stamp(k):
        if stamps:
            A(f"s_memrealtime s[98:99]\ns_waitcnt lgkmcnt(0)\nv_writelane_b32 v{VST}, s98, {k}")
    def stamp0():
        if stamps: A(f"v_writelane_b32 v{VST}, s94, 0")
    def dump_stamps():
        if stamps and amp is None:
            A(f"""s_lshl_b32 s96, s2, 3
            s_add_u32 s96, s96, s3
            s_lshl_b32 s96, s96, 7
            s_add_u32 s96, s96, 0x8000000
            s_add_u32 s96, s26, s96
            s_addc_u32 s97, s27, 0
            s_mov_b32 exec_lo, -1
            s_mov_b32 exec_hi, 0
            v_mbcnt_lo_u32_b32 v126, -1, 0
            v_lshlrev_b32 v126, 2, v126
            global_store_dword v126, v{VST}, s[96:97]""")
    def loop_back(l):
        if safe:
            o = lab("out")
            A(f"""s_add_u32 s100, s100, 1
            s_bitcmp1_b32 s100, 21
            s_cbranch_scc1 {o}
            s_cbranch_vccnz {l}
            {o}:""")
        else:
            A(f"s_cbranch_vccnz {l}")
    def gloop_back(l, sleep=0):
        o = lab("ok")
        A(f"s_cbranch_vccz {o}")
        if sleep: A(f"s_sleep {sleep}")
        A(f"""s_add_u32 s101, s101, 1
        s_cmp_lt_u32 s101, {SPIN}
        s_cbranch_scc1 {l}
        {o}:""")
    def wait_flag(vaddr, off, vt):
        l = lab("wf")
        A(f"""{l}:
        ds_read_b32 v{vt}, v{vaddr} offset:{off}
        s_waitcnt lgkmcnt(0)
        v_cmp_eq_u32 vcc, -1, v{vt}""")
        loop_back(l)
    def set_flag(vaddr, off, vdata):
        A(f"""s_mov_b64 exec, 1
        ds_write_b32 v{vaddr}, v{vdata} offset:{off}
        s_mov_b64 exec, -1""")
    def any_sent(regs, vt):
        regs = list(regs)
        A(f"v_max3_u32 v{vt}, v{regs[0]}, v{regs[1]}, v{regs[2] if len(regs) > 2 else regs[1]}")
        rest = regs[3:]
        while rest:
            a = rest[0]; b = rest[1] if len(rest) > 1 else rest[0]
            A(f"v_max3_u32 v{vt}, v{vt}, v{a}, v{b}")
            rest = rest[2:]
        A(f"v_cmp_eq_u32 vcc, -1, v{vt}")
    def bad_tag(regs, t0, sT, vzero):
        regs = list(regs); n = len(regs) // 2
        for i in range(n):
            if isinstance(sT, list):
                a, b, t = sT[i]
                A(f"v_bitop3_b32 v{t0+i}, v{a}, v{b}, {t} bitop3:0x7e")
            else:
                g, r = i // 4, i % 4
                A(f"v_bitop3_b32 v{t0+i}, v{regs[8*g+r]}, v{regs[8*g+4+r]}, s{72+r} bitop3:0x7e")
        cur = [t0 + i for i in range(n)]
        while len(cur) > 1:
            if len(cur) >= 3:
                A(f"v_or3_b32 v{cur[0]}, v{cur[0]}, v{cur[1]}, v{cur[2]}"); cur = cur[3:] + [cur[0]]
            else:
                A(f"v_or_b32 v{cur[0]}, v{cur[0]}, v{cur[1]}"); cur = [cur[0]]
        A(f"v_cmp_ne_u32_sdwa vcc, v{cur[0]}, v{vzero} src0_sel:BYTE_0 src1_sel:DWORD")
    def mktags(se, lanebit):
        A(f"""s_mov_b32 s72, s{se}
        s_lshr_b32 s73, s{se}, 8
        s_lshr_b32 s74, s{se}, 16
        s_lshr_b32 s75, s{se}, 24
        v_mov_b32 v156, 0xff
        v_and_b32 v152, s72, v156
        v_and_b32 v153, s73, v156
        v_and_b32 v154, s74, v156
        v_and_b32 v155, s75, v156
        v_and_b32 v157, 1, v0
        v_cmp_eq_u32 vcc, 0, v157
        v_cndmask_b32 v156, v154, v152, vcc
        v_cndmask_b32 v157, v155, v153, vcc""")
    def rgmap(r, t):
        if tuple(free) == (28, 29, 30, 31): return
        mask = 0xffffffff
        for f in free: mask &= ~(1 << f)
        A(f"""s_bfm_b32 s{t}, s{r}, 0
        s_and_b32 s{t}, s{t}, {mask}
        s_bcnt1_i32_b32 s{t}, s{t}
        s_bitcmp1_b32 {mask}, s{r}
        s_cselect_b32 s{r}, s{t}, 28""")
    def bf16r(d, s):
        A(f"v_cvt_pk_bf16_f32 v{d}, v{s}, v{s}\nv_lshlrev_b32 v{d}, 16, v{d}")
    def ws_srd(d):
        A(f"""s_add_u32 s{d}, s26, {W_BLK}
        s_addc_u32 s{d+1}, s27, 0
        s_mov_b32 s{d+2}, 0x300000
        s_mov_b32 s{d+3}, 0x00020000""")
    def allred(v, t, op):
        A(f"""v_mov_b32 v{t}, v{v}
        v_permlane32_swap_b32 v{t}, v{v}
        {op} v{v}, v{v}, v{t}
        v_mov_b32 v{t}, v{v}
        v_permlane16_swap_b32 v{t}, v{v}
        {op} v{v}, v{v}, v{t}""")

    def allred2(v, t, w, u, op):
        for sw in ("v_permlane32_swap_b32", "v_permlane16_swap_b32"):
            A(f"""v_mov_b32 v{t}, v{v}
            v_mov_b32 v{u}, v{w}
            {sw} v{t}, v{v}
            {sw} v{u}, v{w}
            {op} v{v}, v{v}, v{t}
            {op} v{w}, v{w}, v{u}""")
    A(header)
    A(f"; @launch grid=(256,1,1) block=(384,1,1) lds={LDS_BYTES}")
    A(f""".amdgcn_target "amdgcn-amd-amdhsa--gfx950"
    .text
    .globl {NAME}
    .p2align 8
    .type {NAME},@function
    {NAME}:""")
    if early: A("s_memrealtime s[92:93]")
    A(f"""s_load_dwordx16 s[4:19], s[0:1], 0
    s_load_dwordx8 s[20:27], s[0:1], 64
    s_getpc_b64 s[30:31]
    L_pc:
    s_cmpk_ge_u32 s2, 256
    s_cbranch_scc1 L_end
    v_xor_b32 v2, 0x140, v0
    v_readfirstlane_b32 s3, v0
    v_lshlrev_b32 v2, 7, v2
    v_min_u32 v2, L_end-L_pc, v2
    global_load_dword v125, v2, s[30:31]""")
    if stamps or lamp or lst: A("s_memrealtime s[94:95]")
    A(f"""s_cmp_eq_u32 s3, 0
    s_cbranch_scc0 L_notloader
    v_lshrrev_b32 v2, 3, v0
    v_and_b32 v9, 6, v2
    v_xor_b32 v9, v9, v0
    v_and_b32 v9, 7, v9
    v_lshlrev_b32 v9, 4, v9
    v_lshrrev_b32 v4, 5, v0
    v_and_b32 v5, 3, v2
    v_lshl_add_u32 v6, v4, 3, v5
    v_lshl_add_u32 v10, v6, 13, v9
    v_add_u32 v11, 31744, v10
    v_lshlrev_b32 v21, 4, v0
    s_mov_b32 s34, -1
    s_mov_b32 s35, 0x00020000
    s_movk_i32 s60, 0x800
    s_and_b32 s28, s2, 7
    s_lshr_b32 s29, s2, 3
    s_lshr_b32 s57, s2, 6
    s_lshl_b32 s57, s57, 10
    s_or_b32 s57, s57, s28
    s_lshl_b32 s57, s57, 3
    s_and_b32 s58, s29, 7
    s_or_b32 s57, s57, s58
    s_lshl_b32 s57, s57, 7
    s_lshl_b32 s59, s60, 6
    s_mov_b32 m0, {L_XR}
    {'s_memrealtime s[76:77]' if early else ''}
    s_waitcnt lgkmcnt(0)
    {'s_memrealtime s[78:79]' if early else ''}
    global_load_lds_dwordx4 v21, s[4:5]
    global_load_lds_dwordx4 v21, s[4:5] offset:1024
    s_lshl_b32 m0, s60, 5
    s_mov_b64 s[32:33], s[10:11]
    L_wq:
    buffer_load_dwordx4 v10, s[32:35], s57 offen nt lds
    buffer_load_dwordx4 v11, s[32:35], s57 offen offset:1024 nt lds
    s_add_u32 m0, m0, s60
    s_add_u32 s57, s57, s59
    s_bitcmp0_b32 m0, 14
    s_cbranch_scc1 L_wq""")
    A("L_after256:")
    if early: A("s_memrealtime s[82:83]\ns_mov_b32 s80, s82")
    if stamps: A(f"v_mov_b32 v{VST}, 0")
    A("""s_setprio 3
    s_and_b32 s61, s29, 3
    s_lshl_b32 s62, s61, 3
    s_add_u32 s62, s62, s28
    s_lshr_b32 s63, s29, 2""")
    rgmap(62, 58)
    if deep and xmask is None: A("s_memrealtime s[72:73]")
    assert order[0] == 'wq' and L_WQ == 0x10000
    info = dict(wq=(8, 32, 10, L_WQ, F_WQ), w1=(4, 36, 12, L_W1, F_W1), k=(16, 40, 14, L_K, F_K), v=(16, 44, 14, L_V, F_V),
                wo=(8, 48, 16, L_WO, F_WO), w2=(4, 52, 18, L_W2, F_W2))
    flag_at = {2: [F_X]}
    cum = 2
    for m in order:
        if m == 'v' and vsplit:
            for i, f in enumerate((F_V0, F_V1, F_V2)): flag_at.setdefault(cum + 8 * (i + 1), []).append(f)
        cum += 2 * info[m][0]
        flag_at.setdefault(cum, []).append(info[m][4])
    def kphase():
        if kph == 'A': A("s_and_b32 s67, s29, 15")
        elif kph == 'B': A("s_lshl_b32 s67, s28, 1\ns_lshr_b32 s59, s29, 4\ns_add_u32 s67, s67, s59")
        elif kph == 'C': A("s_lshl_b32 s67, s28, 1\ns_lshr_b32 s59, s29, 4\ns_add_u32 s67, s67, s59\ns_and_b32 s59, s29, 8\ns_add_u32 s67, s67, s59\ns_and_b32 s67, s67, 15")
        elif kph == 'D': A("s_lshl_b32 s67, s28, 1\ns_add_u32 s67, s67, s29\ns_and_b32 s67, s67, 15")
        elif kph == 'E': A("s_lshl_b32 s67, s28, 1\ns_lshr_b32 s59, s29, 2\ns_add_u32 s67, s67, s59\ns_and_b32 s67, s67, 15")
        elif kph == 'F': A("s_mul_i32 s67, s29, 5\ns_mul_i32 s59, s28, 3\ns_add_u32 s67, s67, s59\ns_and_b32 s67, s67, 15")
        elif kph == 'G': A("s_and_b32 s67, s29, 7\ns_lshl_b32 s67, s67, 1")
        elif kph == 'Z': A("s_mov_b32 s67, 0")
    def setup(m):
        if m == 'wq': return
        if m == 'w1':
            A("""v_mul_u32_u24 v12, 3584, v6
            v_add_u32 v12, v12, v9
            v_add_u32 v13, 13312, v12
            s_mov_b32 s36, s16
            s_mov_b32 s37, s17
            s_cmp_lt_u32 s62, 28
            s_cselect_b32 s38, 1835008, 0
            s_mov_b32 s39, 0x00020000
            s_mul_i32 s57, s63, 229376
            s_lshl_b32 s58, s62, 7
            s_add_u32 s57, s57, s58
            s_lshl_b32 s56, s61, 11""")
        elif m == 'k':
            A(f"""v_lshrrev_b32 v7, 4, v0
            v_lshlrev_b32 v8, 1, v7
            v_xor_b32 v8, v8, v0
            v_and_b32 v8, 15, v8
            v_lshlrev_b32 v8, 4, v8
            v_lshl_add_u32 v14, v7, 8, v8
            v_xor_b32 v15, 128, v14
            s_mov_b32 s40, s6
            s_mov_b32 s41, s7
            s_mov_b32 s42, 33554432
            s_mov_b32 s43, 0x00020000
            s_lshr_b32 s64, s29, 4
            s_lshl_b32 s64, s64, 3
            s_add_u32 s64, s64, s28
            s_lshl_b32 s64, s64, 21
            s_and_b32 s58, s29, 15
            s_lshl_b32 s58, s58, 15
            s_add_u32 s64, s64, s58
            s_add_u32 s64, s64, 1572864""")
            kphase()
            A("s_lshl_b32 s56, s67, 11")
        elif m == 'v':
            A(f"""s_mov_b32 s44, s8
            s_mov_b32 s45, s9
            s_mov_b32 s46, 33554432
            s_mov_b32 s47, 0x00020000""")
            if vsplit:
                A("""s_lshl_b32 s65, s61, 13
                s_and_b32 s66, s63, 3
                s_lshl_b32 s66, s66, 11
                s_or_b32 s56, s65, s66""")
            else:
                A("s_lshl_b32 s56, s67, 11")
        elif m == 'wo':
            A("""v_lshl_add_u32 v7, v4, 7, v5
            v_lshl_add_u32 v16, v7, 10, v9
            v_add_u32 v17, 15360, v16
            s_mov_b32 s48, s12
            s_mov_b32 s49, s13
            s_mov_b32 s50, 4194304
            s_mov_b32 s51, 0x00020000
            s_lshl_b32 s57, s28, 19
            s_lshl_b32 s58, s61, 15
            s_add_u32 s57, s57, s58
            s_lshl_b32 s58, s63, 7
            s_add_u32 s57, s57, s58""")
            A(dict(A="s_and_b32 s56, s29, 7\ns_lshl_b32 s56, s56, 11", Z="s_mov_b32 s56, 0", X="s_lshl_b32 s56, s28, 11", P="s_lshl_b32 s56, s28, 11")[wph])
        elif m == 'w2':
            A("""v_lshl_add_u32 v18, v6, 10, v9
            v_add_u32 v19, 3072, v18
            s_mov_b32 s52, s20
            s_mov_b32 s53, s21
            s_cmp_lt_u32 s62, 28
            s_cselect_b32 s54, 1835008, 0
            s_mov_b32 s55, 0x00020000
            s_lshl_b32 s57, s62, 16
            s_lshl_b32 s58, s63, 7
            s_add_u32 s57, s57, s58
            s_lshl_b32 s56, s61, 11""")
    total = cum
    if hold or pre: flag_at.setdefault(total - (hold or pre), []).append(F_PRE)
    if mlpre: flag_at.setdefault(total - mlpre, []).append(F_QA)
    stn = {F_PRE: 10, F_WQ: 3, F_W1: 4, F_K: 5, F_V: 6, F_WO: 7, F_QA: 2, F_X: 8, F_W2: 9}
    def stream(depth, variant):
        issued = 2
        done_barrier = variant != 0
        flagged = set()
        live = variant == 0
        pending = False
        def landed(n):
            for c in sorted(flag_at):
                if c <= n and c not in flagged:
                    flagged.add(c)
                    if not live: continue
                    A("s_mov_b64 exec, 1")
                    for f in flag_at[c]: A(f"ds_write_b32 v20, v20 offset:{f}")
                    A("s_mov_b64 exec, -1")
                    for f in flag_at[c]:
                        if f in stn: stamp(stn[f])
        for m in order:
            npair, srd, vo, lbase, _ = info[m]
            if m == 'wq':
                issued += 16
                continue
            if live: setup(m)
            for p in range(npair):
                d = depth
                if dsched and variant == 0:
                    for (frm, dd) in dsched:
                        if issued >= frm: d = dd
                if variant == 1 and (issued - (depth0 - 2)) in chk:
                    live = True
                    A(f"L_deep{issued}:")
                if hold and issued >= total - hold:
                    if issued == total - hold and live:
                        cv = [c for c in flag_at if F_V in flag_at[c]][0]
                        for c in sorted(flag_at):
                            if c <= cv and c not in flagged:
                                A(f"s_waitcnt vmcnt({issued - c})")
                                landed(c)
                        l = lab("hold")
                        A(f"""{l}:
                        ds_read_b128 v[24:27], v20 offset:{F_OPD}
                        s_waitcnt lgkmcnt(0)
                        v_max3_u32 v24, v24, v25, v26
                        v_max_u32 v24, v24, v27
                        v_cmp_eq_u32 vcc, -1, v24
                        s_cbranch_vccnz {l}""")
                elif issued + 2 > d:
                    if not done_barrier:
                        A(f"v_mov_b32 v20, {L_FLG}\ns_barrier")
                        stamp(1)
                        done_barrier = True
                    if live: A(f"s_waitcnt vmcnt({d - 2})")
                    landed(issued - (d - 2))
                    if prof and live and (issued - (d - 2)) % 8 == 2: stamp(11 + (issued - (d - 2)) // 8)
                    if variant == 0 and deep:
                        n = issued - (d - 2)
                        if n in chk and xmask is not None:
                            A(f"s_bitcmp1_b32 {xmask}, s28\ns_cbranch_scc1 L_deep{issued}")
                        elif n in chk:
                            thr = int(t0 + slope * (n - 2) + margin)
                            A(f"""s_memrealtime s[70:71]
                            s_waitcnt lgkmcnt(0)
                            s_sub_u32 s70, s70, s72
                            s_cmp_gt_u32 s70, {thr}
                            s_cbranch_scc1 L_deep{issued}""")
                if live:
                    A(f"s_add_u32 m0, s56, {lbase}" if lbase else "s_mov_b32 m0, s56")
                    if m == 'wq': A("s_lshl_b32 s58, s56, 6\ns_add_u32 s58, s58, s57")
                    elif m == 'w1': A("s_mul_i32 s58, s56, 28\ns_add_u32 s58, s58, s57")
                    elif m == 'w2': A("s_lshl_b32 s58, s56, 3\ns_add_u32 s58, s58, s57")
                    elif m == 'wo': A("s_and_b32 s58, s56, s60\ns_lshl_b32 s58, s58, 7\ns_and_b32 s59, s56, 0x3000\ns_add_u32 s58, s58, s59\ns_add_u32 s58, s58, s57")
                    else: A("s_add_u32 s58, s56, s64")
                    fl = ntkv if m in ('k', 'v') else ntw
                    A(f"buffer_load_dwordx4 v{vo}, s[{srd}:{srd+3}], s58 offen{fl} lds")
                    A(f"buffer_load_dwordx4 v{vo+1}, s[{srd}:{srd+3}], s58 offen offset:1024{fl} lds")
                issued += 2
                if p != npair - 1 and live:
                    if m == 'v' and vsplit:
                        A("s_add_u32 s66, s66, s60\ns_and_b32 s66, s66, 0x1fff")
                        if p % 4 == 3: A("s_add_u32 s65, s65, 0x2000\ns_and_b32 s65, s65, 0x7fff")
                        A("s_or_b32 s56, s65, s66")
                    else:
                        A(f"s_add_u32 s56, s56, s60\ns_and_b32 s56, s56, {npair * 2048 - 1}")
        pts = set(c for c in flag_at if c not in flagged)
        if prof: pts |= set(c for c in range(issued - depth + 4, issued + 1) if c % 8 == 2)
        for c in sorted(pts):
            A(f"s_waitcnt vmcnt({issued - c})")
            landed(c)
            if prof and c % 8 == 2: stamp(11 + c // 8)
        if early:
            for k, r in ((11, 76), (12, 78), (13, 80), (14, 82), (15, 92)): A(f"v_writelane_b32 v{VST}, s{r}, {k}")
        if stamps: A(f"s_mov_b32 s98, {variant + 1}\nv_writelane_b32 v{VST}, s98, 31")
        stamp0()
        dump_stamps()
        A("s_endpgm")
    depth0 = depth
    stream(depth, 0)
    if deep: stream(deep, 1)

    A("L_notloader:")
    A("""s_lshr_b32 s3, s3, 6
    v_and_b32 v0, 63, v0
    s_and_b32 s28, s2, 7
    s_lshr_b32 s29, s2, 3""")
    if stamps: A(f"v_mov_b32 v{VST}, 0")
    if loaderonly: A("s_barrier\ns_endpgm")
    A("s_cmp_eq_u32 s3, 1\ns_cbranch_scc0 L_compute")
    A(f"""s_and_b32 s61, s29, 3
    s_lshl_b32 s62, s61, 3
    s_add_u32 s62, s62, s28""")
    rgmap(62, 63)
    A(f"""v_and_b32 v11, 7, v0
    v_lshlrev_b32 v11, 2, v11
    v_lshrrev_b32 v12, 5, v0
    v_lshl_add_u32 v11, v12, 1, v11
    v_bfe_u32 v12, v0, 4, 1
    v_add_u32 v11, v11, v12
    v_bfe_u32 v12, v0, 3, 1
    v_lshl_add_u32 v11, v12, 5, v11
    s_min_u32 s63, s62, 27
    s_lshl_b32 s63, s63, 6
    v_add_u32 v13, s63, v11
    v_lshlrev_b32 v13, 1, v13
    v_mov_b32 v20, {L_FLG}
    v_mov_b32 v40, 0
    v_mov_b32 v41, 0
    v_mov_b32 v19, 0
    s_mov_b32 s100, 0
    s_mov_b32 s101, 0
    s_getreg_b32 s64, hwreg(HW_REG_XCC_ID)
    {'s_memrealtime s[76:77]' if dyn else ''}
    s_lshl_b32 s65, s28, 17
    s_lshl_b32 s66, s29, 12
    s_add_u32 s66, s66, s65
    v_and_b32 v21, 31, v0
    v_lshlrev_b32 v21, 12, v21
    s_waitcnt lgkmcnt(0)
    s_load_dword s5, s[26:27], 0""")
    if b1early: A("global_load_ushort v14, v13, s[18:19]")
    ws_srd(8)
    def dotouch():
        A(f"""v_lshlrev_b32 v25, 7, v0
        s_mov_b32 exec_lo, {touch}
        s_mov_b32 exec_hi, 0
        buffer_load_dword v124, v25, s[8:11], s66 offen{tfl}
        s_mov_b64 exec, -1""")
    if touch and not tlate: dotouch()
    A(f"""s_barrier
    s_and_b32 s64, s64, 15
    s_waitcnt lgkmcnt(0)
    s_add_u32 s5, s5, 1
    s_lshl_b32 s6, s5, 4
    s_or_b32 s6, s6, s64
    v_mov_b32 v22, s6
    v_lshlrev_b32 v24, 2, v0
    s_mov_b32 exec_lo, {0 if nobeacon else (-1 if fullid else 1)}
    s_mov_b32 exec_hi, 0
    buffer_store_dword v22, v24, s[8:11], s66 offen offset:{B_ID}
    s_mov_b64 exec, -1""")
    if dyn:
        A(f"""v_and_b32 v70, 7, v0
        v_lshlrev_b32 v71, 7, v70
        s_mov_b32 s78, {W_ST}
        s_cmp_eq_u32 s29, 0
        s_cbranch_scc0 L_nost
        s_lshl_b32 s34, s28, 7
        s_add_u32 s34, s34, s78
        v_mov_b32 v26, s76
        v_mov_b32 v27, s5
        s_mov_b64 exec, 1
        buffer_store_dwordx2 v[26:27], v19, s[8:11], s34 offen sc1
        s_mov_b64 exec, -1
        L_nost:""")
    if prew:
        A("""s_not_b32 s34, s5
        v_mov_b32 v28, s34
        v_mov_b32 v29, s34
        v_mov_b32 v30, s34
        v_mov_b32 v31, s34
        v_lshlrev_b32 v25, 4, v0""")
        for o in ([0] if prew & 1 else []) + ([1024, 2048] if prew & 2 else []):
            A(f"buffer_store_dwordx4 v[28:31], v25, s[8:11], s66 offen offset:{o}")
        if prew & 4: A(f"s_mov_b64 exec, 0xff\nbuffer_store_dwordx4 v[28:31], v25, s[8:11], s66 offen offset:{B_ML}\ns_mov_b64 exec, -1")
    if xdirty:
        A(f"v_lshlrev_b32 v25, 4, v0\ns_xor_b32 s34, s66, {W_B}")
        for o in range(xdirty): A(f"buffer_store_dwordx4 v[28:31], v25, s[8:11], s34 offen offset:{1024*o}")
    if not b1early: A("global_load_ushort v14, v13, s[18:19]")
    stamp0()
    A(f"""v_lshrrev_b32 v5, 4, v0
    v_and_b32 v4, 15, v0
    v_bfe_u32 v60, v0, 2, 2
    v_and_b32 v17, 1, v5
    v_lshl_add_u32 v60, v17, 2, v60
    v_bfe_u32 v18, v0, 1, 1
    v_and_b32 v61, 6, v60
    v_xor_b32 v18, v18, v61
    v_lshlrev_b32 v18, 4, v18
    v_and_b32 v61, 1, v0
    v_lshl_add_u32 v18, v61, 3, v18
    v_lshrrev_b32 v17, 5, v0
    v_lshl_add_u32 v17, v17, 4, v60
    v_lshl_add_u32 v62, v17, 7, v18
    v_add_u32 v62, {L_W1}, v62
    v_xor_b32 v63, 32, v62
    v_xor_b32 v64, 64, v62
    v_xor_b32 v65, 96, v62
    v_mul_u32_u24 v18, {XSTR}, v61
    v_lshl_add_u32 v18, v5, 4, v18
    s_lshr_b32 s37, s29, 2
    s_lshl_b32 s37, s37, 7
    s_add_u32 s37, s37, {L_XN}
    v_add_u32 v66, s37, v18
    v_lshlrev_b32 v67, 8, v4
    v_lshl_add_u32 v67, v5, 4, v67
    s_movk_i32 s53, 0xff00
    s_mov_b32 s48, 0x00030003
    s_mov_b32 s49, 0x00030003""")
    mktags(5, 0)
    wait_flag(20, F_XN, 18)
    if not nobeacon: A(f"buffer_load_dword v23, v21, s[8:11], s65 offen offset:{B_ID} sc1")
    A("ds_read_b128 v[24:27], v66\nds_read_b128 v[28:31], v66 offset:64")
    wait_flag(20, F_W1, 18)
    for t in range(4):
        for kk in range(2):
            for u in range(2):
                r = 72 + 8 * t + 4 * kk + 2 * u
                A(f"ds_read_b64_tr_b16 v[{r}:{r+1}], v{62+t} offset:{kk*4096 + u*1024}")
    for t in range(4):
        A(f"s_waitcnt lgkmcnt({12 - 4*t})")
        for kk in range(2):
            r = 72 + 8 * t + 4 * kk
            A(f"v_mfma_f32_16x16x32_bf16 v[{104+4*t}:{107+4*t}], v[{r}:{r+3}], v[{24+4*kk}:{27+4*kk}], {f'v[{104+4*t}:{107+4*t}]' if kk else 0}")
    for r in range(104, 120): A(f"v_and_or_b32 v{r}, v{r}, s53, v{152 + r % 4}")
    A("s_mov_b64 exec, s[48:49]")
    for t in range(4): A(f"buffer_store_dwordx4 v[{104+4*t}:{107+4*t}], v67, s[8:11], s66 offen offset:{B_HP + 64*t}{pst}")
    A("s_mov_b64 exec, -1\ns_mov_b32 s7, 0")
    stamp(6)
    if nobeacon: A("s_branch L_idok")
    l = lab("id")
    A(f"""s_waitcnt vmcnt(4)
    s_branch L_idchk
    {l}:
    buffer_load_dword v23, v21, s[8:11], s65 offen offset:{B_ID} sc1
    s_waitcnt vmcnt(0)
    L_idchk:
    v_cmp_ne_u32 vcc, s6, v23
    s_cbranch_vccz L_idok
    s_add_u32 s7, s7, 1
    s_cmp_lt_u32 s7, {IDTRY}
    s_cbranch_scc1 {l}
    L_idok:
    s_cmp_eq_u32 s7, {IDTRY}
    s_cselect_b32 s7, 1, 0""")
    if forcemode is not None: A(f"s_mov_b32 s7, {forcemode}")
    A("v_mov_b32 v23, s7")
    set_flag(20, F_MODE, 23)
    if touch and tlate: dotouch()
    stamp(1)
    A(f"""s_cmp_eq_u32 s7, 0
    s_cbranch_scc1 L_hpfast
    s_xor_b32 s37, s66, {W_B}
    s_mov_b64 exec, s[48:49]""")
    for t in range(4): A(f"buffer_store_dwordx4 v[{104+4*t}:{107+4*t}], v67, s[8:11], s37 offen offset:{B_HP + 64*t} sc1")
    A("s_mov_b64 exec, -1\nL_hpfast:")
    if dyn: A("buffer_load_dwordx2 v[120:121], v71, s[8:11], s78 offen sc1")
    A(f"""s_cmp_lt_u32 s62, 28
    s_cbranch_scc0 L_actw
    v_lshrrev_b32 v16, 3, v0
    v_lshlrev_b32 v16, 14, v16
    v_and_b32 v17, 7, v0
    v_lshl_add_u32 v16, v17, 4, v16
    s_lshl_b32 s31, s61, 12
    s_add_u32 s31, s31, s65""")
    if hpt: wait_flag(20, {'k': F_K}[hpt], 18)
    elif hs: A(f"s_sleep {hs}")
    l = lab("hp")
    A(f"s_lshl_b32 s7, s7, 21\n{l}:\ns_xor_b32 s31, s31, s7")
    for i in range(4):
        b, half = i & 1, i >> 1
        A(f"buffer_load_dwordx4 v[{24+4*i}:{27+4*i}], v16, s[8:11], s31 offen offset:{B_HP + b*256 + half*128} sc1")
    A("s_waitcnt vmcnt(0)")
    bad_tag(range(24, 40), 44, 5, 19)
    gloop_back(l, sleep=4)
    stamp(2)
    for i in range(4):
        r = 24 + 4 * i
        A(f"""v_permlane32_swap_b32 v{r}, v{r+2}
        v_permlane32_swap_b32 v{r+1}, v{r+3}
        v_add_f32 v{r}, v{r}, v{r+2}
        v_add_f32 v{r+1}, v{r+1}, v{r+3}""")
    for i in range(4):
        r = 24 + 4 * i
        A(f"v_permlane16_swap_b32 v{r}, v{r+1}\nv_add_f32 v{r}, v{r}, v{r+1}")
    for i in range(4):
        r = 24 + 4 * i
        A(f"v_add_f32 v{r}, v{r}, v{r} row_ror:8")
    A("""v_and_b32 v18, 8, v0
    v_cmp_eq_u32 vcc, 0, v18
    v_cndmask_b32 v40, v32, v24, vcc
    v_cndmask_b32 v41, v36, v28, vcc
    v_lshlrev_b32 v14, 16, v14
    s_mov_b32 s32, 0x3fb8aa3b
    s_mov_b32 s33, 0x3f317218""")
    for h in (40, 41):
        t = 44
        bf16r(h, h)
        A(f"v_add_f32 v{h}, v{h}, v14")
        bf16r(h, h)
        A(f"v_mul_f32 v{t}, s32, v{h}\nv_exp_f32 v{t}, -abs(v{t})")
        bf16r(t, t)
        A(f"""v_add_f32 v{t+1}, 1.0, v{t}
        v_log_f32 v{t+2}, v{t+1}
        v_add_f32 v{t+3}, -1.0, v{t+1}
        v_rcp_f32 v{t+3}, v{t+3}
        v_mul_f32 v{t+2}, s33, v{t+2}
        v_mul_f32 v{t+2}, v{t+2}, v{t}
        v_mul_f32 v{t+2}, v{t+2}, v{t+3}
        v_cmp_eq_f32 vcc, 1.0, v{t+1}
        v_cndmask_b32 v{t+2}, v{t+2}, v{t}, vcc""")
        bf16r(t+2, t+2)
        A(f"v_max_f32 v{t+1}, 0, v{h}\nv_add_f32 v{t+2}, v{t+2}, v{t+1}")
        bf16r(t+2, t+2)
        A(f"""v_mul_f32 v{t}, -2.0, v{t+2}
        v_mul_f32 v{t+1}, s32, v{t}
        v_exp_f32 v{t+1}, v{t+1}
        v_log_f32 v{t+3}, v{t+1}
        v_add_f32 v{t+4}, -1.0, v{t+1}
        v_mul_f32 v{t+3}, s33, v{t+3}
        v_rcp_f32 v{t+3}, v{t+3}
        v_mul_f32 v{t+5}, v{t+4}, v{t}
        v_mul_f32 v{t+5}, v{t+5}, v{t+3}
        v_cmp_eq_f32 vcc, 1.0, v{t+1}
        v_cndmask_b32 v{t+5}, v{t+5}, v{t}, vcc
        v_cmp_gt_f32 vcc, 0.5, v{t+1}
        v_cndmask_b32 v{t+5}, v{t+5}, v{t+4}, vcc
        v_add_f32 v{t+4}, 2.0, v{t+5}
        v_rcp_f32 v{t+4}, v{t+4}
        v_mul_f32 v{t+5}, v{t+5}, v{t+4}
        v_sub_f32 v{t+5}, 0, v{t+5}""")
        bf16r(t+5, t+5)
        A(f"v_mul_f32 v{h}, v{h}, v{t+5}\nv_cvt_pk_bf16_f32 v{h}, v{h}, v{h}")
    A(f"""L_actw:
    v_lshlrev_b32 v11, 1, v11
    v_add_u32 v11, {L_ACT}, v11
    ds_write_b16 v11, v40
    ds_write_b16 v11, v41 offset:128""")
    set_flag(20, F_ACT, 20)
    stamp(3)
    if dyn:
        l = lab("st")
        A(f"""s_waitcnt vmcnt(0)
        s_branch L_stchk
        {l}:
        buffer_load_dwordx2 v[120:121], v71, s[8:11], s78 offen sc1
        s_waitcnt vmcnt(0)
        L_stchk:
        v_cmp_ne_u32 vcc, s5, v121""")
        gloop_back(l, sleep=4)
        A("""v_readfirstlane_b32 s34, v120
        v_subrev_u32 v120, s34, v120
        v_lshl_add_u32 v120, v120, 3, v70
        v_max_i32 v120, v120, v120 row_ror:1
        v_max_i32 v120, v120, v120 row_ror:2
        v_max_i32 v120, v120, v120 row_ror:4
        v_and_b32 v120, 7, v120""")
        if forcer is not None: A(f"v_mov_b32 v120, {forcer}")
        set_flag(20, F_RED, 120)
    A(f"""v_lshrrev_b32 v16, 2, v0
    v_and_b32 v17, 3, v0
    v_lshlrev_b32 v21, 12, v16
    v_lshl_add_u32 v21, v17, 3, v21
    s_add_u32 s66, s65, 65536
    v_and_b32 v18, 15, v0
    v_lshlrev_b32 v18, 4, v18
    v_lshrrev_b32 v22, 4, v0
    v_lshl_add_u32 v22, v22, 2, v18
    v_add_u32 v22, {L_AL}, v22
    s_movk_i32 s53, 0xff00
    s_mov_b32 s52, -2""")
    if mlpre: wait_flag(20, F_QA, 18)
    elif mlt: wait_flag(20, {'v0': F_V0, 'v1': F_V1, 'v2': F_V2, 'v': F_V, 'k': F_K}[mlt], 18)
    l = lab("ml")
    if mlpipe: A("v_not_b32 v24, v156\nv_not_b32 v26, v156\ns_waitcnt vmcnt(0)")
    A(f"""{l}:
    buffer_load_dwordx2 v[24:25], v21, s[8:11], s65 offen offset:{B_ML} sc1
    buffer_load_dwordx2 v[26:27], v21, s[8:11], s66 offen offset:{B_ML} sc1""")
    if mlpipe and mlsl: A(f"s_sleep {mlsl}")
    A(f"""s_waitcnt vmcnt({2 * mlpipe})
    v_mov_b32 v32, v24
    v_mov_b32 v33, v25
    v_mov_b32 v34, v26
    v_mov_b32 v35, v27""")
    bad_tag(range(32, 36), 44, [(32, 34, "v156"), (33, 35, "v157")], 19)
    gloop_back(l)
    stamp(4)
    A("""v_and_b32 v32, s53, v32
    v_and_b32 v34, s53, v34
    v_max_f32 v28, v32, v32 row_ror:4
    v_max_f32 v29, v34, v34 row_ror:4
    v_max_f32 v28, v28, v28 row_ror:8
    v_max_f32 v29, v29, v29 row_ror:8""")
    allred2(28, 30, 29, 31, "v_max_f32")
    A("""v_sub_f32 v32, v32, v28
    v_sub_f32 v34, v34, v29
    v_exp_f32 v32, v32
    v_exp_f32 v34, v34
    v_mul_f32 v33, v32, v33
    v_mul_f32 v35, v34, v35
    v_add_f32 v28, v33, v33 row_ror:4
    v_add_f32 v29, v35, v35 row_ror:4
    v_add_f32 v28, v28, v28 row_ror:8
    v_add_f32 v29, v29, v29 row_ror:8""")
    allred2(28, 30, 29, 31, "v_add_f32")
    A("""v_rcp_f32 v28, v28
    v_rcp_f32 v29, v29
    v_mul_f32 v32, v32, v28
    v_mul_f32 v34, v34, v29
    v_min_u32 v32, s52, v32
    v_min_u32 v34, s52, v34
    ds_write_b32 v22, v32
    ds_write_b32 v22, v34 offset:256""")
    stamp(5)
    dump_stamps()
    A("s_waitcnt lgkmcnt(0)\ns_endpgm")

    A("L_compute:")
    if cprio: A(f"s_setprio {cprio}")
    A(f"""s_sub_u32 s30, s3, 2
    v_lshlrev_b32 v2, 4, v0
    s_lshl_b32 s31, s30, 10
    s_add_u32 s31, s31, {L_S}
    v_add_u32 v3, s31, v2
    v_mov_b32 v4, -1
    v_mov_b32 v5, -1
    v_mov_b32 v6, -1
    v_mov_b32 v7, -1
    ds_write_b128 v3, v[4:7]
    s_mov_b32 s100, 0
    s_mov_b32 s101, 0
    s_waitcnt lgkmcnt(0)
    s_load_dword s54, s[26:27], 0
    s_barrier""")
    ws_srd(32)
    A(f"""s_mov_b32 s36, 0xffff0000
    v_and_b32 v4, 15, v0
    v_lshrrev_b32 v5, 4, v0
    v_mov_b32 v6, {L_FLG}
    v_bfe_u32 v96, v0, 2, 2
    v_and_b32 v17, 1, v5
    v_lshl_add_u32 v96, v17, 2, v96
    v_bfe_u32 v18, v0, 1, 1
    s_lshl_b32 s37, s30, 1
    v_add_u32 v18, s37, v18
    v_and_b32 v19, 6, v96
    v_xor_b32 v18, v18, v19
    v_lshlrev_b32 v18, 4, v18
    v_and_b32 v19, 1, v0
    v_lshl_add_u32 v18, v19, 3, v18
    v_lshrrev_b32 v17, 5, v0
    v_lshl_add_u32 v17, v17, 4, v96
    v_lshl_add_u32 v7, v17, 7, v18
    v_add_u32 v7, {L_WQ}, v7
    ; xn frag addresses v106 (wq rows), v105 (w1 rows)
    v_mul_u32_u24 v18, {XSTR}, v19
    v_lshl_add_u32 v18, v5, 4, v18
    s_lshr_b32 s37, s29, 3
    s_lshl_b32 s37, s37, 8
    s_add_u32 s37, s37, {L_XN}
    v_add_u32 v106, s37, v18
    s_lshl_b32 s37, s30, 6
    v_lshlrev_b32 v18, 8, v4
    v_lshl_add_u32 v18, v5, 4, v18
    v_add_u32 v107, s37, v18
    s_lshl_b32 s38, s28, 5
    s_add_u32 s38, s38, s29
    s_lshl_b32 s68, s38, 9
    s_lshl_b32 s38, s38, 12
    s_add_u32 s68, s68, {W_FP}
    v_add_u32 v3, {L_XN}, v2
    v_add_u32 v16, {L_XR}, v2
    s_mov_b32 s48, 0x00030003
    s_mov_b32 s49, 0x00030003
    s_mov_b32 s52, -2
    s_movk_i32 s53, 0xff00""")
    stamp(1)
    wait_flag(6, F_X, 17)
    A(f"""ds_read_b128 v[8:11], v16
    ds_read_b128 v[12:15], v16 offset:1024
    s_add_u32 s54, s54, 1
    s_waitcnt lgkmcnt(0)""")
    stamp0()
    stamp(2)
    for b in range(2):
        for i in range(4):
            A(f"v_lshlrev_b32 v{16+8*b+2*i}, 16, v{8+4*b+i}\nv_and_b32 v{17+8*b+2*i}, s36, v{8+4*b+i}")
    def red2(a, b, t):
        A(f"""v_permlane32_swap_b32 v{a}, v{b}
        v_add_f32 v{a}, v{a}, v{b}
        v_mov_b32 v{t}, v{a}
        v_permlane16_swap_b32 v{t}, v{a}
        v_add_f32 v{a}, v{a}, v{t}
        v_add_f32 v{a}, v{a}, v{a} row_ror:8
        v_add_f32 v{a}, v{a}, v{a} row_ror:4
        v_add_f32 v{a}, v{a}, v{a} row_ror:2
        v_add_f32 v{a}, v{a}, v{a} row_ror:1""")
    for b in range(2):
        f = 16 + 8 * b
        A(f"""v_pk_add_f32 v[{32+4*b}:{33+4*b}], v[{f}:{f+1}], v[{f+2}:{f+3}]
        v_pk_add_f32 v[{34+4*b}:{35+4*b}], v[{f+4}:{f+5}], v[{f+6}:{f+7}]""")
    for b in range(2):
        A(f"v_pk_add_f32 v[{32+4*b}:{33+4*b}], v[{32+4*b}:{33+4*b}], v[{34+4*b}:{35+4*b}]")
    A("v_add_f32 v32, v32, v33\nv_add_f32 v36, v36, v37")
    red2(32, 36, 33)
    A("""v_mul_f32 v32, 0x3b000000, v32
    v_readlane_b32 s60, v32, 0
    v_readlane_b32 s62, v32, 32""")
    for b in range(2):
        f = 16 + 8 * b
        for i in range(4):
            A(f"v_pk_add_f32 v[{40+8*b+2*i}:{41+8*b+2*i}], v[{f+2*i}:{f+2*i+1}], s[{60+2*b}:{61+2*b}] op_sel_hi:[1,0] neg_lo:[0,1] neg_hi:[0,1]")
    for b in range(2):
        d = 40 + 8 * b
        A(f"v_pk_mul_f32 v[{34+2*b}:{35+2*b}], v[{d}:{d+1}], v[{d}:{d+1}]")
    for i in range(1, 4):
        for b in range(2):
            d = 40 + 8 * b + 2 * i
            A(f"v_pk_fma_f32 v[{34+2*b}:{35+2*b}], v[{d}:{d+1}], v[{d}:{d+1}], v[{34+2*b}:{35+2*b}]")
    A("v_add_f32 v34, v34, v35\nv_add_f32 v36, v36, v37")
    red2(34, 36, 33)
    A("v_mul_f32 v34, 0x3b000000, v34")
    bf16r(34, 34)
    A("v_add_f32 v34, 0x3727c5ac, v34")
    bf16r(34, 34)
    A("v_sqrt_f32 v34, v34")
    bf16r(32, 32)
    bf16r(34, 34)
    A("v_rcp_f32 v34, v34")
    A("""v_readlane_b32 s60, v32, 0
    v_readlane_b32 s62, v32, 32
    v_readlane_b32 s64, v34, 0
    v_readlane_b32 s66, v34, 32""")
    for b in range(2):
        f = 16 + 8 * b
        for i in range(4):
            A(f"v_pk_add_f32 v[{f+2*i}:{f+2*i+1}], v[{f+2*i}:{f+2*i+1}], s[{60+2*b}:{61+2*b}] op_sel_hi:[1,0] neg_lo:[0,1] neg_hi:[0,1]")
    for i in range(8):
        A(f"v_cvt_pk_bf16_f32 v{8+i}, v{16+2*i}, v{17+2*i}")
    for i in range(8):
        A(f"v_lshlrev_b32 v{16+2*i}, 16, v{8+i}\nv_and_b32 v{17+2*i}, s36, v{8+i}")
    for b in range(2):
        f = 16 + 8 * b
        for i in range(4):
            A(f"v_pk_mul_f32 v[{f+2*i}:{f+2*i+1}], v[{f+2*i}:{f+2*i+1}], s[{64+2*b}:{65+2*b}] op_sel_hi:[1,0]")
    for i in range(8):
        A(f"v_cvt_pk_bf16_f32 v{8+i}, v{16+2*i}, v{17+2*i}")
    A(f"""ds_write_b128 v3, v[8:11]
    ds_write_b128 v3, v[12:15] offset:{XSTR}""")
    set_flag(6, F_XN, 6)
    mktags(54, 0)
    A("s_waitcnt lgkmcnt(0)")
    for kk in range(4): A(f"ds_read_b128 v[{24+4*kk}:{27+4*kk}], v106 offset:{64*kk}")
    stamp(3)
    wait_flag(6, F_WQ, 16)
    stamp(4)
    def trw(base, nk, r0):
        for kk in range(nk):
            for u in range(2):
                A(f"ds_read_b64_tr_b16 v[{r0+4*kk+2*u}:{r0+4*kk+2*u+1}], v7 offset:{base - L_WQ + kk*4096 + u*1024}")
    def tag(regs):
        for r in regs: A(f"v_and_or_b32 v{r}, v{r}, s53, v{152 + r % 4}")
    trw(L_WQ, 4, 48)
    for kk in range(4):
        A(f"s_waitcnt lgkmcnt({6 - 2*kk})")
        A(f"v_mfma_f32_16x16x32_bf16 v[88:91], v[{48+4*kk}:{51+4*kk}], v[{24+4*kk}:{27+4*kk}], {'v[88:91]' if kk else 0}")
    tag(range(88, 92))
    A(f"""s_mov_b64 exec, s[48:49]
    buffer_store_dwordx4 v[88:91], v107, s[32:35], s38 offen offset:{B_QP}{pst}
    s_mov_b64 exec, -1""")
    stamp(5)
    A(f"""v_lshlrev_b32 v119, 15, v5
    v_lshl_add_u32 v119, v4, 4, v119
    s_lshl_b32 s39, s28, 17
    s_lshl_b32 s37, s30, 13
    s_add_u32 s39, s39, s37
    s_lshr_b32 s37, s29, 4
    s_lshl_b32 s37, s37, 8
    s_add_u32 s39, s39, s37
    s_add_u32 s40, s39, 4096
    v_lshlrev_b32 v118, 5, v5
    v_lshl_add_u32 v118, v4, 4, v118
    s_lshl_b32 s37, s30, 7
    v_add_u32 v118, s37, v118""")
    def qloads(r):
        A(f"""buffer_load_dwordx4 v[{r}:{r+3}], v119, s[32:35], s39 offen offset:{B_QP} sc1
        buffer_load_dwordx4 v[{r+4}:{r+7}], v119, s[32:35], s40 offen offset:{B_QP} sc1""")
    A(f"""; ---- remaining addresses
    v_mov_b32 v123, 0
    v_and_b32 v19, 1, v0
    v_bfe_u32 v18, v0, 1, 1
    s_lshl_b32 s37, s30, 2
    v_add_u32 v18, s37, v18
    v_lshlrev_b32 v17, 1, v96
    v_xor_b32 v18, v18, v17
    v_lshlrev_b32 v18, 4, v18
    v_lshl_add_u32 v18, v19, 3, v18
    v_lshrrev_b32 v17, 2, v0
    v_lshl_add_u32 v100, v17, 8, v18
    s_lshl_b32 s37, s30, 2
    v_add_u32 v101, s37, v6
    v_and_b32 v17, 7, v0
    v_lshlrev_b32 v17, 1, v17
    v_xor_b32 v17, v17, v5
    v_lshlrev_b32 v17, 4, v17
    v_lshl_add_u32 v17, v4, 8, v17
    s_lshl_b32 s37, s30, 13
    v_add_u32 v102, s37, v17
    v_xor_b32 v103, 64, v102
    v_xor_b32 v104, 128, v102
    v_xor_b32 v105, 192, v102
    v_mul_u32_u24 v116, {OSTR}, v19
    v_lshl_add_u32 v116, v5, 4, v116
    v_add_u32 v116, {L_O}, v116
    v_lshlrev_b32 v117, 7, v19
    v_lshl_add_u32 v117, v5, 4, v117
    v_add_u32 v117, {L_ACT}, v117
    v_lshrrev_b32 v17, 5, v0
    v_lshlrev_b32 v17, 7, v17
    v_lshl_add_u32 v17, v4, 3, v17
    v_and_b32 v18, 1, v5
    v_lshl_add_u32 v17, v18, 2, v17
    s_mul_i32 s37, s30, {QSTR}
    s_add_u32 s37, s37, {L_Q}
    v_add_u32 v120, s37, v17
    v_and_b32 v19, 3, v0
    v_mul_u32_u24 v121, {QSTR}, v19
    v_lshl_add_u32 v121, v5, 4, v121
    v_add_u32 v121, {L_Q}, v121
    v_lshlrev_b32 v20, 6, v5
    v_lshl_add_u32 v20, v19, 4, v20
    v_add_u32 v108, {L_P}, v20
    s_lshl_b32 s37, s30, 8
    v_add_u32 v110, s37, v108
    s_lshl_b32 s37, s30, 9
    v_add_u32 v109, s37, v20
    s_and_b32 s41, s30, 1
    s_lshl_b32 s37, s41, 8
    s_add_u32 s37, s37, {L_AL}
    v_add_u32 v114, s37, v20
    v_lshlrev_b32 v111, 5, v19
    v_add_u32 v111, {L_ML}, v111
    s_lshl_b32 s37, s30, 2
    v_add_u32 v112, s37, v111
    v_lshlrev_b32 v106, 3, v4
    v_lshlrev_b32 v16, 12, v5
    v_lshl_add_u32 v113, v4, 4, v16
    s_and_b32 s43, s29, 3
    s_lshl_b32 s37, s43, 9
    s_lshr_b32 s42, s30, 1
    s_lshl_b32 s44, s42, 8
    s_add_u32 s37, s37, s44
    v_add_u32 v113, s37, v113
    s_lshl_b32 s44, s28, 17
    s_lshl_b32 s37, s41, 16
    s_add_u32 s44, s44, s37
    s_add_u32 s45, s44, 16384
    s_add_u32 s46, s44, 32768
    s_add_u32 s47, s44, 49152
    v_lshlrev_b32 v115, 4, v4
    v_lshl_add_u32 v115, v18, 2, v115
    s_mul_i32 s37, s41, {OSTR}
    s_lshl_b32 s42, s42, 3
    s_add_u32 s37, s37, s42
    s_add_u32 s37, s37, {L_O}
    v_add_u32 v115, s37, v115
    s_mov_b32 s50, 0x000f000f
    s_mov_b32 s51, 0x000f000f
    s_mov_b32 s58, 0x3db504f3
    s_mov_b32 s59, 0x3fb8aa3b
    s_lshl_b32 s70, s29, 9
    s_lshl_b32 s37, s30, 7
    s_add_u32 s70, s70, s37
    s_add_u32 s70, s70, {W_FP}
    v_lshrrev_b32 v17, 3, v0
    v_lshlrev_b32 v17, 14, v17
    v_and_b32 v16, 7, v0
    v_lshl_add_u32 v99, v16, 4, v17
    v_and_b32 v16, 1, v0
    v_lshlrev_b32 v16, 10, v16
    v_bfe_u32 v17, v0, 1, 2
    v_lshl_add_u32 v16, v17, 3, v16
    v_lshrrev_b32 v17, 5, v0
    v_lshl_add_u32 v16, v17, 2, v16
    s_lshr_b32 s37, s29, 2
    s_lshl_b32 s37, s37, 7
    s_lshl_b32 s41, s30, 5
    s_add_u32 s37, s37, s41
    v_add_u32 v98, s37, v16
    v_add_u32 v17, {L_XR}, v98
    ds_read_b32 v97, v17""")
    for i in range(4):
        if vsplit:
            A(f"""s_add_u32 s37, s43, {i}
            s_and_b32 s37, s37, 3
            s_lshl_b32 s41, s37, 13
            v_add_u32 v{80+2*i}, s41, v100
            s_lshl_b32 s41, s37, 8
            v_add_u32 v{76+i}, s41, v108""")
        else:
            A(f"v_add_u32 v{80+2*i}, {i*8192}, v100\nv_add_u32 v{76+i}, {i*256}, v108")
        A(f"v_xor_b32 v{81+2*i}, 32, v{80+2*i}")
    if touchout: A("global_load_dword v124, v98, s[22:23]")
    if warmfp: A(f"s_mov_b64 exec, s[48:49]\nbuffer_load_dword v124, v118, s[32:35], s68 offen{wfl}\ns_mov_b64 exec, -1")
    A("s_mov_b32 s56, 0")
    if sa: A(f"s_sleep {sa}")
    stamp(6)
    if lst:
        A(f"""s_or_b32 s37, s29, s30
        s_cbranch_scc1 L_nolst
        s_lshl_b32 s37, s28, 2
        s_add_u32 s37, s37, 0x8000100
        v_mov_b32 v20, s37
        v_mov_b32 v22, s94
        s_mov_b64 exec, 1
        global_store_dword v20, v22, s[26:27]
        s_mov_b64 exec, -1
        L_nolst:""")
    def republish():
        A(f"""s_xor_b32 s37, s38, {W_B}
        s_mov_b64 exec, s[48:49]
        buffer_store_dwordx4 v[88:91], v107, s[32:35], s37 offen offset:{B_QP} sc1
        s_mov_b64 exec, -1
        s_mov_b32 s56, 1""")
    qs = [128, 136, 144][:qsets]
    for k, r in enumerate(qs):
        qloads(r)
        if k + 1 < len(qs) and sb: A(f"s_sleep {sb}")
    def kread():
        wait_flag(6, F_K, 41)
        for t in range(2):
            for kk in range(4):
                A(f"ds_read_b128 v[{44+16*t+4*kk}:{47+16*t+4*kk}], v{102+kk} offset:{L_K + t*4096}")
    if kpre: kread()
    A("L_qp:")
    for k, r in enumerate(qs):
        A(f"s_waitcnt vmcnt({2*(len(qs)-1)})")
        bad_tag(range(r, r + 8), 40, 55, 123)
        A(f"s_cbranch_vccz L_qok{k}")
        qloads(r)
    A(f"""ds_read_b32 v40, v6 offset:{F_MODE}
    s_waitcnt lgkmcnt(0)
    v_readfirstlane_b32 s57, v40
    s_xor_b32 s57, s57, 1
    s_or_b32 s57, s57, s56
    s_cbranch_scc1 L_norep""")
    republish()
    A(f"""s_waitcnt vmcnt(0)""")
    for r in qs: qloads(r)
    A(f"""L_norep:
    s_lshl_b32 s37, s56, 21
    s_xor_b32 s39, s39, s37
    s_xor_b32 s40, s40, s37
    s_add_u32 s101, s101, 1
    s_cmp_lt_u32 s101, {SPIN}
    s_cbranch_scc1 L_qp""")
    for k, r in reversed(list(enumerate(qs))):
        A(f"L_qok{k}:")
        for i in range(4): A(f"v_permlane32_swap_b32 v{r+i}, v{r+4+i}")
        A(f"v_pk_add_f32 v[40:41], v[{r}:{r+1}], v[{r+4}:{r+5}]\nv_pk_add_f32 v[42:43], v[{r+2}:{r+3}], v[{r+6}:{r+7}]")
        if k: A("s_branch L_qj")
    A("L_qj:")
    stamp(7)
    A("""v_permlane16_swap_b32 v40, v42
    v_permlane16_swap_b32 v41, v43
    v_pk_add_f32 v[40:41], v[40:41], v[42:43]
    v_cvt_pk_bf16_f32 v40, v40, v41
    v_min_u32 v40, s52, v40
    ds_write_b32 v120, v40""")
    if not kpre: kread()
    l = lab("ql")
    A(f"{l}:")
    for kk in range(4): A(f"ds_read_b128 v[{16+4*kk}:{19+4*kk}], v121 offset:{64*kk}")
    A("s_waitcnt lgkmcnt(0)")
    any_sent(range(16, 32), 40)
    loop_back(l)
    stamp(8)
    for kk in range(4):
        for t in range(2):
            A(f"v_mfma_f32_16x16x32_bf16 v[{8+4*t}:{11+4*t}], v[{44+16*t+4*kk}:{47+16*t+4*kk}], v[{16+4*kk}:{19+4*kk}], {f'v[{8+4*t}:{11+4*t}]' if kk else 0}")
    A(f"ds_read_b32 v42, v6 offset:{F_MODE}")
    for rnd in range(2):
        for i in range(4): A(f"v_cvt_pk_bf16_f32 v{24+i}, v{8+2*i}, v{9+2*i}")
        for i in range(4): A(f"v_lshlrev_b32 v{8+2*i}, 16, v{24+i}\nv_and_b32 v{9+2*i}, s36, v{24+i}")
        if rnd == 0:
            for i in range(4): A(f"v_pk_mul_f32 v[{8+2*i}:{9+2*i}], v[{8+2*i}:{9+2*i}], s[58:59] op_sel_hi:[1,0]")
    A("""v_max3_f32 v24, v8, v9, v10
    v_max3_f32 v25, v11, v12, v13
    v_max3_f32 v24, v24, v14, v15
    v_max_f32 v24, v24, v25""")
    allred(24, 25, "v_max_f32")
    A("""v_min_u32 v25, s52, v24
    s_mov_b64 exec, 15
    ds_write_b32 v112, v25
    s_mov_b64 exec, -1""")
    l = lab("ml")
    A(f"""{l}:
    ds_read_b128 v[28:31], v111
    s_waitcnt lgkmcnt(0)""")
    any_sent([28, 29, 30, 31], 20)
    loop_back(l)
    A("""v_max3_f32 v26, v28, v29, v30
    v_max_f32 v26, v26, v31
    v_mul_f32 v26, s59, v26
    v_and_b32 v26, s53, v26""")
    for i in range(8): A(f"v_fma_f32 v{8+i}, v{8+i}, s59, -v26")
    for i in range(8): A(f"v_exp_f32 v{8+i}, v{8+i}")
    for i in range(4): A(f"v_cvt_pk_bf16_f32 v{16+i}, v{8+2*i}, v{9+2*i}")
    for i in range(4): A(f"v_min_u32 v{16+i}, s52, v{16+i}")
    A(f"""s_mov_b64 exec, s[50:51]
    ds_write_b128 v110, v[16:19]
    s_mov_b64 exec, -1
    v_pk_add_f32 v[28:29], v[8:9], v[10:11]
    v_pk_add_f32 v[30:31], v[12:13], v[14:15]
    v_pk_add_f32 v[28:29], v[28:29], v[30:31]
    v_add_f32 v25, v28, v29""")
    allred(25, 27, "v_add_f32")
    A(f"""v_min_u32 v25, s52, v25
    s_mov_b64 exec, 15
    ds_write_b32 v112, v25 offset:16
    s_mov_b64 exec, -1
    v_readfirstlane_b32 s57, v42
    s_cmp_eq_u32 s57, 0
    s_cbranch_scc1 L_modeok""")
    wait_flag(6, F_MODE, 42)
    A("""v_readfirstlane_b32 s57, v42
    s_xor_b32 s37, s57, 1
    s_or_b32 s37, s37, s56
    s_cbranch_scc1 L_modeok""")
    republish()
    A(f"""L_modeok:
    s_cmp_eq_u32 s30, 0
    s_cbranch_scc0 L_noml""")
    l = lab("ll")
    A(f"""{l}:
    ds_read_b128 v[28:31], v111 offset:16
    s_waitcnt lgkmcnt(0)""")
    any_sent([28, 29, 30, 31], 20)
    loop_back(l)
    A(f"""v_pk_add_f32 v[28:29], v[28:29], v[30:31]
    v_or_b32 v26, v26, v156
    v_add_f32 v27, v28, v29
    v_and_or_b32 v27, v27, s53, v157
    s_mov_b64 exec, {0xffff if fullml else 15}
    s_cmp_eq_u32 s57, 0
    s_cbranch_scc1 L_mlf
    buffer_store_dwordx2 v[26:27], v106, s[32:35], s38 offen offset:{B_ML} sc1
    s_branch L_mle
    L_mlf:
    buffer_store_dwordx2 v[26:27], v106, s[32:35], s38 offen offset:{B_ML}
    L_mle:
    s_mov_b64 exec, -1
    L_noml:""")
    l = lab("pl")
    A(f"{l}:")
    for i in range(4): A(f"ds_read_b128 v[{44+4*i}:{47+4*i}], v{76+i}")
    A("s_waitcnt lgkmcnt(0)")
    any_sent(range(44, 60), 20)
    loop_back(l)
    stamp(9)
    def ffn2():
        wait_flag(6, F_W2, 22)
        trw(L_W2, 2, 60)
        wait_flag(6, F_ACT, 22)
        A("ds_read_b128 v[68:71], v117\nds_read_b128 v[72:75], v117 offset:64\ns_waitcnt lgkmcnt(0)")
        for kk in range(2):
            A(f"v_mfma_f32_16x16x32_bf16 v[8:11], v[{60+4*kk}:{63+4*kk}], v[{68+4*kk}:{71+4*kk}], {'v[8:11]' if kk else 0}")
    def wopre():
        wait_flag(6, F_WO, 22)
        if op2: op_loads(44)
        if not opearly: op_loads()
        trw(L_WO, 4, 60)
    iv = order.index('v')
    assert order.index('w2') < order.index('wo') or order.index('wo') < iv
    if order.index('w2') < iv: ffn2()
    def pvstep(i, waitcnt):
        for t in range(2):
            for u in range(2):
                r = 24 + 8 * (i & 1) + 4 * t + 2 * u
                A(f"ds_read_b64_tr_b16 v[{r}:{r+1}], v{80+2*i+t} offset:{L_V + u*4096}")
    def pvmfma(i):
        for t in range(2):
            r = 24 + 8 * (i & 1) + 4 * t
            A(f"v_mfma_f32_16x16x32_bf16 v[{12+4*t}:{15+4*t}], v[{r}:{r+3}], v[{44+4*i}:{47+4*i}], {f'v[{12+4*t}:{15+4*t}]' if i else 0}")
    if vsplit:
        A(f"""ds_read_b32 v20, v6 offset:{F_V}
        s_waitcnt lgkmcnt(0)
        v_cmp_eq_u32 vcc, -1, v20
        s_cbranch_vccz L_pvall""")
        for i, f in enumerate((F_V0, F_V1, F_V2, F_V)):
            wait_flag(6, f, 20)
            if i == 3: stamp(10)
            pvstep(i, 0)
            A("s_waitcnt lgkmcnt(0)")
            pvmfma(i)
        A("s_branch L_pvdone\nL_pvall:")
    else:
        wait_flag(6, F_V, 20)
    if True:
        stamp(10)
        pvstep(0, 0); pvstep(1, 0)
        A("s_waitcnt lgkmcnt(4)"); pvmfma(0); pvstep(2, 0)
        A("s_waitcnt lgkmcnt(4)"); pvmfma(1); pvstep(3, 0)
        A("s_waitcnt lgkmcnt(4)"); pvmfma(2)
        A("s_waitcnt lgkmcnt(0)"); pvmfma(3)
        A("L_pvdone:\ns_nop 7")
    tag(range(12, 20))
    A(f"""s_mov_b64 exec, s[50:51]
    s_cmp_eq_u32 s57, 0
    s_cbranch_scc0 L_opslow
    buffer_store_dwordx4 v[12:15], v109, s[32:35], s38 offen offset:{B_OP}{pst}
    buffer_store_dwordx4 v[16:19], v109, s[32:35], s38 offen offset:{B_OP + 256}{pst}
    L_opdone:""")
    if hold: A(f"ds_write_b32 v101, v6 offset:{F_OPD}")
    A("s_mov_b64 exec, -1")
    stamp(11)
    def op_loads(r=24):
        for i in range(4): A(f"buffer_load_dwordx4 v[{r+4*i}:{r+3+4*i}], v113, s[32:35], s{44+i} offen offset:{B_OP} sc1")
    if opearly and not hold and not pre: op_loads()
    if order.index('w2') > iv: ffn2()
    if hold or pre:
        wait_flag(6, F_PRE, 22)
        if presl: A(f"s_sleep {presl}")
        op_loads()
    if dyn:
        wait_flag(6, F_RED, 22)
        A("""v_readfirstlane_b32 s76, v22
        s_xor_b32 s76, s76, s28
        s_or_b32 s77, s76, s57
        s_cselect_b32 s77, 2, 1
        s_and_b32 s37, s29, 3
        s_or_b32 s76, s76, s37
        s_cselect_b32 s76, s77, 0""")
    if not olate: wopre()
    else:
        assert not op2 and not hold and not pre
        if opsl: A(f"s_sleep {opsl}")
        if not opearly: op_loads()
    stamp(12)
    def alpha_wait(tagl):
        A("s_waitcnt lgkmcnt(0)")
        any_sent(range(40, 44), 22)
        A(f"s_cbranch_vccz L_alok{tagl}")
        l = lab("al")
        A(f"""{l}:
        ds_read_b128 v[40:43], v114
        s_waitcnt lgkmcnt(0)""")
        any_sent(range(40, 44), 22)
        loop_back(l)
        A(f"L_alok{tagl}:")
    def wsum(r):
        A(f"""v_pk_mul_f32 v[12:13], v[{r}:{r+1}], v[40:41] op_sel_hi:[1,0]
        v_pk_mul_f32 v[14:15], v[{r+2}:{r+3}], v[40:41] op_sel_hi:[1,0]
        v_pk_fma_f32 v[12:13], v[{r+4}:{r+5}], v[40:41], v[12:13] op_sel:[0,1,0] op_sel_hi:[1,1,1]
        v_pk_fma_f32 v[14:15], v[{r+6}:{r+7}], v[40:41], v[14:15] op_sel:[0,1,0] op_sel_hi:[1,1,1]
        v_pk_fma_f32 v[12:13], v[{r+8}:{r+9}], v[42:43], v[12:13] op_sel_hi:[1,0,1]
        v_pk_fma_f32 v[14:15], v[{r+10}:{r+11}], v[42:43], v[14:15] op_sel_hi:[1,0,1]
        v_pk_fma_f32 v[12:13], v[{r+12}:{r+13}], v[42:43], v[12:13] op_sel:[0,1,0] op_sel_hi:[1,1,1]
        v_pk_fma_f32 v[14:15], v[{r+14}:{r+15}], v[42:43], v[14:15] op_sel:[0,1,0] op_sel_hi:[1,1,1]""")
    if op2:
        A("L_opA:\nds_read_b128 v[40:43], v114\ns_waitcnt vmcnt(4)")
        bad_tag(range(24, 40), 88, 55, 123)
        A("s_cbranch_vccz L_opAok")
        op_loads(24)
        A("s_waitcnt vmcnt(4)")
        bad_tag(range(44, 60), 88, 55, 123)
        A("s_cbranch_vccz L_opBok")
        op_loads(44)
        A(f"""s_add_u32 s101, s101, 1
        s_cmp_lt_u32 s101, {SPIN}
        s_cbranch_scc1 L_opA
        L_opBok:""")
        stamp(13)
        alpha_wait("B"); wsum(44)
        A("s_branch L_opJ\nL_opAok:")
        stamp(13)
        alpha_wait("A"); wsum(24)
        A("L_opJ:")
    else:
        l = lab("og")
        A(f"s_branch L_ochk\n{l}:")
        op_loads()
        A("L_ochk:\nds_read_b128 v[40:43], v114\ns_waitcnt vmcnt(0)")
        bad_tag(range(24, 40), 88, 55, 123)
        if opmask:
            A(f"""s_cbranch_vccz L_opok
            s_mov_b64 exec, vcc
            L_opr:""")
            op_loads()
            A("s_waitcnt vmcnt(0)")
            bad_tag(range(24, 40), 88, 55, 123)
            A(f"""s_cbranch_vccz L_opdn
            s_mov_b64 exec, vcc
            s_add_u32 s101, s101, 1
            s_cmp_lt_u32 s101, {SPIN}
            s_cbranch_scc1 L_opr
            L_opdn:
            s_mov_b64 exec, -1
            ds_read_b128 v[40:43], v114
            L_opok:""")
        else:
            gloop_back(l)
        stamp(13)
        alpha_wait("A"); wsum(24)
    stamp(17)
    A("""v_permlane16_swap_b32 v12, v14
    v_permlane16_swap_b32 v13, v15
    v_pk_add_f32 v[12:13], v[12:13], v[14:15]
    v_mov_b32 v14, v12
    v_mov_b32 v15, v13
    v_permlane32_swap_b32 v14, v12
    v_permlane32_swap_b32 v15, v13
    v_pk_add_f32 v[12:13], v[12:13], v[14:15]
    v_cvt_pk_bf16_f32 v12, v12, v13
    v_min_u32 v12, s52, v12
    ds_write_b32 v115, v12""")
    l = lab("ol")
    A(f"{l}:")
    for kk in range(4): A(f"ds_read_b128 v[{76+4*kk}:{79+4*kk}], v116 offset:{64*kk}")
    A("s_waitcnt lgkmcnt(0)")
    any_sent(range(76, 92), 22)
    loop_back(l)
    if olate:
        stamp(18)
        wait_flag(6, F_WO, 22)
        trw(L_WO, 4, 60)
    for kk in range(4):
        if olate: A(f"s_waitcnt lgkmcnt({6 - 2*kk})")
        A(f"v_mfma_f32_16x16x32_bf16 v[8:11], v[{60+4*kk}:{63+4*kk}], v[{76+4*kk}:{79+4*kk}], v[8:11]")
    A("s_cmp_lt_u32 s76, 2" if dyn else "s_lshl_b32 s37, s28, 2\ns_cmp_eq_u32 s29, s37")
    tag(range(8, 12))
    A(f"""s_mov_b64 exec, s[48:49]
    s_cbranch_scc1 L_final
    buffer_store_dwordx4 v[8:11], v118, s[32:35], s68 offen sc1""")
    if stamps:
        A("s_mov_b64 exec, -1")
        stamp(14)
        A("s_branch L_cend")
    else: A("s_endpgm")
    A(f"""L_opslow:
    buffer_store_dwordx4 v[12:15], v109, s[32:35], s38 offen offset:{B_OP} sc1
    buffer_store_dwordx4 v[16:19], v109, s[32:35], s38 offen offset:{B_OP + 256} sc1
    s_branch L_opdone""")
    A(f"""L_final:
    buffer_store_dwordx4 v[8:11], v118, s[32:35], s68 offen
    s_mov_b64 exec, -1""")
    stamp(14)
    if dyn: A(f"s_cmp_eq_u32 s76, 0\ns_cbranch_scc0 {'L_cend' if stamps else 'L_end'}")
    if fdelay: A(f"s_sleep {fdelay}")
    def fp_loads(r):
        for i in range(4):
            A(f"buffer_load_dwordx4 v[{r+4*i}:{r+3+4*i}], v99, s[32:35], s70 offen offset:{512*i} sc1")
    sets = [24, 44, 60][:fpsets]
    for r in sets: fp_loads(r)
    A("L_fp:")
    for k, r in enumerate(sets):
        A(f"s_waitcnt vmcnt({4*(len(sets)-1)})")
        bad_tag(range(r, r + 16), 76, 55, 123)
        A(f"s_cbranch_vccz L_fpok{k}")
        if fpmask and fpsets == 1: A("s_mov_b64 exec, vcc")
        if fsl: A(f"s_sleep {fsl}")
        fp_loads(r)
    A(f"""s_add_u32 s101, s101, 1
    s_cmp_lt_u32 s101, {SPIN}
    s_cbranch_scc1 L_fp""")
    for k, r in reversed(list(enumerate(sets))):
        A(f"L_fpok{k}:")
        if fpmask and fpsets == 1: A("s_mov_b64 exec, -1")
        stamp(16)
        A(f"""v_pk_add_f32 v[12:13], v[{r}:{r+1}], v[{r+4}:{r+5}]
        v_pk_add_f32 v[14:15], v[{r+2}:{r+3}], v[{r+6}:{r+7}]
        v_pk_add_f32 v[16:17], v[{r+8}:{r+9}], v[{r+12}:{r+13}]
        v_pk_add_f32 v[18:19], v[{r+10}:{r+11}], v[{r+14}:{r+15}]""")
        if k: A("s_branch L_fpj")
    A(f"""L_fpj:
    v_pk_add_f32 v[12:13], v[12:13], v[16:17]
    v_pk_add_f32 v[14:15], v[14:15], v[18:19]
    v_permlane32_swap_b32 v12, v14
    v_permlane32_swap_b32 v13, v15
    v_pk_add_f32 v[12:13], v[12:13], v[14:15]
    v_mov_b32 v14, v12
    v_mov_b32 v15, v13
    v_permlane16_swap_b32 v14, v12
    v_permlane16_swap_b32 v15, v13
    v_pk_add_f32 v[12:13], v[12:13], v[14:15]
    v_lshlrev_b32 v14, 16, v97
    v_and_b32 v15, s36, v97
    v_add_f32 v12, v12, v12 row_ror:8
    v_add_f32 v13, v13, v13 row_ror:8
    v_pk_add_f32 v[12:13], v[12:13], v[14:15]
    v_cvt_pk_bf16_f32 v12, v12, v13
    s_mov_b32 s40, 0xff
    s_mov_b32 s41, 0xff
    s_mov_b64 exec, s[40:41]
    global_store_dword v98, v12, s[22:23]{outst}
    s_or_b32 s37, {'s29' if dyn else 's2'}, s30
    s_cbranch_scc1 L_cend
    v_mov_b32 v20, s54
    s_mov_b64 exec, 1
    global_store_dword v123, v20, s[26:27]{epsc}""")
    A("L_cend:")
    if stamps: A("s_mov_b64 exec, -1")
    stamp(15)
    if lst:
        A(f"""s_memrealtime s[98:99]
        s_and_b32 s37, s29, -4
        s_add_u32 s37, s37, s30
        s_lshl_b32 s37, s37, 3
        s_add_u32 s37, s37, 0x8000000
        v_mov_b32 v20, s37
        s_waitcnt lgkmcnt(0)
        v_mov_b32 v22, s94
        v_mov_b32 v23, s98
        s_mov_b64 exec, 1
        global_store_dwordx2 v20, v[22:23], s[26:27]""")
    if lamp:
        A(f"""s_memrealtime s[98:99]
        s_waitcnt lgkmcnt(0)
        s_sub_u32 s37, s98, s94
        s_mul_i32 s37, s37, 10
        s_add_u32 s37, s37, s98
        L_ampl:
        s_memrealtime s[40:41]
        s_waitcnt lgkmcnt(0)
        s_sub_u32 s40, s40, s37
        s_cmp_lt_i32 s40, 0
        s_cbranch_scc1 L_ampl""")
    if amp is not None:
        A(f"""s_cmp_eq_u32 s30, 0
        s_cbranch_scc0 L_end
        s_cmp_eq_u32 s2, {ampwg}
        s_cbranch_scc0 L_end
        v_readlane_b32 s37, v{VST}, {amp}
        s_nop 4
        s_sub_u32 s37, s37, s94
        s_mul_i32 s37, s37, 10
        s_add_u32 s37, s37, s98
        L_ampl:
        s_memrealtime s[40:41]
        s_waitcnt lgkmcnt(0)
        s_sub_u32 s40, s40, s37
        s_cmp_lt_i32 s40, 0
        s_cbranch_scc1 L_ampl""")
    dump_stamps()
    A("L_end:\ns_endpgm")
    A(f""".section .rodata,"a"
    .p2align 6
    .amdhsa_kernel {NAME}
    .amdhsa_next_free_vgpr 160
    .amdhsa_next_free_sgpr 102
    .amdhsa_accum_offset 160
    .amdhsa_group_segment_fixed_size 0
    .amdhsa_kernarg_size 96
    .amdhsa_user_sgpr_count 2
    .amdhsa_user_sgpr_kernarg_segment_ptr 1
    .amdhsa_system_sgpr_workgroup_id_x 1
    .amdhsa_float_denorm_mode_32 3
    .end_amdhsa_kernel""")
    return A.finish()

if __name__ == "__main__":
    out = sys.argv[1] if len(sys.argv) > 1 else "k.s"
    kw = {}
    for a in sys.argv[2:]:
        if '=' in a:
            k, v = a.split('=', 1); kw[k] = eval(v)
        else: kw[a] = True
    open(out, "w").write(gen(**kw))
```

```python
import sys
from asmlib import Asm

NAME = "parallel_sum__sliding_block_cached__dense_activation_mish__decode_kernel"

L_K, L_V, L_WQ, L_WO, L_W1, L_W2 = 0x0, 0x8000, 0x10000, 0x14000, 0x18000, 0x1A000
L_S = 0x1C000
L_Q, L_P, L_O, L_ML, L_FLG, L_AL = L_S, L_S + 0x500, L_S + 0x900, L_S + 0xB40, L_S + 0xC00, L_S + 0xD00
L_XN, L_ACT, L_XR = 0x1D000, 0x1D900, 0x1DA00
LDS_BYTES = 0x1E200
QSTR, XSTR, OSTR = 272, 1040, 272
F_WQ, F_W1, F_K, F_V, F_WO, F_W2, F_QA, F_QB, F_ACT, F_X, F_MODE, F_V0, F_V1, F_V2, F_XN, F_PRE = [4 * i for i in range(16)]
F_OPD = 64
W_BLK = 0x10000
B_QP, B_HP, B_OP, B_ML, B_ID = 0, 512, 1024, 3072, 3200
W_FP = 0x100000
W_B = 0x200000
SPIN = 1 << 18
IDTRY = 48

def gen(depth=22, stamps=False, safe=False, amp=None, ampwg=0, order=('wq', 'w1', 'k', 'v', 'w2', 'wo'),
        qa=34, qb=44, hpt=None, pref=True, header="", warmfp=True, fdelay=0, loaderonly=False, vsplit=True,
        forcemode=None, mlt='k', nobeacon=False, noB=False, fullml=True, fullid=True, prof=False, dsched=None, kph='A', wph='A', ntw=' nt', ntkv=' nt', sa=4, sb=12, touchout=False, fpsets=1, op2=False, epsc='', b1early=True, idt='x', qsets=3, hs=12, opmask=False, fpmask=False, opearly=False, hold=0, presl=0, early=False, free=(18, 26, 20, 28), mlpipe=0, mlsl=3, prew=0, pre=0, olate=False, opsl=0, xdirty=0, fsl=0, pst='', outst='', mlpre=0, touch=0x1ffff00, tfl='', tlate=True, wfl='', lamp=False, lampx=None, lst=False, xmask=None, cprio=2, kpre=True, deep=None, t0=95, slope=3.35, margin=25, chk=(18, 26, 34, 42, 50, 58, 66, 74, 82)):
    A = Asm()
    uid = [0]
    def lab(p):
        uid[0] += 1
        return f"L_{p}{uid[0]}"
    VST = 127
    def stamp(k):
        if stamps:
            A(f"s_memrealtime s[98:99]\ns_waitcnt lgkmcnt(0)\nv_writelane_b32 v{VST}, s98, {k}")
    def stamp0():
        if stamps: A(f"v_writelane_b32 v{VST}, s94, 0")
    def dump_stamps():
        if stamps and amp is None:
            A(f"""s_lshl_b32 s96, s2, 3
            s_add_u32 s96, s96, s3
            s_lshl_b32 s96, s96, 7
            s_add_u32 s96, s96, 0x8000000
            s_add_u32 s96, s26, s96
            s_addc_u32 s97, s27, 0
            s_mov_b32 exec_lo, -1
            s_mov_b32 exec_hi, 0
            v_mbcnt_lo_u32_b32 v126, -1, 0
            v_lshlrev_b32 v126, 2, v126
            global_store_dword v126, v{VST}, s[96:97]""")
    def loop_back(l):
        if safe:
            o = lab("out")
            A(f"""s_add_u32 s100, s100, 1
            s_bitcmp1_b32 s100, 21
            s_cbranch_scc1 {o}
            s_cbranch_vccnz {l}
            {o}:""")
        else:
            A(f"s_cbranch_vccnz {l}")
    def gloop_back(l, sleep=0):
        o = lab("ok")
        A(f"s_cbranch_vccz {o}")
        if sleep: A(f"s_sleep {sleep}")
        A(f"""s_add_u32 s101, s101, 1
        s_cmp_lt_u32 s101, {SPIN}
        s_cbranch_scc1 {l}
        {o}:""")
    def wait_flag(vaddr, off, vt):
        l = lab("wf")
        A(f"""{l}:
        ds_read_b32 v{vt}, v{vaddr} offset:{off}
        s_waitcnt lgkmcnt(0)
        v_cmp_eq_u32 vcc, -1, v{vt}""")
        loop_back(l)
    def set_flag(vaddr, off, vdata):
        A(f"""s_mov_b64 exec, 1
        ds_write_b32 v{vaddr}, v{vdata} offset:{off}
        s_mov_b64 exec, -1""")
    def any_sent(regs, vt):
        regs = list(regs)
        A(f"v_max3_u32 v{vt}, v{regs[0]}, v{regs[1]}, v{regs[2] if len(regs) > 2 else regs[1]}")
        rest = regs[3:]
        while rest:
            a = rest[0]; b = rest[1] if len(rest) > 1 else rest[0]
            A(f"v_max3_u32 v{vt}, v{vt}, v{a}, v{b}")
            rest = rest[2:]
        A(f"v_cmp_eq_u32 vcc, -1, v{vt}")
    def bad_tag(regs, t0, sT, vzero):
        regs = list(regs); n = len(regs) // 2
        for i in range(n):
            if isinstance(sT, list):
                a, b, t = sT[i]
                A(f"v_bitop3_b32 v{t0+i}, v{a}, v{b}, {t} bitop3:0x7e")
            else:
                g, r = i // 4, i % 4
                A(f"v_bitop3_b32 v{t0+i}, v{regs[8*g+r]}, v{regs[8*g+4+r]}, s{72+r} bitop3:0x7e")
        cur = [t0 + i for i in range(n)]
        while len(cur) > 1:
            if len(cur) >= 3:
                A(f"v_or3_b32 v{cur[0]}, v{cur[0]}, v{cur[1]}, v{cur[2]}"); cur = cur[3:] + [cur[0]]
            else:
                A(f"v_or_b32 v{cur[0]}, v{cur[0]}, v{cur[1]}"); cur = [cur[0]]
        A(f"v_cmp_ne_u32_sdwa vcc, v{cur[0]}, v{vzero} src0_sel:BYTE_0 src1_sel:DWORD")
    def mktags(se, lanebit):
        A(f"""s_mov_b32 s72, s{se}
        s_lshr_b32 s73, s{se}, 8
        s_lshr_b32 s74, s{se}, 16
        s_lshr_b32 s75, s{se}, 24
        v_mov_b32 v156, 0xff
        v_and_b32 v152, s72, v156
        v_and_b32 v153, s73, v156
        v_and_b32 v154, s74, v156
        v_and_b32 v155, s75, v156
        v_and_b32 v157, 1, v0
        v_cmp_eq_u32 vcc, 0, v157
        v_cndmask_b32 v156, v154, v152, vcc
        v_cndmask_b32 v157, v155, v153, vcc""")
    def rgmap(r, t):
        if tuple(free) == (28, 29, 30, 31): return
        mask = 0xffffffff
        for f in free: mask &= ~(1 << f)
        A(f"""s_bfm_b32 s{t}, s{r}, 0
        s_and_b32 s{t}, s{t}, {mask}
        s_bcnt1_i32_b32 s{t}, s{t}
        s_bitcmp1_b32 {mask}, s{r}
        s_cselect_b32 s{r}, s{t}, 28""")
    def bf16r(d, s):
        A(f"v_cvt_pk_bf16_f32 v{d}, v{s}, v{s}\nv_lshlrev_b32 v{d}, 16, v{d}")
    def ws_srd(d):
        A(f"""s_add_u32 s{d}, s26, {W_BLK}
        s_addc_u32 s{d+1}, s27, 0
        s_mov_b32 s{d+2}, 0x300000
        s_mov_b32 s{d+3}, 0x00020000""")
    def allred(v, t, op):
        A(f"""v_mov_b32 v{t}, v{v}
        v_permlane32_swap_b32 v{t}, v{v}
        {op} v{v}, v{v}, v{t}
        v_mov_b32 v{t}, v{v}
        v_permlane16_swap_b32 v{t}, v{v}
        {op} v{v}, v{v}, v{t}""")

    def allred2(v, t, w, u, op):
        for sw in ("v_permlane32_swap_b32", "v_permlane16_swap_b32"):
            A(f"""v_mov_b32 v{t}, v{v}
            v_mov_b32 v{u}, v{w}
            {sw} v{t}, v{v}
            {sw} v{u}, v{w}
            {op} v{v}, v{v}, v{t}
            {op} v{w}, v{w}, v{u}""")
    A(header)
    A(f"; @launch grid=(256,1,1) block=(384,1,1) lds={LDS_BYTES}")
    A(f""".amdgcn_target "amdgcn-amd-amdhsa--gfx950"
    .text
    .globl {NAME}
    .p2align 8
    .type {NAME},@function
    {NAME}:""")
    if early: A("s_memrealtime s[92:93]")
    A(f"""s_load_dwordx16 s[4:19], s[0:1], 0
    s_load_dwordx8 s[20:27], s[0:1], 64
    s_getpc_b64 s[30:31]
    L_pc:
    s_cmpk_ge_u32 s2, 256
    s_cbranch_scc1 L_end
    v_xor_b32 v2, 0x140, v0
    v_readfirstlane_b32 s3, v0
    v_lshlrev_b32 v2, 7, v2
    v_min_u32 v2, L_end-L_pc, v2
    global_load_dword v125, v2, s[30:31]""")
    if stamps or lamp or lst: A("s_memrealtime s[94:95]")
    A(f"""s_cmp_eq_u32 s3, 0
    s_cbranch_scc0 L_notloader
    v_lshrrev_b32 v2, 3, v0
    v_and_b32 v9, 6, v2
    v_xor_b32 v9, v9, v0
    v_and_b32 v9, 7, v9
    v_lshlrev_b32 v9, 4, v9
    v_lshrrev_b32 v4, 5, v0
    v_and_b32 v5, 3, v2
    v_lshl_add_u32 v6, v4, 3, v5
    v_lshl_add_u32 v10, v6, 13, v9
    v_add_u32 v11, 31744, v10
    v_lshlrev_b32 v21, 4, v0
    s_mov_b32 s34, -1
    s_mov_b32 s35, 0x00020000
    s_movk_i32 s60, 0x800
    s_and_b32 s28, s2, 7
    s_lshr_b32 s29, s2, 3
    s_lshr_b32 s57, s2, 6
    s_lshl_b32 s57, s57, 10
    s_or_b32 s57, s57, s28
    s_lshl_b32 s57, s57, 3
    s_and_b32 s58, s29, 7
    s_or_b32 s57, s57, s58
    s_lshl_b32 s57, s57, 7
    s_lshl_b32 s59, s60, 6
    s_mov_b32 m0, {L_XR}
    {'s_memrealtime s[76:77]' if early else ''}
    s_waitcnt lgkmcnt(0)
    {'s_memrealtime s[78:79]' if early else ''}
    global_load_lds_dwordx4 v21, s[4:5]
    global_load_lds_dwordx4 v21, s[4:5] offset:1024
    s_lshl_b32 m0, s60, 5
    s_mov_b64 s[32:33], s[10:11]
    L_wq:
    buffer_load_dwordx4 v10, s[32:35], s57 offen nt lds
    buffer_load_dwordx4 v11, s[32:35], s57 offen offset:1024 nt lds
    s_add_u32 m0, m0, s60
    s_add_u32 s57, s57, s59
    s_bitcmp0_b32 m0, 14
    s_cbranch_scc1 L_wq""")
    A("L_after256:")
    if early: A("s_memrealtime s[82:83]\ns_mov_b32 s80, s82")
    if stamps: A(f"v_mov_b32 v{VST}, 0")
    A("""s_setprio 3
    s_and_b32 s61, s29, 3
    s_lshl_b32 s62, s61, 3
    s_add_u32 s62, s62, s28
    s_lshr_b32 s63, s29, 2""")
    rgmap(62, 58)
    if deep and xmask is None: A("s_memrealtime s[72:73]")
    assert order[0] == 'wq' and L_WQ == 0x10000
    info = dict(wq=(8, 32, 10, L_WQ, F_WQ), w1=(4, 36, 12, L_W1, F_W1), k=(16, 40, 14, L_K, F_K), v=(16, 44, 14, L_V, F_V),
                wo=(8, 48, 16, L_WO, F_WO), w2=(4, 52, 18, L_W2, F_W2))
    flag_at = {2: [F_X]}
    cum = 2
    for m in order:
        if m == 'v' and vsplit:
            for i, f in enumerate((F_V0, F_V1, F_V2)): flag_at.setdefault(cum + 8 * (i + 1), []).append(f)
        cum += 2 * info[m][0]
        flag_at.setdefault(cum, []).append(info[m][4])
    def kphase():
        if kph == 'A': A("s_and_b32 s67, s29, 15")
        elif kph == 'B': A("s_lshl_b32 s67, s28, 1\ns_lshr_b32 s59, s29, 4\ns_add_u32 s67, s67, s59")
        elif kph == 'C': A("s_lshl_b32 s67, s28, 1\ns_lshr_b32 s59, s29, 4\ns_add_u32 s67, s67, s59\ns_and_b32 s59, s29, 8\ns_add_u32 s67, s67, s59\ns_and_b32 s67, s67, 15")
        elif kph == 'D': A("s_lshl_b32 s67, s28, 1\ns_add_u32 s67, s67, s29\ns_and_b32 s67, s67, 15")
        elif kph == 'E': A("s_lshl_b32 s67, s28, 1\ns_lshr_b32 s59, s29, 2\ns_add_u32 s67, s67, s59\ns_and_b32 s67, s67, 15")
        elif kph == 'F': A("s_mul_i32 s67, s29, 5\ns_mul_i32 s59, s28, 3\ns_add_u32 s67, s67, s59\ns_and_b32 s67, s67, 15")
        elif kph == 'G': A("s_and_b32 s67, s29, 7\ns_lshl_b32 s67, s67, 1")
        elif kph == 'Z': A("s_mov_b32 s67, 0")
    def setup(m):
        if m == 'wq': return
        if m == 'w1':
            A("""v_mul_u32_u24 v12, 3584, v6
            v_add_u32 v12, v12, v9
            v_add_u32 v13, 13312, v12
            s_mov_b32 s36, s16
            s_mov_b32 s37, s17
            s_cmp_lt_u32 s62, 28
            s_cselect_b32 s38, 1835008, 0
            s_mov_b32 s39, 0x00020000
            s_mul_i32 s57, s63, 229376
            s_lshl_b32 s58, s62, 7
            s_add_u32 s57, s57, s58
            s_lshl_b32 s56, s61, 11""")
        elif m == 'k':
            A(f"""v_lshrrev_b32 v7, 4, v0
            v_lshlrev_b32 v8, 1, v7
            v_xor_b32 v8, v8, v0
            v_and_b32 v8, 15, v8
            v_lshlrev_b32 v8, 4, v8
            v_lshl_add_u32 v14, v7, 8, v8
            v_xor_b32 v15, 128, v14
            s_mov_b32 s40, s6
            s_mov_b32 s41, s7
            s_mov_b32 s42, 33554432
            s_mov_b32 s43, 0x00020000
            s_lshr_b32 s64, s29, 4
            s_lshl_b32 s64, s64, 3
            s_add_u32 s64, s64, s28
            s_lshl_b32 s64, s64, 21
            s_and_b32 s58, s29, 15
            s_lshl_b32 s58, s58, 15
            s_add_u32 s64, s64, s58
            s_add_u32 s64, s64, 1572864""")
            kphase()
            A("s_lshl_b32 s56, s67, 11")
        elif m == 'v':
            A(f"""s_mov_b32 s44, s8
            s_mov_b32 s45, s9
            s_mov_b32 s46, 33554432
            s_mov_b32 s47, 0x00020000""")
            if vsplit:
                A("""s_lshl_b32 s65, s61, 13
                s_and_b32 s66, s63, 3
                s_lshl_b32 s66, s66, 11
                s_or_b32 s56, s65, s66""")
            else:
                A("s_lshl_b32 s56, s67, 11")
        elif m == 'wo':
            A("""v_lshl_add_u32 v7, v4, 7, v5
            v_lshl_add_u32 v16, v7, 10, v9
            v_add_u32 v17, 15360, v16
            s_mov_b32 s48, s12
            s_mov_b32 s49, s13
            s_mov_b32 s50, 4194304
            s_mov_b32 s51, 0x00020000
            s_lshl_b32 s57, s28, 19
            s_lshl_b32 s58, s61, 15
            s_add_u32 s57, s57, s58
            s_lshl_b32 s58, s63, 7
            s_add_u32 s57, s57, s58""")
            A(dict(A="s_and_b32 s56, s29, 7\ns_lshl_b32 s56, s56, 11", Z="s_mov_b32 s56, 0", X="s_lshl_b32 s56, s28, 11", P="s_lshl_b32 s56, s28, 11")[wph])
        elif m == 'w2':
            A("""v_lshl_add_u32 v18, v6, 10, v9
            v_add_u32 v19, 3072, v18
            s_mov_b32 s52, s20
            s_mov_b32 s53, s21
            s_cmp_lt_u32 s62, 28
            s_cselect_b32 s54, 1835008, 0
            s_mov_b32 s55, 0x00020000
            s_lshl_b32 s57, s62, 16
            s_lshl_b32 s58, s63, 7
            s_add_u32 s57, s57, s58
            s_lshl_b32 s56, s61, 11""")
    total = cum
    if hold or pre: flag_at.setdefault(total - (hold or pre), []).append(F_PRE)
    if mlpre: flag_at.setdefault(total - mlpre, []).append(F_QA)
    stn = {F_PRE: 10, F_WQ: 3, F_W1: 4, F_K: 5, F_V: 6, F_WO: 7, F_QA: 2, F_X: 8, F_W2: 9}
    def stream(depth, variant):
        issued = 2
        done_barrier = variant != 0
        flagged = set()
        live = variant == 0
        pending = False
        def landed(n):
            for c in sorted(flag_at):
                if c <= n and c not in flagged:
                    flagged.add(c)
                    if not live: continue
                    A("s_mov_b64 exec, 1")
                    for f in flag_at[c]: A(f"ds_write_b32 v20, v20 offset:{f}")
                    A("s_mov_b64 exec, -1")
                    for f in flag_at[c]:
                        if f in stn: stamp(stn[f])
        for m in order:
            npair, srd, vo, lbase, _ = info[m]
            if m == 'wq':
                issued += 16
                continue
            if live: setup(m)
            for p in range(npair):
                d = depth
                if dsched and variant == 0:
                    for (frm, dd) in dsched:
                        if issued >= frm: d = dd
                if variant == 1 and (issued - (depth0 - 2)) in chk:
                    live = True
                    A(f"L_deep{issued}:")
                if hold and issued >= total - hold:
                    if issued == total - hold and live:
                        cv = [c for c in flag_at if F_V in flag_at[c]][0]
                        for c in sorted(flag_at):
                            if c <= cv and c not in flagged:
                                A(f"s_waitcnt vmcnt({issued - c})")
                                landed(c)
                        l = lab("hold")
                        A(f"""{l}:
                        ds_read_b128 v[24:27], v20 offset:{F_OPD}
                        s_waitcnt lgkmcnt(0)
                        v_max3_u32 v24, v24, v25, v26
                        v_max_u32 v24, v24, v27
                        v_cmp_eq_u32 vcc, -1, v24
                        s_cbranch_vccnz {l}""")
                elif issued + 2 > d:
                    if not done_barrier:
                        A(f"v_mov_b32 v20, {L_FLG}\ns_barrier")
                        stamp(1)
                        done_barrier = True
                    if live: A(f"s_waitcnt vmcnt({d - 2})")
                    landed(issued - (d - 2))
                    if prof and live and (issued - (d - 2)) % 8 == 2: stamp(11 + (issued - (d - 2)) // 8)
                    if variant == 0 and deep:
                        n = issued - (d - 2)
                        if n in chk and xmask is not None:
                            A(f"s_bitcmp1_b32 {xmask}, s28\ns_cbranch_scc1 L_deep{issued}")
                        elif n in chk:
                            thr = int(t0 + slope * (n - 2) + margin)
                            A(f"""s_memrealtime s[70:71]
                            s_waitcnt lgkmcnt(0)
                            s_sub_u32 s70, s70, s72
                            s_cmp_gt_u32 s70, {thr}
                            s_cbranch_scc1 L_deep{issued}""")
                if live:
                    A(f"s_add_u32 m0, s56, {lbase}" if lbase else "s_mov_b32 m0, s56")
                    if m == 'wq': A("s_lshl_b32 s58, s56, 6\ns_add_u32 s58, s58, s57")
                    elif m == 'w1': A("s_mul_i32 s58, s56, 28\ns_add_u32 s58, s58, s57")
                    elif m == 'w2': A("s_lshl_b32 s58, s56, 3\ns_add_u32 s58, s58, s57")
                    elif m == 'wo': A("s_and_b32 s58, s56, s60\ns_lshl_b32 s58, s58, 7\ns_and_b32 s59, s56, 0x3000\ns_add_u32 s58, s58, s59\ns_add_u32 s58, s58, s57")
                    else: A("s_add_u32 s58, s56, s64")
                    fl = ntkv if m in ('k', 'v') else ntw
                    A(f"buffer_load_dwordx4 v{vo}, s[{srd}:{srd+3}], s58 offen{fl} lds")
                    A(f"buffer_load_dwordx4 v{vo+1}, s[{srd}:{srd+3}], s58 offen offset:1024{fl} lds")
                issued += 2
                if p != npair - 1 and live:
                    if m == 'v' and vsplit:
                        A("s_add_u32 s66, s66, s60\ns_and_b32 s66, s66, 0x1fff")
                        if p % 4 == 3: A("s_add_u32 s65, s65, 0x2000\ns_and_b32 s65, s65, 0x7fff")
                        A("s_or_b32 s56, s65, s66")
                    else:
                        A(f"s_add_u32 s56, s56, s60\ns_and_b32 s56, s56, {npair * 2048 - 1}")
        pts = set(c for c in flag_at if c not in flagged)
        if prof: pts |= set(c for c in range(issued - depth + 4, issued + 1) if c % 8 == 2)
        for c in sorted(pts):
            A(f"s_waitcnt vmcnt({issued - c})")
            landed(c)
            if prof and c % 8 == 2: stamp(11 + c // 8)
        if early:
            for k, r in ((11, 76), (12, 78), (13, 80), (14, 82), (15, 92)): A(f"v_writelane_b32 v{VST}, s{r}, {k}")
        if stamps: A(f"s_mov_b32 s98, {variant + 1}\nv_writelane_b32 v{VST}, s98, 31")
        stamp0()
        dump_stamps()
        A("s_endpgm")
    depth0 = depth
    stream(depth, 0)
    if deep: stream(deep, 1)

    A("L_notloader:")
    A("""s_lshr_b32 s3, s3, 6
    v_and_b32 v0, 63, v0
    s_and_b32 s28, s2, 7
    s_lshr_b32 s29, s2, 3""")
    if stamps: A(f"v_mov_b32 v{VST}, 0")
    if loaderonly: A("s_barrier\ns_endpgm")
    A("s_cmp_eq_u32 s3, 1\ns_cbranch_scc0 L_compute")
    A(f"""s_and_b32 s61, s29, 3
    s_lshl_b32 s62, s61, 3
    s_add_u32 s62, s62, s28""")
    rgmap(62, 63)
    A(f"""v_and_b32 v11, 7, v0
    v_lshlrev_b32 v11, 2, v11
    v_lshrrev_b32 v12, 5, v0
    v_lshl_add_u32 v11, v12, 1, v11
    v_bfe_u32 v12, v0, 4, 1
    v_add_u32 v11, v11, v12
    v_bfe_u32 v12, v0, 3, 1
    v_lshl_add_u32 v11, v12, 5, v11
    s_min_u32 s63, s62, 27
    s_lshl_b32 s63, s63, 6
    v_add_u32 v13, s63, v11
    v_lshlrev_b32 v13, 1, v13
    v_mov_b32 v20, {L_FLG}
    v_mov_b32 v40, 0
    v_mov_b32 v41, 0
    v_mov_b32 v19, 0
    s_mov_b32 s100, 0
    s_mov_b32 s101, 0
    s_getreg_b32 s64, hwreg(HW_REG_XCC_ID)
    s_lshl_b32 s65, s28, 17
    s_lshl_b32 s66, s29, 12
    s_add_u32 s66, s66, s65
    v_and_b32 v21, 31, v0
    v_lshlrev_b32 v21, 12, v21
    s_waitcnt lgkmcnt(0)
    s_load_dword s5, s[26:27], 0""")
    if b1early: A("global_load_ushort v14, v13, s[18:19]")
    ws_srd(8)
    def dotouch():
        A(f"""v_lshlrev_b32 v25, 7, v0
        s_mov_b32 exec_lo, {touch}
        s_mov_b32 exec_hi, 0
        buffer_load_dword v124, v25, s[8:11], s66 offen{tfl}
        s_mov_b64 exec, -1""")
    if touch and not tlate: dotouch()
    A(f"""s_barrier
    s_and_b32 s64, s64, 15
    s_waitcnt lgkmcnt(0)
    s_add_u32 s5, s5, 1
    s_lshl_b32 s6, s5, 4
    s_or_b32 s6, s6, s64
    v_mov_b32 v22, s6
    v_lshlrev_b32 v24, 2, v0
    s_mov_b32 exec_lo, {0 if nobeacon else (-1 if fullid else 1)}
    s_mov_b32 exec_hi, 0
    buffer_store_dword v22, v24, s[8:11], s66 offen offset:{B_ID}
    s_mov_b64 exec, -1""")
    if prew:
        A("""s_not_b32 s34, s5
        v_mov_b32 v28, s34
        v_mov_b32 v29, s34
        v_mov_b32 v30, s34
        v_mov_b32 v31, s34
        v_lshlrev_b32 v25, 4, v0""")
        for o in ([0] if prew & 1 else []) + ([1024, 2048] if prew & 2 else []):
            A(f"buffer_store_dwordx4 v[28:31], v25, s[8:11], s66 offen offset:{o}")
        if prew & 4: A(f"s_mov_b64 exec, 0xff\nbuffer_store_dwordx4 v[28:31], v25, s[8:11], s66 offen offset:{B_ML}\ns_mov_b64 exec, -1")
    if xdirty:
        A(f"v_lshlrev_b32 v25, 4, v0\ns_xor_b32 s34, s66, {W_B}")
        for o in range(xdirty): A(f"buffer_store_dwordx4 v[28:31], v25, s[8:11], s34 offen offset:{1024*o}")
    if not b1early: A("global_load_ushort v14, v13, s[18:19]")
    stamp0()
    A(f"""v_lshrrev_b32 v5, 4, v0
    v_and_b32 v4, 15, v0
    v_bfe_u32 v60, v0, 2, 2
    v_and_b32 v17, 1, v5
    v_lshl_add_u32 v60, v17, 2, v60
    v_bfe_u32 v18, v0, 1, 1
    v_and_b32 v61, 6, v60
    v_xor_b32 v18, v18, v61
    v_lshlrev_b32 v18, 4, v18
    v_and_b32 v61, 1, v0
    v_lshl_add_u32 v18, v61, 3, v18
    v_lshrrev_b32 v17, 5, v0
    v_lshl_add_u32 v17, v17, 4, v60
    v_lshl_add_u32 v62, v17, 7, v18
    v_add_u32 v62, {L_W1}, v62
    v_xor_b32 v63, 32, v62
    v_xor_b32 v64, 64, v62
    v_xor_b32 v65, 96, v62
    v_mul_u32_u24 v18, {XSTR}, v61
    v_lshl_add_u32 v18, v5, 4, v18
    s_lshr_b32 s37, s29, 2
    s_lshl_b32 s37, s37, 7
    s_add_u32 s37, s37, {L_XN}
    v_add_u32 v66, s37, v18
    v_lshlrev_b32 v67, 8, v4
    v_lshl_add_u32 v67, v5, 4, v67
    s_movk_i32 s53, 0xff00
    s_mov_b32 s48, 0x00030003
    s_mov_b32 s49, 0x00030003""")
    mktags(5, 0)
    wait_flag(20, F_XN, 18)
    if not nobeacon: A(f"buffer_load_dword v23, v21, s[8:11], s65 offen offset:{B_ID} sc1")
    A("ds_read_b128 v[24:27], v66\nds_read_b128 v[28:31], v66 offset:64")
    wait_flag(20, F_W1, 18)
    for t in range(4):
        for kk in range(2):
            for u in range(2):
                r = 72 + 8 * t + 4 * kk + 2 * u
                A(f"ds_read_b64_tr_b16 v[{r}:{r+1}], v{62+t} offset:{kk*4096 + u*1024}")
    for t in range(4):
        A(f"s_waitcnt lgkmcnt({12 - 4*t})")
        for kk in range(2):
            r = 72 + 8 * t + 4 * kk
            A(f"v_mfma_f32_16x16x32_bf16 v[{104+4*t}:{107+4*t}], v[{r}:{r+3}], v[{24+4*kk}:{27+4*kk}], {f'v[{104+4*t}:{107+4*t}]' if kk else 0}")
    for r in range(104, 120): A(f"v_and_or_b32 v{r}, v{r}, s53, v{152 + r % 4}")
    A("s_mov_b64 exec, s[48:49]")
    for t in range(4): A(f"buffer_store_dwordx4 v[{104+4*t}:{107+4*t}], v67, s[8:11], s66 offen offset:{B_HP + 64*t}{pst}")
    A("s_mov_b64 exec, -1\ns_mov_b32 s7, 0")
    stamp(6)
    if nobeacon: A("s_branch L_idok")
    l = lab("id")
    A(f"""s_waitcnt vmcnt(4)
    s_branch L_idchk
    {l}:
    buffer_load_dword v23, v21, s[8:11], s65 offen offset:{B_ID} sc1
    s_waitcnt vmcnt(0)
    L_idchk:
    v_cmp_ne_u32 vcc, s6, v23
    s_cbranch_vccz L_idok
    s_add_u32 s7, s7, 1
    s_cmp_lt_u32 s7, {IDTRY}
    s_cbranch_scc1 {l}
    L_idok:
    s_cmp_eq_u32 s7, {IDTRY}
    s_cselect_b32 s7, 1, 0""")
    if forcemode is not None: A(f"s_mov_b32 s7, {forcemode}")
    A("v_mov_b32 v23, s7")
    set_flag(20, F_MODE, 23)
    if touch and tlate: dotouch()
    stamp(1)
    A(f"""s_cmp_eq_u32 s7, 0
    s_cbranch_scc1 L_hpfast
    s_xor_b32 s37, s66, {W_B}
    s_mov_b64 exec, s[48:49]""")
    for t in range(4): A(f"buffer_store_dwordx4 v[{104+4*t}:{107+4*t}], v67, s[8:11], s37 offen offset:{B_HP + 64*t} sc1")
    A("s_mov_b64 exec, -1\nL_hpfast:")
    A(f"""s_cmp_lt_u32 s62, 28
    s_cbranch_scc0 L_actw
    v_lshrrev_b32 v16, 3, v0
    v_lshlrev_b32 v16, 14, v16
    v_and_b32 v17, 7, v0
    v_lshl_add_u32 v16, v17, 4, v16
    s_lshl_b32 s31, s61, 12
    s_add_u32 s31, s31, s65""")
    if hpt: wait_flag(20, {'k': F_K}[hpt], 18)
    elif hs: A(f"s_sleep {hs}")
    l = lab("hp")
    A(f"s_lshl_b32 s7, s7, 21\n{l}:\ns_xor_b32 s31, s31, s7")
    for i in range(4):
        b, half = i & 1, i >> 1
        A(f"buffer_load_dwordx4 v[{24+4*i}:{27+4*i}], v16, s[8:11], s31 offen offset:{B_HP + b*256 + half*128} sc1")
    A("s_waitcnt vmcnt(0)")
    bad_tag(range(24, 40), 44, 5, 19)
    gloop_back(l, sleep=4)
    stamp(2)
    for i in range(4):
        r = 24 + 4 * i
        A(f"""v_permlane32_swap_b32 v{r}, v{r+2}
        v_permlane32_swap_b32 v{r+1}, v{r+3}
        v_add_f32 v{r}, v{r}, v{r+2}
        v_add_f32 v{r+1}, v{r+1}, v{r+3}""")
    for i in range(4):
        r = 24 + 4 * i
        A(f"v_permlane16_swap_b32 v{r}, v{r+1}\nv_add_f32 v{r}, v{r}, v{r+1}")
    for i in range(4):
        r = 24 + 4 * i
        A(f"v_add_f32 v{r}, v{r}, v{r} row_ror:8")
    A("""v_and_b32 v18, 8, v0
    v_cmp_eq_u32 vcc, 0, v18
    v_cndmask_b32 v40, v32, v24, vcc
    v_cndmask_b32 v41, v36, v28, vcc
    v_lshlrev_b32 v14, 16, v14
    s_mov_b32 s32, 0x3fb8aa3b
    s_mov_b32 s33, 0x3f317218""")
    for h in (40, 41):
        t = 44
        bf16r(h, h)
        A(f"v_add_f32 v{h}, v{h}, v14")
        bf16r(h, h)
        A(f"v_mul_f32 v{t}, s32, v{h}\nv_exp_f32 v{t}, -abs(v{t})")
        bf16r(t, t)
        A(f"""v_add_f32 v{t+1}, 1.0, v{t}
        v_log_f32 v{t+2}, v{t+1}
        v_add_f32 v{t+3}, -1.0, v{t+1}
        v_rcp_f32 v{t+3}, v{t+3}
        v_mul_f32 v{t+2}, s33, v{t+2}
        v_mul_f32 v{t+2}, v{t+2}, v{t}
        v_mul_f32 v{t+2}, v{t+2}, v{t+3}
        v_cmp_eq_f32 vcc, 1.0, v{t+1}
        v_cndmask_b32 v{t+2}, v{t+2}, v{t}, vcc""")
        bf16r(t+2, t+2)
        A(f"v_max_f32 v{t+1}, 0, v{h}\nv_add_f32 v{t+2}, v{t+2}, v{t+1}")
        bf16r(t+2, t+2)
        A(f"""v_mul_f32 v{t}, -2.0, v{t+2}
        v_mul_f32 v{t+1}, s32, v{t}
        v_exp_f32 v{t+1}, v{t+1}
        v_log_f32 v{t+3}, v{t+1}
        v_add_f32 v{t+4}, -1.0, v{t+1}
        v_mul_f32 v{t+3}, s33, v{t+3}
        v_rcp_f32 v{t+3}, v{t+3}
        v_mul_f32 v{t+5}, v{t+4}, v{t}
        v_mul_f32 v{t+5}, v{t+5}, v{t+3}
        v_cmp_eq_f32 vcc, 1.0, v{t+1}
        v_cndmask_b32 v{t+5}, v{t+5}, v{t}, vcc
        v_cmp_gt_f32 vcc, 0.5, v{t+1}
        v_cndmask_b32 v{t+5}, v{t+5}, v{t+4}, vcc
        v_add_f32 v{t+4}, 2.0, v{t+5}
        v_rcp_f32 v{t+4}, v{t+4}
        v_mul_f32 v{t+5}, v{t+5}, v{t+4}
        v_sub_f32 v{t+5}, 0, v{t+5}""")
        bf16r(t+5, t+5)
        A(f"v_mul_f32 v{h}, v{h}, v{t+5}\nv_cvt_pk_bf16_f32 v{h}, v{h}, v{h}")
    A(f"""L_actw:
    v_lshlrev_b32 v11, 1, v11
    v_add_u32 v11, {L_ACT}, v11
    ds_write_b16 v11, v40
    ds_write_b16 v11, v41 offset:128""")
    set_flag(20, F_ACT, 20)
    stamp(3)
    A(f"""v_lshrrev_b32 v16, 2, v0
    v_and_b32 v17, 3, v0
    v_lshlrev_b32 v21, 12, v16
    v_lshl_add_u32 v21, v17, 3, v21
    s_add_u32 s66, s65, 65536
    v_and_b32 v18, 15, v0
    v_lshlrev_b32 v18, 4, v18
    v_lshrrev_b32 v22, 4, v0
    v_lshl_add_u32 v22, v22, 2, v18
    v_add_u32 v22, {L_AL}, v22
    s_movk_i32 s53, 0xff00
    s_mov_b32 s52, -2""")
    if mlpre: wait_flag(20, F_QA, 18)
    elif mlt: wait_flag(20, {'v0': F_V0, 'v1': F_V1, 'v2': F_V2, 'v': F_V, 'k': F_K}[mlt], 18)
    l = lab("ml")
    if mlpipe: A("v_not_b32 v24, v156\nv_not_b32 v26, v156\ns_waitcnt vmcnt(0)")
    A(f"""{l}:
    buffer_load_dwordx2 v[24:25], v21, s[8:11], s65 offen offset:{B_ML} sc1
    buffer_load_dwordx2 v[26:27], v21, s[8:11], s66 offen offset:{B_ML} sc1""")
    if mlpipe and mlsl: A(f"s_sleep {mlsl}")
    A(f"""s_waitcnt vmcnt({2 * mlpipe})
    v_mov_b32 v32, v24
    v_mov_b32 v33, v25
    v_mov_b32 v34, v26
    v_mov_b32 v35, v27""")
    bad_tag(range(32, 36), 44, [(32, 34, "v156"), (33, 35, "v157")], 19)
    gloop_back(l)
    stamp(4)
    A("""v_and_b32 v32, s53, v32
    v_and_b32 v34, s53, v34
    v_max_f32 v28, v32, v32 row_ror:4
    v_max_f32 v29, v34, v34 row_ror:4
    v_max_f32 v28, v28, v28 row_ror:8
    v_max_f32 v29, v29, v29 row_ror:8""")
    allred2(28, 30, 29, 31, "v_max_f32")
    A("""v_sub_f32 v32, v32, v28
    v_sub_f32 v34, v34, v29
    v_exp_f32 v32, v32
    v_exp_f32 v34, v34
    v_mul_f32 v33, v32, v33
    v_mul_f32 v35, v34, v35
    v_add_f32 v28, v33, v33 row_ror:4
    v_add_f32 v29, v35, v35 row_ror:4
    v_add_f32 v28, v28, v28 row_ror:8
    v_add_f32 v29, v29, v29 row_ror:8""")
    allred2(28, 30, 29, 31, "v_add_f32")
    A("""v_rcp_f32 v28, v28
    v_rcp_f32 v29, v29
    v_mul_f32 v32, v32, v28
    v_mul_f32 v34, v34, v29
    v_min_u32 v32, s52, v32
    v_min_u32 v34, s52, v34
    ds_write_b32 v22, v32
    ds_write_b32 v22, v34 offset:256""")
    stamp(5)
    dump_stamps()
    A("s_waitcnt lgkmcnt(0)\ns_endpgm")

    A("L_compute:")
    if cprio: A(f"s_setprio {cprio}")
    A(f"""s_sub_u32 s30, s3, 2
    v_lshlrev_b32 v2, 4, v0
    s_lshl_b32 s31, s30, 10
    s_add_u32 s31, s31, {L_S}
    v_add_u32 v3, s31, v2
    v_mov_b32 v4, -1
    v_mov_b32 v5, -1
    v_mov_b32 v6, -1
    v_mov_b32 v7, -1
    ds_write_b128 v3, v[4:7]
    s_mov_b32 s100, 0
    s_mov_b32 s101, 0
    s_waitcnt lgkmcnt(0)
    s_load_dword s54, s[26:27], 0
    s_barrier""")
    ws_srd(32)
    A(f"""s_mov_b32 s36, 0xffff0000
    v_and_b32 v4, 15, v0
    v_lshrrev_b32 v5, 4, v0
    v_mov_b32 v6, {L_FLG}
    v_bfe_u32 v96, v0, 2, 2
    v_and_b32 v17, 1, v5
    v_lshl_add_u32 v96, v17, 2, v96
    v_bfe_u32 v18, v0, 1, 1
    s_lshl_b32 s37, s30, 1
    v_add_u32 v18, s37, v18
    v_and_b32 v19, 6, v96
    v_xor_b32 v18, v18, v19
    v_lshlrev_b32 v18, 4, v18
    v_and_b32 v19, 1, v0
    v_lshl_add_u32 v18, v19, 3, v18
    v_lshrrev_b32 v17, 5, v0
    v_lshl_add_u32 v17, v17, 4, v96
    v_lshl_add_u32 v7, v17, 7, v18
    v_add_u32 v7, {L_WQ}, v7
    ; xn frag addresses v106 (wq rows), v105 (w1 rows)
    v_mul_u32_u24 v18, {XSTR}, v19
    v_lshl_add_u32 v18, v5, 4, v18
    s_lshr_b32 s37, s29, 3
    s_lshl_b32 s37, s37, 8
    s_add_u32 s37, s37, {L_XN}
    v_add_u32 v106, s37, v18
    s_lshl_b32 s37, s30, 6
    v_lshlrev_b32 v18, 8, v4
    v_lshl_add_u32 v18, v5, 4, v18
    v_add_u32 v107, s37, v18
    s_lshl_b32 s38, s28, 5
    s_add_u32 s38, s38, s29
    s_lshl_b32 s68, s38, 9
    s_lshl_b32 s38, s38, 12
    s_add_u32 s68, s68, {W_FP}
    v_add_u32 v3, {L_XN}, v2
    v_add_u32 v16, {L_XR}, v2
    s_mov_b32 s48, 0x00030003
    s_mov_b32 s49, 0x00030003
    s_mov_b32 s52, -2
    s_movk_i32 s53, 0xff00""")
    stamp(1)
    wait_flag(6, F_X, 17)
    A(f"""ds_read_b128 v[8:11], v16
    ds_read_b128 v[12:15], v16 offset:1024
    s_add_u32 s54, s54, 1
    s_waitcnt lgkmcnt(0)""")
    stamp0()
    stamp(2)
    for b in range(2):
        for i in range(4):
            A(f"v_lshlrev_b32 v{16+8*b+2*i}, 16, v{8+4*b+i}\nv_and_b32 v{17+8*b+2*i}, s36, v{8+4*b+i}")
    def red2(a, b, t):
        A(f"""v_permlane32_swap_b32 v{a}, v{b}
        v_add_f32 v{a}, v{a}, v{b}
        v_mov_b32 v{t}, v{a}
        v_permlane16_swap_b32 v{t}, v{a}
        v_add_f32 v{a}, v{a}, v{t}
        v_add_f32 v{a}, v{a}, v{a} row_ror:8
        v_add_f32 v{a}, v{a}, v{a} row_ror:4
        v_add_f32 v{a}, v{a}, v{a} row_ror:2
        v_add_f32 v{a}, v{a}, v{a} row_ror:1""")
    for b in range(2):
        f = 16 + 8 * b
        A(f"""v_pk_add_f32 v[{32+4*b}:{33+4*b}], v[{f}:{f+1}], v[{f+2}:{f+3}]
        v_pk_add_f32 v[{34+4*b}:{35+4*b}], v[{f+4}:{f+5}], v[{f+6}:{f+7}]""")
    for b in range(2):
        A(f"v_pk_add_f32 v[{32+4*b}:{33+4*b}], v[{32+4*b}:{33+4*b}], v[{34+4*b}:{35+4*b}]")
    A("v_add_f32 v32, v32, v33\nv_add_f32 v36, v36, v37")
    red2(32, 36, 33)
    A("""v_mul_f32 v32, 0x3b000000, v32
    v_readlane_b32 s60, v32, 0
    v_readlane_b32 s62, v32, 32""")
    for b in range(2):
        f = 16 + 8 * b
        for i in range(4):
            A(f"v_pk_add_f32 v[{40+8*b+2*i}:{41+8*b+2*i}], v[{f+2*i}:{f+2*i+1}], s[{60+2*b}:{61+2*b}] op_sel_hi:[1,0] neg_lo:[0,1] neg_hi:[0,1]")
    for b in range(2):
        d = 40 + 8 * b
        A(f"v_pk_mul_f32 v[{34+2*b}:{35+2*b}], v[{d}:{d+1}], v[{d}:{d+1}]")
    for i in range(1, 4):
        for b in range(2):
            d = 40 + 8 * b + 2 * i
            A(f"v_pk_fma_f32 v[{34+2*b}:{35+2*b}], v[{d}:{d+1}], v[{d}:{d+1}], v[{34+2*b}:{35+2*b}]")
    A("v_add_f32 v34, v34, v35\nv_add_f32 v36, v36, v37")
    red2(34, 36, 33)
    A("v_mul_f32 v34, 0x3b000000, v34")
    bf16r(34, 34)
    A("v_add_f32 v34, 0x3727c5ac, v34")
    bf16r(34, 34)
    A("v_sqrt_f32 v34, v34")
    bf16r(32, 32)
    bf16r(34, 34)
    A("v_rcp_f32 v34, v34")
    A("""v_readlane_b32 s60, v32, 0
    v_readlane_b32 s62, v32, 32
    v_readlane_b32 s64, v34, 0
    v_readlane_b32 s66, v34, 32""")
    for b in range(2):
        f = 16 + 8 * b
        for i in range(4):
            A(f"v_pk_add_f32 v[{f+2*i}:{f+2*i+1}], v[{f+2*i}:{f+2*i+1}], s[{60+2*b}:{61+2*b}] op_sel_hi:[1,0] neg_lo:[0,1] neg_hi:[0,1]")
    for i in range(8):
        A(f"v_cvt_pk_bf16_f32 v{8+i}, v{16+2*i}, v{17+2*i}")
    for i in range(8):
        A(f"v_lshlrev_b32 v{16+2*i}, 16, v{8+i}\nv_and_b32 v{17+2*i}, s36, v{8+i}")
    for b in range(2):
        f = 16 + 8 * b
        for i in range(4):
            A(f"v_pk_mul_f32 v[{f+2*i}:{f+2*i+1}], v[{f+2*i}:{f+2*i+1}], s[{64+2*b}:{65+2*b}] op_sel_hi:[1,0]")
    for i in range(8):
        A(f"v_cvt_pk_bf16_f32 v{8+i}, v{16+2*i}, v{17+2*i}")
    A(f"""ds_write_b128 v3, v[8:11]
    ds_write_b128 v3, v[12:15] offset:{XSTR}""")
    set_flag(6, F_XN, 6)
    mktags(54, 0)
    A("s_waitcnt lgkmcnt(0)")
    for kk in range(4): A(f"ds_read_b128 v[{24+4*kk}:{27+4*kk}], v106 offset:{64*kk}")
    stamp(3)
    wait_flag(6, F_WQ, 16)
    stamp(4)
    def trw(base, nk, r0):
        for kk in range(nk):
            for u in range(2):
                A(f"ds_read_b64_tr_b16 v[{r0+4*kk+2*u}:{r0+4*kk+2*u+1}], v7 offset:{base - L_WQ + kk*4096 + u*1024}")
    def tag(regs):
        for r in regs: A(f"v_and_or_b32 v{r}, v{r}, s53, v{152 + r % 4}")
    trw(L_WQ, 4, 48)
    for kk in range(4):
        A(f"s_waitcnt lgkmcnt({6 - 2*kk})")
        A(f"v_mfma_f32_16x16x32_bf16 v[88:91], v[{48+4*kk}:{51+4*kk}], v[{24+4*kk}:{27+4*kk}], {'v[88:91]' if kk else 0}")
    tag(range(88, 92))
    A(f"""s_mov_b64 exec, s[48:49]
    buffer_store_dwordx4 v[88:91], v107, s[32:35], s38 offen offset:{B_QP}{pst}
    s_mov_b64 exec, -1""")
    stamp(5)
    A(f"""v_lshlrev_b32 v119, 15, v5
    v_lshl_add_u32 v119, v4, 4, v119
    s_lshl_b32 s39, s28, 17
    s_lshl_b32 s37, s30, 13
    s_add_u32 s39, s39, s37
    s_lshr_b32 s37, s29, 4
    s_lshl_b32 s37, s37, 8
    s_add_u32 s39, s39, s37
    s_add_u32 s40, s39, 4096
    v_lshlrev_b32 v118, 5, v5
    v_lshl_add_u32 v118, v4, 4, v118
    s_lshl_b32 s37, s30, 7
    v_add_u32 v118, s37, v118""")
    def qloads(r):
        A(f"""buffer_load_dwordx4 v[{r}:{r+3}], v119, s[32:35], s39 offen offset:{B_QP} sc1
        buffer_load_dwordx4 v[{r+4}:{r+7}], v119, s[32:35], s40 offen offset:{B_QP} sc1""")
    A(f"""; ---- remaining addresses
    v_mov_b32 v123, 0
    v_and_b32 v19, 1, v0
    v_bfe_u32 v18, v0, 1, 1
    s_lshl_b32 s37, s30, 2
    v_add_u32 v18, s37, v18
    v_lshlrev_b32 v17, 1, v96
    v_xor_b32 v18, v18, v17
    v_lshlrev_b32 v18, 4, v18
    v_lshl_add_u32 v18, v19, 3, v18
    v_lshrrev_b32 v17, 2, v0
    v_lshl_add_u32 v100, v17, 8, v18
    s_lshl_b32 s37, s30, 2
    v_add_u32 v101, s37, v6
    v_and_b32 v17, 7, v0
    v_lshlrev_b32 v17, 1, v17
    v_xor_b32 v17, v17, v5
    v_lshlrev_b32 v17, 4, v17
    v_lshl_add_u32 v17, v4, 8, v17
    s_lshl_b32 s37, s30, 13
    v_add_u32 v102, s37, v17
    v_xor_b32 v103, 64, v102
    v_xor_b32 v104, 128, v102
    v_xor_b32 v105, 192, v102
    v_mul_u32_u24 v116, {OSTR}, v19
    v_lshl_add_u32 v116, v5, 4, v116
    v_add_u32 v116, {L_O}, v116
    v_lshlrev_b32 v117, 7, v19
    v_lshl_add_u32 v117, v5, 4, v117
    v_add_u32 v117, {L_ACT}, v117
    v_lshrrev_b32 v17, 5, v0
    v_lshlrev_b32 v17, 7, v17
    v_lshl_add_u32 v17, v4, 3, v17
    v_and_b32 v18, 1, v5
    v_lshl_add_u32 v17, v18, 2, v17
    s_mul_i32 s37, s30, {QSTR}
    s_add_u32 s37, s37, {L_Q}
    v_add_u32 v120, s37, v17
    v_and_b32 v19, 3, v0
    v_mul_u32_u24 v121, {QSTR}, v19
    v_lshl_add_u32 v121, v5, 4, v121
    v_add_u32 v121, {L_Q}, v121
    v_lshlrev_b32 v20, 6, v5
    v_lshl_add_u32 v20, v19, 4, v20
    v_add_u32 v108, {L_P}, v20
    s_lshl_b32 s37, s30, 8
    v_add_u32 v110, s37, v108
    s_lshl_b32 s37, s30, 9
    v_add_u32 v109, s37, v20
    s_and_b32 s41, s30, 1
    s_lshl_b32 s37, s41, 8
    s_add_u32 s37, s37, {L_AL}
    v_add_u32 v114, s37, v20
    v_lshlrev_b32 v111, 5, v19
    v_add_u32 v111, {L_ML}, v111
    s_lshl_b32 s37, s30, 2
    v_add_u32 v112, s37, v111
    v_lshlrev_b32 v106, 3, v4
    v_lshlrev_b32 v16, 12, v5
    v_lshl_add_u32 v113, v4, 4, v16
    s_and_b32 s43, s29, 3
    s_lshl_b32 s37, s43, 9
    s_lshr_b32 s42, s30, 1
    s_lshl_b32 s44, s42, 8
    s_add_u32 s37, s37, s44
    v_add_u32 v113, s37, v113
    s_lshl_b32 s44, s28, 17
    s_lshl_b32 s37, s41, 16
    s_add_u32 s44, s44, s37
    s_add_u32 s45, s44, 16384
    s_add_u32 s46, s44, 32768
    s_add_u32 s47, s44, 49152
    v_lshlrev_b32 v115, 4, v4
    v_lshl_add_u32 v115, v18, 2, v115
    s_mul_i32 s37, s41, {OSTR}
    s_lshl_b32 s42, s42, 3
    s_add_u32 s37, s37, s42
    s_add_u32 s37, s37, {L_O}
    v_add_u32 v115, s37, v115
    s_mov_b32 s50, 0x000f000f
    s_mov_b32 s51, 0x000f000f
    s_mov_b32 s58, 0x3db504f3
    s_mov_b32 s59, 0x3fb8aa3b
    s_lshl_b32 s70, s29, 9
    s_lshl_b32 s37, s30, 7
    s_add_u32 s70, s70, s37
    s_add_u32 s70, s70, {W_FP}
    v_lshrrev_b32 v17, 3, v0
    v_lshlrev_b32 v17, 14, v17
    v_and_b32 v16, 7, v0
    v_lshl_add_u32 v99, v16, 4, v17
    v_and_b32 v16, 1, v0
    v_lshlrev_b32 v16, 10, v16
    v_bfe_u32 v17, v0, 1, 2
    v_lshl_add_u32 v16, v17, 3, v16
    v_lshrrev_b32 v17, 5, v0
    v_lshl_add_u32 v16, v17, 2, v16
    s_lshl_b32 s37, s28, 7
    s_lshl_b32 s41, s30, 5
    s_add_u32 s37, s37, s41
    v_add_u32 v98, s37, v16
    v_add_u32 v17, {L_XR}, v98
    ds_read_b32 v97, v17""")
    for i in range(4):
        if vsplit:
            A(f"""s_add_u32 s37, s43, {i}
            s_and_b32 s37, s37, 3
            s_lshl_b32 s41, s37, 13
            v_add_u32 v{80+2*i}, s41, v100
            s_lshl_b32 s41, s37, 8
            v_add_u32 v{76+i}, s41, v108""")
        else:
            A(f"v_add_u32 v{80+2*i}, {i*8192}, v100\nv_add_u32 v{76+i}, {i*256}, v108")
        A(f"v_xor_b32 v{81+2*i}, 32, v{80+2*i}")
    if touchout: A("global_load_dword v124, v98, s[22:23]")
    if warmfp: A(f"s_mov_b64 exec, s[48:49]\nbuffer_load_dword v124, v118, s[32:35], s68 offen{wfl}\ns_mov_b64 exec, -1")
    A("s_mov_b32 s56, 0")
    if sa: A(f"s_sleep {sa}")
    stamp(6)
    def republish():
        A(f"""s_xor_b32 s37, s38, {W_B}
        s_mov_b64 exec, s[48:49]
        buffer_store_dwordx4 v[88:91], v107, s[32:35], s37 offen offset:{B_QP} sc1
        s_mov_b64 exec, -1
        s_mov_b32 s56, 1""")
    qs = [128, 136, 144][:qsets]
    for k, r in enumerate(qs):
        qloads(r)
        if k + 1 < len(qs) and sb: A(f"s_sleep {sb}")
    def kread():
        wait_flag(6, F_K, 41)
        for t in range(2):
            for kk in range(4):
                A(f"ds_read_b128 v[{44+16*t+4*kk}:{47+16*t+4*kk}], v{102+kk} offset:{L_K + t*4096}")
    if kpre: kread()
    A("L_qp:")
    for k, r in enumerate(qs):
        A(f"s_waitcnt vmcnt({2*(len(qs)-1)})")
        bad_tag(range(r, r + 8), 40, 55, 123)
        A(f"s_cbranch_vccz L_qok{k}")
        qloads(r)
    A(f"""ds_read_b32 v40, v6 offset:{F_MODE}
    s_waitcnt lgkmcnt(0)
    v_readfirstlane_b32 s57, v40
    s_xor_b32 s57, s57, 1
    s_or_b32 s57, s57, s56
    s_cbranch_scc1 L_norep""")
    republish()
    A(f"""s_waitcnt vmcnt(0)""")
    for r in qs: qloads(r)
    A(f"""L_norep:
    s_lshl_b32 s37, s56, 21
    s_xor_b32 s39, s39, s37
    s_xor_b32 s40, s40, s37
    s_add_u32 s101, s101, 1
    s_cmp_lt_u32 s101, {SPIN}
    s_cbranch_scc1 L_qp""")
    for k, r in reversed(list(enumerate(qs))):
        A(f"L_qok{k}:")
        for i in range(4): A(f"v_permlane32_swap_b32 v{r+i}, v{r+4+i}")
        A(f"v_pk_add_f32 v[40:41], v[{r}:{r+1}], v[{r+4}:{r+5}]\nv_pk_add_f32 v[42:43], v[{r+2}:{r+3}], v[{r+6}:{r+7}]")
        if k: A("s_branch L_qj")
    A("L_qj:")
    stamp(7)
    A("""v_permlane16_swap_b32 v40, v42
    v_permlane16_swap_b32 v41, v43
    v_pk_add_f32 v[40:41], v[40:41], v[42:43]
    v_cvt_pk_bf16_f32 v40, v40, v41
    v_min_u32 v40, s52, v40
    ds_write_b32 v120, v40""")
    if not kpre: kread()
    l = lab("ql")
    A(f"{l}:")
    for kk in range(4): A(f"ds_read_b128 v[{16+4*kk}:{19+4*kk}], v121 offset:{64*kk}")
    A("s_waitcnt lgkmcnt(0)")
    any_sent(range(16, 32), 40)
    loop_back(l)
    stamp(8)
    for kk in range(4):
        for t in range(2):
            A(f"v_mfma_f32_16x16x32_bf16 v[{8+4*t}:{11+4*t}], v[{44+16*t+4*kk}:{47+16*t+4*kk}], v[{16+4*kk}:{19+4*kk}], {f'v[{8+4*t}:{11+4*t}]' if kk else 0}")
    A(f"ds_read_b32 v42, v6 offset:{F_MODE}")
    for rnd in range(2):
        for i in range(4): A(f"v_cvt_pk_bf16_f32 v{24+i}, v{8+2*i}, v{9+2*i}")
        for i in range(4): A(f"v_lshlrev_b32 v{8+2*i}, 16, v{24+i}\nv_and_b32 v{9+2*i}, s36, v{24+i}")
        if rnd == 0:
            for i in range(4): A(f"v_pk_mul_f32 v[{8+2*i}:{9+2*i}], v[{8+2*i}:{9+2*i}], s[58:59] op_sel_hi:[1,0]")
    A("""v_max3_f32 v24, v8, v9, v10
    v_max3_f32 v25, v11, v12, v13
    v_max3_f32 v24, v24, v14, v15
    v_max_f32 v24, v24, v25""")
    allred(24, 25, "v_max_f32")
    A("""v_min_u32 v25, s52, v24
    s_mov_b64 exec, 15
    ds_write_b32 v112, v25
    s_mov_b64 exec, -1""")
    l = lab("ml")
    A(f"""{l}:
    ds_read_b128 v[28:31], v111
    s_waitcnt lgkmcnt(0)""")
    any_sent([28, 29, 30, 31], 20)
    loop_back(l)
    A("""v_max3_f32 v26, v28, v29, v30
    v_max_f32 v26, v26, v31
    v_mul_f32 v26, s59, v26
    v_and_b32 v26, s53, v26""")
    for i in range(8): A(f"v_fma_f32 v{8+i}, v{8+i}, s59, -v26")
    for i in range(8): A(f"v_exp_f32 v{8+i}, v{8+i}")
    for i in range(4): A(f"v_cvt_pk_bf16_f32 v{16+i}, v{8+2*i}, v{9+2*i}")
    for i in range(4): A(f"v_min_u32 v{16+i}, s52, v{16+i}")
    A(f"""s_mov_b64 exec, s[50:51]
    ds_write_b128 v110, v[16:19]
    s_mov_b64 exec, -1
    v_pk_add_f32 v[28:29], v[8:9], v[10:11]
    v_pk_add_f32 v[30:31], v[12:13], v[14:15]
    v_pk_add_f32 v[28:29], v[28:29], v[30:31]
    v_add_f32 v25, v28, v29""")
    allred(25, 27, "v_add_f32")
    A(f"""v_min_u32 v25, s52, v25
    s_mov_b64 exec, 15
    ds_write_b32 v112, v25 offset:16
    s_mov_b64 exec, -1
    v_readfirstlane_b32 s57, v42
    s_cmp_eq_u32 s57, 0
    s_cbranch_scc1 L_modeok""")
    wait_flag(6, F_MODE, 42)
    A("""v_readfirstlane_b32 s57, v42
    s_xor_b32 s37, s57, 1
    s_or_b32 s37, s37, s56
    s_cbranch_scc1 L_modeok""")
    republish()
    A(f"""L_modeok:
    s_cmp_eq_u32 s30, 0
    s_cbranch_scc0 L_noml""")
    l = lab("ll")
    A(f"""{l}:
    ds_read_b128 v[28:31], v111 offset:16
    s_waitcnt lgkmcnt(0)""")
    any_sent([28, 29, 30, 31], 20)
    loop_back(l)
    A(f"""v_pk_add_f32 v[28:29], v[28:29], v[30:31]
    v_or_b32 v26, v26, v156
    v_add_f32 v27, v28, v29
    v_and_or_b32 v27, v27, s53, v157
    s_mov_b64 exec, {0xffff if fullml else 15}
    s_cmp_eq_u32 s57, 0
    s_cbranch_scc1 L_mlf
    buffer_store_dwordx2 v[26:27], v106, s[32:35], s38 offen offset:{B_ML} sc1
    s_branch L_mle
    L_mlf:
    buffer_store_dwordx2 v[26:27], v106, s[32:35], s38 offen offset:{B_ML}
    L_mle:
    s_mov_b64 exec, -1
    L_noml:""")
    l = lab("pl")
    A(f"{l}:")
    for i in range(4): A(f"ds_read_b128 v[{44+4*i}:{47+4*i}], v{76+i}")
    A("s_waitcnt lgkmcnt(0)")
    any_sent(range(44, 60), 20)
    loop_back(l)
    stamp(9)
    def ffn2():
        wait_flag(6, F_W2, 22)
        trw(L_W2, 2, 60)
        wait_flag(6, F_ACT, 22)
        A("ds_read_b128 v[68:71], v117\nds_read_b128 v[72:75], v117 offset:64\ns_waitcnt lgkmcnt(0)")
        for kk in range(2):
            A(f"v_mfma_f32_16x16x32_bf16 v[8:11], v[{60+4*kk}:{63+4*kk}], v[{68+4*kk}:{71+4*kk}], {'v[8:11]' if kk else 0}")
    def wopre():
        wait_flag(6, F_WO, 22)
        if op2: op_loads(44)
        if not opearly: op_loads()
        trw(L_WO, 4, 60)
    iv = order.index('v')
    assert order.index('w2') < order.index('wo') or order.index('wo') < iv
    if order.index('w2') < iv: ffn2()
    def pvstep(i, waitcnt):
        for t in range(2):
            for u in range(2):
                r = 24 + 8 * (i & 1) + 4 * t + 2 * u
                A(f"ds_read_b64_tr_b16 v[{r}:{r+1}], v{80+2*i+t} offset:{L_V + u*4096}")
    def pvmfma(i):
        for t in range(2):
            r = 24 + 8 * (i & 1) + 4 * t
            A(f"v_mfma_f32_16x16x32_bf16 v[{12+4*t}:{15+4*t}], v[{r}:{r+3}], v[{44+4*i}:{47+4*i}], {f'v[{12+4*t}:{15+4*t}]' if i else 0}")
    if vsplit:
        A(f"""ds_read_b32 v20, v6 offset:{F_V}
        s_waitcnt lgkmcnt(0)
        v_cmp_eq_u32 vcc, -1, v20
        s_cbranch_vccz L_pvall""")
        for i, f in enumerate((F_V0, F_V1, F_V2, F_V)):
            wait_flag(6, f, 20)
            if i == 3: stamp(10)
            pvstep(i, 0)
            A("s_waitcnt lgkmcnt(0)")
            pvmfma(i)
        A("s_branch L_pvdone\nL_pvall:")
    else:
        wait_flag(6, F_V, 20)
    if True:
        stamp(10)
        pvstep(0, 0); pvstep(1, 0)
        A("s_waitcnt lgkmcnt(4)"); pvmfma(0); pvstep(2, 0)
        A("s_waitcnt lgkmcnt(4)"); pvmfma(1); pvstep(3, 0)
        A("s_waitcnt lgkmcnt(4)"); pvmfma(2)
        A("s_waitcnt lgkmcnt(0)"); pvmfma(3)
        A("L_pvdone:\ns_nop 7")
    tag(range(12, 20))
    A(f"""s_mov_b64 exec, s[50:51]
    s_cmp_eq_u32 s57, 0
    s_cbranch_scc0 L_opslow
    buffer_store_dwordx4 v[12:15], v109, s[32:35], s38 offen offset:{B_OP}{pst}
    buffer_store_dwordx4 v[16:19], v109, s[32:35], s38 offen offset:{B_OP + 256}{pst}
    L_opdone:""")
    if hold: A(f"ds_write_b32 v101, v6 offset:{F_OPD}")
    A("s_mov_b64 exec, -1")
    stamp(11)
    def op_loads(r=24):
        for i in range(4): A(f"buffer_load_dwordx4 v[{r+4*i}:{r+3+4*i}], v113, s[32:35], s{44+i} offen offset:{B_OP} sc1")
    if opearly and not hold and not pre: op_loads()
    if order.index('w2') > iv: ffn2()
    if hold or pre:
        wait_flag(6, F_PRE, 22)
        if presl: A(f"s_sleep {presl}")
        op_loads()
    if not olate: wopre()
    else:
        assert not op2 and not hold and not pre
        if opsl: A(f"s_sleep {opsl}")
        if not opearly: op_loads()
    stamp(12)
    def alpha_wait(tagl):
        A("s_waitcnt lgkmcnt(0)")
        any_sent(range(40, 44), 22)
        A(f"s_cbranch_vccz L_alok{tagl}")
        l = lab("al")
        A(f"""{l}:
        ds_read_b128 v[40:43], v114
        s_waitcnt lgkmcnt(0)""")
        any_sent(range(40, 44), 22)
        loop_back(l)
        A(f"L_alok{tagl}:")
    def wsum(r):
        A(f"""v_pk_mul_f32 v[12:13], v[{r}:{r+1}], v[40:41] op_sel_hi:[1,0]
        v_pk_mul_f32 v[14:15], v[{r+2}:{r+3}], v[40:41] op_sel_hi:[1,0]
        v_pk_fma_f32 v[12:13], v[{r+4}:{r+5}], v[40:41], v[12:13] op_sel:[0,1,0] op_sel_hi:[1,1,1]
        v_pk_fma_f32 v[14:15], v[{r+6}:{r+7}], v[40:41], v[14:15] op_sel:[0,1,0] op_sel_hi:[1,1,1]
        v_pk_fma_f32 v[12:13], v[{r+8}:{r+9}], v[42:43], v[12:13] op_sel_hi:[1,0,1]
        v_pk_fma_f32 v[14:15], v[{r+10}:{r+11}], v[42:43], v[14:15] op_sel_hi:[1,0,1]
        v_pk_fma_f32 v[12:13], v[{r+12}:{r+13}], v[42:43], v[12:13] op_sel:[0,1,0] op_sel_hi:[1,1,1]
        v_pk_fma_f32 v[14:15], v[{r+14}:{r+15}], v[42:43], v[14:15] op_sel:[0,1,0] op_sel_hi:[1,1,1]""")
    if op2:
        A("L_opA:\nds_read_b128 v[40:43], v114\ns_waitcnt vmcnt(4)")
        bad_tag(range(24, 40), 88, 55, 123)
        A("s_cbranch_vccz L_opAok")
        op_loads(24)
        A("s_waitcnt vmcnt(4)")
        bad_tag(range(44, 60), 88, 55, 123)
        A("s_cbranch_vccz L_opBok")
        op_loads(44)
        A(f"""s_add_u32 s101, s101, 1
        s_cmp_lt_u32 s101, {SPIN}
        s_cbranch_scc1 L_opA
        L_opBok:""")
        stamp(13)
        alpha_wait("B"); wsum(44)
        A("s_branch L_opJ\nL_opAok:")
        stamp(13)
        alpha_wait("A"); wsum(24)
        A("L_opJ:")
    else:
        l = lab("og")
        A(f"s_branch L_ochk\n{l}:")
        op_loads()
        A("L_ochk:\nds_read_b128 v[40:43], v114\ns_waitcnt vmcnt(0)")
        bad_tag(range(24, 40), 88, 55, 123)
        if opmask:
            A(f"""s_cbranch_vccz L_opok
            s_mov_b64 exec, vcc
            L_opr:""")
            op_loads()
            A("s_waitcnt vmcnt(0)")
            bad_tag(range(24, 40), 88, 55, 123)
            A(f"""s_cbranch_vccz L_opdn
            s_mov_b64 exec, vcc
            s_add_u32 s101, s101, 1
            s_cmp_lt_u32 s101, {SPIN}
            s_cbranch_scc1 L_opr
            L_opdn:
            s_mov_b64 exec, -1
            ds_read_b128 v[40:43], v114
            L_opok:""")
        else:
            gloop_back(l)
        stamp(13)
        alpha_wait("A"); wsum(24)
    stamp(17)
    A("""v_permlane16_swap_b32 v12, v14
    v_permlane16_swap_b32 v13, v15
    v_pk_add_f32 v[12:13], v[12:13], v[14:15]
    v_mov_b32 v14, v12
    v_mov_b32 v15, v13
    v_permlane32_swap_b32 v14, v12
    v_permlane32_swap_b32 v15, v13
    v_pk_add_f32 v[12:13], v[12:13], v[14:15]
    v_cvt_pk_bf16_f32 v12, v12, v13
    v_min_u32 v12, s52, v12
    ds_write_b32 v115, v12""")
    l = lab("ol")
    A(f"{l}:")
    for kk in range(4): A(f"ds_read_b128 v[{76+4*kk}:{79+4*kk}], v116 offset:{64*kk}")
    A("s_waitcnt lgkmcnt(0)")
    any_sent(range(76, 92), 22)
    loop_back(l)
    if olate:
        stamp(18)
        wait_flag(6, F_WO, 22)
        trw(L_WO, 4, 60)
    for kk in range(4):
        if olate: A(f"s_waitcnt lgkmcnt({6 - 2*kk})")
        A(f"v_mfma_f32_16x16x32_bf16 v[8:11], v[{60+4*kk}:{63+4*kk}], v[{76+4*kk}:{79+4*kk}], v[8:11]")
    A("s_lshl_b32 s37, s28, 2\ns_cmp_eq_u32 s29, s37")
    tag(range(8, 12))
    A(f"""s_mov_b64 exec, s[48:49]
    s_cbranch_scc1 L_final
    buffer_store_dwordx4 v[8:11], v118, s[32:35], s68 offen sc1""")
    if stamps:
        A("s_mov_b64 exec, -1")
        stamp(14)
        A("s_branch L_cend")
    else: A("s_endpgm")
    A(f"""L_opslow:
    buffer_store_dwordx4 v[12:15], v109, s[32:35], s38 offen offset:{B_OP} sc1
    buffer_store_dwordx4 v[16:19], v109, s[32:35], s38 offen offset:{B_OP + 256} sc1
    s_branch L_opdone""")
    A(f"""L_final:
    buffer_store_dwordx4 v[8:11], v118, s[32:35], s68 offen
    s_mov_b64 exec, -1""")
    stamp(14)
    if fdelay: A(f"s_sleep {fdelay}")
    def fp_loads(r):
        for i in range(4):
            A(f"buffer_load_dwordx4 v[{r+4*i}:{r+3+4*i}], v99, s[32:35], s70 offen offset:{512*i} sc1")
    sets = [24, 44, 60][:fpsets]
    for r in sets: fp_loads(r)
    A("L_fp:")
    for k, r in enumerate(sets):
        A(f"s_waitcnt vmcnt({4*(len(sets)-1)})")
        bad_tag(range(r, r + 16), 76, 55, 123)
        A(f"s_cbranch_vccz L_fpok{k}")
        if fpmask and fpsets == 1: A("s_mov_b64 exec, vcc")
        if fsl: A(f"s_sleep {fsl}")
        fp_loads(r)
    A(f"""s_add_u32 s101, s101, 1
    s_cmp_lt_u32 s101, {SPIN}
    s_cbranch_scc1 L_fp""")
    for k, r in reversed(list(enumerate(sets))):
        A(f"L_fpok{k}:")
        if fpmask and fpsets == 1: A("s_mov_b64 exec, -1")
        stamp(16)
        A(f"""v_pk_add_f32 v[12:13], v[{r}:{r+1}], v[{r+4}:{r+5}]
        v_pk_add_f32 v[14:15], v[{r+2}:{r+3}], v[{r+6}:{r+7}]
        v_pk_add_f32 v[16:17], v[{r+8}:{r+9}], v[{r+12}:{r+13}]
        v_pk_add_f32 v[18:19], v[{r+10}:{r+11}], v[{r+14}:{r+15}]""")
        if k: A("s_branch L_fpj")
    A(f"""L_fpj:
    v_pk_add_f32 v[12:13], v[12:13], v[16:17]
    v_pk_add_f32 v[14:15], v[14:15], v[18:19]
    v_permlane32_swap_b32 v12, v14
    v_permlane32_swap_b32 v13, v15
    v_pk_add_f32 v[12:13], v[12:13], v[14:15]
    v_mov_b32 v14, v12
    v_mov_b32 v15, v13
    v_permlane16_swap_b32 v14, v12
    v_permlane16_swap_b32 v15, v13
    v_pk_add_f32 v[12:13], v[12:13], v[14:15]
    v_lshlrev_b32 v14, 16, v97
    v_and_b32 v15, s36, v97
    v_add_f32 v12, v12, v12 row_ror:8
    v_add_f32 v13, v13, v13 row_ror:8
    v_pk_add_f32 v[12:13], v[12:13], v[14:15]
    v_cvt_pk_bf16_f32 v12, v12, v13
    s_mov_b32 s40, 0xff
    s_mov_b32 s41, 0xff
    s_mov_b64 exec, s[40:41]
    global_store_dword v98, v12, s[22:23]{outst}
    s_or_b32 s37, s2, s30
    s_cbranch_scc1 L_cend
    v_mov_b32 v20, s54
    s_mov_b64 exec, 1
    global_store_dword v123, v20, s[26:27]{epsc}""")
    A("L_cend:")
    if stamps: A("s_mov_b64 exec, -1")
    stamp(15)
    if lst:
        A(f"""s_memrealtime s[98:99]
        s_lshl_b32 s37, s28, 2
        s_add_u32 s37, s37, s30
        s_lshl_b32 s37, s37, 3
        s_add_u32 s37, s37, 0x8000000
        v_mov_b32 v20, s37
        s_waitcnt lgkmcnt(0)
        v_mov_b32 v22, s94
        v_mov_b32 v23, s98
        s_mov_b64 exec, 1
        global_store_dwordx2 v20, v[22:23], s[26:27]""")
    if lamp:
        if lampx is not None: A(f"s_cmp_eq_u32 s28, {lampx}\ns_cbranch_scc0 L_end")
        A(f"""s_memrealtime s[98:99]
        s_waitcnt lgkmcnt(0)
        s_sub_u32 s37, s98, s94
        s_mul_i32 s37, s37, 10
        s_add_u32 s37, s37, s98
        L_ampl:
        s_memrealtime s[40:41]
        s_waitcnt lgkmcnt(0)
        s_sub_u32 s40, s40, s37
        s_cmp_lt_i32 s40, 0
        s_cbranch_scc1 L_ampl""")
    if amp is not None:
        A(f"""s_cmp_eq_u32 s30, 0
        s_cbranch_scc0 L_end
        s_cmp_eq_u32 s2, {ampwg}
        s_cbranch_scc0 L_end
        v_readlane_b32 s37, v{VST}, {amp}
        s_nop 4
        s_sub_u32 s37, s37, s94
        s_mul_i32 s37, s37, 10
        s_add_u32 s37, s37, s98
        L_ampl:
        s_memrealtime s[40:41]
        s_waitcnt lgkmcnt(0)
        s_sub_u32 s40, s40, s37
        s_cmp_lt_i32 s40, 0
        s_cbranch_scc1 L_ampl""")
    dump_stamps()
    A("L_end:\ns_endpgm")
    A(f""".section .rodata,"a"
    .p2align 6
    .amdhsa_kernel {NAME}
    .amdhsa_next_free_vgpr 160
    .amdhsa_next_free_sgpr 102
    .amdhsa_accum_offset 160
    .amdhsa_group_segment_fixed_size 0
    .amdhsa_kernarg_size 96
    .amdhsa_user_sgpr_count 2
    .amdhsa_user_sgpr_kernarg_segment_ptr 1
    .amdhsa_system_sgpr_workgroup_id_x 1
    .amdhsa_float_denorm_mode_32 3
    .end_amdhsa_kernel""")
    return A.finish()

if __name__ == "__main__":
    out = sys.argv[1] if len(sys.argv) > 1 else "k.s"
    kw = {}
    for a in sys.argv[2:]:
        if '=' in a:
            k, v = a.split('=', 1); kw[k] = eval(v)
        else: kw[a] = True
    open(out, "w").write(gen(**kw))
```

```python
import sys
from asmlib import Asm

NAME = "parallel_sum__sliding_block_cached__dense_activation_mish__decode_kernel"

L_K, L_V, L_WQ, L_WO, L_W1, L_W2 = 0x0, 0x8000, 0x10000, 0x14000, 0x18000, 0x1A000
L_S = 0x1C000
L_Q, L_P, L_O, L_ML, L_FLG, L_AL = L_S, L_S + 0x500, L_S + 0x900, L_S + 0xB40, L_S + 0xC00, L_S + 0xD00
L_XN, L_ACT, L_XR = 0x1D000, 0x1D900, 0x1DA00
LDS_BYTES = 0x1E200
QSTR, XSTR, OSTR = 272, 1040, 272
F_WQ, F_W1, F_K, F_V, F_WO, F_W2, F_QA, F_QB, F_ACT, F_X, F_MODE, F_V0, F_V1, F_V2, F_XN, F_PRE = [4 * i for i in range(16)]
F_OPD = 64
W_BLK = 0x10000
B_QP, B_HP, B_OP, B_ML, B_ID = 0, 512, 1024, 3072, 3200
W_FP = 0x100000
W_ST = 0x120000
F_RED = F_QB
W_B = 0x200000
SPIN = 1 << 18
IDTRY = 48

def gen(depth=22, stamps=False, safe=False, amp=None, ampwg=0, order=('wq', 'w1', 'k', 'v', 'w2', 'wo'),
        qa=34, qb=44, hpt=None, pref=True, header="", warmfp=True, fdelay=0, loaderonly=False, vsplit=True,
        forcemode=None, mlt='k', nobeacon=False, noB=False, fullml=True, fullid=True, prof=False, dsched=None, kph='A', wph='A', ntw=' nt', ntkv=' nt', sa=4, sb=12, touchout=False, fpsets=1, op2=False, epsc='', b1early=True, idt='x', qsets=3, hs=12, opmask=False, fpmask=False, opearly=False, hold=0, presl=0, early=False, free=(0, 8, 16, 24), mlpipe=0, mlsl=3, prew=0, pre=0, olate=False, opsl=0, xdirty=0, fsl=0, pst='', outst='', mlpre=0, touch=0x1ffff00, tfl='', tlate=True, wfl='', lamp=False, lst=False, dyn=True, forcer=None, bias0=45, xmask=None, cprio=2, kpre=True, deep=None, t0=95, slope=3.35, margin=25, chk=(18, 26, 34, 42, 50, 58, 66, 74, 82)):
    A = Asm()
    uid = [0]
    def lab(p):
        uid[0] += 1
        return f"L_{p}{uid[0]}"
    VST = 127
    def stamp(k):
        if stamps:
            A(f"s_memrealtime s[98:99]\ns_waitcnt lgkmcnt(0)\nv_writelane_b32 v{VST}, s98, {k}")
    def stamp0():
        if stamps: A(f"v_writelane_b32 v{VST}, s94, 0")
    def dump_stamps():
        if stamps and amp is None:
            A(f"""s_lshl_b32 s96, s2, 3
            s_add_u32 s96, s96, s3
            s_lshl_b32 s96, s96, 7
            s_add_u32 s96, s96, 0x8000000
            s_add_u32 s96, s26, s96
            s_addc_u32 s97, s27, 0
            s_mov_b32 exec_lo, -1
            s_mov_b32 exec_hi, 0
            v_mbcnt_lo_u32_b32 v126, -1, 0
            v_lshlrev_b32 v126, 2, v126
            global_store_dword v126, v{VST}, s[96:97]""")
    def loop_back(l):
        if safe:
            o = lab("out")
            A(f"""s_add_u32 s100, s100, 1
            s_bitcmp1_b32 s100, 21
            s_cbranch_scc1 {o}
            s_cbranch_vccnz {l}
            {o}:""")
        else:
            A(f"s_cbranch_vccnz {l}")
    def gloop_back(l, sleep=0):
        o = lab("ok")
        A(f"s_cbranch_vccz {o}")
        if sleep: A(f"s_sleep {sleep}")
        A(f"""s_add_u32 s101, s101, 1
        s_cmp_lt_u32 s101, {SPIN}
        s_cbranch_scc1 {l}
        {o}:""")
    def wait_flag(vaddr, off, vt):
        l = lab("wf")
        A(f"""{l}:
        ds_read_b32 v{vt}, v{vaddr} offset:{off}
        s_waitcnt lgkmcnt(0)
        v_cmp_eq_u32 vcc, -1, v{vt}""")
        loop_back(l)
    def set_flag(vaddr, off, vdata):
        A(f"""s_mov_b64 exec, 1
        ds_write_b32 v{vaddr}, v{vdata} offset:{off}
        s_mov_b64 exec, -1""")
    def any_sent(regs, vt):
        regs = list(regs)
        A(f"v_max3_u32 v{vt}, v{regs[0]}, v{regs[1]}, v{regs[2] if len(regs) > 2 else regs[1]}")
        rest = regs[3:]
        while rest:
            a = rest[0]; b = rest[1] if len(rest) > 1 else rest[0]
            A(f"v_max3_u32 v{vt}, v{vt}, v{a}, v{b}")
            rest = rest[2:]
        A(f"v_cmp_eq_u32 vcc, -1, v{vt}")
    def bad_tag(regs, t0, sT, vzero):
        regs = list(regs); n = len(regs) // 2
        for i in range(n):
            if isinstance(sT, list):
                a, b, t = sT[i]
                A(f"v_bitop3_b32 v{t0+i}, v{a}, v{b}, {t} bitop3:0x7e")
            else:
                g, r = i // 4, i % 4
                A(f"v_bitop3_b32 v{t0+i}, v{regs[8*g+r]}, v{regs[8*g+4+r]}, s{72+r} bitop3:0x7e")
        cur = [t0 + i for i in range(n)]
        while len(cur) > 1:
            if len(cur) >= 3:
                A(f"v_or3_b32 v{cur[0]}, v{cur[0]}, v{cur[1]}, v{cur[2]}"); cur = cur[3:] + [cur[0]]
            else:
                A(f"v_or_b32 v{cur[0]}, v{cur[0]}, v{cur[1]}"); cur = [cur[0]]
        A(f"v_cmp_ne_u32_sdwa vcc, v{cur[0]}, v{vzero} src0_sel:BYTE_0 src1_sel:DWORD")
    def mktags(se, lanebit):
        A(f"""s_mov_b32 s72, s{se}
        s_lshr_b32 s73, s{se}, 8
        s_lshr_b32 s74, s{se}, 16
        s_lshr_b32 s75, s{se}, 24
        v_mov_b32 v156, 0xff
        v_and_b32 v152, s72, v156
        v_and_b32 v153, s73, v156
        v_and_b32 v154, s74, v156
        v_and_b32 v155, s75, v156
        v_and_b32 v157, 1, v0
        v_cmp_eq_u32 vcc, 0, v157
        v_cndmask_b32 v156, v154, v152, vcc
        v_cndmask_b32 v157, v155, v153, vcc""")
    def rgmap(r, t):
        if tuple(free) == (28, 29, 30, 31): return
        mask = 0xffffffff
        for f in free: mask &= ~(1 << f)
        A(f"""s_bfm_b32 s{t}, s{r}, 0
        s_and_b32 s{t}, s{t}, {mask}
        s_bcnt1_i32_b32 s{t}, s{t}
        s_bitcmp1_b32 {mask}, s{r}
        s_cselect_b32 s{r}, s{t}, 28""")
    def bf16r(d, s):
        A(f"v_cvt_pk_bf16_f32 v{d}, v{s}, v{s}\nv_lshlrev_b32 v{d}, 16, v{d}")
    def ws_srd(d):
        A(f"""s_add_u32 s{d}, s26, {W_BLK}
        s_addc_u32 s{d+1}, s27, 0
        s_mov_b32 s{d+2}, 0x300000
        s_mov_b32 s{d+3}, 0x00020000""")
    def allred(v, t, op):
        A(f"""v_mov_b32 v{t}, v{v}
        v_permlane32_swap_b32 v{t}, v{v}
        {op} v{v}, v{v}, v{t}
        v_mov_b32 v{t}, v{v}
        v_permlane16_swap_b32 v{t}, v{v}
        {op} v{v}, v{v}, v{t}""")

    def allred2(v, t, w, u, op):
        for sw in ("v_permlane32_swap_b32", "v_permlane16_swap_b32"):
            A(f"""v_mov_b32 v{t}, v{v}
            v_mov_b32 v{u}, v{w}
            {sw} v{t}, v{v}
            {sw} v{u}, v{w}
            {op} v{v}, v{v}, v{t}
            {op} v{w}, v{w}, v{u}""")
    A(header)
    A(f"; @launch grid=(256,1,1) block=(384,1,1) lds={LDS_BYTES}")
    A(f""".amdgcn_target "amdgcn-amd-amdhsa--gfx950"
    .text
    .globl {NAME}
    .p2align 8
    .type {NAME},@function
    {NAME}:""")
    if early: A("s_memrealtime s[92:93]")
    A(f"""s_load_dwordx16 s[4:19], s[0:1], 0
    s_load_dwordx8 s[20:27], s[0:1], 64
    s_getpc_b64 s[30:31]
    L_pc:
    s_cmpk_ge_u32 s2, 256
    s_cbranch_scc1 L_end
    v_xor_b32 v2, 0x140, v0
    v_readfirstlane_b32 s3, v0
    v_lshlrev_b32 v2, 7, v2
    v_min_u32 v2, L_end-L_pc, v2
    global_load_dword v125, v2, s[30:31]""")
    if stamps or lamp or lst: A("s_memrealtime s[94:95]")
    A(f"""s_cmp_eq_u32 s3, 0
    s_cbranch_scc0 L_notloader
    v_lshrrev_b32 v2, 3, v0
    v_and_b32 v9, 6, v2
    v_xor_b32 v9, v9, v0
    v_and_b32 v9, 7, v9
    v_lshlrev_b32 v9, 4, v9
    v_lshrrev_b32 v4, 5, v0
    v_and_b32 v5, 3, v2
    v_lshl_add_u32 v6, v4, 3, v5
    v_lshl_add_u32 v10, v6, 13, v9
    v_add_u32 v11, 31744, v10
    v_lshlrev_b32 v21, 4, v0
    s_mov_b32 s34, -1
    s_mov_b32 s35, 0x00020000
    s_movk_i32 s60, 0x800
    s_and_b32 s28, s2, 7
    s_lshr_b32 s29, s2, 3
    s_lshr_b32 s57, s2, 6
    s_lshl_b32 s57, s57, 10
    s_or_b32 s57, s57, s28
    s_lshl_b32 s57, s57, 3
    s_and_b32 s58, s29, 7
    s_or_b32 s57, s57, s58
    s_lshl_b32 s57, s57, 7
    s_lshl_b32 s59, s60, 6
    s_mov_b32 m0, {L_XR}
    {'s_memrealtime s[76:77]' if early else ''}
    s_waitcnt lgkmcnt(0)
    {'s_memrealtime s[78:79]' if early else ''}
    global_load_lds_dwordx4 v21, s[4:5]
    global_load_lds_dwordx4 v21, s[4:5] offset:1024
    s_lshl_b32 m0, s60, 5
    s_mov_b64 s[32:33], s[10:11]
    L_wq:
    buffer_load_dwordx4 v10, s[32:35], s57 offen nt lds
    buffer_load_dwordx4 v11, s[32:35], s57 offen offset:1024 nt lds
    s_add_u32 m0, m0, s60
    s_add_u32 s57, s57, s59
    s_bitcmp0_b32 m0, 14
    s_cbranch_scc1 L_wq""")
    A("L_after256:")
    if early: A("s_memrealtime s[82:83]\ns_mov_b32 s80, s82")
    if stamps: A(f"v_mov_b32 v{VST}, 0")
    A("""s_setprio 3
    s_and_b32 s61, s29, 3
    s_lshl_b32 s62, s61, 3
    s_add_u32 s62, s62, s28
    s_lshr_b32 s63, s29, 2""")
    rgmap(62, 58)
    if deep and xmask is None: A("s_memrealtime s[72:73]")
    assert order[0] == 'wq' and L_WQ == 0x10000
    info = dict(wq=(8, 32, 10, L_WQ, F_WQ), w1=(4, 36, 12, L_W1, F_W1), k=(16, 40, 14, L_K, F_K), v=(16, 44, 14, L_V, F_V),
                wo=(8, 48, 16, L_WO, F_WO), w2=(4, 52, 18, L_W2, F_W2))
    flag_at = {2: [F_X]}
    cum = 2
    for m in order:
        if m == 'v' and vsplit:
            for i, f in enumerate((F_V0, F_V1, F_V2)): flag_at.setdefault(cum + 8 * (i + 1), []).append(f)
        cum += 2 * info[m][0]
        flag_at.setdefault(cum, []).append(info[m][4])
    def kphase():
        if kph == 'A': A("s_and_b32 s67, s29, 15")
        elif kph == 'B': A("s_lshl_b32 s67, s28, 1\ns_lshr_b32 s59, s29, 4\ns_add_u32 s67, s67, s59")
        elif kph == 'C': A("s_lshl_b32 s67, s28, 1\ns_lshr_b32 s59, s29, 4\ns_add_u32 s67, s67, s59\ns_and_b32 s59, s29, 8\ns_add_u32 s67, s67, s59\ns_and_b32 s67, s67, 15")
        elif kph == 'D': A("s_lshl_b32 s67, s28, 1\ns_add_u32 s67, s67, s29\ns_and_b32 s67, s67, 15")
        elif kph == 'E': A("s_lshl_b32 s67, s28, 1\ns_lshr_b32 s59, s29, 2\ns_add_u32 s67, s67, s59\ns_and_b32 s67, s67, 15")
        elif kph == 'F': A("s_mul_i32 s67, s29, 5\ns_mul_i32 s59, s28, 3\ns_add_u32 s67, s67, s59\ns_and_b32 s67, s67, 15")
        elif kph == 'G': A("s_and_b32 s67, s29, 7\ns_lshl_b32 s67, s67, 1")
        elif kph == 'Z': A("s_mov_b32 s67, 0")
    def setup(m):
        if m == 'wq': return
        if m == 'w1':
            A("""v_mul_u32_u24 v12, 3584, v6
            v_add_u32 v12, v12, v9
            v_add_u32 v13, 13312, v12
            s_mov_b32 s36, s16
            s_mov_b32 s37, s17
            s_cmp_lt_u32 s62, 28
            s_cselect_b32 s38, 1835008, 0
            s_mov_b32 s39, 0x00020000
            s_mul_i32 s57, s63, 229376
            s_lshl_b32 s58, s62, 7
            s_add_u32 s57, s57, s58
            s_lshl_b32 s56, s61, 11""")
        elif m == 'k':
            A(f"""v_lshrrev_b32 v7, 4, v0
            v_lshlrev_b32 v8, 1, v7
            v_xor_b32 v8, v8, v0
            v_and_b32 v8, 15, v8
            v_lshlrev_b32 v8, 4, v8
            v_lshl_add_u32 v14, v7, 8, v8
            v_xor_b32 v15, 128, v14
            s_mov_b32 s40, s6
            s_mov_b32 s41, s7
            s_mov_b32 s42, 33554432
            s_mov_b32 s43, 0x00020000
            s_lshr_b32 s64, s29, 4
            s_lshl_b32 s64, s64, 3
            s_add_u32 s64, s64, s28
            s_lshl_b32 s64, s64, 21
            s_and_b32 s58, s29, 15
            s_lshl_b32 s58, s58, 15
            s_add_u32 s64, s64, s58
            s_add_u32 s64, s64, 1572864""")
            kphase()
            A("s_lshl_b32 s56, s67, 11")
        elif m == 'v':
            A(f"""s_mov_b32 s44, s8
            s_mov_b32 s45, s9
            s_mov_b32 s46, 33554432
            s_mov_b32 s47, 0x00020000""")
            if vsplit:
                A("""s_lshl_b32 s65, s61, 13
                s_and_b32 s66, s63, 3
                s_lshl_b32 s66, s66, 11
                s_or_b32 s56, s65, s66""")
            else:
                A("s_lshl_b32 s56, s67, 11")
        elif m == 'wo':
            A("""v_lshl_add_u32 v7, v4, 7, v5
            v_lshl_add_u32 v16, v7, 10, v9
            v_add_u32 v17, 15360, v16
            s_mov_b32 s48, s12
            s_mov_b32 s49, s13
            s_mov_b32 s50, 4194304
            s_mov_b32 s51, 0x00020000
            s_lshl_b32 s57, s28, 19
            s_lshl_b32 s58, s61, 15
            s_add_u32 s57, s57, s58
            s_lshl_b32 s58, s63, 7
            s_add_u32 s57, s57, s58""")
            A(dict(A="s_and_b32 s56, s29, 7\ns_lshl_b32 s56, s56, 11", Z="s_mov_b32 s56, 0", X="s_lshl_b32 s56, s28, 11", P="s_lshl_b32 s56, s28, 11")[wph])
        elif m == 'w2':
            A("""v_lshl_add_u32 v18, v6, 10, v9
            v_add_u32 v19, 3072, v18
            s_mov_b32 s52, s20
            s_mov_b32 s53, s21
            s_cmp_lt_u32 s62, 28
            s_cselect_b32 s54, 1835008, 0
            s_mov_b32 s55, 0x00020000
            s_lshl_b32 s57, s62, 16
            s_lshl_b32 s58, s63, 7
            s_add_u32 s57, s57, s58
            s_lshl_b32 s56, s61, 11""")
    total = cum
    if hold or pre: flag_at.setdefault(total - (hold or pre), []).append(F_PRE)
    if mlpre: flag_at.setdefault(total - mlpre, []).append(F_QA)
    stn = {F_PRE: 10, F_WQ: 3, F_W1: 4, F_K: 5, F_V: 6, F_WO: 7, F_QA: 2, F_X: 8, F_W2: 9}
    def stream(depth, variant):
        issued = 2
        done_barrier = variant != 0
        flagged = set()
        live = variant == 0
        pending = False
        def landed(n):
            for c in sorted(flag_at):
                if c <= n and c not in flagged:
                    flagged.add(c)
                    if not live: continue
                    A("s_mov_b64 exec, 1")
                    for f in flag_at[c]: A(f"ds_write_b32 v20, v20 offset:{f}")
                    A("s_mov_b64 exec, -1")
                    for f in flag_at[c]:
                        if f in stn: stamp(stn[f])
        for m in order:
            npair, srd, vo, lbase, _ = info[m]
            if m == 'wq':
                issued += 16
                continue
            if live: setup(m)
            for p in range(npair):
                d = depth
                if dsched and variant == 0:
                    for (frm, dd) in dsched:
                        if issued >= frm: d = dd
                if variant == 1 and (issued - (depth0 - 2)) in chk:
                    live = True
                    A(f"L_deep{issued}:")
                if hold and issued >= total - hold:
                    if issued == total - hold and live:
                        cv = [c for c in flag_at if F_V in flag_at[c]][0]
                        for c in sorted(flag_at):
                            if c <= cv and c not in flagged:
                                A(f"s_waitcnt vmcnt({issued - c})")
                                landed(c)
                        l = lab("hold")
                        A(f"""{l}:
                        ds_read_b128 v[24:27], v20 offset:{F_OPD}
                        s_waitcnt lgkmcnt(0)
                        v_max3_u32 v24, v24, v25, v26
                        v_max_u32 v24, v24, v27
                        v_cmp_eq_u32 vcc, -1, v24
                        s_cbranch_vccnz {l}""")
                elif issued + 2 > d:
                    if not done_barrier:
                        A(f"v_mov_b32 v20, {L_FLG}\ns_barrier")
                        stamp(1)
                        done_barrier = True
                    if live: A(f"s_waitcnt vmcnt({d - 2})")
                    landed(issued - (d - 2))
                    if prof and live and (issued - (d - 2)) % 8 == 2: stamp(11 + (issued - (d - 2)) // 8)
                    if variant == 0 and deep:
                        n = issued - (d - 2)
                        if n in chk and xmask is not None:
                            A(f"s_bitcmp1_b32 {xmask}, s28\ns_cbranch_scc1 L_deep{issued}")
                        elif n in chk:
                            thr = int(t0 + slope * (n - 2) + margin)
                            A(f"""s_memrealtime s[70:71]
                            s_waitcnt lgkmcnt(0)
                            s_sub_u32 s70, s70, s72
                            s_cmp_gt_u32 s70, {thr}
                            s_cbranch_scc1 L_deep{issued}""")
                if live:
                    A(f"s_add_u32 m0, s56, {lbase}" if lbase else "s_mov_b32 m0, s56")
                    if m == 'wq': A("s_lshl_b32 s58, s56, 6\ns_add_u32 s58, s58, s57")
                    elif m == 'w1': A("s_mul_i32 s58, s56, 28\ns_add_u32 s58, s58, s57")
                    elif m == 'w2': A("s_lshl_b32 s58, s56, 3\ns_add_u32 s58, s58, s57")
                    elif m == 'wo': A("s_and_b32 s58, s56, s60\ns_lshl_b32 s58, s58, 7\ns_and_b32 s59, s56, 0x3000\ns_add_u32 s58, s58, s59\ns_add_u32 s58, s58, s57")
                    else: A("s_add_u32 s58, s56, s64")
                    fl = ntkv if m in ('k', 'v') else ntw
                    A(f"buffer_load_dwordx4 v{vo}, s[{srd}:{srd+3}], s58 offen{fl} lds")
                    A(f"buffer_load_dwordx4 v{vo+1}, s[{srd}:{srd+3}], s58 offen offset:1024{fl} lds")
                issued += 2
                if p != npair - 1 and live:
                    if m == 'v' and vsplit:
                        A("s_add_u32 s66, s66, s60\ns_and_b32 s66, s66, 0x1fff")
                        if p % 4 == 3: A("s_add_u32 s65, s65, 0x2000\ns_and_b32 s65, s65, 0x7fff")
                        A("s_or_b32 s56, s65, s66")
                    else:
                        A(f"s_add_u32 s56, s56, s60\ns_and_b32 s56, s56, {npair * 2048 - 1}")
        pts = set(c for c in flag_at if c not in flagged)
        if prof: pts |= set(c for c in range(issued - depth + 4, issued + 1) if c % 8 == 2)
        for c in sorted(pts):
            A(f"s_waitcnt vmcnt({issued - c})")
            landed(c)
            if prof and c % 8 == 2: stamp(11 + c // 8)
        if early:
            for k, r in ((11, 76), (12, 78), (13, 80), (14, 82), (15, 92)): A(f"v_writelane_b32 v{VST}, s{r}, {k}")
        if stamps: A(f"s_mov_b32 s98, {variant + 1}\nv_writelane_b32 v{VST}, s98, 31")
        stamp0()
        dump_stamps()
        A("s_endpgm")
    depth0 = depth
    stream(depth, 0)
    if deep: stream(deep, 1)

    A("L_notloader:")
    A("""s_lshr_b32 s3, s3, 6
    v_and_b32 v0, 63, v0
    s_and_b32 s28, s2, 7
    s_lshr_b32 s29, s2, 3""")
    if stamps: A(f"v_mov_b32 v{VST}, 0")
    if loaderonly: A("s_barrier\ns_endpgm")
    A("s_cmp_eq_u32 s3, 1\ns_cbranch_scc0 L_compute")
    A(f"""s_and_b32 s61, s29, 3
    s_lshl_b32 s62, s61, 3
    s_add_u32 s62, s62, s28""")
    rgmap(62, 63)
    A(f"""v_and_b32 v11, 7, v0
    v_lshlrev_b32 v11, 2, v11
    v_lshrrev_b32 v12, 5, v0
    v_lshl_add_u32 v11, v12, 1, v11
    v_bfe_u32 v12, v0, 4, 1
    v_add_u32 v11, v11, v12
    v_bfe_u32 v12, v0, 3, 1
    v_lshl_add_u32 v11, v12, 5, v11
    s_min_u32 s63, s62, 27
    s_lshl_b32 s63, s63, 6
    v_add_u32 v13, s63, v11
    v_lshlrev_b32 v13, 1, v13
    v_mov_b32 v20, {L_FLG}
    v_mov_b32 v40, 0
    v_mov_b32 v41, 0
    v_mov_b32 v19, 0
    s_mov_b32 s100, 0
    s_mov_b32 s101, 0
    s_getreg_b32 s64, hwreg(HW_REG_XCC_ID)
    {'s_memrealtime s[76:77]' if dyn else ''}
    s_lshl_b32 s65, s28, 17
    s_lshl_b32 s66, s29, 12
    s_add_u32 s66, s66, s65
    v_and_b32 v21, 31, v0
    v_lshlrev_b32 v21, 12, v21
    s_waitcnt lgkmcnt(0)
    s_load_dword s5, s[26:27], 0""")
    if b1early: A("global_load_ushort v14, v13, s[18:19]")
    ws_srd(8)
    def dotouch():
        A(f"""v_lshlrev_b32 v25, 7, v0
        s_mov_b32 exec_lo, {touch}
        s_mov_b32 exec_hi, 0
        buffer_load_dword v124, v25, s[8:11], s66 offen{tfl}
        s_mov_b64 exec, -1""")
    if touch and not tlate: dotouch()
    A(f"""s_barrier
    s_and_b32 s64, s64, 15
    s_waitcnt lgkmcnt(0)
    s_add_u32 s5, s5, 1
    s_lshl_b32 s6, s5, 4
    s_or_b32 s6, s6, s64
    v_mov_b32 v22, s6
    v_lshlrev_b32 v24, 2, v0
    s_mov_b32 exec_lo, {0 if nobeacon else (-1 if fullid else 1)}
    s_mov_b32 exec_hi, 0
    buffer_store_dword v22, v24, s[8:11], s66 offen offset:{B_ID}
    s_mov_b64 exec, -1""")
    if dyn:
        A(f"""v_and_b32 v70, 7, v0
        v_lshlrev_b32 v71, 7, v70
        s_mov_b32 s78, {W_ST}
        s_cmp_eq_u32 s29, 0
        s_cbranch_scc0 L_nost
        s_lshl_b32 s34, s28, 7
        s_add_u32 s34, s34, s78
        s_cmp_eq_u32 s28, 0
        s_cselect_b32 s35, {bias0}, 0
        s_sub_u32 s76, s76, s35
        v_mov_b32 v26, s76
        v_mov_b32 v27, s5
        s_mov_b64 exec, 1
        buffer_store_dwordx2 v[26:27], v19, s[8:11], s34 offen sc1
        s_mov_b64 exec, -1
        L_nost:""")
    if prew:
        A("""s_not_b32 s34, s5
        v_mov_b32 v28, s34
        v_mov_b32 v29, s34
        v_mov_b32 v30, s34
        v_mov_b32 v31, s34
        v_lshlrev_b32 v25, 4, v0""")
        for o in ([0] if prew & 1 else []) + ([1024, 2048] if prew & 2 else []):
            A(f"buffer_store_dwordx4 v[28:31], v25, s[8:11], s66 offen offset:{o}")
        if prew & 4: A(f"s_mov_b64 exec, 0xff\nbuffer_store_dwordx4 v[28:31], v25, s[8:11], s66 offen offset:{B_ML}\ns_mov_b64 exec, -1")
    if xdirty:
        A(f"v_lshlrev_b32 v25, 4, v0\ns_xor_b32 s34, s66, {W_B}")
        for o in range(xdirty): A(f"buffer_store_dwordx4 v[28:31], v25, s[8:11], s34 offen offset:{1024*o}")
    if not b1early: A("global_load_ushort v14, v13, s[18:19]")
    stamp0()
    A(f"""v_lshrrev_b32 v5, 4, v0
    v_and_b32 v4, 15, v0
    v_bfe_u32 v60, v0, 2, 2
    v_and_b32 v17, 1, v5
    v_lshl_add_u32 v60, v17, 2, v60
    v_bfe_u32 v18, v0, 1, 1
    v_and_b32 v61, 6, v60
    v_xor_b32 v18, v18, v61
    v_lshlrev_b32 v18, 4, v18
    v_and_b32 v61, 1, v0
    v_lshl_add_u32 v18, v61, 3, v18
    v_lshrrev_b32 v17, 5, v0
    v_lshl_add_u32 v17, v17, 4, v60
    v_lshl_add_u32 v62, v17, 7, v18
    v_add_u32 v62, {L_W1}, v62
    v_xor_b32 v63, 32, v62
    v_xor_b32 v64, 64, v62
    v_xor_b32 v65, 96, v62
    v_mul_u32_u24 v18, {XSTR}, v61
    v_lshl_add_u32 v18, v5, 4, v18
    s_lshr_b32 s37, s29, 2
    s_lshl_b32 s37, s37, 7
    s_add_u32 s37, s37, {L_XN}
    v_add_u32 v66, s37, v18
    v_lshlrev_b32 v67, 8, v4
    v_lshl_add_u32 v67, v5, 4, v67
    s_movk_i32 s53, 0xff00
    s_mov_b32 s48, 0x00030003
    s_mov_b32 s49, 0x00030003""")
    mktags(5, 0)
    wait_flag(20, F_XN, 18)
    if not nobeacon: A(f"buffer_load_dword v23, v21, s[8:11], s65 offen offset:{B_ID} sc1")
    A("ds_read_b128 v[24:27], v66\nds_read_b128 v[28:31], v66 offset:64")
    wait_flag(20, F_W1, 18)
    for t in range(4):
        for kk in range(2):
            for u in range(2):
                r = 72 + 8 * t + 4 * kk + 2 * u
                A(f"ds_read_b64_tr_b16 v[{r}:{r+1}], v{62+t} offset:{kk*4096 + u*1024}")
    for t in range(4):
        A(f"s_waitcnt lgkmcnt({12 - 4*t})")
        for kk in range(2):
            r = 72 + 8 * t + 4 * kk
            A(f"v_mfma_f32_16x16x32_bf16 v[{104+4*t}:{107+4*t}], v[{r}:{r+3}], v[{24+4*kk}:{27+4*kk}], {f'v[{104+4*t}:{107+4*t}]' if kk else 0}")
    for r in range(104, 120): A(f"v_and_or_b32 v{r}, v{r}, s53, v{152 + r % 4}")
    A("s_mov_b64 exec, s[48:49]")
    for t in range(4): A(f"buffer_store_dwordx4 v[{104+4*t}:{107+4*t}], v67, s[8:11], s66 offen offset:{B_HP + 64*t}{pst}")
    A("s_mov_b64 exec, -1\ns_mov_b32 s7, 0")
    stamp(6)
    if nobeacon: A("s_branch L_idok")
    l = lab("id")
    A(f"""s_waitcnt vmcnt(4)
    s_branch L_idchk
    {l}:
    buffer_load_dword v23, v21, s[8:11], s65 offen offset:{B_ID} sc1
    s_waitcnt vmcnt(0)
    L_idchk:
    v_cmp_ne_u32 vcc, s6, v23
    s_cbranch_vccz L_idok
    s_add_u32 s7, s7, 1
    s_cmp_lt_u32 s7, {IDTRY}
    s_cbranch_scc1 {l}
    L_idok:
    s_cmp_eq_u32 s7, {IDTRY}
    s_cselect_b32 s7, 1, 0""")
    if forcemode is not None: A(f"s_mov_b32 s7, {forcemode}")
    A("v_mov_b32 v23, s7")
    set_flag(20, F_MODE, 23)
    if touch and tlate: dotouch()
    stamp(1)
    A(f"""s_cmp_eq_u32 s7, 0
    s_cbranch_scc1 L_hpfast
    s_xor_b32 s37, s66, {W_B}
    s_mov_b64 exec, s[48:49]""")
    for t in range(4): A(f"buffer_store_dwordx4 v[{104+4*t}:{107+4*t}], v67, s[8:11], s37 offen offset:{B_HP + 64*t} sc1")
    A("s_mov_b64 exec, -1\nL_hpfast:")
    if dyn: A("buffer_load_dwordx2 v[120:121], v71, s[8:11], s78 offen sc1")
    A(f"""s_cmp_lt_u32 s62, 28
    s_cbranch_scc0 L_actw
    v_lshrrev_b32 v16, 3, v0
    v_lshlrev_b32 v16, 14, v16
    v_and_b32 v17, 7, v0
    v_lshl_add_u32 v16, v17, 4, v16
    s_lshl_b32 s31, s61, 12
    s_add_u32 s31, s31, s65""")
    if hpt: wait_flag(20, {'k': F_K}[hpt], 18)
    elif hs: A(f"s_sleep {hs}")
    l = lab("hp")
    A(f"s_lshl_b32 s7, s7, 21\n{l}:\ns_xor_b32 s31, s31, s7")
    for i in range(4):
        b, half = i & 1, i >> 1
        A(f"buffer_load_dwordx4 v[{24+4*i}:{27+4*i}], v16, s[8:11], s31 offen offset:{B_HP + b*256 + half*128} sc1")
    A("s_waitcnt vmcnt(0)")
    bad_tag(range(24, 40), 44, 5, 19)
    gloop_back(l, sleep=4)
    stamp(2)
    for i in range(4):
        r = 24 + 4 * i
        A(f"""v_permlane32_swap_b32 v{r}, v{r+2}
        v_permlane32_swap_b32 v{r+1}, v{r+3}
        v_add_f32 v{r}, v{r}, v{r+2}
        v_add_f32 v{r+1}, v{r+1}, v{r+3}""")
    for i in range(4):
        r = 24 + 4 * i
        A(f"v_permlane16_swap_b32 v{r}, v{r+1}\nv_add_f32 v{r}, v{r}, v{r+1}")
    for i in range(4):
        r = 24 + 4 * i
        A(f"v_add_f32 v{r}, v{r}, v{r} row_ror:8")
    A("""v_and_b32 v18, 8, v0
    v_cmp_eq_u32 vcc, 0, v18
    v_cndmask_b32 v40, v32, v24, vcc
    v_cndmask_b32 v41, v36, v28, vcc
    v_lshlrev_b32 v14, 16, v14
    s_mov_b32 s32, 0x3fb8aa3b
    s_mov_b32 s33, 0x3f317218""")
    for h in (40, 41):
        t = 44
        bf16r(h, h)
        A(f"v_add_f32 v{h}, v{h}, v14")
        bf16r(h, h)
        A(f"v_mul_f32 v{t}, s32, v{h}\nv_exp_f32 v{t}, -abs(v{t})")
        bf16r(t, t)
        A(f"""v_add_f32 v{t+1}, 1.0, v{t}
        v_log_f32 v{t+2}, v{t+1}
        v_add_f32 v{t+3}, -1.0, v{t+1}
        v_rcp_f32 v{t+3}, v{t+3}
        v_mul_f32 v{t+2}, s33, v{t+2}
        v_mul_f32 v{t+2}, v{t+2}, v{t}
        v_mul_f32 v{t+2}, v{t+2}, v{t+3}
        v_cmp_eq_f32 vcc, 1.0, v{t+1}
        v_cndmask_b32 v{t+2}, v{t+2}, v{t}, vcc""")
        bf16r(t+2, t+2)
        A(f"v_max_f32 v{t+1}, 0, v{h}\nv_add_f32 v{t+2}, v{t+2}, v{t+1}")
        bf16r(t+2, t+2)
        A(f"""v_mul_f32 v{t}, -2.0, v{t+2}
        v_mul_f32 v{t+1}, s32, v{t}
        v_exp_f32 v{t+1}, v{t+1}
        v_log_f32 v{t+3}, v{t+1}
        v_add_f32 v{t+4}, -1.0, v{t+1}
        v_mul_f32 v{t+3}, s33, v{t+3}
        v_rcp_f32 v{t+3}, v{t+3}
        v_mul_f32 v{t+5}, v{t+4}, v{t}
        v_mul_f32 v{t+5}, v{t+5}, v{t+3}
        v_cmp_eq_f32 vcc, 1.0, v{t+1}
        v_cndmask_b32 v{t+5}, v{t+5}, v{t}, vcc
        v_cmp_gt_f32 vcc, 0.5, v{t+1}
        v_cndmask_b32 v{t+5}, v{t+5}, v{t+4}, vcc
        v_add_f32 v{t+4}, 2.0, v{t+5}
        v_rcp_f32 v{t+4}, v{t+4}
        v_mul_f32 v{t+5}, v{t+5}, v{t+4}
        v_sub_f32 v{t+5}, 0, v{t+5}""")
        bf16r(t+5, t+5)
        A(f"v_mul_f32 v{h}, v{h}, v{t+5}\nv_cvt_pk_bf16_f32 v{h}, v{h}, v{h}")
    A(f"""L_actw:
    v_lshlrev_b32 v11, 1, v11
    v_add_u32 v11, {L_ACT}, v11
    ds_write_b16 v11, v40
    ds_write_b16 v11, v41 offset:128""")
    set_flag(20, F_ACT, 20)
    stamp(3)
    if dyn:
        l = lab("st")
        A(f"""s_waitcnt vmcnt(0)
        s_branch L_stchk
        {l}:
        buffer_load_dwordx2 v[120:121], v71, s[8:11], s78 offen sc1
        s_waitcnt vmcnt(0)
        L_stchk:
        v_cmp_ne_u32 vcc, s5, v121""")
        gloop_back(l, sleep=4)
        A("""v_readfirstlane_b32 s34, v120
        v_subrev_u32 v120, s34, v120
        v_lshl_add_u32 v120, v120, 3, v70
        v_max_i32 v120, v120, v120 row_ror:1
        v_max_i32 v120, v120, v120 row_ror:2
        v_max_i32 v120, v120, v120 row_ror:4
        v_and_b32 v120, 7, v120""")
        if forcer is not None: A(f"v_mov_b32 v120, {forcer}")
        set_flag(20, F_RED, 120)
    A(f"""v_lshrrev_b32 v16, 2, v0
    v_and_b32 v17, 3, v0
    v_lshlrev_b32 v21, 12, v16
    v_lshl_add_u32 v21, v17, 3, v21
    s_add_u32 s66, s65, 65536
    v_and_b32 v18, 15, v0
    v_lshlrev_b32 v18, 4, v18
    v_lshrrev_b32 v22, 4, v0
    v_lshl_add_u32 v22, v22, 2, v18
    v_add_u32 v22, {L_AL}, v22
    s_movk_i32 s53, 0xff00
    s_mov_b32 s52, -2""")
    if mlpre: wait_flag(20, F_QA, 18)
    elif mlt: wait_flag(20, {'v0': F_V0, 'v1': F_V1, 'v2': F_V2, 'v': F_V, 'k': F_K}[mlt], 18)
    l = lab("ml")
    if mlpipe: A("v_not_b32 v24, v156\nv_not_b32 v26, v156\ns_waitcnt vmcnt(0)")
    A(f"""{l}:
    buffer_load_dwordx2 v[24:25], v21, s[8:11], s65 offen offset:{B_ML} sc1
    buffer_load_dwordx2 v[26:27], v21, s[8:11], s66 offen offset:{B_ML} sc1""")
    if mlpipe and mlsl: A(f"s_sleep {mlsl}")
    A(f"""s_waitcnt vmcnt({2 * mlpipe})
    v_mov_b32 v32, v24
    v_mov_b32 v33, v25
    v_mov_b32 v34, v26
    v_mov_b32 v35, v27""")
    bad_tag(range(32, 36), 44, [(32, 34, "v156"), (33, 35, "v157")], 19)
    gloop_back(l)
    stamp(4)
    A("""v_and_b32 v32, s53, v32
    v_and_b32 v34, s53, v34
    v_max_f32 v28, v32, v32 row_ror:4
    v_max_f32 v29, v34, v34 row_ror:4
    v_max_f32 v28, v28, v28 row_ror:8
    v_max_f32 v29, v29, v29 row_ror:8""")
    allred2(28, 30, 29, 31, "v_max_f32")
    A("""v_sub_f32 v32, v32, v28
    v_sub_f32 v34, v34, v29
    v_exp_f32 v32, v32
    v_exp_f32 v34, v34
    v_mul_f32 v33, v32, v33
    v_mul_f32 v35, v34, v35
    v_add_f32 v28, v33, v33 row_ror:4
    v_add_f32 v29, v35, v35 row_ror:4
    v_add_f32 v28, v28, v28 row_ror:8
    v_add_f32 v29, v29, v29 row_ror:8""")
    allred2(28, 30, 29, 31, "v_add_f32")
    A("""v_rcp_f32 v28, v28
    v_rcp_f32 v29, v29
    v_mul_f32 v32, v32, v28
    v_mul_f32 v34, v34, v29
    v_min_u32 v32, s52, v32
    v_min_u32 v34, s52, v34
    ds_write_b32 v22, v32
    ds_write_b32 v22, v34 offset:256""")
    stamp(5)
    dump_stamps()
    A("s_waitcnt lgkmcnt(0)\ns_endpgm")

    A("L_compute:")
    if cprio: A(f"s_setprio {cprio}")
    A(f"""s_sub_u32 s30, s3, 2
    v_lshlrev_b32 v2, 4, v0
    s_lshl_b32 s31, s30, 10
    s_add_u32 s31, s31, {L_S}
    v_add_u32 v3, s31, v2
    v_mov_b32 v4, -1
    v_mov_b32 v5, -1
    v_mov_b32 v6, -1
    v_mov_b32 v7, -1
    ds_write_b128 v3, v[4:7]
    s_mov_b32 s100, 0
    s_mov_b32 s101, 0
    s_waitcnt lgkmcnt(0)
    s_load_dword s54, s[26:27], 0
    s_barrier""")
    ws_srd(32)
    A(f"""s_mov_b32 s36, 0xffff0000
    v_and_b32 v4, 15, v0
    v_lshrrev_b32 v5, 4, v0
    v_mov_b32 v6, {L_FLG}
    v_bfe_u32 v96, v0, 2, 2
    v_and_b32 v17, 1, v5
    v_lshl_add_u32 v96, v17, 2, v96
    v_bfe_u32 v18, v0, 1, 1
    s_lshl_b32 s37, s30, 1
    v_add_u32 v18, s37, v18
    v_and_b32 v19, 6, v96
    v_xor_b32 v18, v18, v19
    v_lshlrev_b32 v18, 4, v18
    v_and_b32 v19, 1, v0
    v_lshl_add_u32 v18, v19, 3, v18
    v_lshrrev_b32 v17, 5, v0
    v_lshl_add_u32 v17, v17, 4, v96
    v_lshl_add_u32 v7, v17, 7, v18
    v_add_u32 v7, {L_WQ}, v7
    ; xn frag addresses v106 (wq rows), v105 (w1 rows)
    v_mul_u32_u24 v18, {XSTR}, v19
    v_lshl_add_u32 v18, v5, 4, v18
    s_lshr_b32 s37, s29, 3
    s_lshl_b32 s37, s37, 8
    s_add_u32 s37, s37, {L_XN}
    v_add_u32 v106, s37, v18
    s_lshl_b32 s37, s30, 6
    v_lshlrev_b32 v18, 8, v4
    v_lshl_add_u32 v18, v5, 4, v18
    v_add_u32 v107, s37, v18
    s_lshl_b32 s38, s28, 5
    s_add_u32 s38, s38, s29
    s_lshl_b32 s68, s38, 9
    s_lshl_b32 s38, s38, 12
    s_add_u32 s68, s68, {W_FP}
    v_add_u32 v3, {L_XN}, v2
    v_add_u32 v16, {L_XR}, v2
    s_mov_b32 s48, 0x00030003
    s_mov_b32 s49, 0x00030003
    s_mov_b32 s52, -2
    s_movk_i32 s53, 0xff00""")
    stamp(1)
    wait_flag(6, F_X, 17)
    A(f"""ds_read_b128 v[8:11], v16
    ds_read_b128 v[12:15], v16 offset:1024
    s_add_u32 s54, s54, 1
    s_waitcnt lgkmcnt(0)""")
    stamp0()
    stamp(2)
    for b in range(2):
        for i in range(4):
            A(f"v_lshlrev_b32 v{16+8*b+2*i}, 16, v{8+4*b+i}\nv_and_b32 v{17+8*b+2*i}, s36, v{8+4*b+i}")
    def red2(a, b, t):
        A(f"""v_permlane32_swap_b32 v{a}, v{b}
        v_add_f32 v{a}, v{a}, v{b}
        v_mov_b32 v{t}, v{a}
        v_permlane16_swap_b32 v{t}, v{a}
        v_add_f32 v{a}, v{a}, v{t}
        v_add_f32 v{a}, v{a}, v{a} row_ror:8
        v_add_f32 v{a}, v{a}, v{a} row_ror:4
        v_add_f32 v{a}, v{a}, v{a} row_ror:2
        v_add_f32 v{a}, v{a}, v{a} row_ror:1""")
    for b in range(2):
        f = 16 + 8 * b
        A(f"""v_pk_add_f32 v[{32+4*b}:{33+4*b}], v[{f}:{f+1}], v[{f+2}:{f+3}]
        v_pk_add_f32 v[{34+4*b}:{35+4*b}], v[{f+4}:{f+5}], v[{f+6}:{f+7}]""")
    for b in range(2):
        A(f"v_pk_add_f32 v[{32+4*b}:{33+4*b}], v[{32+4*b}:{33+4*b}], v[{34+4*b}:{35+4*b}]")
    A("v_add_f32 v32, v32, v33\nv_add_f32 v36, v36, v37")
    red2(32, 36, 33)
    A("""v_mul_f32 v32, 0x3b000000, v32
    v_readlane_b32 s60, v32, 0
    v_readlane_b32 s62, v32, 32""")
    for b in range(2):
        f = 16 + 8 * b
        for i in range(4):
            A(f"v_pk_add_f32 v[{40+8*b+2*i}:{41+8*b+2*i}], v[{f+2*i}:{f+2*i+1}], s[{60+2*b}:{61+2*b}] op_sel_hi:[1,0] neg_lo:[0,1] neg_hi:[0,1]")
    for b in range(2):
        d = 40 + 8 * b
        A(f"v_pk_mul_f32 v[{34+2*b}:{35+2*b}], v[{d}:{d+1}], v[{d}:{d+1}]")
    for i in range(1, 4):
        for b in range(2):
            d = 40 + 8 * b + 2 * i
            A(f"v_pk_fma_f32 v[{34+2*b}:{35+2*b}], v[{d}:{d+1}], v[{d}:{d+1}], v[{34+2*b}:{35+2*b}]")
    A("v_add_f32 v34, v34, v35\nv_add_f32 v36, v36, v37")
    red2(34, 36, 33)
    A("v_mul_f32 v34, 0x3b000000, v34")
    bf16r(34, 34)
    A("v_add_f32 v34, 0x3727c5ac, v34")
    bf16r(34, 34)
    A("v_sqrt_f32 v34, v34")
    bf16r(32, 32)
    bf16r(34, 34)
    A("v_rcp_f32 v34, v34")
    A("""v_readlane_b32 s60, v32, 0
    v_readlane_b32 s62, v32, 32
    v_readlane_b32 s64, v34, 0
    v_readlane_b32 s66, v34, 32""")
    for b in range(2):
        f = 16 + 8 * b
        for i in range(4):
            A(f"v_pk_add_f32 v[{f+2*i}:{f+2*i+1}], v[{f+2*i}:{f+2*i+1}], s[{60+2*b}:{61+2*b}] op_sel_hi:[1,0] neg_lo:[0,1] neg_hi:[0,1]")
    for i in range(8):
        A(f"v_cvt_pk_bf16_f32 v{8+i}, v{16+2*i}, v{17+2*i}")
    for i in range(8):
        A(f"v_lshlrev_b32 v{16+2*i}, 16, v{8+i}\nv_and_b32 v{17+2*i}, s36, v{8+i}")
    for b in range(2):
        f = 16 + 8 * b
        for i in range(4):
            A(f"v_pk_mul_f32 v[{f+2*i}:{f+2*i+1}], v[{f+2*i}:{f+2*i+1}], s[{64+2*b}:{65+2*b}] op_sel_hi:[1,0]")
    for i in range(8):
        A(f"v_cvt_pk_bf16_f32 v{8+i}, v{16+2*i}, v{17+2*i}")
    A(f"""ds_write_b128 v3, v[8:11]
    ds_write_b128 v3, v[12:15] offset:{XSTR}""")
    set_flag(6, F_XN, 6)
    mktags(54, 0)
    A("s_waitcnt lgkmcnt(0)")
    for kk in range(4): A(f"ds_read_b128 v[{24+4*kk}:{27+4*kk}], v106 offset:{64*kk}")
    stamp(3)
    wait_flag(6, F_WQ, 16)
    stamp(4)
    def trw(base, nk, r0):
        for kk in range(nk):
            for u in range(2):
                A(f"ds_read_b64_tr_b16 v[{r0+4*kk+2*u}:{r0+4*kk+2*u+1}], v7 offset:{base - L_WQ + kk*4096 + u*1024}")
    def tag(regs):
        for r in regs: A(f"v_and_or_b32 v{r}, v{r}, s53, v{152 + r % 4}")
    trw(L_WQ, 4, 48)
    for kk in range(4):
        A(f"s_waitcnt lgkmcnt({6 - 2*kk})")
        A(f"v_mfma_f32_16x16x32_bf16 v[88:91], v[{48+4*kk}:{51+4*kk}], v[{24+4*kk}:{27+4*kk}], {'v[88:91]' if kk else 0}")
    tag(range(88, 92))
    A(f"""s_mov_b64 exec, s[48:49]
    buffer_store_dwordx4 v[88:91], v107, s[32:35], s38 offen offset:{B_QP}{pst}
    s_mov_b64 exec, -1""")
    stamp(5)
    A(f"""v_lshlrev_b32 v119, 15, v5
    v_lshl_add_u32 v119, v4, 4, v119
    s_lshl_b32 s39, s28, 17
    s_lshl_b32 s37, s30, 13
    s_add_u32 s39, s39, s37
    s_lshr_b32 s37, s29, 4
    s_lshl_b32 s37, s37, 8
    s_add_u32 s39, s39, s37
    s_add_u32 s40, s39, 4096
    v_lshlrev_b32 v118, 5, v5
    v_lshl_add_u32 v118, v4, 4, v118
    s_lshl_b32 s37, s30, 7
    v_add_u32 v118, s37, v118""")
    def qloads(r):
        A(f"""buffer_load_dwordx4 v[{r}:{r+3}], v119, s[32:35], s39 offen offset:{B_QP} sc1
        buffer_load_dwordx4 v[{r+4}:{r+7}], v119, s[32:35], s40 offen offset:{B_QP} sc1""")
    A(f"""; ---- remaining addresses
    v_mov_b32 v123, 0
    v_and_b32 v19, 1, v0
    v_bfe_u32 v18, v0, 1, 1
    s_lshl_b32 s37, s30, 2
    v_add_u32 v18, s37, v18
    v_lshlrev_b32 v17, 1, v96
    v_xor_b32 v18, v18, v17
    v_lshlrev_b32 v18, 4, v18
    v_lshl_add_u32 v18, v19, 3, v18
    v_lshrrev_b32 v17, 2, v0
    v_lshl_add_u32 v100, v17, 8, v18
    s_lshl_b32 s37, s30, 2
    v_add_u32 v101, s37, v6
    v_and_b32 v17, 7, v0
    v_lshlrev_b32 v17, 1, v17
    v_xor_b32 v17, v17, v5
    v_lshlrev_b32 v17, 4, v17
    v_lshl_add_u32 v17, v4, 8, v17
    s_lshl_b32 s37, s30, 13
    v_add_u32 v102, s37, v17
    v_xor_b32 v103, 64, v102
    v_xor_b32 v104, 128, v102
    v_xor_b32 v105, 192, v102
    v_mul_u32_u24 v116, {OSTR}, v19
    v_lshl_add_u32 v116, v5, 4, v116
    v_add_u32 v116, {L_O}, v116
    v_lshlrev_b32 v117, 7, v19
    v_lshl_add_u32 v117, v5, 4, v117
    v_add_u32 v117, {L_ACT}, v117
    v_lshrrev_b32 v17, 5, v0
    v_lshlrev_b32 v17, 7, v17
    v_lshl_add_u32 v17, v4, 3, v17
    v_and_b32 v18, 1, v5
    v_lshl_add_u32 v17, v18, 2, v17
    s_mul_i32 s37, s30, {QSTR}
    s_add_u32 s37, s37, {L_Q}
    v_add_u32 v120, s37, v17
    v_and_b32 v19, 3, v0
    v_mul_u32_u24 v121, {QSTR}, v19
    v_lshl_add_u32 v121, v5, 4, v121
    v_add_u32 v121, {L_Q}, v121
    v_lshlrev_b32 v20, 6, v5
    v_lshl_add_u32 v20, v19, 4, v20
    v_add_u32 v108, {L_P}, v20
    s_lshl_b32 s37, s30, 8
    v_add_u32 v110, s37, v108
    s_lshl_b32 s37, s30, 9
    v_add_u32 v109, s37, v20
    s_and_b32 s41, s30, 1
    s_lshl_b32 s37, s41, 8
    s_add_u32 s37, s37, {L_AL}
    v_add_u32 v114, s37, v20
    v_lshlrev_b32 v111, 5, v19
    v_add_u32 v111, {L_ML}, v111
    s_lshl_b32 s37, s30, 2
    v_add_u32 v112, s37, v111
    v_lshlrev_b32 v106, 3, v4
    v_lshlrev_b32 v16, 12, v5
    v_lshl_add_u32 v113, v4, 4, v16
    s_and_b32 s43, s29, 3
    s_lshl_b32 s37, s43, 9
    s_lshr_b32 s42, s30, 1
    s_lshl_b32 s44, s42, 8
    s_add_u32 s37, s37, s44
    v_add_u32 v113, s37, v113
    s_lshl_b32 s44, s28, 17
    s_lshl_b32 s37, s41, 16
    s_add_u32 s44, s44, s37
    s_add_u32 s45, s44, 16384
    s_add_u32 s46, s44, 32768
    s_add_u32 s47, s44, 49152
    v_lshlrev_b32 v115, 4, v4
    v_lshl_add_u32 v115, v18, 2, v115
    s_mul_i32 s37, s41, {OSTR}
    s_lshl_b32 s42, s42, 3
    s_add_u32 s37, s37, s42
    s_add_u32 s37, s37, {L_O}
    v_add_u32 v115, s37, v115
    s_mov_b32 s50, 0x000f000f
    s_mov_b32 s51, 0x000f000f
    s_mov_b32 s58, 0x3db504f3
    s_mov_b32 s59, 0x3fb8aa3b
    s_lshl_b32 s70, s29, 9
    s_lshl_b32 s37, s30, 7
    s_add_u32 s70, s70, s37
    s_add_u32 s70, s70, {W_FP}
    v_lshrrev_b32 v17, 3, v0
    v_lshlrev_b32 v17, 14, v17
    v_and_b32 v16, 7, v0
    v_lshl_add_u32 v99, v16, 4, v17
    v_and_b32 v16, 1, v0
    v_lshlrev_b32 v16, 10, v16
    v_bfe_u32 v17, v0, 1, 2
    v_lshl_add_u32 v16, v17, 3, v16
    v_lshrrev_b32 v17, 5, v0
    v_lshl_add_u32 v16, v17, 2, v16
    s_lshr_b32 s37, s29, 2
    s_lshl_b32 s37, s37, 7
    s_lshl_b32 s41, s30, 5
    s_add_u32 s37, s37, s41
    v_add_u32 v98, s37, v16
    v_add_u32 v17, {L_XR}, v98
    ds_read_b32 v97, v17""")
    for i in range(4):
        if vsplit:
            A(f"""s_add_u32 s37, s43, {i}
            s_and_b32 s37, s37, 3
            s_lshl_b32 s41, s37, 13
            v_add_u32 v{80+2*i}, s41, v100
            s_lshl_b32 s41, s37, 8
            v_add_u32 v{76+i}, s41, v108""")
        else:
            A(f"v_add_u32 v{80+2*i}, {i*8192}, v100\nv_add_u32 v{76+i}, {i*256}, v108")
        A(f"v_xor_b32 v{81+2*i}, 32, v{80+2*i}")
    if touchout: A("global_load_dword v124, v98, s[22:23]")
    if warmfp: A(f"s_mov_b64 exec, s[48:49]\nbuffer_load_dword v124, v118, s[32:35], s68 offen{wfl}\ns_mov_b64 exec, -1")
    A("s_mov_b32 s56, 0")
    if sa: A(f"s_sleep {sa}")
    stamp(6)
    if lst:
        A(f"""s_or_b32 s37, s29, s30
        s_cbranch_scc1 L_nolst
        s_lshl_b32 s37, s28, 2
        s_add_u32 s37, s37, 0x8000100
        v_mov_b32 v20, s37
        v_mov_b32 v22, s94
        s_mov_b64 exec, 1
        global_store_dword v20, v22, s[26:27]
        s_mov_b64 exec, -1
        L_nolst:""")
    def republish():
        A(f"""s_xor_b32 s37, s38, {W_B}
        s_mov_b64 exec, s[48:49]
        buffer_store_dwordx4 v[88:91], v107, s[32:35], s37 offen offset:{B_QP} sc1
        s_mov_b64 exec, -1
        s_mov_b32 s56, 1""")
    qs = [128, 136, 144][:qsets]
    for k, r in enumerate(qs):
        qloads(r)
        if k + 1 < len(qs) and sb: A(f"s_sleep {sb}")
    def kread():
        wait_flag(6, F_K, 41)
        for t in range(2):
            for kk in range(4):
                A(f"ds_read_b128 v[{44+16*t+4*kk}:{47+16*t+4*kk}], v{102+kk} offset:{L_K + t*4096}")
    if kpre: kread()
    A("L_qp:")
    for k, r in enumerate(qs):
        A(f"s_waitcnt vmcnt({2*(len(qs)-1)})")
        bad_tag(range(r, r + 8), 40, 55, 123)
        A(f"s_cbranch_vccz L_qok{k}")
        qloads(r)
    A(f"""ds_read_b32 v40, v6 offset:{F_MODE}
    s_waitcnt lgkmcnt(0)
    v_readfirstlane_b32 s57, v40
    s_xor_b32 s57, s57, 1
    s_or_b32 s57, s57, s56
    s_cbranch_scc1 L_norep""")
    republish()
    A(f"""s_waitcnt vmcnt(0)""")
    for r in qs: qloads(r)
    A(f"""L_norep:
    s_lshl_b32 s37, s56, 21
    s_xor_b32 s39, s39, s37
    s_xor_b32 s40, s40, s37
    s_add_u32 s101, s101, 1
    s_cmp_lt_u32 s101, {SPIN}
    s_cbranch_scc1 L_qp""")
    for k, r in reversed(list(enumerate(qs))):
        A(f"L_qok{k}:")
        for i in range(4): A(f"v_permlane32_swap_b32 v{r+i}, v{r+4+i}")
        A(f"v_pk_add_f32 v[40:41], v[{r}:{r+1}], v[{r+4}:{r+5}]\nv_pk_add_f32 v[42:43], v[{r+2}:{r+3}], v[{r+6}:{r+7}]")
        if k: A("s_branch L_qj")
    A("L_qj:")
    stamp(7)
    A("""v_permlane16_swap_b32 v40, v42
    v_permlane16_swap_b32 v41, v43
    v_pk_add_f32 v[40:41], v[40:41], v[42:43]
    v_cvt_pk_bf16_f32 v40, v40, v41
    v_min_u32 v40, s52, v40
    ds_write_b32 v120, v40""")
    if not kpre: kread()
    l = lab("ql")
    A(f"{l}:")
    for kk in range(4): A(f"ds_read_b128 v[{16+4*kk}:{19+4*kk}], v121 offset:{64*kk}")
    A("s_waitcnt lgkmcnt(0)")
    any_sent(range(16, 32), 40)
    loop_back(l)
    stamp(8)
    for kk in range(4):
        for t in range(2):
            A(f"v_mfma_f32_16x16x32_bf16 v[{8+4*t}:{11+4*t}], v[{44+16*t+4*kk}:{47+16*t+4*kk}], v[{16+4*kk}:{19+4*kk}], {f'v[{8+4*t}:{11+4*t}]' if kk else 0}")
    A(f"ds_read_b32 v42, v6 offset:{F_MODE}")
    for rnd in range(2):
        for i in range(4): A(f"v_cvt_pk_bf16_f32 v{24+i}, v{8+2*i}, v{9+2*i}")
        for i in range(4): A(f"v_lshlrev_b32 v{8+2*i}, 16, v{24+i}\nv_and_b32 v{9+2*i}, s36, v{24+i}")
        if rnd == 0:
            for i in range(4): A(f"v_pk_mul_f32 v[{8+2*i}:{9+2*i}], v[{8+2*i}:{9+2*i}], s[58:59] op_sel_hi:[1,0]")
    A("""v_max3_f32 v24, v8, v9, v10
    v_max3_f32 v25, v11, v12, v13
    v_max3_f32 v24, v24, v14, v15
    v_max_f32 v24, v24, v25""")
    allred(24, 25, "v_max_f32")
    A("""v_min_u32 v25, s52, v24
    s_mov_b64 exec, 15
    ds_write_b32 v112, v25
    s_mov_b64 exec, -1""")
    l = lab("ml")
    A(f"""{l}:
    ds_read_b128 v[28:31], v111
    s_waitcnt lgkmcnt(0)""")
    any_sent([28, 29, 30, 31], 20)
    loop_back(l)
    A("""v_max3_f32 v26, v28, v29, v30
    v_max_f32 v26, v26, v31
    v_mul_f32 v26, s59, v26
    v_and_b32 v26, s53, v26""")
    for i in range(8): A(f"v_fma_f32 v{8+i}, v{8+i}, s59, -v26")
    for i in range(8): A(f"v_exp_f32 v{8+i}, v{8+i}")
    for i in range(4): A(f"v_cvt_pk_bf16_f32 v{16+i}, v{8+2*i}, v{9+2*i}")
    for i in range(4): A(f"v_min_u32 v{16+i}, s52, v{16+i}")
    A(f"""s_mov_b64 exec, s[50:51]
    ds_write_b128 v110, v[16:19]
    s_mov_b64 exec, -1
    v_pk_add_f32 v[28:29], v[8:9], v[10:11]
    v_pk_add_f32 v[30:31], v[12:13], v[14:15]
    v_pk_add_f32 v[28:29], v[28:29], v[30:31]
    v_add_f32 v25, v28, v29""")
    allred(25, 27, "v_add_f32")
    A(f"""v_min_u32 v25, s52, v25
    s_mov_b64 exec, 15
    ds_write_b32 v112, v25 offset:16
    s_mov_b64 exec, -1
    v_readfirstlane_b32 s57, v42
    s_cmp_eq_u32 s57, 0
    s_cbranch_scc1 L_modeok""")
    wait_flag(6, F_MODE, 42)
    A("""v_readfirstlane_b32 s57, v42
    s_xor_b32 s37, s57, 1
    s_or_b32 s37, s37, s56
    s_cbranch_scc1 L_modeok""")
    republish()
    A(f"""L_modeok:
    s_cmp_eq_u32 s30, 0
    s_cbranch_scc0 L_noml""")
    l = lab("ll")
    A(f"""{l}:
    ds_read_b128 v[28:31], v111 offset:16
    s_waitcnt lgkmcnt(0)""")
    any_sent([28, 29, 30, 31], 20)
    loop_back(l)
    A(f"""v_pk_add_f32 v[28:29], v[28:29], v[30:31]
    v_or_b32 v26, v26, v156
    v_add_f32 v27, v28, v29
    v_and_or_b32 v27, v27, s53, v157
    s_mov_b64 exec, {0xffff if fullml else 15}
    s_cmp_eq_u32 s57, 0
    s_cbranch_scc1 L_mlf
    buffer_store_dwordx2 v[26:27], v106, s[32:35], s38 offen offset:{B_ML} sc1
    s_branch L_mle
    L_mlf:
    buffer_store_dwordx2 v[26:27], v106, s[32:35], s38 offen offset:{B_ML}
    L_mle:
    s_mov_b64 exec, -1
    L_noml:""")
    l = lab("pl")
    A(f"{l}:")
    for i in range(4): A(f"ds_read_b128 v[{44+4*i}:{47+4*i}], v{76+i}")
    A("s_waitcnt lgkmcnt(0)")
    any_sent(range(44, 60), 20)
    loop_back(l)
    stamp(9)
    def ffn2():
        wait_flag(6, F_W2, 22)
        trw(L_W2, 2, 60)
        wait_flag(6, F_ACT, 22)
        A("ds_read_b128 v[68:71], v117\nds_read_b128 v[72:75], v117 offset:64\ns_waitcnt lgkmcnt(0)")
        for kk in range(2):
            A(f"v_mfma_f32_16x16x32_bf16 v[8:11], v[{60+4*kk}:{63+4*kk}], v[{68+4*kk}:{71+4*kk}], {'v[8:11]' if kk else 0}")
    def wopre():
        wait_flag(6, F_WO, 22)
        if op2: op_loads(44)
        if not opearly: op_loads()
        trw(L_WO, 4, 60)
    iv = order.index('v')
    assert order.index('w2') < order.index('wo') or order.index('wo') < iv
    if order.index('w2') < iv: ffn2()
    def pvstep(i, waitcnt):
        for t in range(2):
            for u in range(2):
                r = 24 + 8 * (i & 1) + 4 * t + 2 * u
                A(f"ds_read_b64_tr_b16 v[{r}:{r+1}], v{80+2*i+t} offset:{L_V + u*4096}")
    def pvmfma(i):
        for t in range(2):
            r = 24 + 8 * (i & 1) + 4 * t
            A(f"v_mfma_f32_16x16x32_bf16 v[{12+4*t}:{15+4*t}], v[{r}:{r+3}], v[{44+4*i}:{47+4*i}], {f'v[{12+4*t}:{15+4*t}]' if i else 0}")
    if vsplit:
        A(f"""ds_read_b32 v20, v6 offset:{F_V}
        s_waitcnt lgkmcnt(0)
        v_cmp_eq_u32 vcc, -1, v20
        s_cbranch_vccz L_pvall""")
        for i, f in enumerate((F_V0, F_V1, F_V2, F_V)):
            wait_flag(6, f, 20)
            if i == 3: stamp(10)
            pvstep(i, 0)
            A("s_waitcnt lgkmcnt(0)")
            pvmfma(i)
        A("s_branch L_pvdone\nL_pvall:")
    else:
        wait_flag(6, F_V, 20)
    if True:
        stamp(10)
        pvstep(0, 0); pvstep(1, 0)
        A("s_waitcnt lgkmcnt(4)"); pvmfma(0); pvstep(2, 0)
        A("s_waitcnt lgkmcnt(4)"); pvmfma(1); pvstep(3, 0)
        A("s_waitcnt lgkmcnt(4)"); pvmfma(2)
        A("s_waitcnt lgkmcnt(0)"); pvmfma(3)
        A("L_pvdone:\ns_nop 7")
    tag(range(12, 20))
    A(f"""s_mov_b64 exec, s[50:51]
    s_cmp_eq_u32 s57, 0
    s_cbranch_scc0 L_opslow
    buffer_store_dwordx4 v[12:15], v109, s[32:35], s38 offen offset:{B_OP}{pst}
    buffer_store_dwordx4 v[16:19], v109, s[32:35], s38 offen offset:{B_OP + 256}{pst}
    L_opdone:""")
    if hold: A(f"ds_write_b32 v101, v6 offset:{F_OPD}")
    A("s_mov_b64 exec, -1")
    stamp(11)
    def op_loads(r=24):
        for i in range(4): A(f"buffer_load_dwordx4 v[{r+4*i}:{r+3+4*i}], v113, s[32:35], s{44+i} offen offset:{B_OP} sc1")
    if opearly and not hold and not pre: op_loads()
    if order.index('w2') > iv: ffn2()
    if hold or pre:
        wait_flag(6, F_PRE, 22)
        if presl: A(f"s_sleep {presl}")
        op_loads()
    if dyn:
        wait_flag(6, F_RED, 22)
        A("""v_readfirstlane_b32 s76, v22
        s_xor_b32 s76, s76, s28
        s_or_b32 s77, s76, s57
        s_cselect_b32 s77, 2, 1
        s_and_b32 s37, s29, 3
        s_or_b32 s76, s76, s37
        s_cselect_b32 s76, s77, 0""")
    if not olate: wopre()
    else:
        assert not op2 and not hold and not pre
        if opsl: A(f"s_sleep {opsl}")
        if not opearly: op_loads()
    stamp(12)
    def alpha_wait(tagl):
        A("s_waitcnt lgkmcnt(0)")
        any_sent(range(40, 44), 22)
        A(f"s_cbranch_vccz L_alok{tagl}")
        l = lab("al")
        A(f"""{l}:
        ds_read_b128 v[40:43], v114
        s_waitcnt lgkmcnt(0)""")
        any_sent(range(40, 44), 22)
        loop_back(l)
        A(f"L_alok{tagl}:")
    def wsum(r):
        A(f"""v_pk_mul_f32 v[12:13], v[{r}:{r+1}], v[40:41] op_sel_hi:[1,0]
        v_pk_mul_f32 v[14:15], v[{r+2}:{r+3}], v[40:41] op_sel_hi:[1,0]
        v_pk_fma_f32 v[12:13], v[{r+4}:{r+5}], v[40:41], v[12:13] op_sel:[0,1,0] op_sel_hi:[1,1,1]
        v_pk_fma_f32 v[14:15], v[{r+6}:{r+7}], v[40:41], v[14:15] op_sel:[0,1,0] op_sel_hi:[1,1,1]
        v_pk_fma_f32 v[12:13], v[{r+8}:{r+9}], v[42:43], v[12:13] op_sel_hi:[1,0,1]
        v_pk_fma_f32 v[14:15], v[{r+10}:{r+11}], v[42:43], v[14:15] op_sel_hi:[1,0,1]
        v_pk_fma_f32 v[12:13], v[{r+12}:{r+13}], v[42:43], v[12:13] op_sel:[0,1,0] op_sel_hi:[1,1,1]
        v_pk_fma_f32 v[14:15], v[{r+14}:{r+15}], v[42:43], v[14:15] op_sel:[0,1,0] op_sel_hi:[1,1,1]""")
    if op2:
        A("L_opA:\nds_read_b128 v[40:43], v114\ns_waitcnt vmcnt(4)")
        bad_tag(range(24, 40), 88, 55, 123)
        A("s_cbranch_vccz L_opAok")
        op_loads(24)
        A("s_waitcnt vmcnt(4)")
        bad_tag(range(44, 60), 88, 55, 123)
        A("s_cbranch_vccz L_opBok")
        op_loads(44)
        A(f"""s_add_u32 s101, s101, 1
        s_cmp_lt_u32 s101, {SPIN}
        s_cbranch_scc1 L_opA
        L_opBok:""")
        stamp(13)
        alpha_wait("B"); wsum(44)
        A("s_branch L_opJ\nL_opAok:")
        stamp(13)
        alpha_wait("A"); wsum(24)
        A("L_opJ:")
    else:
        l = lab("og")
        A(f"s_branch L_ochk\n{l}:")
        op_loads()
        A("L_ochk:\nds_read_b128 v[40:43], v114\ns_waitcnt vmcnt(0)")
        bad_tag(range(24, 40), 88, 55, 123)
        if opmask:
            A(f"""s_cbranch_vccz L_opok
            s_mov_b64 exec, vcc
            L_opr:""")
            op_loads()
            A("s_waitcnt vmcnt(0)")
            bad_tag(range(24, 40), 88, 55, 123)
            A(f"""s_cbranch_vccz L_opdn
            s_mov_b64 exec, vcc
            s_add_u32 s101, s101, 1
            s_cmp_lt_u32 s101, {SPIN}
            s_cbranch_scc1 L_opr
            L_opdn:
            s_mov_b64 exec, -1
            ds_read_b128 v[40:43], v114
            L_opok:""")
        else:
            gloop_back(l)
        stamp(13)
        alpha_wait("A"); wsum(24)
    stamp(17)
    A("""v_permlane16_swap_b32 v12, v14
    v_permlane16_swap_b32 v13, v15
    v_pk_add_f32 v[12:13], v[12:13], v[14:15]
    v_mov_b32 v14, v12
    v_mov_b32 v15, v13
    v_permlane32_swap_b32 v14, v12
    v_permlane32_swap_b32 v15, v13
    v_pk_add_f32 v[12:13], v[12:13], v[14:15]
    v_cvt_pk_bf16_f32 v12, v12, v13
    v_min_u32 v12, s52, v12
    ds_write_b32 v115, v12""")
    l = lab("ol")
    A(f"{l}:")
    for kk in range(4): A(f"ds_read_b128 v[{76+4*kk}:{79+4*kk}], v116 offset:{64*kk}")
    A("s_waitcnt lgkmcnt(0)")
    any_sent(range(76, 92), 22)
    loop_back(l)
    if olate:
        stamp(18)
        wait_flag(6, F_WO, 22)
        trw(L_WO, 4, 60)
    for kk in range(4):
        if olate: A(f"s_waitcnt lgkmcnt({6 - 2*kk})")
        A(f"v_mfma_f32_16x16x32_bf16 v[8:11], v[{60+4*kk}:{63+4*kk}], v[{76+4*kk}:{79+4*kk}], v[8:11]")
    A("s_cmp_lt_u32 s76, 2" if dyn else "s_lshl_b32 s37, s28, 2\ns_cmp_eq_u32 s29, s37")
    tag(range(8, 12))
    A(f"""s_mov_b64 exec, s[48:49]
    s_cbranch_scc1 L_final
    buffer_store_dwordx4 v[8:11], v118, s[32:35], s68 offen sc1""")
    if stamps:
        A("s_mov_b64 exec, -1")
        stamp(14)
        A("s_branch L_cend")
    else: A("s_endpgm")
    A(f"""L_opslow:
    buffer_store_dwordx4 v[12:15], v109, s[32:35], s38 offen offset:{B_OP} sc1
    buffer_store_dwordx4 v[16:19], v109, s[32:35], s38 offen offset:{B_OP + 256} sc1
    s_branch L_opdone""")
    A(f"""L_final:
    buffer_store_dwordx4 v[8:11], v118, s[32:35], s68 offen
    s_mov_b64 exec, -1""")
    stamp(14)
    if dyn: A(f"s_cmp_eq_u32 s76, 0\ns_cbranch_scc0 {'L_cend' if stamps else 'L_end'}")
    if fdelay: A(f"s_sleep {fdelay}")
    def fp_loads(r):
        for i in range(4):
            A(f"buffer_load_dwordx4 v[{r+4*i}:{r+3+4*i}], v99, s[32:35], s70 offen offset:{512*i} sc1")
    sets = [24, 44, 60][:fpsets]
    for r in sets: fp_loads(r)
    A("L_fp:")
    for k, r in enumerate(sets):
        A(f"s_waitcnt vmcnt({4*(len(sets)-1)})")
        bad_tag(range(r, r + 16), 76, 55, 123)
        A(f"s_cbranch_vccz L_fpok{k}")
        if fpmask and fpsets == 1: A("s_mov_b64 exec, vcc")
        if fsl: A(f"s_sleep {fsl}")
        fp_loads(r)
    A(f"""s_add_u32 s101, s101, 1
    s_cmp_lt_u32 s101, {SPIN}
    s_cbranch_scc1 L_fp""")
    for k, r in reversed(list(enumerate(sets))):
        A(f"L_fpok{k}:")
        if fpmask and fpsets == 1: A("s_mov_b64 exec, -1")
        stamp(16)
        A(f"""v_pk_add_f32 v[12:13], v[{r}:{r+1}], v[{r+4}:{r+5}]
        v_pk_add_f32 v[14:15], v[{r+2}:{r+3}], v[{r+6}:{r+7}]
        v_pk_add_f32 v[16:17], v[{r+8}:{r+9}], v[{r+12}:{r+13}]
        v_pk_add_f32 v[18:19], v[{r+10}:{r+11}], v[{r+14}:{r+15}]""")
        if k: A("s_branch L_fpj")
    A(f"""L_fpj:
    v_pk_add_f32 v[12:13], v[12:13], v[16:17]
    v_pk_add_f32 v[14:15], v[14:15], v[18:19]
    v_permlane32_swap_b32 v12, v14
    v_permlane32_swap_b32 v13, v15
    v_pk_add_f32 v[12:13], v[12:13], v[14:15]
    v_mov_b32 v14, v12
    v_mov_b32 v15, v13
    v_permlane16_swap_b32 v14, v12
    v_permlane16_swap_b32 v15, v13
    v_pk_add_f32 v[12:13], v[12:13], v[14:15]
    v_lshlrev_b32 v14, 16, v97
    v_and_b32 v15, s36, v97
    v_add_f32 v12, v12, v12 row_ror:8
    v_add_f32 v13, v13, v13 row_ror:8
    v_pk_add_f32 v[12:13], v[12:13], v[14:15]
    v_cvt_pk_bf16_f32 v12, v12, v13
    s_mov_b32 s40, 0xff
    s_mov_b32 s41, 0xff
    s_mov_b64 exec, s[40:41]
    global_store_dword v98, v12, s[22:23]{outst}
    s_or_b32 s37, {'s29' if dyn else 's2'}, s30
    s_cbranch_scc1 L_cend
    v_mov_b32 v20, s54
    s_mov_b64 exec, 1
    global_store_dword v123, v20, s[26:27]{epsc}""")
    A("L_cend:")
    if stamps: A("s_mov_b64 exec, -1")
    stamp(15)
    if lst:
        A(f"""s_memrealtime s[98:99]
        s_and_b32 s37, s29, -4
        s_add_u32 s37, s37, s30
        s_lshl_b32 s37, s37, 3
        s_add_u32 s37, s37, 0x8000000
        v_mov_b32 v20, s37
        s_waitcnt lgkmcnt(0)
        v_mov_b32 v22, s94
        v_mov_b32 v23, s98
        s_mov_b64 exec, 1
        global_store_dwordx2 v20, v[22:23], s[26:27]""")
    if lamp:
        A(f"""s_memrealtime s[98:99]
        s_waitcnt lgkmcnt(0)
        s_sub_u32 s37, s98, s94
        s_mul_i32 s37, s37, 10
        s_add_u32 s37, s37, s98
        L_ampl:
        s_memrealtime s[40:41]
        s_waitcnt lgkmcnt(0)
        s_sub_u32 s40, s40, s37
        s_cmp_lt_i32 s40, 0
        s_cbranch_scc1 L_ampl""")
    if amp is not None:
        A(f"""s_cmp_eq_u32 s30, 0
        s_cbranch_scc0 L_end
        s_cmp_eq_u32 s2, {ampwg}
        s_cbranch_scc0 L_end
        v_readlane_b32 s37, v{VST}, {amp}
        s_nop 4
        s_sub_u32 s37, s37, s94
        s_mul_i32 s37, s37, 10
        s_add_u32 s37, s37, s98
        L_ampl:
        s_memrealtime s[40:41]
        s_waitcnt lgkmcnt(0)
        s_sub_u32 s40, s40, s37
        s_cmp_lt_i32 s40, 0
        s_cbranch_scc1 L_ampl""")
    dump_stamps()
    A("L_end:\ns_endpgm")
    A(f""".section .rodata,"a"
    .p2align 6
    .amdhsa_kernel {NAME}
    .amdhsa_next_free_vgpr 160
    .amdhsa_next_free_sgpr 102
    .amdhsa_accum_offset 160
    .amdhsa_group_segment_fixed_size 0
    .amdhsa_kernarg_size 96
    .amdhsa_user_sgpr_count 2
    .amdhsa_user_sgpr_kernarg_segment_ptr 1
    .amdhsa_system_sgpr_workgroup_id_x 1
    .amdhsa_float_denorm_mode_32 3
    .end_amdhsa_kernel""")
    return A.finish()

if __name__ == "__main__":
    out = sys.argv[1] if len(sys.argv) > 1 else "k.s"
    kw = {}
    for a in sys.argv[2:]:
        if '=' in a:
            k, v = a.split('=', 1); kw[k] = eval(v)
        else: kw[a] = True
    open(out, "w").write(gen(**kw))
```

```python
import sys
from asmlib import Asm

NAME = "parallel_sum__sliding_block_cached__dense_activation_mish__decode_kernel"

L_K, L_V, L_WQ, L_WO, L_W1, L_W2 = 0x0, 0x8000, 0x10000, 0x14000, 0x18000, 0x1A000
L_S = 0x1C000
L_Q, L_P, L_O, L_ML, L_FLG, L_AL = L_S, L_S + 0x500, L_S + 0x900, L_S + 0xB40, L_S + 0xC00, L_S + 0xD00
L_XN, L_ACT, L_XR = 0x1D000, 0x1D900, 0x1DA00
LDS_BYTES = 0x1E200
QSTR, XSTR, OSTR = 272, 1040, 272
F_WQ, F_W1, F_K, F_V, F_WO, F_W2, F_QA, F_QB, F_ACT, F_X, F_MODE, F_V0, F_V1, F_V2, F_XN, F_PRE = [4 * i for i in range(16)]
F_OPD = 64
W_BLK = 0x10000
B_QP, B_HP, B_OP, B_ML, B_ID = 0, 512, 1024, 3072, 3200
W_FP = 0x100000
W_ST = 0x120000
F_RED = F_QB
W_B = 0x200000
SPIN = 1 << 18
IDTRY = 48

def gen(depth=22, stamps=False, safe=False, amp=None, ampwg=0, order=('wq', 'w1', 'k', 'v', 'w2', 'wo'),
        qa=34, qb=44, hpt=None, pref=True, header="", warmfp=True, fdelay=0, loaderonly=False, vsplit=True,
        forcemode=None, mlt='k', nobeacon=False, noB=False, fullml=True, fullid=True, prof=False, dsched=None, kph='A', wph='A', ntw=' nt', ntkv=' nt', sa=4, sb=12, touchout=False, fpsets=1, op2=False, epsc='', b1early=True, idt='x', qsets=3, hs=12, opmask=False, fpmask=False, opearly=False, hold=0, presl=0, early=False, free=(0, 8, 16, 24), mlpipe=0, mlsl=3, prew=0, pre=0, olate=False, opsl=0, xdirty=0, fsl=0, pst='', outst='', mlpre=0, touch=0x1ffff00, tfl='', tlate=True, wfl='', lamp=False, lst=False, dyn=True, forcer=None, bias0=45, xmask=None, cprio=2, kpre=True, deep=None, t0=95, slope=3.35, margin=25, chk=(18, 26, 34, 42, 50, 58, 66, 74, 82)):
    A = Asm()
    uid = [0]
    def lab(p):
        uid[0] += 1
        return f"L_{p}{uid[0]}"
    VST = 127
    def stamp(k):
        if stamps:
            A(f"s_memrealtime s[98:99]\ns_waitcnt lgkmcnt(0)\nv_writelane_b32 v{VST}, s98, {k}")
    def stamp0():
        if stamps: A(f"v_writelane_b32 v{VST}, s94, 0")
    def dump_stamps():
        if stamps and amp is None:
            A(f"""s_lshl_b32 s96, s2, 3
            s_add_u32 s96, s96, s3
            s_lshl_b32 s96, s96, 7
            s_add_u32 s96, s96, 0x8000000
            s_add_u32 s96, s26, s96
            s_addc_u32 s97, s27, 0
            s_mov_b32 exec_lo, -1
            s_mov_b32 exec_hi, 0
            v_mbcnt_lo_u32_b32 v126, -1, 0
            v_lshlrev_b32 v126, 2, v126
            global_store_dword v126, v{VST}, s[96:97]""")
    def loop_back(l):
        if safe:
            o = lab("out")
            A(f"""s_add_u32 s100, s100, 1
            s_bitcmp1_b32 s100, 21
            s_cbranch_scc1 {o}
            s_cbranch_vccnz {l}
            {o}:""")
        else:
            A(f"s_cbranch_vccnz {l}")
    def gloop_back(l, sleep=0):
        o = lab("ok")
        A(f"s_cbranch_vccz {o}")
        if sleep: A(f"s_sleep {sleep}")
        A(f"""s_add_u32 s101, s101, 1
        s_cmp_lt_u32 s101, {SPIN}
        s_cbranch_scc1 {l}
        {o}:""")
    def wait_flag(vaddr, off, vt):
        l = lab("wf")
        A(f"""{l}:
        ds_read_b32 v{vt}, v{vaddr} offset:{off}
        s_waitcnt lgkmcnt(0)
        v_cmp_eq_u32 vcc, -1, v{vt}""")
        loop_back(l)
    def set_flag(vaddr, off, vdata):
        A(f"""s_mov_b64 exec, 1
        ds_write_b32 v{vaddr}, v{vdata} offset:{off}
        s_mov_b64 exec, -1""")
    def any_sent(regs, vt):
        regs = list(regs)
        A(f"v_max3_u32 v{vt}, v{regs[0]}, v{regs[1]}, v{regs[2] if len(regs) > 2 else regs[1]}")
        rest = regs[3:]
        while rest:
            a = rest[0]; b = rest[1] if len(rest) > 1 else rest[0]
            A(f"v_max3_u32 v{vt}, v{vt}, v{a}, v{b}")
            rest = rest[2:]
        A(f"v_cmp_eq_u32 vcc, -1, v{vt}")
    def bad_tag(regs, t0, sT, vzero):
        regs = list(regs); n = len(regs) // 2
        for i in range(n):
            if isinstance(sT, list):
                a, b, t = sT[i]
                A(f"v_bitop3_b32 v{t0+i}, v{a}, v{b}, {t} bitop3:0x7e")
            else:
                g, r = i // 4, i % 4
                A(f"v_bitop3_b32 v{t0+i}, v{regs[8*g+r]}, v{regs[8*g+4+r]}, s{72+r} bitop3:0x7e")
        cur = [t0 + i for i in range(n)]
        while len(cur) > 1:
            if len(cur) >= 3:
                A(f"v_or3_b32 v{cur[0]}, v{cur[0]}, v{cur[1]}, v{cur[2]}"); cur = cur[3:] + [cur[0]]
            else:
                A(f"v_or_b32 v{cur[0]}, v{cur[0]}, v{cur[1]}"); cur = [cur[0]]
        A(f"v_cmp_ne_u32_sdwa vcc, v{cur[0]}, v{vzero} src0_sel:BYTE_0 src1_sel:DWORD")
    def mktags(se, lanebit):
        A(f"""s_mov_b32 s72, s{se}
        s_lshr_b32 s73, s{se}, 8
        s_lshr_b32 s74, s{se}, 16
        s_lshr_b32 s75, s{se}, 24
        v_mov_b32 v156, 0xff
        v_and_b32 v152, s72, v156
        v_and_b32 v153, s73, v156
        v_and_b32 v154, s74, v156
        v_and_b32 v155, s75, v156
        v_and_b32 v157, 1, v0
        v_cmp_eq_u32 vcc, 0, v157
        v_cndmask_b32 v156, v154, v152, vcc
        v_cndmask_b32 v157, v155, v153, vcc""")
    def rgmap(r, t):
        if tuple(free) == (28, 29, 30, 31): return
        mask = 0xffffffff
        for f in free: mask &= ~(1 << f)
        A(f"""s_bfm_b32 s{t}, s{r}, 0
        s_and_b32 s{t}, s{t}, {mask}
        s_bcnt1_i32_b32 s{t}, s{t}
        s_bitcmp1_b32 {mask}, s{r}
        s_cselect_b32 s{r}, s{t}, 28""")
    def bf16r(d, s):
        A(f"v_cvt_pk_bf16_f32 v{d}, v{s}, v{s}\nv_lshlrev_b32 v{d}, 16, v{d}")
    def ws_srd(d):
        A(f"""s_add_u32 s{d}, s26, {W_BLK}
        s_addc_u32 s{d+1}, s27, 0
        s_mov_b32 s{d+2}, 0x300000
        s_mov_b32 s{d+3}, 0x00020000""")
    def allred(v, t, op):
        A(f"""v_mov_b32 v{t}, v{v}
        v_permlane32_swap_b32 v{t}, v{v}
        {op} v{v}, v{v}, v{t}
        v_mov_b32 v{t}, v{v}
        v_permlane16_swap_b32 v{t}, v{v}
        {op} v{v}, v{v}, v{t}""")

    def allred2(v, t, w, u, op):
        for sw in ("v_permlane32_swap_b32", "v_permlane16_swap_b32"):
            A(f"""v_mov_b32 v{t}, v{v}
            v_mov_b32 v{u}, v{w}
            {sw} v{t}, v{v}
            {sw} v{u}, v{w}
            {op} v{v}, v{v}, v{t}
            {op} v{w}, v{w}, v{u}""")
    A(header)
    A(f"; @launch grid=(256,1,1) block=(384,1,1) lds={LDS_BYTES}")
    A(f""".amdgcn_target "amdgcn-amd-amdhsa--gfx950"
    .text
    .globl {NAME}
    .p2align 8
    .type {NAME},@function
    {NAME}:""")
    if early: A("s_memrealtime s[92:93]")
    A(f"""s_load_dwordx16 s[4:19], s[0:1], 0
    s_load_dwordx8 s[20:27], s[0:1], 64
    s_getpc_b64 s[30:31]
    L_pc:
    s_cmpk_ge_u32 s2, 256
    s_cbranch_scc1 L_end
    v_xor_b32 v2, 0x140, v0
    v_readfirstlane_b32 s3, v0
    v_lshlrev_b32 v2, 7, v2
    v_min_u32 v2, L_end-L_pc, v2
    global_load_dword v125, v2, s[30:31]""")
    if stamps or lst: A("s_memrealtime s[94:95]")
    A(f"""s_cmp_eq_u32 s3, 0
    s_cbranch_scc0 L_notloader
    v_lshrrev_b32 v2, 3, v0
    v_and_b32 v9, 6, v2
    v_xor_b32 v9, v9, v0
    v_and_b32 v9, 7, v9
    v_lshlrev_b32 v9, 4, v9
    v_lshrrev_b32 v4, 5, v0
    v_and_b32 v5, 3, v2
    v_lshl_add_u32 v6, v4, 3, v5
    v_lshl_add_u32 v10, v6, 13, v9
    v_add_u32 v11, 31744, v10
    v_lshlrev_b32 v21, 4, v0
    s_mov_b32 s34, -1
    s_mov_b32 s35, 0x00020000
    s_movk_i32 s60, 0x800
    s_and_b32 s28, s2, 7
    s_lshr_b32 s29, s2, 3
    s_lshr_b32 s57, s2, 6
    s_lshl_b32 s57, s57, 10
    s_or_b32 s57, s57, s28
    s_lshl_b32 s57, s57, 3
    s_and_b32 s58, s29, 7
    s_or_b32 s57, s57, s58
    s_lshl_b32 s57, s57, 7
    s_lshl_b32 s59, s60, 6
    s_mov_b32 m0, {L_XR}
    {'s_memrealtime s[76:77]' if early else ''}
    s_waitcnt lgkmcnt(0)
    {'s_memrealtime s[78:79]' if early else ''}
    global_load_lds_dwordx4 v21, s[4:5]
    global_load_lds_dwordx4 v21, s[4:5] offset:1024
    s_lshl_b32 m0, s60, 5
    s_mov_b64 s[32:33], s[10:11]
    L_wq:
    buffer_load_dwordx4 v10, s[32:35], s57 offen nt lds
    buffer_load_dwordx4 v11, s[32:35], s57 offen offset:1024 nt lds
    s_add_u32 m0, m0, s60
    s_add_u32 s57, s57, s59
    s_bitcmp0_b32 m0, 14
    s_cbranch_scc1 L_wq""")
    A("L_after256:")
    if early: A("s_memrealtime s[82:83]\ns_mov_b32 s80, s82")
    if stamps: A(f"v_mov_b32 v{VST}, 0")
    A("""s_setprio 3
    s_and_b32 s61, s29, 3
    s_lshl_b32 s62, s61, 3
    s_add_u32 s62, s62, s28
    s_lshr_b32 s63, s29, 2""")
    rgmap(62, 58)
    if deep and xmask is None: A("s_memrealtime s[72:73]")
    assert order[0] == 'wq' and L_WQ == 0x10000
    info = dict(wq=(8, 32, 10, L_WQ, F_WQ), w1=(4, 36, 12, L_W1, F_W1), k=(16, 40, 14, L_K, F_K), v=(16, 44, 14, L_V, F_V),
                wo=(8, 48, 16, L_WO, F_WO), w2=(4, 52, 18, L_W2, F_W2))
    flag_at = {2: [F_X]}
    cum = 2
    for m in order:
        if m == 'v' and vsplit:
            for i, f in enumerate((F_V0, F_V1, F_V2)): flag_at.setdefault(cum + 8 * (i + 1), []).append(f)
        cum += 2 * info[m][0]
        flag_at.setdefault(cum, []).append(info[m][4])
    def kphase():
        if kph == 'A': A("s_and_b32 s67, s29, 15")
        elif kph == 'B': A("s_lshl_b32 s67, s28, 1\ns_lshr_b32 s59, s29, 4\ns_add_u32 s67, s67, s59")
        elif kph == 'C': A("s_lshl_b32 s67, s28, 1\ns_lshr_b32 s59, s29, 4\ns_add_u32 s67, s67, s59\ns_and_b32 s59, s29, 8\ns_add_u32 s67, s67, s59\ns_and_b32 s67, s67, 15")
        elif kph == 'D': A("s_lshl_b32 s67, s28, 1\ns_add_u32 s67, s67, s29\ns_and_b32 s67, s67, 15")
        elif kph == 'E': A("s_lshl_b32 s67, s28, 1\ns_lshr_b32 s59, s29, 2\ns_add_u32 s67, s67, s59\ns_and_b32 s67, s67, 15")
        elif kph == 'F': A("s_mul_i32 s67, s29, 5\ns_mul_i32 s59, s28, 3\ns_add_u32 s67, s67, s59\ns_and_b32 s67, s67, 15")
        elif kph == 'G': A("s_and_b32 s67, s29, 7\ns_lshl_b32 s67, s67, 1")
        elif kph == 'Z': A("s_mov_b32 s67, 0")
    def setup(m):
        if m == 'wq': return
        if m == 'w1':
            A("""v_mul_u32_u24 v12, 3584, v6
            v_add_u32 v12, v12, v9
            v_add_u32 v13, 13312, v12
            s_mov_b32 s36, s16
            s_mov_b32 s37, s17
            s_cmp_lt_u32 s62, 28
            s_cselect_b32 s38, 1835008, 0
            s_mov_b32 s39, 0x00020000
            s_mul_i32 s57, s63, 229376
            s_lshl_b32 s58, s62, 7
            s_add_u32 s57, s57, s58
            s_lshl_b32 s56, s61, 11""")
        elif m == 'k':
            A(f"""v_lshrrev_b32 v7, 4, v0
            v_lshlrev_b32 v8, 1, v7
            v_xor_b32 v8, v8, v0
            v_and_b32 v8, 15, v8
            v_lshlrev_b32 v8, 4, v8
            v_lshl_add_u32 v14, v7, 8, v8
            v_xor_b32 v15, 128, v14
            s_mov_b32 s40, s6
            s_mov_b32 s41, s7
            s_mov_b32 s42, 33554432
            s_mov_b32 s43, 0x00020000
            s_lshr_b32 s64, s29, 4
            s_lshl_b32 s64, s64, 3
            s_add_u32 s64, s64, s28
            s_lshl_b32 s64, s64, 21
            s_and_b32 s58, s29, 15
            s_lshl_b32 s58, s58, 15
            s_add_u32 s64, s64, s58
            s_add_u32 s64, s64, 1572864""")
            kphase()
            A("s_lshl_b32 s56, s67, 11")
        elif m == 'v':
            A(f"""s_mov_b32 s44, s8
            s_mov_b32 s45, s9
            s_mov_b32 s46, 33554432
            s_mov_b32 s47, 0x00020000""")
            if vsplit:
                A("""s_lshl_b32 s65, s61, 13
                s_and_b32 s66, s63, 3
                s_lshl_b32 s66, s66, 11
                s_or_b32 s56, s65, s66""")
            else:
                A("s_lshl_b32 s56, s67, 11")
        elif m == 'wo':
            A("""v_lshl_add_u32 v7, v4, 7, v5
            v_lshl_add_u32 v16, v7, 10, v9
            v_add_u32 v17, 15360, v16
            s_mov_b32 s48, s12
            s_mov_b32 s49, s13
            s_mov_b32 s50, 4194304
            s_mov_b32 s51, 0x00020000
            s_lshl_b32 s57, s28, 19
            s_lshl_b32 s58, s61, 15
            s_add_u32 s57, s57, s58
            s_lshl_b32 s58, s63, 7
            s_add_u32 s57, s57, s58""")
            A(dict(A="s_and_b32 s56, s29, 7\ns_lshl_b32 s56, s56, 11", Z="s_mov_b32 s56, 0", X="s_lshl_b32 s56, s28, 11", P="s_lshl_b32 s56, s28, 11")[wph])
        elif m == 'w2':
            A("""v_lshl_add_u32 v18, v6, 10, v9
            v_add_u32 v19, 3072, v18
            s_mov_b32 s52, s20
            s_mov_b32 s53, s21
            s_cmp_lt_u32 s62, 28
            s_cselect_b32 s54, 1835008, 0
            s_mov_b32 s55, 0x00020000
            s_lshl_b32 s57, s62, 16
            s_lshl_b32 s58, s63, 7
            s_add_u32 s57, s57, s58
            s_lshl_b32 s56, s61, 11""")
    total = cum
    if hold or pre: flag_at.setdefault(total - (hold or pre), []).append(F_PRE)
    if mlpre: flag_at.setdefault(total - mlpre, []).append(F_QA)
    stn = {F_PRE: 10, F_WQ: 3, F_W1: 4, F_K: 5, F_V: 6, F_WO: 7, F_QA: 2, F_X: 8, F_W2: 9}
    def stream(depth, variant):
        issued = 2
        done_barrier = variant != 0
        flagged = set()
        live = variant == 0
        pending = False
        def landed(n):
            for c in sorted(flag_at):
                if c <= n and c not in flagged:
                    flagged.add(c)
                    if not live: continue
                    A("s_mov_b64 exec, 1")
                    for f in flag_at[c]: A(f"ds_write_b32 v20, v20 offset:{f}")
                    A("s_mov_b64 exec, -1")
                    for f in flag_at[c]:
                        if f in stn: stamp(stn[f])
        for m in order:
            npair, srd, vo, lbase, _ = info[m]
            if m == 'wq':
                issued += 16
                continue
            if live: setup(m)
            for p in range(npair):
                d = depth
                if dsched and variant == 0:
                    for (frm, dd) in dsched:
                        if issued >= frm: d = dd
                if variant == 1 and (issued - (depth0 - 2)) in chk:
                    live = True
                    A(f"L_deep{issued}:")
                if hold and issued >= total - hold:
                    if issued == total - hold and live:
                        cv = [c for c in flag_at if F_V in flag_at[c]][0]
                        for c in sorted(flag_at):
                            if c <= cv and c not in flagged:
                                A(f"s_waitcnt vmcnt({issued - c})")
                                landed(c)
                        l = lab("hold")
                        A(f"""{l}:
                        ds_read_b128 v[24:27], v20 offset:{F_OPD}
                        s_waitcnt lgkmcnt(0)
                        v_max3_u32 v24, v24, v25, v26
                        v_max_u32 v24, v24, v27
                        v_cmp_eq_u32 vcc, -1, v24
                        s_cbranch_vccnz {l}""")
                elif issued + 2 > d:
                    if not done_barrier:
                        A(f"v_mov_b32 v20, {L_FLG}\ns_barrier")
                        stamp(1)
                        done_barrier = True
                    if live: A(f"s_waitcnt vmcnt({d - 2})")
                    landed(issued - (d - 2))
                    if prof and live and (issued - (d - 2)) % 8 == 2: stamp(11 + (issued - (d - 2)) // 8)
                    if variant == 0 and deep:
                        n = issued - (d - 2)
                        if n in chk and xmask is not None:
                            A(f"s_bitcmp1_b32 {xmask}, s28\ns_cbranch_scc1 L_deep{issued}")
                        elif n in chk:
                            thr = int(t0 + slope * (n - 2) + margin)
                            A(f"""s_memrealtime s[70:71]
                            s_waitcnt lgkmcnt(0)
                            s_sub_u32 s70, s70, s72
                            s_cmp_gt_u32 s70, {thr}
                            s_cbranch_scc1 L_deep{issued}""")
                if live:
                    A(f"s_add_u32 m0, s56, {lbase}" if lbase else "s_mov_b32 m0, s56")
                    if m == 'wq': A("s_lshl_b32 s58, s56, 6\ns_add_u32 s58, s58, s57")
                    elif m == 'w1': A("s_mul_i32 s58, s56, 28\ns_add_u32 s58, s58, s57")
                    elif m == 'w2': A("s_lshl_b32 s58, s56, 3\ns_add_u32 s58, s58, s57")
                    elif m == 'wo': A("s_and_b32 s58, s56, s60\ns_lshl_b32 s58, s58, 7\ns_and_b32 s59, s56, 0x3000\ns_add_u32 s58, s58, s59\ns_add_u32 s58, s58, s57")
                    else: A("s_add_u32 s58, s56, s64")
                    fl = ntkv if m in ('k', 'v') else ntw
                    A(f"buffer_load_dwordx4 v{vo}, s[{srd}:{srd+3}], s58 offen{fl} lds")
                    A(f"buffer_load_dwordx4 v{vo+1}, s[{srd}:{srd+3}], s58 offen offset:1024{fl} lds")
                issued += 2
                if p != npair - 1 and live:
                    if m == 'v' and vsplit:
                        A("s_add_u32 s66, s66, s60\ns_and_b32 s66, s66, 0x1fff")
                        if p % 4 == 3: A("s_add_u32 s65, s65, 0x2000\ns_and_b32 s65, s65, 0x7fff")
                        A("s_or_b32 s56, s65, s66")
                    else:
                        A(f"s_add_u32 s56, s56, s60\ns_and_b32 s56, s56, {npair * 2048 - 1}")
        pts = set(c for c in flag_at if c not in flagged)
        if prof: pts |= set(c for c in range(issued - depth + 4, issued + 1) if c % 8 == 2)
        for c in sorted(pts):
            A(f"s_waitcnt vmcnt({issued - c})")
            landed(c)
            if prof and c % 8 == 2: stamp(11 + c // 8)
        if early:
            for k, r in ((11, 76), (12, 78), (13, 80), (14, 82), (15, 92)): A(f"v_writelane_b32 v{VST}, s{r}, {k}")
        if stamps: A(f"s_mov_b32 s98, {variant + 1}\nv_writelane_b32 v{VST}, s98, 31")
        stamp0()
        dump_stamps()
        A("s_endpgm")
    depth0 = depth
    stream(depth, 0)
    if deep: stream(deep, 1)

    A("L_notloader:")
    A("""s_lshr_b32 s3, s3, 6
    v_and_b32 v0, 63, v0
    s_and_b32 s28, s2, 7
    s_lshr_b32 s29, s2, 3""")
    if stamps: A(f"v_mov_b32 v{VST}, 0")
    if loaderonly: A("s_barrier\ns_endpgm")
    A("s_cmp_eq_u32 s3, 1\ns_cbranch_scc0 L_compute")
    A(f"""s_and_b32 s61, s29, 3
    s_lshl_b32 s62, s61, 3
    s_add_u32 s62, s62, s28""")
    rgmap(62, 63)
    A(f"""v_and_b32 v11, 7, v0
    v_lshlrev_b32 v11, 2, v11
    v_lshrrev_b32 v12, 5, v0
    v_lshl_add_u32 v11, v12, 1, v11
    v_bfe_u32 v12, v0, 4, 1
    v_add_u32 v11, v11, v12
    v_bfe_u32 v12, v0, 3, 1
    v_lshl_add_u32 v11, v12, 5, v11
    s_min_u32 s63, s62, 27
    s_lshl_b32 s63, s63, 6
    v_add_u32 v13, s63, v11
    v_lshlrev_b32 v13, 1, v13
    v_mov_b32 v20, {L_FLG}
    v_mov_b32 v40, 0
    v_mov_b32 v41, 0
    v_mov_b32 v19, 0
    s_mov_b32 s100, 0
    s_mov_b32 s101, 0
    s_getreg_b32 s64, hwreg(HW_REG_XCC_ID)
    {'s_memrealtime s[76:77]' if dyn else ''}
    s_lshl_b32 s65, s28, 17
    s_lshl_b32 s66, s29, 12
    s_add_u32 s66, s66, s65
    v_and_b32 v21, 31, v0
    v_lshlrev_b32 v21, 12, v21
    s_waitcnt lgkmcnt(0)
    s_load_dword s5, s[26:27], 0""")
    if b1early: A("global_load_ushort v14, v13, s[18:19]")
    ws_srd(8)
    def dotouch():
        A(f"""v_lshlrev_b32 v25, 7, v0
        s_mov_b32 exec_lo, {touch}
        s_mov_b32 exec_hi, 0
        buffer_load_dword v124, v25, s[8:11], s66 offen{tfl}
        s_mov_b64 exec, -1""")
    if touch and not tlate: dotouch()
    A(f"""s_barrier
    s_and_b32 s64, s64, 15
    s_waitcnt lgkmcnt(0)
    s_add_u32 s5, s5, 1
    s_lshl_b32 s6, s5, 4
    s_or_b32 s6, s6, s64
    v_mov_b32 v22, s6
    v_lshlrev_b32 v24, 2, v0
    s_mov_b32 exec_lo, {0 if nobeacon else (-1 if fullid else 1)}
    s_mov_b32 exec_hi, 0
    buffer_store_dword v22, v24, s[8:11], s66 offen offset:{B_ID}
    s_mov_b64 exec, -1""")
    if dyn:
        A(f"""v_and_b32 v70, 7, v0
        v_lshlrev_b32 v71, 7, v70
        s_mov_b32 s78, {W_ST}
        s_cmp_eq_u32 s29, 0
        s_cbranch_scc0 L_nost
        s_lshl_b32 s34, s28, 7
        s_add_u32 s34, s34, s78
        s_cmp_eq_u32 s28, 0
        s_cselect_b32 s35, {bias0}, 0
        s_sub_u32 s76, s76, s35
        v_mov_b32 v26, s76
        v_mov_b32 v27, s5
        s_mov_b64 exec, 1
        buffer_store_dwordx2 v[26:27], v19, s[8:11], s34 offen sc1
        s_mov_b64 exec, -1
        L_nost:""")
    if prew:
        A("""s_not_b32 s34, s5
        v_mov_b32 v28, s34
        v_mov_b32 v29, s34
        v_mov_b32 v30, s34
        v_mov_b32 v31, s34
        v_lshlrev_b32 v25, 4, v0""")
        for o in ([0] if prew & 1 else []) + ([1024, 2048] if prew & 2 else []):
            A(f"buffer_store_dwordx4 v[28:31], v25, s[8:11], s66 offen offset:{o}")
        if prew & 4: A(f"s_mov_b64 exec, 0xff\nbuffer_store_dwordx4 v[28:31], v25, s[8:11], s66 offen offset:{B_ML}\ns_mov_b64 exec, -1")
    if xdirty:
        A(f"v_lshlrev_b32 v25, 4, v0\ns_xor_b32 s34, s66, {W_B}")
        for o in range(xdirty): A(f"buffer_store_dwordx4 v[28:31], v25, s[8:11], s34 offen offset:{1024*o}")
    if not b1early: A("global_load_ushort v14, v13, s[18:19]")
    stamp0()
    A(f"""v_lshrrev_b32 v5, 4, v0
    v_and_b32 v4, 15, v0
    v_bfe_u32 v60, v0, 2, 2
    v_and_b32 v17, 1, v5
    v_lshl_add_u32 v60, v17, 2, v60
    v_bfe_u32 v18, v0, 1, 1
    v_and_b32 v61, 6, v60
    v_xor_b32 v18, v18, v61
    v_lshlrev_b32 v18, 4, v18
    v_and_b32 v61, 1, v0
    v_lshl_add_u32 v18, v61, 3, v18
    v_lshrrev_b32 v17, 5, v0
    v_lshl_add_u32 v17, v17, 4, v60
    v_lshl_add_u32 v62, v17, 7, v18
    v_add_u32 v62, {L_W1}, v62
    v_xor_b32 v63, 32, v62
    v_xor_b32 v64, 64, v62
    v_xor_b32 v65, 96, v62
    v_mul_u32_u24 v18, {XSTR}, v61
    v_lshl_add_u32 v18, v5, 4, v18
    s_lshr_b32 s37, s29, 2
    s_lshl_b32 s37, s37, 7
    s_add_u32 s37, s37, {L_XN}
    v_add_u32 v66, s37, v18
    v_lshlrev_b32 v67, 8, v4
    v_lshl_add_u32 v67, v5, 4, v67
    s_movk_i32 s53, 0xff00
    s_mov_b32 s48, 0x00030003
    s_mov_b32 s49, 0x00030003""")
    mktags(5, 0)
    wait_flag(20, F_XN, 18)
    if not nobeacon: A(f"buffer_load_dword v23, v21, s[8:11], s65 offen offset:{B_ID} sc1")
    A("ds_read_b128 v[24:27], v66\nds_read_b128 v[28:31], v66 offset:64")
    wait_flag(20, F_W1, 18)
    for t in range(4):
        for kk in range(2):
            for u in range(2):
                r = 72 + 8 * t + 4 * kk + 2 * u
                A(f"ds_read_b64_tr_b16 v[{r}:{r+1}], v{62+t} offset:{kk*4096 + u*1024}")
    for t in range(4):
        A(f"s_waitcnt lgkmcnt({12 - 4*t})")
        for kk in range(2):
            r = 72 + 8 * t + 4 * kk
            A(f"v_mfma_f32_16x16x32_bf16 v[{104+4*t}:{107+4*t}], v[{r}:{r+3}], v[{24+4*kk}:{27+4*kk}], {f'v[{104+4*t}:{107+4*t}]' if kk else 0}")
    for r in range(104, 120): A(f"v_and_or_b32 v{r}, v{r}, s53, v{152 + r % 4}")
    A("s_mov_b64 exec, s[48:49]")
    for t in range(4): A(f"buffer_store_dwordx4 v[{104+4*t}:{107+4*t}], v67, s[8:11], s66 offen offset:{B_HP + 64*t}{pst}")
    A("s_mov_b64 exec, -1\ns_mov_b32 s7, 0")
    stamp(6)
    if nobeacon: A("s_branch L_idok")
    l = lab("id")
    A(f"""s_waitcnt vmcnt(4)
    s_branch L_idchk
    {l}:
    buffer_load_dword v23, v21, s[8:11], s65 offen offset:{B_ID} sc1
    s_waitcnt vmcnt(0)
    L_idchk:
    v_cmp_ne_u32 vcc, s6, v23
    s_cbranch_vccz L_idok
    s_add_u32 s7, s7, 1
    s_cmp_lt_u32 s7, {IDTRY}
    s_cbranch_scc1 {l}
    L_idok:
    s_cmp_eq_u32 s7, {IDTRY}
    s_cselect_b32 s7, 1, 0""")
    if forcemode is not None: A(f"s_mov_b32 s7, {forcemode}")
    A("v_mov_b32 v23, s7")
    set_flag(20, F_MODE, 23)
    if touch and tlate: dotouch()
    stamp(1)
    A(f"""s_cmp_eq_u32 s7, 0
    s_cbranch_scc1 L_hpfast
    s_xor_b32 s37, s66, {W_B}
    s_mov_b64 exec, s[48:49]""")
    for t in range(4): A(f"buffer_store_dwordx4 v[{104+4*t}:{107+4*t}], v67, s[8:11], s37 offen offset:{B_HP + 64*t} sc1")
    A("s_mov_b64 exec, -1\nL_hpfast:")
    if dyn: A("buffer_load_dwordx2 v[120:121], v71, s[8:11], s78 offen sc1")
    A(f"""s_cmp_lt_u32 s62, 28
    s_cbranch_scc0 L_actw
    v_lshrrev_b32 v16, 3, v0
    v_lshlrev_b32 v16, 14, v16
    v_and_b32 v17, 7, v0
    v_lshl_add_u32 v16, v17, 4, v16
    s_lshl_b32 s31, s61, 12
    s_add_u32 s31, s31, s65""")
    if hpt: wait_flag(20, {'k': F_K}[hpt], 18)
    elif hs: A(f"s_sleep {hs}")
    l = lab("hp")
    A(f"s_lshl_b32 s7, s7, 21\n{l}:\ns_xor_b32 s31, s31, s7")
    for i in range(4):
        b, half = i & 1, i >> 1
        A(f"buffer_load_dwordx4 v[{24+4*i}:{27+4*i}], v16, s[8:11], s31 offen offset:{B_HP + b*256 + half*128} sc1")
    A("s_waitcnt vmcnt(0)")
    bad_tag(range(24, 40), 44, 5, 19)
    gloop_back(l, sleep=4)
    stamp(2)
    for i in range(4):
        r = 24 + 4 * i
        A(f"""v_permlane32_swap_b32 v{r}, v{r+2}
        v_permlane32_swap_b32 v{r+1}, v{r+3}
        v_add_f32 v{r}, v{r}, v{r+2}
        v_add_f32 v{r+1}, v{r+1}, v{r+3}""")
    for i in range(4):
        r = 24 + 4 * i
        A(f"v_permlane16_swap_b32 v{r}, v{r+1}\nv_add_f32 v{r}, v{r}, v{r+1}")
    for i in range(4):
        r = 24 + 4 * i
        A(f"v_add_f32 v{r}, v{r}, v{r} row_ror:8")
    A("""v_and_b32 v18, 8, v0
    v_cmp_eq_u32 vcc, 0, v18
    v_cndmask_b32 v40, v32, v24, vcc
    v_cndmask_b32 v41, v36, v28, vcc
    v_lshlrev_b32 v14, 16, v14
    s_mov_b32 s32, 0x3fb8aa3b
    s_mov_b32 s33, 0x3f317218""")
    for h in (40, 41):
        t = 44
        bf16r(h, h)
        A(f"v_add_f32 v{h}, v{h}, v14")
        bf16r(h, h)
        A(f"v_mul_f32 v{t}, s32, v{h}\nv_exp_f32 v{t}, -abs(v{t})")
        bf16r(t, t)
        A(f"""v_add_f32 v{t+1}, 1.0, v{t}
        v_log_f32 v{t+2}, v{t+1}
        v_add_f32 v{t+3}, -1.0, v{t+1}
        v_rcp_f32 v{t+3}, v{t+3}
        v_mul_f32 v{t+2}, s33, v{t+2}
        v_mul_f32 v{t+2}, v{t+2}, v{t}
        v_mul_f32 v{t+2}, v{t+2}, v{t+3}
        v_cmp_eq_f32 vcc, 1.0, v{t+1}
        v_cndmask_b32 v{t+2}, v{t+2}, v{t}, vcc""")
        bf16r(t+2, t+2)
        A(f"v_max_f32 v{t+1}, 0, v{h}\nv_add_f32 v{t+2}, v{t+2}, v{t+1}")
        bf16r(t+2, t+2)
        A(f"""v_mul_f32 v{t}, -2.0, v{t+2}
        v_mul_f32 v{t+1}, s32, v{t}
        v_exp_f32 v{t+1}, v{t+1}
        v_log_f32 v{t+3}, v{t+1}
        v_add_f32 v{t+4}, -1.0, v{t+1}
        v_mul_f32 v{t+3}, s33, v{t+3}
        v_rcp_f32 v{t+3}, v{t+3}
        v_mul_f32 v{t+5}, v{t+4}, v{t}
        v_mul_f32 v{t+5}, v{t+5}, v{t+3}
        v_cmp_eq_f32 vcc, 1.0, v{t+1}
        v_cndmask_b32 v{t+5}, v{t+5}, v{t}, vcc
        v_cmp_gt_f32 vcc, 0.5, v{t+1}
        v_cndmask_b32 v{t+5}, v{t+5}, v{t+4}, vcc
        v_add_f32 v{t+4}, 2.0, v{t+5}
        v_rcp_f32 v{t+4}, v{t+4}
        v_mul_f32 v{t+5}, v{t+5}, v{t+4}
        v_sub_f32 v{t+5}, 0, v{t+5}""")
        bf16r(t+5, t+5)
        A(f"v_mul_f32 v{h}, v{h}, v{t+5}\nv_cvt_pk_bf16_f32 v{h}, v{h}, v{h}")
    A(f"""L_actw:
    v_lshlrev_b32 v11, 1, v11
    v_add_u32 v11, {L_ACT}, v11
    ds_write_b16 v11, v40
    ds_write_b16 v11, v41 offset:128""")
    set_flag(20, F_ACT, 20)
    stamp(3)
    if dyn:
        l = lab("st")
        A(f"""s_waitcnt vmcnt(0)
        s_branch L_stchk
        {l}:
        buffer_load_dwordx2 v[120:121], v71, s[8:11], s78 offen sc1
        s_waitcnt vmcnt(0)
        L_stchk:
        v_cmp_ne_u32 vcc, s5, v121""")
        gloop_back(l, sleep=4)
        if lamp:
            A(f"""v_readfirstlane_b32 s34, v120
            v_subrev_u32 v122, s34, v120
            v_mov_b32 v123, {bias0}
            v_cmp_eq_u32 vcc, 0, v70
            v_cndmask_b32 v123, 0, v123, vcc
            v_add_u32 v122, v122, v123
            v_min_i32 v122, v122, v122 row_ror:1
            v_min_i32 v122, v122, v122 row_ror:2
            v_min_i32 v122, v122, v122 row_ror:4
            v_add_u32 v122, s34, v122""")
            set_flag(20, F_PRE, 122)
        A("""v_readfirstlane_b32 s34, v120
        v_subrev_u32 v120, s34, v120
        v_lshl_add_u32 v120, v120, 3, v70
        v_max_i32 v120, v120, v120 row_ror:1
        v_max_i32 v120, v120, v120 row_ror:2
        v_max_i32 v120, v120, v120 row_ror:4
        v_and_b32 v120, 7, v120""")
        if forcer is not None: A(f"v_mov_b32 v120, {forcer}")
        set_flag(20, F_RED, 120)
    A(f"""v_lshrrev_b32 v16, 2, v0
    v_and_b32 v17, 3, v0
    v_lshlrev_b32 v21, 12, v16
    v_lshl_add_u32 v21, v17, 3, v21
    s_add_u32 s66, s65, 65536
    v_and_b32 v18, 15, v0
    v_lshlrev_b32 v18, 4, v18
    v_lshrrev_b32 v22, 4, v0
    v_lshl_add_u32 v22, v22, 2, v18
    v_add_u32 v22, {L_AL}, v22
    s_movk_i32 s53, 0xff00
    s_mov_b32 s52, -2""")
    if mlpre: wait_flag(20, F_QA, 18)
    elif mlt: wait_flag(20, {'v0': F_V0, 'v1': F_V1, 'v2': F_V2, 'v': F_V, 'k': F_K}[mlt], 18)
    l = lab("ml")
    if mlpipe: A("v_not_b32 v24, v156\nv_not_b32 v26, v156\ns_waitcnt vmcnt(0)")
    A(f"""{l}:
    buffer_load_dwordx2 v[24:25], v21, s[8:11], s65 offen offset:{B_ML} sc1
    buffer_load_dwordx2 v[26:27], v21, s[8:11], s66 offen offset:{B_ML} sc1""")
    if mlpipe and mlsl: A(f"s_sleep {mlsl}")
    A(f"""s_waitcnt vmcnt({2 * mlpipe})
    v_mov_b32 v32, v24
    v_mov_b32 v33, v25
    v_mov_b32 v34, v26
    v_mov_b32 v35, v27""")
    bad_tag(range(32, 36), 44, [(32, 34, "v156"), (33, 35, "v157")], 19)
    gloop_back(l)
    stamp(4)
    A("""v_and_b32 v32, s53, v32
    v_and_b32 v34, s53, v34
    v_max_f32 v28, v32, v32 row_ror:4
    v_max_f32 v29, v34, v34 row_ror:4
    v_max_f32 v28, v28, v28 row_ror:8
    v_max_f32 v29, v29, v29 row_ror:8""")
    allred2(28, 30, 29, 31, "v_max_f32")
    A("""v_sub_f32 v32, v32, v28
    v_sub_f32 v34, v34, v29
    v_exp_f32 v32, v32
    v_exp_f32 v34, v34
    v_mul_f32 v33, v32, v33
    v_mul_f32 v35, v34, v35
    v_add_f32 v28, v33, v33 row_ror:4
    v_add_f32 v29, v35, v35 row_ror:4
    v_add_f32 v28, v28, v28 row_ror:8
    v_add_f32 v29, v29, v29 row_ror:8""")
    allred2(28, 30, 29, 31, "v_add_f32")
    A("""v_rcp_f32 v28, v28
    v_rcp_f32 v29, v29
    v_mul_f32 v32, v32, v28
    v_mul_f32 v34, v34, v29
    v_min_u32 v32, s52, v32
    v_min_u32 v34, s52, v34
    ds_write_b32 v22, v32
    ds_write_b32 v22, v34 offset:256""")
    stamp(5)
    dump_stamps()
    A("s_waitcnt lgkmcnt(0)\ns_endpgm")

    A("L_compute:")
    if cprio: A(f"s_setprio {cprio}")
    A(f"""s_sub_u32 s30, s3, 2
    v_lshlrev_b32 v2, 4, v0
    s_lshl_b32 s31, s30, 10
    s_add_u32 s31, s31, {L_S}
    v_add_u32 v3, s31, v2
    v_mov_b32 v4, -1
    v_mov_b32 v5, -1
    v_mov_b32 v6, -1
    v_mov_b32 v7, -1
    ds_write_b128 v3, v[4:7]
    s_mov_b32 s100, 0
    s_mov_b32 s101, 0
    s_waitcnt lgkmcnt(0)
    s_load_dword s54, s[26:27], 0
    s_barrier""")
    ws_srd(32)
    A(f"""s_mov_b32 s36, 0xffff0000
    v_and_b32 v4, 15, v0
    v_lshrrev_b32 v5, 4, v0
    v_mov_b32 v6, {L_FLG}
    v_bfe_u32 v96, v0, 2, 2
    v_and_b32 v17, 1, v5
    v_lshl_add_u32 v96, v17, 2, v96
    v_bfe_u32 v18, v0, 1, 1
    s_lshl_b32 s37, s30, 1
    v_add_u32 v18, s37, v18
    v_and_b32 v19, 6, v96
    v_xor_b32 v18, v18, v19
    v_lshlrev_b32 v18, 4, v18
    v_and_b32 v19, 1, v0
    v_lshl_add_u32 v18, v19, 3, v18
    v_lshrrev_b32 v17, 5, v0
    v_lshl_add_u32 v17, v17, 4, v96
    v_lshl_add_u32 v7, v17, 7, v18
    v_add_u32 v7, {L_WQ}, v7
    ; xn frag addresses v106 (wq rows), v105 (w1 rows)
    v_mul_u32_u24 v18, {XSTR}, v19
    v_lshl_add_u32 v18, v5, 4, v18
    s_lshr_b32 s37, s29, 3
    s_lshl_b32 s37, s37, 8
    s_add_u32 s37, s37, {L_XN}
    v_add_u32 v106, s37, v18
    s_lshl_b32 s37, s30, 6
    v_lshlrev_b32 v18, 8, v4
    v_lshl_add_u32 v18, v5, 4, v18
    v_add_u32 v107, s37, v18
    s_lshl_b32 s38, s28, 5
    s_add_u32 s38, s38, s29
    s_lshl_b32 s68, s38, 9
    s_lshl_b32 s38, s38, 12
    s_add_u32 s68, s68, {W_FP}
    v_add_u32 v3, {L_XN}, v2
    v_add_u32 v16, {L_XR}, v2
    s_mov_b32 s48, 0x00030003
    s_mov_b32 s49, 0x00030003
    s_mov_b32 s52, -2
    s_movk_i32 s53, 0xff00""")
    stamp(1)
    wait_flag(6, F_X, 17)
    A(f"""ds_read_b128 v[8:11], v16
    ds_read_b128 v[12:15], v16 offset:1024
    s_add_u32 s54, s54, 1
    s_waitcnt lgkmcnt(0)""")
    stamp0()
    stamp(2)
    for b in range(2):
        for i in range(4):
            A(f"v_lshlrev_b32 v{16+8*b+2*i}, 16, v{8+4*b+i}\nv_and_b32 v{17+8*b+2*i}, s36, v{8+4*b+i}")
    def red2(a, b, t):
        A(f"""v_permlane32_swap_b32 v{a}, v{b}
        v_add_f32 v{a}, v{a}, v{b}
        v_mov_b32 v{t}, v{a}
        v_permlane16_swap_b32 v{t}, v{a}
        v_add_f32 v{a}, v{a}, v{t}
        v_add_f32 v{a}, v{a}, v{a} row_ror:8
        v_add_f32 v{a}, v{a}, v{a} row_ror:4
        v_add_f32 v{a}, v{a}, v{a} row_ror:2
        v_add_f32 v{a}, v{a}, v{a} row_ror:1""")
    for b in range(2):
        f = 16 + 8 * b
        A(f"""v_pk_add_f32 v[{32+4*b}:{33+4*b}], v[{f}:{f+1}], v[{f+2}:{f+3}]
        v_pk_add_f32 v[{34+4*b}:{35+4*b}], v[{f+4}:{f+5}], v[{f+6}:{f+7}]""")
    for b in range(2):
        A(f"v_pk_add_f32 v[{32+4*b}:{33+4*b}], v[{32+4*b}:{33+4*b}], v[{34+4*b}:{35+4*b}]")
    A("v_add_f32 v32, v32, v33\nv_add_f32 v36, v36, v37")
    red2(32, 36, 33)
    A("""v_mul_f32 v32, 0x3b000000, v32
    v_readlane_b32 s60, v32, 0
    v_readlane_b32 s62, v32, 32""")
    for b in range(2):
        f = 16 + 8 * b
        for i in range(4):
            A(f"v_pk_add_f32 v[{40+8*b+2*i}:{41+8*b+2*i}], v[{f+2*i}:{f+2*i+1}], s[{60+2*b}:{61+2*b}] op_sel_hi:[1,0] neg_lo:[0,1] neg_hi:[0,1]")
    for b in range(2):
        d = 40 + 8 * b
        A(f"v_pk_mul_f32 v[{34+2*b}:{35+2*b}], v[{d}:{d+1}], v[{d}:{d+1}]")
    for i in range(1, 4):
        for b in range(2):
            d = 40 + 8 * b + 2 * i
            A(f"v_pk_fma_f32 v[{34+2*b}:{35+2*b}], v[{d}:{d+1}], v[{d}:{d+1}], v[{34+2*b}:{35+2*b}]")
    A("v_add_f32 v34, v34, v35\nv_add_f32 v36, v36, v37")
    red2(34, 36, 33)
    A("v_mul_f32 v34, 0x3b000000, v34")
    bf16r(34, 34)
    A("v_add_f32 v34, 0x3727c5ac, v34")
    bf16r(34, 34)
    A("v_sqrt_f32 v34, v34")
    bf16r(32, 32)
    bf16r(34, 34)
    A("v_rcp_f32 v34, v34")
    A("""v_readlane_b32 s60, v32, 0
    v_readlane_b32 s62, v32, 32
    v_readlane_b32 s64, v34, 0
    v_readlane_b32 s66, v34, 32""")
    for b in range(2):
        f = 16 + 8 * b
        for i in range(4):
            A(f"v_pk_add_f32 v[{f+2*i}:{f+2*i+1}], v[{f+2*i}:{f+2*i+1}], s[{60+2*b}:{61+2*b}] op_sel_hi:[1,0] neg_lo:[0,1] neg_hi:[0,1]")
    for i in range(8):
        A(f"v_cvt_pk_bf16_f32 v{8+i}, v{16+2*i}, v{17+2*i}")
    for i in range(8):
        A(f"v_lshlrev_b32 v{16+2*i}, 16, v{8+i}\nv_and_b32 v{17+2*i}, s36, v{8+i}")
    for b in range(2):
        f = 16 + 8 * b
        for i in range(4):
            A(f"v_pk_mul_f32 v[{f+2*i}:{f+2*i+1}], v[{f+2*i}:{f+2*i+1}], s[{64+2*b}:{65+2*b}] op_sel_hi:[1,0]")
    for i in range(8):
        A(f"v_cvt_pk_bf16_f32 v{8+i}, v{16+2*i}, v{17+2*i}")
    A(f"""ds_write_b128 v3, v[8:11]
    ds_write_b128 v3, v[12:15] offset:{XSTR}""")
    set_flag(6, F_XN, 6)
    mktags(54, 0)
    A("s_waitcnt lgkmcnt(0)")
    for kk in range(4): A(f"ds_read_b128 v[{24+4*kk}:{27+4*kk}], v106 offset:{64*kk}")
    stamp(3)
    wait_flag(6, F_WQ, 16)
    stamp(4)
    def trw(base, nk, r0):
        for kk in range(nk):
            for u in range(2):
                A(f"ds_read_b64_tr_b16 v[{r0+4*kk+2*u}:{r0+4*kk+2*u+1}], v7 offset:{base - L_WQ + kk*4096 + u*1024}")
    def tag(regs):
        for r in regs: A(f"v_and_or_b32 v{r}, v{r}, s53, v{152 + r % 4}")
    trw(L_WQ, 4, 48)
    for kk in range(4):
        A(f"s_waitcnt lgkmcnt({6 - 2*kk})")
        A(f"v_mfma_f32_16x16x32_bf16 v[88:91], v[{48+4*kk}:{51+4*kk}], v[{24+4*kk}:{27+4*kk}], {'v[88:91]' if kk else 0}")
    tag(range(88, 92))
    A(f"""s_mov_b64 exec, s[48:49]
    buffer_store_dwordx4 v[88:91], v107, s[32:35], s38 offen offset:{B_QP}{pst}
    s_mov_b64 exec, -1""")
    stamp(5)
    A(f"""v_lshlrev_b32 v119, 15, v5
    v_lshl_add_u32 v119, v4, 4, v119
    s_lshl_b32 s39, s28, 17
    s_lshl_b32 s37, s30, 13
    s_add_u32 s39, s39, s37
    s_lshr_b32 s37, s29, 4
    s_lshl_b32 s37, s37, 8
    s_add_u32 s39, s39, s37
    s_add_u32 s40, s39, 4096
    v_lshlrev_b32 v118, 5, v5
    v_lshl_add_u32 v118, v4, 4, v118
    s_lshl_b32 s37, s30, 7
    v_add_u32 v118, s37, v118""")
    def qloads(r):
        A(f"""buffer_load_dwordx4 v[{r}:{r+3}], v119, s[32:35], s39 offen offset:{B_QP} sc1
        buffer_load_dwordx4 v[{r+4}:{r+7}], v119, s[32:35], s40 offen offset:{B_QP} sc1""")
    A(f"""; ---- remaining addresses
    v_mov_b32 v123, 0
    v_and_b32 v19, 1, v0
    v_bfe_u32 v18, v0, 1, 1
    s_lshl_b32 s37, s30, 2
    v_add_u32 v18, s37, v18
    v_lshlrev_b32 v17, 1, v96
    v_xor_b32 v18, v18, v17
    v_lshlrev_b32 v18, 4, v18
    v_lshl_add_u32 v18, v19, 3, v18
    v_lshrrev_b32 v17, 2, v0
    v_lshl_add_u32 v100, v17, 8, v18
    s_lshl_b32 s37, s30, 2
    v_add_u32 v101, s37, v6
    v_and_b32 v17, 7, v0
    v_lshlrev_b32 v17, 1, v17
    v_xor_b32 v17, v17, v5
    v_lshlrev_b32 v17, 4, v17
    v_lshl_add_u32 v17, v4, 8, v17
    s_lshl_b32 s37, s30, 13
    v_add_u32 v102, s37, v17
    v_xor_b32 v103, 64, v102
    v_xor_b32 v104, 128, v102
    v_xor_b32 v105, 192, v102
    v_mul_u32_u24 v116, {OSTR}, v19
    v_lshl_add_u32 v116, v5, 4, v116
    v_add_u32 v116, {L_O}, v116
    v_lshlrev_b32 v117, 7, v19
    v_lshl_add_u32 v117, v5, 4, v117
    v_add_u32 v117, {L_ACT}, v117
    v_lshrrev_b32 v17, 5, v0
    v_lshlrev_b32 v17, 7, v17
    v_lshl_add_u32 v17, v4, 3, v17
    v_and_b32 v18, 1, v5
    v_lshl_add_u32 v17, v18, 2, v17
    s_mul_i32 s37, s30, {QSTR}
    s_add_u32 s37, s37, {L_Q}
    v_add_u32 v120, s37, v17
    v_and_b32 v19, 3, v0
    v_mul_u32_u24 v121, {QSTR}, v19
    v_lshl_add_u32 v121, v5, 4, v121
    v_add_u32 v121, {L_Q}, v121
    v_lshlrev_b32 v20, 6, v5
    v_lshl_add_u32 v20, v19, 4, v20
    v_add_u32 v108, {L_P}, v20
    s_lshl_b32 s37, s30, 8
    v_add_u32 v110, s37, v108
    s_lshl_b32 s37, s30, 9
    v_add_u32 v109, s37, v20
    s_and_b32 s41, s30, 1
    s_lshl_b32 s37, s41, 8
    s_add_u32 s37, s37, {L_AL}
    v_add_u32 v114, s37, v20
    v_lshlrev_b32 v111, 5, v19
    v_add_u32 v111, {L_ML}, v111
    s_lshl_b32 s37, s30, 2
    v_add_u32 v112, s37, v111
    v_lshlrev_b32 v106, 3, v4
    v_lshlrev_b32 v16, 12, v5
    v_lshl_add_u32 v113, v4, 4, v16
    s_and_b32 s43, s29, 3
    s_lshl_b32 s37, s43, 9
    s_lshr_b32 s42, s30, 1
    s_lshl_b32 s44, s42, 8
    s_add_u32 s37, s37, s44
    v_add_u32 v113, s37, v113
    s_lshl_b32 s44, s28, 17
    s_lshl_b32 s37, s41, 16
    s_add_u32 s44, s44, s37
    s_add_u32 s45, s44, 16384
    s_add_u32 s46, s44, 32768
    s_add_u32 s47, s44, 49152
    v_lshlrev_b32 v115, 4, v4
    v_lshl_add_u32 v115, v18, 2, v115
    s_mul_i32 s37, s41, {OSTR}
    s_lshl_b32 s42, s42, 3
    s_add_u32 s37, s37, s42
    s_add_u32 s37, s37, {L_O}
    v_add_u32 v115, s37, v115
    s_mov_b32 s50, 0x000f000f
    s_mov_b32 s51, 0x000f000f
    s_mov_b32 s58, 0x3db504f3
    s_mov_b32 s59, 0x3fb8aa3b
    s_lshl_b32 s70, s29, 9
    s_lshl_b32 s37, s30, 7
    s_add_u32 s70, s70, s37
    s_add_u32 s70, s70, {W_FP}
    v_lshrrev_b32 v17, 3, v0
    v_lshlrev_b32 v17, 14, v17
    v_and_b32 v16, 7, v0
    v_lshl_add_u32 v99, v16, 4, v17
    v_and_b32 v16, 1, v0
    v_lshlrev_b32 v16, 10, v16
    v_bfe_u32 v17, v0, 1, 2
    v_lshl_add_u32 v16, v17, 3, v16
    v_lshrrev_b32 v17, 5, v0
    v_lshl_add_u32 v16, v17, 2, v16
    s_lshr_b32 s37, s29, 2
    s_lshl_b32 s37, s37, 7
    s_lshl_b32 s41, s30, 5
    s_add_u32 s37, s37, s41
    v_add_u32 v98, s37, v16
    v_add_u32 v17, {L_XR}, v98
    ds_read_b32 v97, v17""")
    for i in range(4):
        if vsplit:
            A(f"""s_add_u32 s37, s43, {i}
            s_and_b32 s37, s37, 3
            s_lshl_b32 s41, s37, 13
            v_add_u32 v{80+2*i}, s41, v100
            s_lshl_b32 s41, s37, 8
            v_add_u32 v{76+i}, s41, v108""")
        else:
            A(f"v_add_u32 v{80+2*i}, {i*8192}, v100\nv_add_u32 v{76+i}, {i*256}, v108")
        A(f"v_xor_b32 v{81+2*i}, 32, v{80+2*i}")
    if touchout: A("global_load_dword v124, v98, s[22:23]")
    if warmfp: A(f"s_mov_b64 exec, s[48:49]\nbuffer_load_dword v124, v118, s[32:35], s68 offen{wfl}\ns_mov_b64 exec, -1")
    A("s_mov_b32 s56, 0")
    if sa: A(f"s_sleep {sa}")
    stamp(6)
    if lst:
        A(f"""s_or_b32 s37, s29, s30
        s_cbranch_scc1 L_nolst
        s_lshl_b32 s37, s28, 2
        s_add_u32 s37, s37, 0x8000100
        v_mov_b32 v20, s37
        v_mov_b32 v22, s94
        s_mov_b64 exec, 1
        global_store_dword v20, v22, s[26:27]
        s_mov_b64 exec, -1
        L_nolst:""")
    def republish():
        A(f"""s_xor_b32 s37, s38, {W_B}
        s_mov_b64 exec, s[48:49]
        buffer_store_dwordx4 v[88:91], v107, s[32:35], s37 offen offset:{B_QP} sc1
        s_mov_b64 exec, -1
        s_mov_b32 s56, 1""")
    qs = [128, 136, 144][:qsets]
    for k, r in enumerate(qs):
        qloads(r)
        if k + 1 < len(qs) and sb: A(f"s_sleep {sb}")
    def kread():
        wait_flag(6, F_K, 41)
        for t in range(2):
            for kk in range(4):
                A(f"ds_read_b128 v[{44+16*t+4*kk}:{47+16*t+4*kk}], v{102+kk} offset:{L_K + t*4096}")
    if kpre: kread()
    A("L_qp:")
    for k, r in enumerate(qs):
        A(f"s_waitcnt vmcnt({2*(len(qs)-1)})")
        bad_tag(range(r, r + 8), 40, 55, 123)
        A(f"s_cbranch_vccz L_qok{k}")
        qloads(r)
    A(f"""ds_read_b32 v40, v6 offset:{F_MODE}
    s_waitcnt lgkmcnt(0)
    v_readfirstlane_b32 s57, v40
    s_xor_b32 s57, s57, 1
    s_or_b32 s57, s57, s56
    s_cbranch_scc1 L_norep""")
    republish()
    A(f"""s_waitcnt vmcnt(0)""")
    for r in qs: qloads(r)
    A(f"""L_norep:
    s_lshl_b32 s37, s56, 21
    s_xor_b32 s39, s39, s37
    s_xor_b32 s40, s40, s37
    s_add_u32 s101, s101, 1
    s_cmp_lt_u32 s101, {SPIN}
    s_cbranch_scc1 L_qp""")
    for k, r in reversed(list(enumerate(qs))):
        A(f"L_qok{k}:")
        for i in range(4): A(f"v_permlane32_swap_b32 v{r+i}, v{r+4+i}")
        A(f"v_pk_add_f32 v[40:41], v[{r}:{r+1}], v[{r+4}:{r+5}]\nv_pk_add_f32 v[42:43], v[{r+2}:{r+3}], v[{r+6}:{r+7}]")
        if k: A("s_branch L_qj")
    A("L_qj:")
    stamp(7)
    A("""v_permlane16_swap_b32 v40, v42
    v_permlane16_swap_b32 v41, v43
    v_pk_add_f32 v[40:41], v[40:41], v[42:43]
    v_cvt_pk_bf16_f32 v40, v40, v41
    v_min_u32 v40, s52, v40
    ds_write_b32 v120, v40""")
    if not kpre: kread()
    l = lab("ql")
    A(f"{l}:")
    for kk in range(4): A(f"ds_read_b128 v[{16+4*kk}:{19+4*kk}], v121 offset:{64*kk}")
    A("s_waitcnt lgkmcnt(0)")
    any_sent(range(16, 32), 40)
    loop_back(l)
    stamp(8)
    for kk in range(4):
        for t in range(2):
            A(f"v_mfma_f32_16x16x32_bf16 v[{8+4*t}:{11+4*t}], v[{44+16*t+4*kk}:{47+16*t+4*kk}], v[{16+4*kk}:{19+4*kk}], {f'v[{8+4*t}:{11+4*t}]' if kk else 0}")
    A(f"ds_read_b32 v42, v6 offset:{F_MODE}")
    for rnd in range(2):
        for i in range(4): A(f"v_cvt_pk_bf16_f32 v{24+i}, v{8+2*i}, v{9+2*i}")
        for i in range(4): A(f"v_lshlrev_b32 v{8+2*i}, 16, v{24+i}\nv_and_b32 v{9+2*i}, s36, v{24+i}")
        if rnd == 0:
            for i in range(4): A(f"v_pk_mul_f32 v[{8+2*i}:{9+2*i}], v[{8+2*i}:{9+2*i}], s[58:59] op_sel_hi:[1,0]")
    A("""v_max3_f32 v24, v8, v9, v10
    v_max3_f32 v25, v11, v12, v13
    v_max3_f32 v24, v24, v14, v15
    v_max_f32 v24, v24, v25""")
    allred(24, 25, "v_max_f32")
    A("""v_min_u32 v25, s52, v24
    s_mov_b64 exec, 15
    ds_write_b32 v112, v25
    s_mov_b64 exec, -1""")
    l = lab("ml")
    A(f"""{l}:
    ds_read_b128 v[28:31], v111
    s_waitcnt lgkmcnt(0)""")
    any_sent([28, 29, 30, 31], 20)
    loop_back(l)
    A("""v_max3_f32 v26, v28, v29, v30
    v_max_f32 v26, v26, v31
    v_mul_f32 v26, s59, v26
    v_and_b32 v26, s53, v26""")
    for i in range(8): A(f"v_fma_f32 v{8+i}, v{8+i}, s59, -v26")
    for i in range(8): A(f"v_exp_f32 v{8+i}, v{8+i}")
    for i in range(4): A(f"v_cvt_pk_bf16_f32 v{16+i}, v{8+2*i}, v{9+2*i}")
    for i in range(4): A(f"v_min_u32 v{16+i}, s52, v{16+i}")
    A(f"""s_mov_b64 exec, s[50:51]
    ds_write_b128 v110, v[16:19]
    s_mov_b64 exec, -1
    v_pk_add_f32 v[28:29], v[8:9], v[10:11]
    v_pk_add_f32 v[30:31], v[12:13], v[14:15]
    v_pk_add_f32 v[28:29], v[28:29], v[30:31]
    v_add_f32 v25, v28, v29""")
    allred(25, 27, "v_add_f32")
    A(f"""v_min_u32 v25, s52, v25
    s_mov_b64 exec, 15
    ds_write_b32 v112, v25 offset:16
    s_mov_b64 exec, -1
    v_readfirstlane_b32 s57, v42
    s_cmp_eq_u32 s57, 0
    s_cbranch_scc1 L_modeok""")
    wait_flag(6, F_MODE, 42)
    A("""v_readfirstlane_b32 s57, v42
    s_xor_b32 s37, s57, 1
    s_or_b32 s37, s37, s56
    s_cbranch_scc1 L_modeok""")
    republish()
    A(f"""L_modeok:
    s_cmp_eq_u32 s30, 0
    s_cbranch_scc0 L_noml""")
    l = lab("ll")
    A(f"""{l}:
    ds_read_b128 v[28:31], v111 offset:16
    s_waitcnt lgkmcnt(0)""")
    any_sent([28, 29, 30, 31], 20)
    loop_back(l)
    A(f"""v_pk_add_f32 v[28:29], v[28:29], v[30:31]
    v_or_b32 v26, v26, v156
    v_add_f32 v27, v28, v29
    v_and_or_b32 v27, v27, s53, v157
    s_mov_b64 exec, {0xffff if fullml else 15}
    s_cmp_eq_u32 s57, 0
    s_cbranch_scc1 L_mlf
    buffer_store_dwordx2 v[26:27], v106, s[32:35], s38 offen offset:{B_ML} sc1
    s_branch L_mle
    L_mlf:
    buffer_store_dwordx2 v[26:27], v106, s[32:35], s38 offen offset:{B_ML}
    L_mle:
    s_mov_b64 exec, -1
    L_noml:""")
    l = lab("pl")
    A(f"{l}:")
    for i in range(4): A(f"ds_read_b128 v[{44+4*i}:{47+4*i}], v{76+i}")
    A("s_waitcnt lgkmcnt(0)")
    any_sent(range(44, 60), 20)
    loop_back(l)
    stamp(9)
    def ffn2():
        wait_flag(6, F_W2, 22)
        trw(L_W2, 2, 60)
        wait_flag(6, F_ACT, 22)
        A("ds_read_b128 v[68:71], v117\nds_read_b128 v[72:75], v117 offset:64\ns_waitcnt lgkmcnt(0)")
        for kk in range(2):
            A(f"v_mfma_f32_16x16x32_bf16 v[8:11], v[{60+4*kk}:{63+4*kk}], v[{68+4*kk}:{71+4*kk}], {'v[8:11]' if kk else 0}")
    def wopre():
        wait_flag(6, F_WO, 22)
        if op2: op_loads(44)
        if not opearly: op_loads()
        trw(L_WO, 4, 60)
    iv = order.index('v')
    assert order.index('w2') < order.index('wo') or order.index('wo') < iv
    if order.index('w2') < iv: ffn2()
    def pvstep(i, waitcnt):
        for t in range(2):
            for u in range(2):
                r = 24 + 8 * (i & 1) + 4 * t + 2 * u
                A(f"ds_read_b64_tr_b16 v[{r}:{r+1}], v{80+2*i+t} offset:{L_V + u*4096}")
    def pvmfma(i):
        for t in range(2):
            r = 24 + 8 * (i & 1) + 4 * t
            A(f"v_mfma_f32_16x16x32_bf16 v[{12+4*t}:{15+4*t}], v[{r}:{r+3}], v[{44+4*i}:{47+4*i}], {f'v[{12+4*t}:{15+4*t}]' if i else 0}")
    if vsplit:
        A(f"""ds_read_b32 v20, v6 offset:{F_V}
        s_waitcnt lgkmcnt(0)
        v_cmp_eq_u32 vcc, -1, v20
        s_cbranch_vccz L_pvall""")
        for i, f in enumerate((F_V0, F_V1, F_V2, F_V)):
            wait_flag(6, f, 20)
            if i == 3: stamp(10)
            pvstep(i, 0)
            A("s_waitcnt lgkmcnt(0)")
            pvmfma(i)
        A("s_branch L_pvdone\nL_pvall:")
    else:
        wait_flag(6, F_V, 20)
    if True:
        stamp(10)
        pvstep(0, 0); pvstep(1, 0)
        A("s_waitcnt lgkmcnt(4)"); pvmfma(0); pvstep(2, 0)
        A("s_waitcnt lgkmcnt(4)"); pvmfma(1); pvstep(3, 0)
        A("s_waitcnt lgkmcnt(4)"); pvmfma(2)
        A("s_waitcnt lgkmcnt(0)"); pvmfma(3)
        A("L_pvdone:\ns_nop 7")
    tag(range(12, 20))
    A(f"""s_mov_b64 exec, s[50:51]
    s_cmp_eq_u32 s57, 0
    s_cbranch_scc0 L_opslow
    buffer_store_dwordx4 v[12:15], v109, s[32:35], s38 offen offset:{B_OP}{pst}
    buffer_store_dwordx4 v[16:19], v109, s[32:35], s38 offen offset:{B_OP + 256}{pst}
    L_opdone:""")
    if hold: A(f"ds_write_b32 v101, v6 offset:{F_OPD}")
    A("s_mov_b64 exec, -1")
    stamp(11)
    def op_loads(r=24):
        for i in range(4): A(f"buffer_load_dwordx4 v[{r+4*i}:{r+3+4*i}], v113, s[32:35], s{44+i} offen offset:{B_OP} sc1")
    if opearly and not hold and not pre: op_loads()
    if order.index('w2') > iv: ffn2()
    if hold or pre:
        wait_flag(6, F_PRE, 22)
        if presl: A(f"s_sleep {presl}")
        op_loads()
    if dyn:
        wait_flag(6, F_RED, 22)
        A("""v_readfirstlane_b32 s76, v22
        s_xor_b32 s76, s76, s28
        s_or_b32 s77, s76, s57
        s_cselect_b32 s77, 2, 1
        s_and_b32 s37, s29, 3
        s_or_b32 s76, s76, s37
        s_cselect_b32 s76, s77, 0""")
    if not olate: wopre()
    else:
        assert not op2 and not hold and not pre
        if opsl: A(f"s_sleep {opsl}")
        if not opearly: op_loads()
    stamp(12)
    def alpha_wait(tagl):
        A("s_waitcnt lgkmcnt(0)")
        any_sent(range(40, 44), 22)
        A(f"s_cbranch_vccz L_alok{tagl}")
        l = lab("al")
        A(f"""{l}:
        ds_read_b128 v[40:43], v114
        s_waitcnt lgkmcnt(0)""")
        any_sent(range(40, 44), 22)
        loop_back(l)
        A(f"L_alok{tagl}:")
    def wsum(r):
        A(f"""v_pk_mul_f32 v[12:13], v[{r}:{r+1}], v[40:41] op_sel_hi:[1,0]
        v_pk_mul_f32 v[14:15], v[{r+2}:{r+3}], v[40:41] op_sel_hi:[1,0]
        v_pk_fma_f32 v[12:13], v[{r+4}:{r+5}], v[40:41], v[12:13] op_sel:[0,1,0] op_sel_hi:[1,1,1]
        v_pk_fma_f32 v[14:15], v[{r+6}:{r+7}], v[40:41], v[14:15] op_sel:[0,1,0] op_sel_hi:[1,1,1]
        v_pk_fma_f32 v[12:13], v[{r+8}:{r+9}], v[42:43], v[12:13] op_sel_hi:[1,0,1]
        v_pk_fma_f32 v[14:15], v[{r+10}:{r+11}], v[42:43], v[14:15] op_sel_hi:[1,0,1]
        v_pk_fma_f32 v[12:13], v[{r+12}:{r+13}], v[42:43], v[12:13] op_sel:[0,1,0] op_sel_hi:[1,1,1]
        v_pk_fma_f32 v[14:15], v[{r+14}:{r+15}], v[42:43], v[14:15] op_sel:[0,1,0] op_sel_hi:[1,1,1]""")
    if op2:
        A("L_opA:\nds_read_b128 v[40:43], v114\ns_waitcnt vmcnt(4)")
        bad_tag(range(24, 40), 88, 55, 123)
        A("s_cbranch_vccz L_opAok")
        op_loads(24)
        A("s_waitcnt vmcnt(4)")
        bad_tag(range(44, 60), 88, 55, 123)
        A("s_cbranch_vccz L_opBok")
        op_loads(44)
        A(f"""s_add_u32 s101, s101, 1
        s_cmp_lt_u32 s101, {SPIN}
        s_cbranch_scc1 L_opA
        L_opBok:""")
        stamp(13)
        alpha_wait("B"); wsum(44)
        A("s_branch L_opJ\nL_opAok:")
        stamp(13)
        alpha_wait("A"); wsum(24)
        A("L_opJ:")
    else:
        l = lab("og")
        A(f"s_branch L_ochk\n{l}:")
        op_loads()
        A("L_ochk:\nds_read_b128 v[40:43], v114\ns_waitcnt vmcnt(0)")
        bad_tag(range(24, 40), 88, 55, 123)
        if opmask:
            A(f"""s_cbranch_vccz L_opok
            s_mov_b64 exec, vcc
            L_opr:""")
            op_loads()
            A("s_waitcnt vmcnt(0)")
            bad_tag(range(24, 40), 88, 55, 123)
            A(f"""s_cbranch_vccz L_opdn
            s_mov_b64 exec, vcc
            s_add_u32 s101, s101, 1
            s_cmp_lt_u32 s101, {SPIN}
            s_cbranch_scc1 L_opr
            L_opdn:
            s_mov_b64 exec, -1
            ds_read_b128 v[40:43], v114
            L_opok:""")
        else:
            gloop_back(l)
        stamp(13)
        alpha_wait("A"); wsum(24)
    stamp(17)
    A("""v_permlane16_swap_b32 v12, v14
    v_permlane16_swap_b32 v13, v15
    v_pk_add_f32 v[12:13], v[12:13], v[14:15]
    v_mov_b32 v14, v12
    v_mov_b32 v15, v13
    v_permlane32_swap_b32 v14, v12
    v_permlane32_swap_b32 v15, v13
    v_pk_add_f32 v[12:13], v[12:13], v[14:15]
    v_cvt_pk_bf16_f32 v12, v12, v13
    v_min_u32 v12, s52, v12
    ds_write_b32 v115, v12""")
    l = lab("ol")
    A(f"{l}:")
    for kk in range(4): A(f"ds_read_b128 v[{76+4*kk}:{79+4*kk}], v116 offset:{64*kk}")
    A("s_waitcnt lgkmcnt(0)")
    any_sent(range(76, 92), 22)
    loop_back(l)
    if olate:
        stamp(18)
        wait_flag(6, F_WO, 22)
        trw(L_WO, 4, 60)
    for kk in range(4):
        if olate: A(f"s_waitcnt lgkmcnt({6 - 2*kk})")
        A(f"v_mfma_f32_16x16x32_bf16 v[8:11], v[{60+4*kk}:{63+4*kk}], v[{76+4*kk}:{79+4*kk}], v[8:11]")
    A("s_cmp_lt_u32 s76, 2" if dyn else "s_lshl_b32 s37, s28, 2\ns_cmp_eq_u32 s29, s37")
    tag(range(8, 12))
    A(f"""s_mov_b64 exec, s[48:49]
    s_cbranch_scc1 L_final
    buffer_store_dwordx4 v[8:11], v118, s[32:35], s68 offen sc1""")
    if stamps:
        A("s_mov_b64 exec, -1")
        stamp(14)
        A("s_branch L_cend")
    else: A("s_endpgm")
    A(f"""L_opslow:
    buffer_store_dwordx4 v[12:15], v109, s[32:35], s38 offen offset:{B_OP} sc1
    buffer_store_dwordx4 v[16:19], v109, s[32:35], s38 offen offset:{B_OP + 256} sc1
    s_branch L_opdone""")
    A(f"""L_final:
    buffer_store_dwordx4 v[8:11], v118, s[32:35], s68 offen
    s_mov_b64 exec, -1""")
    stamp(14)
    if dyn: A(f"s_cmp_eq_u32 s76, 0\ns_cbranch_scc0 {'L_cend' if stamps else 'L_end'}")
    if fdelay: A(f"s_sleep {fdelay}")
    def fp_loads(r):
        for i in range(4):
            A(f"buffer_load_dwordx4 v[{r+4*i}:{r+3+4*i}], v99, s[32:35], s70 offen offset:{512*i} sc1")
    sets = [24, 44, 60][:fpsets]
    for r in sets: fp_loads(r)
    A("L_fp:")
    for k, r in enumerate(sets):
        A(f"s_waitcnt vmcnt({4*(len(sets)-1)})")
        bad_tag(range(r, r + 16), 76, 55, 123)
        A(f"s_cbranch_vccz L_fpok{k}")
        if fpmask and fpsets == 1: A("s_mov_b64 exec, vcc")
        if fsl: A(f"s_sleep {fsl}")
        fp_loads(r)
    A(f"""s_add_u32 s101, s101, 1
    s_cmp_lt_u32 s101, {SPIN}
    s_cbranch_scc1 L_fp""")
    for k, r in reversed(list(enumerate(sets))):
        A(f"L_fpok{k}:")
        if fpmask and fpsets == 1: A("s_mov_b64 exec, -1")
        stamp(16)
        A(f"""v_pk_add_f32 v[12:13], v[{r}:{r+1}], v[{r+4}:{r+5}]
        v_pk_add_f32 v[14:15], v[{r+2}:{r+3}], v[{r+6}:{r+7}]
        v_pk_add_f32 v[16:17], v[{r+8}:{r+9}], v[{r+12}:{r+13}]
        v_pk_add_f32 v[18:19], v[{r+10}:{r+11}], v[{r+14}:{r+15}]""")
        if k: A("s_branch L_fpj")
    A(f"""L_fpj:
    v_pk_add_f32 v[12:13], v[12:13], v[16:17]
    v_pk_add_f32 v[14:15], v[14:15], v[18:19]
    v_permlane32_swap_b32 v12, v14
    v_permlane32_swap_b32 v13, v15
    v_pk_add_f32 v[12:13], v[12:13], v[14:15]
    v_mov_b32 v14, v12
    v_mov_b32 v15, v13
    v_permlane16_swap_b32 v14, v12
    v_permlane16_swap_b32 v15, v13
    v_pk_add_f32 v[12:13], v[12:13], v[14:15]
    v_lshlrev_b32 v14, 16, v97
    v_and_b32 v15, s36, v97
    v_add_f32 v12, v12, v12 row_ror:8
    v_add_f32 v13, v13, v13 row_ror:8
    v_pk_add_f32 v[12:13], v[12:13], v[14:15]
    v_cvt_pk_bf16_f32 v12, v12, v13
    s_mov_b32 s40, 0xff
    s_mov_b32 s41, 0xff
    s_mov_b64 exec, s[40:41]
    global_store_dword v98, v12, s[22:23]{outst}
    s_or_b32 s37, {'s29' if dyn else 's2'}, s30
    s_cbranch_scc1 L_cend
    v_mov_b32 v20, s54
    s_mov_b64 exec, 1
    global_store_dword v123, v20, s[26:27]{epsc}""")
    A("L_cend:")
    if stamps: A("s_mov_b64 exec, -1")
    stamp(15)
    if lst:
        A(f"""s_memrealtime s[98:99]
        s_and_b32 s37, s29, -4
        s_add_u32 s37, s37, s30
        s_lshl_b32 s37, s37, 3
        s_add_u32 s37, s37, 0x8000000
        v_mov_b32 v20, s37
        s_waitcnt lgkmcnt(0)
        v_mov_b32 v22, s94
        v_mov_b32 v23, s98
        s_mov_b64 exec, 1
        global_store_dwordx2 v20, v[22:23], s[26:27]""")
    if lamp:
        A(f"""s_memrealtime s[98:99]
        s_mov_b64 exec, -1
        ds_read_b32 v20, v6 offset:{F_PRE}
        s_waitcnt lgkmcnt(0)
        v_readfirstlane_b32 s94, v20
        s_nop 3
        s_sub_u32 s37, s98, s94
        s_mul_i32 s37, s37, 10
        s_add_u32 s37, s37, s98
        L_ampl:
        s_memrealtime s[40:41]
        s_waitcnt lgkmcnt(0)
        s_sub_u32 s40, s40, s37
        s_cmp_lt_i32 s40, 0
        s_cbranch_scc1 L_ampl""")
    if amp is not None:
        A(f"""s_cmp_eq_u32 s30, 0
        s_cbranch_scc0 L_end
        s_cmp_eq_u32 s2, {ampwg}
        s_cbranch_scc0 L_end
        v_readlane_b32 s37, v{VST}, {amp}
        s_nop 4
        s_sub_u32 s37, s37, s94
        s_mul_i32 s37, s37, 10
        s_add_u32 s37, s37, s98
        L_ampl:
        s_memrealtime s[40:41]
        s_waitcnt lgkmcnt(0)
        s_sub_u32 s40, s40, s37
        s_cmp_lt_i32 s40, 0
        s_cbranch_scc1 L_ampl""")
    dump_stamps()
    A("L_end:\ns_endpgm")
    A(f""".section .rodata,"a"
    .p2align 6
    .amdhsa_kernel {NAME}
    .amdhsa_next_free_vgpr 160
    .amdhsa_next_free_sgpr 102
    .amdhsa_accum_offset 160
    .amdhsa_group_segment_fixed_size 0
    .amdhsa_kernarg_size 96
    .amdhsa_user_sgpr_count 2
    .amdhsa_user_sgpr_kernarg_segment_ptr 1
    .amdhsa_system_sgpr_workgroup_id_x 1
    .amdhsa_float_denorm_mode_32 3
    .end_amdhsa_kernel""")
    return A.finish()

if __name__ == "__main__":
    out = sys.argv[1] if len(sys.argv) > 1 else "k.s"
    kw = {}
    for a in sys.argv[2:]:
        if '=' in a:
            k, v = a.split('=', 1); kw[k] = eval(v)
        else: kw[a] = True
    open(out, "w").write(gen(**kw))
```

```python
import sys
from asmlib import Asm

NAME = "parallel_sum__sliding_block_cached__dense_activation_mish__decode_kernel"

L_K, L_V, L_WQ, L_WO, L_W1, L_W2 = 0x0, 0x8000, 0x10000, 0x14000, 0x18000, 0x1A000
L_S = 0x1C000
L_Q, L_P, L_O, L_ML, L_FLG, L_AL = L_S, L_S + 0x500, L_S + 0x900, L_S + 0xB40, L_S + 0xC00, L_S + 0xD00
L_XN, L_ACT, L_XR = 0x1D000, 0x1D900, 0x1DA00
LDS_BYTES = 0x1E200
QSTR, XSTR, OSTR = 272, 1040, 272
F_WQ, F_W1, F_K, F_V, F_WO, F_W2, F_QA, F_QB, F_ACT, F_X, F_MODE, F_V0, F_V1, F_V2, F_XN, F_PRE = [4 * i for i in range(16)]
F_OPD = 64
W_BLK = 0x10000
B_QP, B_HP, B_OP, B_ML, B_ID = 0, 512, 1024, 3072, 3200
W_FP = 0x100000
W_ST = 0x120000
F_RED = F_QB
W_B = 0x200000
SPIN = 1 << 18
IDTRY = 48

def gen(depth=22, stamps=False, safe=False, amp=None, ampwg=0, order=('wq', 'w1', 'k', 'v', 'w2', 'wo'),
        qa=34, qb=44, hpt=None, pref=True, header="", warmfp=True, fdelay=0, loaderonly=False, vsplit=True,
        forcemode=None, mlt='k', nobeacon=False, noB=False, fullml=True, fullid=True, prof=False, dsched=None, kph='A', wph='A', ntw=' nt', ntkv=' nt', sa=4, sb=12, touchout=False, fpsets=1, op2=False, epsc='', b1early=True, idt='x', qsets=3, hs=12, opmask=False, fpmask=False, opearly=False, hold=0, presl=0, early=False, free=(0, 8, 16, 24), mlpipe=0, mlsl=3, prew=0, pre=0, olate=False, opsl=0, xdirty=0, fsl=0, pst='', outst='', mlpre=0, touch=0x1ffff00, tfl='', tlate=True, wfl='', lamp=False, lst=False, dyn=True, forcer=None, bias0=45, late0=0, latex=0, skipffn=True, depthn=None, xmask=None, cprio=2, kpre=True, deep=None, t0=95, slope=3.35, margin=25, chk=(18, 26, 34, 42, 50, 58, 66, 74, 82)):
    A = Asm()
    uid = [0]
    def lab(p):
        uid[0] += 1
        return f"L_{p}{uid[0]}"
    VST = 127
    def stamp(k):
        if stamps:
            A(f"s_memrealtime s[98:99]\ns_waitcnt lgkmcnt(0)\nv_writelane_b32 v{VST}, s98, {k}")
    def stamp0():
        if stamps: A(f"v_writelane_b32 v{VST}, s94, 0")
    def dump_stamps():
        if stamps and amp is None:
            A(f"""s_lshl_b32 s96, s2, 3
            s_add_u32 s96, s96, s3
            s_lshl_b32 s96, s96, 7
            s_add_u32 s96, s96, 0x8000000
            s_add_u32 s96, s26, s96
            s_addc_u32 s97, s27, 0
            s_mov_b32 exec_lo, -1
            s_mov_b32 exec_hi, 0
            v_mbcnt_lo_u32_b32 v126, -1, 0
            v_lshlrev_b32 v126, 2, v126
            global_store_dword v126, v{VST}, s[96:97]""")
    def loop_back(l):
        if safe:
            o = lab("out")
            A(f"""s_add_u32 s100, s100, 1
            s_bitcmp1_b32 s100, 21
            s_cbranch_scc1 {o}
            s_cbranch_vccnz {l}
            {o}:""")
        else:
            A(f"s_cbranch_vccnz {l}")
    def gloop_back(l, sleep=0):
        o = lab("ok")
        A(f"s_cbranch_vccz {o}")
        if sleep: A(f"s_sleep {sleep}")
        A(f"""s_add_u32 s101, s101, 1
        s_cmp_lt_u32 s101, {SPIN}
        s_cbranch_scc1 {l}
        {o}:""")
    def wait_flag(vaddr, off, vt):
        l = lab("wf")
        A(f"""{l}:
        ds_read_b32 v{vt}, v{vaddr} offset:{off}
        s_waitcnt lgkmcnt(0)
        v_cmp_eq_u32 vcc, -1, v{vt}""")
        loop_back(l)
    def set_flag(vaddr, off, vdata):
        A(f"""s_mov_b64 exec, 1
        ds_write_b32 v{vaddr}, v{vdata} offset:{off}
        s_mov_b64 exec, -1""")
    def any_sent(regs, vt):
        regs = list(regs)
        A(f"v_max3_u32 v{vt}, v{regs[0]}, v{regs[1]}, v{regs[2] if len(regs) > 2 else regs[1]}")
        rest = regs[3:]
        while rest:
            a = rest[0]; b = rest[1] if len(rest) > 1 else rest[0]
            A(f"v_max3_u32 v{vt}, v{vt}, v{a}, v{b}")
            rest = rest[2:]
        A(f"v_cmp_eq_u32 vcc, -1, v{vt}")
    def bad_tag(regs, t0, sT, vzero):
        regs = list(regs); n = len(regs) // 2
        for i in range(n):
            if isinstance(sT, list):
                a, b, t = sT[i]
                A(f"v_bitop3_b32 v{t0+i}, v{a}, v{b}, {t} bitop3:0x7e")
            else:
                g, r = i // 4, i % 4
                A(f"v_bitop3_b32 v{t0+i}, v{regs[8*g+r]}, v{regs[8*g+4+r]}, s{72+r} bitop3:0x7e")
        cur = [t0 + i for i in range(n)]
        while len(cur) > 1:
            if len(cur) >= 3:
                A(f"v_or3_b32 v{cur[0]}, v{cur[0]}, v{cur[1]}, v{cur[2]}"); cur = cur[3:] + [cur[0]]
            else:
                A(f"v_or_b32 v{cur[0]}, v{cur[0]}, v{cur[1]}"); cur = [cur[0]]
        A(f"v_cmp_ne_u32_sdwa vcc, v{cur[0]}, v{vzero} src0_sel:BYTE_0 src1_sel:DWORD")
    def mktags(se, lanebit):
        A(f"""s_mov_b32 s72, s{se}
        s_lshr_b32 s73, s{se}, 8
        s_lshr_b32 s74, s{se}, 16
        s_lshr_b32 s75, s{se}, 24
        v_mov_b32 v156, 0xff
        v_and_b32 v152, s72, v156
        v_and_b32 v153, s73, v156
        v_and_b32 v154, s74, v156
        v_and_b32 v155, s75, v156
        v_and_b32 v157, 1, v0
        v_cmp_eq_u32 vcc, 0, v157
        v_cndmask_b32 v156, v154, v152, vcc
        v_cndmask_b32 v157, v155, v153, vcc""")
    def rgmap(r, t):
        if tuple(free) == (28, 29, 30, 31): return
        mask = 0xffffffff
        for f in free: mask &= ~(1 << f)
        A(f"""s_bfm_b32 s{t}, s{r}, 0
        s_and_b32 s{t}, s{t}, {mask}
        s_bcnt1_i32_b32 s{t}, s{t}
        s_bitcmp1_b32 {mask}, s{r}
        s_cselect_b32 s{r}, s{t}, 28""")
    def bf16r(d, s):
        A(f"v_cvt_pk_bf16_f32 v{d}, v{s}, v{s}\nv_lshlrev_b32 v{d}, 16, v{d}")
    def ws_srd(d):
        A(f"""s_add_u32 s{d}, s26, {W_BLK}
        s_addc_u32 s{d+1}, s27, 0
        s_mov_b32 s{d+2}, 0x300000
        s_mov_b32 s{d+3}, 0x00020000""")
    def allred(v, t, op):
        A(f"""v_mov_b32 v{t}, v{v}
        v_permlane32_swap_b32 v{t}, v{v}
        {op} v{v}, v{v}, v{t}
        v_mov_b32 v{t}, v{v}
        v_permlane16_swap_b32 v{t}, v{v}
        {op} v{v}, v{v}, v{t}""")

    def allred2(v, t, w, u, op):
        for sw in ("v_permlane32_swap_b32", "v_permlane16_swap_b32"):
            A(f"""v_mov_b32 v{t}, v{v}
            v_mov_b32 v{u}, v{w}
            {sw} v{t}, v{v}
            {sw} v{u}, v{w}
            {op} v{v}, v{v}, v{t}
            {op} v{w}, v{w}, v{u}""")
    A(header)
    A(f"; @launch grid=(256,1,1) block=(384,1,1) lds={LDS_BYTES}")
    A(f""".amdgcn_target "amdgcn-amd-amdhsa--gfx950"
    .text
    .globl {NAME}
    .p2align 8
    .type {NAME},@function
    {NAME}:""")
    if early: A("s_memrealtime s[92:93]")
    A(f"""s_load_dwordx16 s[4:19], s[0:1], 0
    s_load_dwordx8 s[20:27], s[0:1], 64
    s_getpc_b64 s[30:31]
    L_pc:
    s_cmpk_ge_u32 s2, 256
    s_cbranch_scc1 L_end
    v_xor_b32 v2, 0x140, v0
    v_readfirstlane_b32 s3, v0
    v_lshlrev_b32 v2, 7, v2
    v_min_u32 v2, L_end-L_pc, v2
    global_load_dword v125, v2, s[30:31]""")
    if late0: A(f"s_and_b32 s28, s2, 7\ns_cmp_lg_u32 s28, {latex}\ns_cbranch_scc1 L_nl\ns_sleep {late0}\nL_nl:" if latex else f"s_and_b32 s28, s2, 7\ns_cbranch_scc1 L_nl\ns_sleep {late0}\nL_nl:")
    if stamps: A("s_memrealtime s[94:95]")
    A(f"""s_cmp_eq_u32 s3, 0
    s_cbranch_scc0 L_notloader
    v_lshrrev_b32 v2, 3, v0
    v_and_b32 v9, 6, v2
    v_xor_b32 v9, v9, v0
    v_and_b32 v9, 7, v9
    v_lshlrev_b32 v9, 4, v9
    v_lshrrev_b32 v4, 5, v0
    v_and_b32 v5, 3, v2
    v_lshl_add_u32 v6, v4, 3, v5
    v_lshl_add_u32 v10, v6, 13, v9
    v_add_u32 v11, 31744, v10
    v_lshlrev_b32 v21, 4, v0
    s_mov_b32 s34, -1
    s_mov_b32 s35, 0x00020000
    s_movk_i32 s60, 0x800
    {'' if late0 else 's_and_b32 s28, s2, 7'}
    s_lshr_b32 s29, s2, 3
    s_lshr_b32 s57, s2, 6
    s_lshl_b32 s57, s57, 10
    s_or_b32 s57, s57, s28
    s_lshl_b32 s57, s57, 3
    s_and_b32 s58, s29, 7
    s_or_b32 s57, s57, s58
    s_lshl_b32 s57, s57, 7
    s_lshl_b32 s59, s60, 6
    s_mov_b32 m0, {L_XR}
    {'s_memrealtime s[76:77]' if early else ''}
    s_waitcnt lgkmcnt(0)
    {'s_memrealtime s[78:79]' if early else ''}
    global_load_lds_dwordx4 v21, s[4:5]
    global_load_lds_dwordx4 v21, s[4:5] offset:1024
    s_lshl_b32 m0, s60, 5
    s_mov_b64 s[32:33], s[10:11]
    L_wq:
    buffer_load_dwordx4 v10, s[32:35], s57 offen nt lds
    buffer_load_dwordx4 v11, s[32:35], s57 offen offset:1024 nt lds
    s_add_u32 m0, m0, s60
    s_add_u32 s57, s57, s59
    s_bitcmp0_b32 m0, 14
    s_cbranch_scc1 L_wq""")
    A("L_after256:")
    if early: A("s_memrealtime s[82:83]\ns_mov_b32 s80, s82")
    if stamps: A(f"v_mov_b32 v{VST}, 0")
    A("""s_setprio 3
    s_and_b32 s61, s29, 3
    s_lshl_b32 s62, s61, 3
    s_add_u32 s62, s62, s28
    s_lshr_b32 s63, s29, 2""")
    rgmap(62, 58)
    if deep and xmask is None: A("s_memrealtime s[72:73]")
    assert order[0] == 'wq' and L_WQ == 0x10000
    info = dict(wq=(8, 32, 10, L_WQ, F_WQ), w1=(4, 36, 12, L_W1, F_W1), k=(16, 40, 14, L_K, F_K), v=(16, 44, 14, L_V, F_V),
                wo=(8, 48, 16, L_WO, F_WO), w2=(4, 52, 18, L_W2, F_W2))
    def mkflags(order):
        flag_at = {2: [F_X]}
        cum = 2
        for m in order:
            if m == 'v' and vsplit:
                for i, f in enumerate((F_V0, F_V1, F_V2)): flag_at.setdefault(cum + 8 * (i + 1), []).append(f)
            cum += 2 * info[m][0]
            flag_at.setdefault(cum, []).append(info[m][4])
        return flag_at, cum
    flag_at, cum = mkflags(order)
    def kphase():
        if kph == 'A': A("s_and_b32 s67, s29, 15")
        elif kph == 'B': A("s_lshl_b32 s67, s28, 1\ns_lshr_b32 s59, s29, 4\ns_add_u32 s67, s67, s59")
        elif kph == 'C': A("s_lshl_b32 s67, s28, 1\ns_lshr_b32 s59, s29, 4\ns_add_u32 s67, s67, s59\ns_and_b32 s59, s29, 8\ns_add_u32 s67, s67, s59\ns_and_b32 s67, s67, 15")
        elif kph == 'D': A("s_lshl_b32 s67, s28, 1\ns_add_u32 s67, s67, s29\ns_and_b32 s67, s67, 15")
        elif kph == 'E': A("s_lshl_b32 s67, s28, 1\ns_lshr_b32 s59, s29, 2\ns_add_u32 s67, s67, s59\ns_and_b32 s67, s67, 15")
        elif kph == 'F': A("s_mul_i32 s67, s29, 5\ns_mul_i32 s59, s28, 3\ns_add_u32 s67, s67, s59\ns_and_b32 s67, s67, 15")
        elif kph == 'G': A("s_and_b32 s67, s29, 7\ns_lshl_b32 s67, s67, 1")
        elif kph == 'Z': A("s_mov_b32 s67, 0")
    def setup(m):
        if m == 'wq': return
        if m == 'w1':
            A("""v_mul_u32_u24 v12, 3584, v6
            v_add_u32 v12, v12, v9
            v_add_u32 v13, 13312, v12
            s_mov_b32 s36, s16
            s_mov_b32 s37, s17
            s_cmp_lt_u32 s62, 28
            s_cselect_b32 s38, 1835008, 0
            s_mov_b32 s39, 0x00020000
            s_mul_i32 s57, s63, 229376
            s_lshl_b32 s58, s62, 7
            s_add_u32 s57, s57, s58
            s_lshl_b32 s56, s61, 11""")
        elif m == 'k':
            A(f"""v_lshrrev_b32 v7, 4, v0
            v_lshlrev_b32 v8, 1, v7
            v_xor_b32 v8, v8, v0
            v_and_b32 v8, 15, v8
            v_lshlrev_b32 v8, 4, v8
            v_lshl_add_u32 v14, v7, 8, v8
            v_xor_b32 v15, 128, v14
            s_mov_b32 s40, s6
            s_mov_b32 s41, s7
            s_mov_b32 s42, 33554432
            s_mov_b32 s43, 0x00020000
            s_lshr_b32 s64, s29, 4
            s_lshl_b32 s64, s64, 3
            s_add_u32 s64, s64, s28
            s_lshl_b32 s64, s64, 21
            s_and_b32 s58, s29, 15
            s_lshl_b32 s58, s58, 15
            s_add_u32 s64, s64, s58
            s_add_u32 s64, s64, 1572864""")
            kphase()
            A("s_lshl_b32 s56, s67, 11")
        elif m == 'v':
            A(f"""s_mov_b32 s44, s8
            s_mov_b32 s45, s9
            s_mov_b32 s46, 33554432
            s_mov_b32 s47, 0x00020000""")
            if vsplit:
                A("""s_lshl_b32 s65, s61, 13
                s_and_b32 s66, s63, 3
                s_lshl_b32 s66, s66, 11
                s_or_b32 s56, s65, s66""")
            else:
                A("s_lshl_b32 s56, s67, 11")
        elif m == 'wo':
            A("""v_lshl_add_u32 v7, v4, 7, v5
            v_lshl_add_u32 v16, v7, 10, v9
            v_add_u32 v17, 15360, v16
            s_mov_b32 s48, s12
            s_mov_b32 s49, s13
            s_mov_b32 s50, 4194304
            s_mov_b32 s51, 0x00020000
            s_lshl_b32 s57, s28, 19
            s_lshl_b32 s58, s61, 15
            s_add_u32 s57, s57, s58
            s_lshl_b32 s58, s63, 7
            s_add_u32 s57, s57, s58""")
            A(dict(A="s_and_b32 s56, s29, 7\ns_lshl_b32 s56, s56, 11", Z="s_mov_b32 s56, 0", X="s_lshl_b32 s56, s28, 11", P="s_lshl_b32 s56, s28, 11")[wph])
        elif m == 'w2':
            A("""v_lshl_add_u32 v18, v6, 10, v9
            v_add_u32 v19, 3072, v18
            s_mov_b32 s52, s20
            s_mov_b32 s53, s21
            s_cmp_lt_u32 s62, 28
            s_cselect_b32 s54, 1835008, 0
            s_mov_b32 s55, 0x00020000
            s_lshl_b32 s57, s62, 16
            s_lshl_b32 s58, s63, 7
            s_add_u32 s57, s57, s58
            s_lshl_b32 s56, s61, 11""")
    total = cum
    if hold or pre: flag_at.setdefault(total - (hold or pre), []).append(F_PRE)
    if mlpre: flag_at.setdefault(total - mlpre, []).append(F_QA)
    stn = {F_PRE: 10, F_WQ: 3, F_W1: 4, F_K: 5, F_V: 6, F_WO: 7, F_QA: 2, F_X: 8, F_W2: 9}
    def stream(depth, variant, order=order, flag_at=flag_at):
        issued = 2
        done_barrier = variant == 1
        flagged = set()
        live = variant != 1
        pending = False
        def landed(n):
            for c in sorted(flag_at):
                if c <= n and c not in flagged:
                    flagged.add(c)
                    if not live: continue
                    A("s_mov_b64 exec, 1")
                    for f in flag_at[c]: A(f"ds_write_b32 v20, v20 offset:{f}")
                    A("s_mov_b64 exec, -1")
                    for f in flag_at[c]:
                        if f in stn: stamp(stn[f])
        for m in order:
            npair, srd, vo, lbase, _ = info[m]
            if m == 'wq':
                issued += 16
                continue
            if live: setup(m)
            for p in range(npair):
                d = depth
                if dsched and variant == 0:
                    for (frm, dd) in dsched:
                        if issued >= frm: d = dd
                if variant == 1 and (issued - (depth0 - 2)) in chk:
                    live = True
                    A(f"L_deep{issued}:")
                if hold and issued >= total - hold:
                    if issued == total - hold and live:
                        cv = [c for c in flag_at if F_V in flag_at[c]][0]
                        for c in sorted(flag_at):
                            if c <= cv and c not in flagged:
                                A(f"s_waitcnt vmcnt({issued - c})")
                                landed(c)
                        l = lab("hold")
                        A(f"""{l}:
                        ds_read_b128 v[24:27], v20 offset:{F_OPD}
                        s_waitcnt lgkmcnt(0)
                        v_max3_u32 v24, v24, v25, v26
                        v_max_u32 v24, v24, v27
                        v_cmp_eq_u32 vcc, -1, v24
                        s_cbranch_vccnz {l}""")
                elif issued + 2 > d:
                    if not done_barrier:
                        A(f"v_mov_b32 v20, {L_FLG}\ns_barrier")
                        stamp(1)
                        done_barrier = True
                    if live: A(f"s_waitcnt vmcnt({d - 2})")
                    landed(issued - (d - 2))
                    if prof and live and (issued - (d - 2)) % 8 == 2: stamp(11 + (issued - (d - 2)) // 8)
                    if variant == 0 and deep:
                        n = issued - (d - 2)
                        if n in chk and xmask is not None:
                            A(f"s_bitcmp1_b32 {xmask}, s28\ns_cbranch_scc1 L_deep{issued}")
                        elif n in chk:
                            thr = int(t0 + slope * (n - 2) + margin)
                            A(f"""s_memrealtime s[70:71]
                            s_waitcnt lgkmcnt(0)
                            s_sub_u32 s70, s70, s72
                            s_cmp_gt_u32 s70, {thr}
                            s_cbranch_scc1 L_deep{issued}""")
                if live:
                    A(f"s_add_u32 m0, s56, {lbase}" if lbase else "s_mov_b32 m0, s56")
                    if m == 'wq': A("s_lshl_b32 s58, s56, 6\ns_add_u32 s58, s58, s57")
                    elif m == 'w1': A("s_mul_i32 s58, s56, 28\ns_add_u32 s58, s58, s57")
                    elif m == 'w2': A("s_lshl_b32 s58, s56, 3\ns_add_u32 s58, s58, s57")
                    elif m == 'wo': A("s_and_b32 s58, s56, s60\ns_lshl_b32 s58, s58, 7\ns_and_b32 s59, s56, 0x3000\ns_add_u32 s58, s58, s59\ns_add_u32 s58, s58, s57")
                    else: A("s_add_u32 s58, s56, s64")
                    fl = ntkv if m in ('k', 'v') else ntw
                    A(f"buffer_load_dwordx4 v{vo}, s[{srd}:{srd+3}], s58 offen{fl} lds")
                    A(f"buffer_load_dwordx4 v{vo+1}, s[{srd}:{srd+3}], s58 offen offset:1024{fl} lds")
                issued += 2
                if p != npair - 1 and live:
                    if m == 'v' and vsplit:
                        A("s_add_u32 s66, s66, s60\ns_and_b32 s66, s66, 0x1fff")
                        if p % 4 == 3: A("s_add_u32 s65, s65, 0x2000\ns_and_b32 s65, s65, 0x7fff")
                        A("s_or_b32 s56, s65, s66")
                    else:
                        A(f"s_add_u32 s56, s56, s60\ns_and_b32 s56, s56, {npair * 2048 - 1}")
        pts = set(c for c in flag_at if c not in flagged)
        if prof: pts |= set(c for c in range(issued - depth + 4, issued + 1) if c % 8 == 2)
        for c in sorted(pts):
            A(f"s_waitcnt vmcnt({issued - c})")
            landed(c)
            if prof and c % 8 == 2: stamp(11 + c // 8)
        if early:
            for k, r in ((11, 76), (12, 78), (13, 80), (14, 82), (15, 92)): A(f"v_writelane_b32 v{VST}, s{r}, {k}")
        if stamps: A(f"s_mov_b32 s98, {variant + 1}\nv_writelane_b32 v{VST}, s98, 31")
        stamp0()
        dump_stamps()
        A("s_endpgm")
    depth0 = depth
    if skipffn: A("s_cmp_lt_u32 s62, 28\ns_cbranch_scc0 L_noffn")
    stream(depth, 0)
    if deep: stream(deep, 1)
    if skipffn:
        A("L_noffn:")
        o2 = tuple(m for m in order if m not in ('w1', 'w2'))
        stream(depthn or depth, 2, o2, mkflags(o2)[0])

    A("L_notloader:")
    A("""s_lshr_b32 s3, s3, 6
    v_and_b32 v0, 63, v0
    s_and_b32 s28, s2, 7
    s_lshr_b32 s29, s2, 3""")
    if stamps: A(f"v_mov_b32 v{VST}, 0")
    if loaderonly: A("s_barrier\ns_endpgm")
    A("s_cmp_eq_u32 s3, 1\ns_cbranch_scc0 L_compute")
    A(f"""s_and_b32 s61, s29, 3
    s_lshl_b32 s62, s61, 3
    s_add_u32 s62, s62, s28""")
    rgmap(62, 63)
    A(f"""v_and_b32 v11, 7, v0
    v_lshlrev_b32 v11, 2, v11
    v_lshrrev_b32 v12, 5, v0
    v_lshl_add_u32 v11, v12, 1, v11
    v_bfe_u32 v12, v0, 4, 1
    v_add_u32 v11, v11, v12
    v_bfe_u32 v12, v0, 3, 1
    v_lshl_add_u32 v11, v12, 5, v11
    s_min_u32 s63, s62, 27
    s_lshl_b32 s63, s63, 6
    v_add_u32 v13, s63, v11
    v_lshlrev_b32 v13, 1, v13
    v_mov_b32 v20, {L_FLG}
    v_mov_b32 v40, 0
    v_mov_b32 v41, 0
    v_mov_b32 v19, 0
    s_mov_b32 s100, 0
    s_mov_b32 s101, 0
    s_getreg_b32 s64, hwreg(HW_REG_XCC_ID)
    {'s_memrealtime s[76:77]' if dyn else ''}
    s_lshl_b32 s65, s28, 17
    s_lshl_b32 s66, s29, 12
    s_add_u32 s66, s66, s65
    v_and_b32 v21, 31, v0
    v_lshlrev_b32 v21, 12, v21
    s_waitcnt lgkmcnt(0)
    s_load_dword s5, s[26:27], 0""")
    if b1early: A("global_load_ushort v14, v13, s[18:19]")
    ws_srd(8)
    def dotouch():
        A(f"""v_lshlrev_b32 v25, 7, v0
        s_mov_b32 exec_lo, {touch}
        s_mov_b32 exec_hi, 0
        buffer_load_dword v124, v25, s[8:11], s66 offen{tfl}
        s_mov_b64 exec, -1""")
    if touch and not tlate: dotouch()
    A(f"""s_barrier
    s_and_b32 s64, s64, 15
    s_waitcnt lgkmcnt(0)
    s_add_u32 s5, s5, 1
    s_lshl_b32 s6, s5, 4
    s_or_b32 s6, s6, s64
    v_mov_b32 v22, s6
    v_lshlrev_b32 v24, 2, v0
    s_mov_b32 exec_lo, {0 if nobeacon else (-1 if fullid else 1)}
    s_mov_b32 exec_hi, 0
    buffer_store_dword v22, v24, s[8:11], s66 offen offset:{B_ID}
    s_mov_b64 exec, -1""")
    if dyn:
        A(f"""v_and_b32 v70, 7, v0
        v_lshlrev_b32 v71, 7, v70
        s_mov_b32 s78, {W_ST}
        s_cmp_eq_u32 s29, 0
        s_cbranch_scc0 L_nost
        s_lshl_b32 s34, s28, 7
        s_add_u32 s34, s34, s78
        s_cmp_eq_u32 s28, 0
        s_cselect_b32 s35, {bias0}, 0
        s_sub_u32 s76, s76, s35
        v_mov_b32 v26, s76
        v_mov_b32 v27, s5
        s_mov_b64 exec, 1
        buffer_store_dwordx2 v[26:27], v19, s[8:11], s34 offen sc1
        s_mov_b64 exec, -1
        L_nost:""")
    if prew:
        A("""s_not_b32 s34, s5
        v_mov_b32 v28, s34
        v_mov_b32 v29, s34
        v_mov_b32 v30, s34
        v_mov_b32 v31, s34
        v_lshlrev_b32 v25, 4, v0""")
        for o in ([0] if prew & 1 else []) + ([1024, 2048] if prew & 2 else []):
            A(f"buffer_store_dwordx4 v[28:31], v25, s[8:11], s66 offen offset:{o}")
        if prew & 4: A(f"s_mov_b64 exec, 0xff\nbuffer_store_dwordx4 v[28:31], v25, s[8:11], s66 offen offset:{B_ML}\ns_mov_b64 exec, -1")
    if xdirty:
        A(f"v_lshlrev_b32 v25, 4, v0\ns_xor_b32 s34, s66, {W_B}")
        for o in range(xdirty): A(f"buffer_store_dwordx4 v[28:31], v25, s[8:11], s34 offen offset:{1024*o}")
    if not b1early: A("global_load_ushort v14, v13, s[18:19]")
    stamp0()
    A(f"""v_lshrrev_b32 v5, 4, v0
    v_and_b32 v4, 15, v0
    v_bfe_u32 v60, v0, 2, 2
    v_and_b32 v17, 1, v5
    v_lshl_add_u32 v60, v17, 2, v60
    v_bfe_u32 v18, v0, 1, 1
    v_and_b32 v61, 6, v60
    v_xor_b32 v18, v18, v61
    v_lshlrev_b32 v18, 4, v18
    v_and_b32 v61, 1, v0
    v_lshl_add_u32 v18, v61, 3, v18
    v_lshrrev_b32 v17, 5, v0
    v_lshl_add_u32 v17, v17, 4, v60
    v_lshl_add_u32 v62, v17, 7, v18
    v_add_u32 v62, {L_W1}, v62
    v_xor_b32 v63, 32, v62
    v_xor_b32 v64, 64, v62
    v_xor_b32 v65, 96, v62
    v_mul_u32_u24 v18, {XSTR}, v61
    v_lshl_add_u32 v18, v5, 4, v18
    s_lshr_b32 s37, s29, 2
    s_lshl_b32 s37, s37, 7
    s_add_u32 s37, s37, {L_XN}
    v_add_u32 v66, s37, v18
    v_lshlrev_b32 v67, 8, v4
    v_lshl_add_u32 v67, v5, 4, v67
    s_movk_i32 s53, 0xff00
    s_mov_b32 s48, 0x00030003
    s_mov_b32 s49, 0x00030003""")
    mktags(5, 0)
    wait_flag(20, F_XN, 18)
    if not nobeacon: A(f"buffer_load_dword v23, v21, s[8:11], s65 offen offset:{B_ID} sc1")
    if skipffn: A("s_mov_b32 s7, 0\ns_cmp_lt_u32 s62, 28\ns_cbranch_scc0 L_idw0")
    A("ds_read_b128 v[24:27], v66\nds_read_b128 v[28:31], v66 offset:64")
    wait_flag(20, F_W1, 18)
    for t in range(4):
        for kk in range(2):
            for u in range(2):
                r = 72 + 8 * t + 4 * kk + 2 * u
                A(f"ds_read_b64_tr_b16 v[{r}:{r+1}], v{62+t} offset:{kk*4096 + u*1024}")
    for t in range(4):
        A(f"s_waitcnt lgkmcnt({12 - 4*t})")
        for kk in range(2):
            r = 72 + 8 * t + 4 * kk
            A(f"v_mfma_f32_16x16x32_bf16 v[{104+4*t}:{107+4*t}], v[{r}:{r+3}], v[{24+4*kk}:{27+4*kk}], {f'v[{104+4*t}:{107+4*t}]' if kk else 0}")
    for r in range(104, 120): A(f"v_and_or_b32 v{r}, v{r}, s53, v{152 + r % 4}")
    A("s_mov_b64 exec, s[48:49]")
    for t in range(4): A(f"buffer_store_dwordx4 v[{104+4*t}:{107+4*t}], v67, s[8:11], s66 offen offset:{B_HP + 64*t}{pst}")
    A("s_mov_b64 exec, -1\ns_mov_b32 s7, 0")
    stamp(6)
    if nobeacon: A("s_branch L_idok")
    l = lab("id")
    A(f"""s_waitcnt vmcnt(4)
    s_branch L_idchk
    {l}:
    buffer_load_dword v23, v21, s[8:11], s65 offen offset:{B_ID} sc1
    L_idw0:
    s_waitcnt vmcnt(0)
    L_idchk:
    v_cmp_ne_u32 vcc, s6, v23
    s_cbranch_vccz L_idok
    s_add_u32 s7, s7, 1
    s_cmp_lt_u32 s7, {IDTRY}
    s_cbranch_scc1 {l}
    L_idok:
    s_cmp_eq_u32 s7, {IDTRY}
    s_cselect_b32 s7, 1, 0""")
    if forcemode is not None: A(f"s_mov_b32 s7, {forcemode}")
    A("v_mov_b32 v23, s7")
    set_flag(20, F_MODE, 23)
    if touch and tlate: dotouch()
    stamp(1)
    A(f"""s_cmp_ge_u32 s62, 28
    s_cbranch_scc1 L_hpfast
    s_cmp_eq_u32 s7, 0
    s_cbranch_scc1 L_hpfast
    s_xor_b32 s37, s66, {W_B}
    s_mov_b64 exec, s[48:49]""")
    for t in range(4): A(f"buffer_store_dwordx4 v[{104+4*t}:{107+4*t}], v67, s[8:11], s37 offen offset:{B_HP + 64*t} sc1")
    A("s_mov_b64 exec, -1\nL_hpfast:")
    if dyn: A("buffer_load_dwordx2 v[120:121], v71, s[8:11], s78 offen sc1")
    A(f"""s_cmp_lt_u32 s62, 28
    s_cbranch_scc0 L_actw
    v_lshrrev_b32 v16, 3, v0
    v_lshlrev_b32 v16, 14, v16
    v_and_b32 v17, 7, v0
    v_lshl_add_u32 v16, v17, 4, v16
    s_lshl_b32 s31, s61, 12
    s_add_u32 s31, s31, s65""")
    if hpt: wait_flag(20, {'k': F_K}[hpt], 18)
    elif hs: A(f"s_sleep {hs}")
    l = lab("hp")
    A(f"s_lshl_b32 s7, s7, 21\n{l}:\ns_xor_b32 s31, s31, s7")
    for i in range(4):
        b, half = i & 1, i >> 1
        A(f"buffer_load_dwordx4 v[{24+4*i}:{27+4*i}], v16, s[8:11], s31 offen offset:{B_HP + b*256 + half*128} sc1")
    A("s_waitcnt vmcnt(0)")
    bad_tag(range(24, 40), 44, 5, 19)
    gloop_back(l, sleep=4)
    stamp(2)
    for i in range(4):
        r = 24 + 4 * i
        A(f"""v_permlane32_swap_b32 v{r}, v{r+2}
        v_permlane32_swap_b32 v{r+1}, v{r+3}
        v_add_f32 v{r}, v{r}, v{r+2}
        v_add_f32 v{r+1}, v{r+1}, v{r+3}""")
    for i in range(4):
        r = 24 + 4 * i
        A(f"v_permlane16_swap_b32 v{r}, v{r+1}\nv_add_f32 v{r}, v{r}, v{r+1}")
    for i in range(4):
        r = 24 + 4 * i
        A(f"v_add_f32 v{r}, v{r}, v{r} row_ror:8")
    A("""v_and_b32 v18, 8, v0
    v_cmp_eq_u32 vcc, 0, v18
    v_cndmask_b32 v40, v32, v24, vcc
    v_cndmask_b32 v41, v36, v28, vcc
    v_lshlrev_b32 v14, 16, v14
    s_mov_b32 s32, 0x3fb8aa3b
    s_mov_b32 s33, 0x3f317218""")
    for h in (40, 41):
        t = 44
        bf16r(h, h)
        A(f"v_add_f32 v{h}, v{h}, v14")
        bf16r(h, h)
        A(f"v_mul_f32 v{t}, s32, v{h}\nv_exp_f32 v{t}, -abs(v{t})")
        bf16r(t, t)
        A(f"""v_add_f32 v{t+1}, 1.0, v{t}
        v_log_f32 v{t+2}, v{t+1}
        v_add_f32 v{t+3}, -1.0, v{t+1}
        v_rcp_f32 v{t+3}, v{t+3}
        v_mul_f32 v{t+2}, s33, v{t+2}
        v_mul_f32 v{t+2}, v{t+2}, v{t}
        v_mul_f32 v{t+2}, v{t+2}, v{t+3}
        v_cmp_eq_f32 vcc, 1.0, v{t+1}
        v_cndmask_b32 v{t+2}, v{t+2}, v{t}, vcc""")
        bf16r(t+2, t+2)
        A(f"v_max_f32 v{t+1}, 0, v{h}\nv_add_f32 v{t+2}, v{t+2}, v{t+1}")
        bf16r(t+2, t+2)
        A(f"""v_mul_f32 v{t}, -2.0, v{t+2}
        v_mul_f32 v{t+1}, s32, v{t}
        v_exp_f32 v{t+1}, v{t+1}
        v_log_f32 v{t+3}, v{t+1}
        v_add_f32 v{t+4}, -1.0, v{t+1}
        v_mul_f32 v{t+3}, s33, v{t+3}
        v_rcp_f32 v{t+3}, v{t+3}
        v_mul_f32 v{t+5}, v{t+4}, v{t}
        v_mul_f32 v{t+5}, v{t+5}, v{t+3}
        v_cmp_eq_f32 vcc, 1.0, v{t+1}
        v_cndmask_b32 v{t+5}, v{t+5}, v{t}, vcc
        v_cmp_gt_f32 vcc, 0.5, v{t+1}
        v_cndmask_b32 v{t+5}, v{t+5}, v{t+4}, vcc
        v_add_f32 v{t+4}, 2.0, v{t+5}
        v_rcp_f32 v{t+4}, v{t+4}
        v_mul_f32 v{t+5}, v{t+5}, v{t+4}
        v_sub_f32 v{t+5}, 0, v{t+5}""")
        bf16r(t+5, t+5)
        A(f"v_mul_f32 v{h}, v{h}, v{t+5}\nv_cvt_pk_bf16_f32 v{h}, v{h}, v{h}")
    A(f"""L_actw:
    v_lshlrev_b32 v11, 1, v11
    v_add_u32 v11, {L_ACT}, v11
    ds_write_b16 v11, v40
    ds_write_b16 v11, v41 offset:128""")
    set_flag(20, F_ACT, 20)
    stamp(3)
    if dyn:
        l = lab("st")
        A(f"""s_waitcnt vmcnt(0)
        s_branch L_stchk
        {l}:
        buffer_load_dwordx2 v[120:121], v71, s[8:11], s78 offen sc1
        s_waitcnt vmcnt(0)
        L_stchk:
        v_cmp_ne_u32 vcc, s5, v121""")
        gloop_back(l, sleep=4)
        if lamp:
            A(f"""v_readfirstlane_b32 s34, v120
            v_subrev_u32 v122, s34, v120
            v_mov_b32 v123, {bias0}
            v_cmp_eq_u32 vcc, 0, v70
            v_cndmask_b32 v123, 0, v123, vcc
            v_add_u32 v122, v122, v123
            v_min_i32 v122, v122, v122 row_ror:1
            v_min_i32 v122, v122, v122 row_ror:2
            v_min_i32 v122, v122, v122 row_ror:4
            v_add_u32 v122, s34, v122""")
            set_flag(20, F_PRE, 122)
        A("""v_readfirstlane_b32 s34, v120
        v_subrev_u32 v120, s34, v120
        v_lshl_add_u32 v120, v120, 3, v70
        v_max_i32 v120, v120, v120 row_ror:1
        v_max_i32 v120, v120, v120 row_ror:2
        v_max_i32 v120, v120, v120 row_ror:4
        v_and_b32 v120, 7, v120""")
        if forcer is not None: A(f"v_mov_b32 v120, {forcer}")
        set_flag(20, F_RED, 120)
    A(f"""v_lshrrev_b32 v16, 2, v0
    v_and_b32 v17, 3, v0
    v_lshlrev_b32 v21, 12, v16
    v_lshl_add_u32 v21, v17, 3, v21
    s_add_u32 s66, s65, 65536
    v_and_b32 v18, 15, v0
    v_lshlrev_b32 v18, 4, v18
    v_lshrrev_b32 v22, 4, v0
    v_lshl_add_u32 v22, v22, 2, v18
    v_add_u32 v22, {L_AL}, v22
    s_movk_i32 s53, 0xff00
    s_mov_b32 s52, -2""")
    if mlpre: wait_flag(20, F_QA, 18)
    elif mlt: wait_flag(20, {'v0': F_V0, 'v1': F_V1, 'v2': F_V2, 'v': F_V, 'k': F_K}[mlt], 18)
    l = lab("ml")
    if mlpipe: A("v_not_b32 v24, v156\nv_not_b32 v26, v156\ns_waitcnt vmcnt(0)")
    A(f"""{l}:
    buffer_load_dwordx2 v[24:25], v21, s[8:11], s65 offen offset:{B_ML} sc1
    buffer_load_dwordx2 v[26:27], v21, s[8:11], s66 offen offset:{B_ML} sc1""")
    if mlpipe and mlsl: A(f"s_sleep {mlsl}")
    A(f"""s_waitcnt vmcnt({2 * mlpipe})
    v_mov_b32 v32, v24
    v_mov_b32 v33, v25
    v_mov_b32 v34, v26
    v_mov_b32 v35, v27""")
    bad_tag(range(32, 36), 44, [(32, 34, "v156"), (33, 35, "v157")], 19)
    gloop_back(l)
    stamp(4)
    A("""v_and_b32 v32, s53, v32
    v_and_b32 v34, s53, v34
    v_max_f32 v28, v32, v32 row_ror:4
    v_max_f32 v29, v34, v34 row_ror:4
    v_max_f32 v28, v28, v28 row_ror:8
    v_max_f32 v29, v29, v29 row_ror:8""")
    allred2(28, 30, 29, 31, "v_max_f32")
    A("""v_sub_f32 v32, v32, v28
    v_sub_f32 v34, v34, v29
    v_exp_f32 v32, v32
    v_exp_f32 v34, v34
    v_mul_f32 v33, v32, v33
    v_mul_f32 v35, v34, v35
    v_add_f32 v28, v33, v33 row_ror:4
    v_add_f32 v29, v35, v35 row_ror:4
    v_add_f32 v28, v28, v28 row_ror:8
    v_add_f32 v29, v29, v29 row_ror:8""")
    allred2(28, 30, 29, 31, "v_add_f32")
    A("""v_rcp_f32 v28, v28
    v_rcp_f32 v29, v29
    v_mul_f32 v32, v32, v28
    v_mul_f32 v34, v34, v29
    v_min_u32 v32, s52, v32
    v_min_u32 v34, s52, v34
    ds_write_b32 v22, v32
    ds_write_b32 v22, v34 offset:256""")
    stamp(5)
    dump_stamps()
    A("s_waitcnt lgkmcnt(0)\ns_endpgm")

    A("L_compute:")
    if cprio: A(f"s_setprio {cprio}")
    A(f"""s_sub_u32 s30, s3, 2
    v_lshlrev_b32 v2, 4, v0
    s_lshl_b32 s31, s30, 10
    s_add_u32 s31, s31, {L_S}
    v_add_u32 v3, s31, v2
    v_mov_b32 v4, -1
    v_mov_b32 v5, -1
    v_mov_b32 v6, -1
    v_mov_b32 v7, -1
    ds_write_b128 v3, v[4:7]
    s_mov_b32 s100, 0
    s_mov_b32 s101, 0
    s_waitcnt lgkmcnt(0)
    s_load_dword s54, s[26:27], 0
    s_barrier""")
    ws_srd(32)
    A(f"""s_mov_b32 s36, 0xffff0000
    v_and_b32 v4, 15, v0
    v_lshrrev_b32 v5, 4, v0
    v_mov_b32 v6, {L_FLG}
    v_bfe_u32 v96, v0, 2, 2
    v_and_b32 v17, 1, v5
    v_lshl_add_u32 v96, v17, 2, v96
    v_bfe_u32 v18, v0, 1, 1
    s_lshl_b32 s37, s30, 1
    v_add_u32 v18, s37, v18
    v_and_b32 v19, 6, v96
    v_xor_b32 v18, v18, v19
    v_lshlrev_b32 v18, 4, v18
    v_and_b32 v19, 1, v0
    v_lshl_add_u32 v18, v19, 3, v18
    v_lshrrev_b32 v17, 5, v0
    v_lshl_add_u32 v17, v17, 4, v96
    v_lshl_add_u32 v7, v17, 7, v18
    v_add_u32 v7, {L_WQ}, v7
    ; xn frag addresses v106 (wq rows), v105 (w1 rows)
    v_mul_u32_u24 v18, {XSTR}, v19
    v_lshl_add_u32 v18, v5, 4, v18
    s_lshr_b32 s37, s29, 3
    s_lshl_b32 s37, s37, 8
    s_add_u32 s37, s37, {L_XN}
    v_add_u32 v106, s37, v18
    s_lshl_b32 s37, s30, 6
    v_lshlrev_b32 v18, 8, v4
    v_lshl_add_u32 v18, v5, 4, v18
    v_add_u32 v107, s37, v18
    s_lshl_b32 s38, s28, 5
    s_add_u32 s38, s38, s29
    s_lshl_b32 s68, s38, 9
    s_lshl_b32 s38, s38, 12
    s_add_u32 s68, s68, {W_FP}
    v_add_u32 v3, {L_XN}, v2
    v_add_u32 v16, {L_XR}, v2
    s_mov_b32 s48, 0x00030003
    s_mov_b32 s49, 0x00030003
    s_mov_b32 s52, -2
    s_movk_i32 s53, 0xff00""")
    stamp(1)
    wait_flag(6, F_X, 17)
    A(f"""ds_read_b128 v[8:11], v16
    ds_read_b128 v[12:15], v16 offset:1024
    s_add_u32 s54, s54, 1
    s_waitcnt lgkmcnt(0)""")
    stamp0()
    stamp(2)
    for b in range(2):
        for i in range(4):
            A(f"v_lshlrev_b32 v{16+8*b+2*i}, 16, v{8+4*b+i}\nv_and_b32 v{17+8*b+2*i}, s36, v{8+4*b+i}")
    def red2(a, b, t):
        A(f"""v_permlane32_swap_b32 v{a}, v{b}
        v_add_f32 v{a}, v{a}, v{b}
        v_mov_b32 v{t}, v{a}
        v_permlane16_swap_b32 v{t}, v{a}
        v_add_f32 v{a}, v{a}, v{t}
        v_add_f32 v{a}, v{a}, v{a} row_ror:8
        v_add_f32 v{a}, v{a}, v{a} row_ror:4
        v_add_f32 v{a}, v{a}, v{a} row_ror:2
        v_add_f32 v{a}, v{a}, v{a} row_ror:1""")
    for b in range(2):
        f = 16 + 8 * b
        A(f"""v_pk_add_f32 v[{32+4*b}:{33+4*b}], v[{f}:{f+1}], v[{f+2}:{f+3}]
        v_pk_add_f32 v[{34+4*b}:{35+4*b}], v[{f+4}:{f+5}], v[{f+6}:{f+7}]""")
    for b in range(2):
        A(f"v_pk_add_f32 v[{32+4*b}:{33+4*b}], v[{32+4*b}:{33+4*b}], v[{34+4*b}:{35+4*b}]")
    A("v_add_f32 v32, v32, v33\nv_add_f32 v36, v36, v37")
    red2(32, 36, 33)
    A("""v_mul_f32 v32, 0x3b000000, v32
    v_readlane_b32 s60, v32, 0
    v_readlane_b32 s62, v32, 32""")
    for b in range(2):
        f = 16 + 8 * b
        for i in range(4):
            A(f"v_pk_add_f32 v[{40+8*b+2*i}:{41+8*b+2*i}], v[{f+2*i}:{f+2*i+1}], s[{60+2*b}:{61+2*b}] op_sel_hi:[1,0] neg_lo:[0,1] neg_hi:[0,1]")
    for b in range(2):
        d = 40 + 8 * b
        A(f"v_pk_mul_f32 v[{34+2*b}:{35+2*b}], v[{d}:{d+1}], v[{d}:{d+1}]")
    for i in range(1, 4):
        for b in range(2):
            d = 40 + 8 * b + 2 * i
            A(f"v_pk_fma_f32 v[{34+2*b}:{35+2*b}], v[{d}:{d+1}], v[{d}:{d+1}], v[{34+2*b}:{35+2*b}]")
    A("v_add_f32 v34, v34, v35\nv_add_f32 v36, v36, v37")
    red2(34, 36, 33)
    A("v_mul_f32 v34, 0x3b000000, v34")
    bf16r(34, 34)
    A("v_add_f32 v34, 0x3727c5ac, v34")
    bf16r(34, 34)
    A("v_sqrt_f32 v34, v34")
    bf16r(32, 32)
    bf16r(34, 34)
    A("v_rcp_f32 v34, v34")
    A("""v_readlane_b32 s60, v32, 0
    v_readlane_b32 s62, v32, 32
    v_readlane_b32 s64, v34, 0
    v_readlane_b32 s66, v34, 32""")
    for b in range(2):
        f = 16 + 8 * b
        for i in range(4):
            A(f"v_pk_add_f32 v[{f+2*i}:{f+2*i+1}], v[{f+2*i}:{f+2*i+1}], s[{60+2*b}:{61+2*b}] op_sel_hi:[1,0] neg_lo:[0,1] neg_hi:[0,1]")
    for i in range(8):
        A(f"v_cvt_pk_bf16_f32 v{8+i}, v{16+2*i}, v{17+2*i}")
    for i in range(8):
        A(f"v_lshlrev_b32 v{16+2*i}, 16, v{8+i}\nv_and_b32 v{17+2*i}, s36, v{8+i}")
    for b in range(2):
        f = 16 + 8 * b
        for i in range(4):
            A(f"v_pk_mul_f32 v[{f+2*i}:{f+2*i+1}], v[{f+2*i}:{f+2*i+1}], s[{64+2*b}:{65+2*b}] op_sel_hi:[1,0]")
    for i in range(8):
        A(f"v_cvt_pk_bf16_f32 v{8+i}, v{16+2*i}, v{17+2*i}")
    A(f"""ds_write_b128 v3, v[8:11]
    ds_write_b128 v3, v[12:15] offset:{XSTR}""")
    set_flag(6, F_XN, 6)
    mktags(54, 0)
    A("s_waitcnt lgkmcnt(0)")
    for kk in range(4): A(f"ds_read_b128 v[{24+4*kk}:{27+4*kk}], v106 offset:{64*kk}")
    stamp(3)
    wait_flag(6, F_WQ, 16)
    stamp(4)
    def trw(base, nk, r0):
        for kk in range(nk):
            for u in range(2):
                A(f"ds_read_b64_tr_b16 v[{r0+4*kk+2*u}:{r0+4*kk+2*u+1}], v7 offset:{base - L_WQ + kk*4096 + u*1024}")
    def tag(regs):
        for r in regs: A(f"v_and_or_b32 v{r}, v{r}, s53, v{152 + r % 4}")
    trw(L_WQ, 4, 48)
    for kk in range(4):
        A(f"s_waitcnt lgkmcnt({6 - 2*kk})")
        A(f"v_mfma_f32_16x16x32_bf16 v[88:91], v[{48+4*kk}:{51+4*kk}], v[{24+4*kk}:{27+4*kk}], {'v[88:91]' if kk else 0}")
    tag(range(88, 92))
    A(f"""s_mov_b64 exec, s[48:49]
    buffer_store_dwordx4 v[88:91], v107, s[32:35], s38 offen offset:{B_QP}{pst}
    s_mov_b64 exec, -1""")
    stamp(5)
    A(f"""v_lshlrev_b32 v119, 15, v5
    v_lshl_add_u32 v119, v4, 4, v119
    s_lshl_b32 s39, s28, 17
    s_lshl_b32 s37, s30, 13
    s_add_u32 s39, s39, s37
    s_lshr_b32 s37, s29, 4
    s_lshl_b32 s37, s37, 8
    s_add_u32 s39, s39, s37
    s_add_u32 s40, s39, 4096
    v_lshlrev_b32 v118, 5, v5
    v_lshl_add_u32 v118, v4, 4, v118
    s_lshl_b32 s37, s30, 7
    v_add_u32 v118, s37, v118""")
    def qloads(r):
        A(f"""buffer_load_dwordx4 v[{r}:{r+3}], v119, s[32:35], s39 offen offset:{B_QP} sc1
        buffer_load_dwordx4 v[{r+4}:{r+7}], v119, s[32:35], s40 offen offset:{B_QP} sc1""")
    A(f"""; ---- remaining addresses
    v_mov_b32 v123, 0
    v_and_b32 v19, 1, v0
    v_bfe_u32 v18, v0, 1, 1
    s_lshl_b32 s37, s30, 2
    v_add_u32 v18, s37, v18
    v_lshlrev_b32 v17, 1, v96
    v_xor_b32 v18, v18, v17
    v_lshlrev_b32 v18, 4, v18
    v_lshl_add_u32 v18, v19, 3, v18
    v_lshrrev_b32 v17, 2, v0
    v_lshl_add_u32 v100, v17, 8, v18
    s_lshl_b32 s37, s30, 2
    v_add_u32 v101, s37, v6
    v_and_b32 v17, 7, v0
    v_lshlrev_b32 v17, 1, v17
    v_xor_b32 v17, v17, v5
    v_lshlrev_b32 v17, 4, v17
    v_lshl_add_u32 v17, v4, 8, v17
    s_lshl_b32 s37, s30, 13
    v_add_u32 v102, s37, v17
    v_xor_b32 v103, 64, v102
    v_xor_b32 v104, 128, v102
    v_xor_b32 v105, 192, v102
    v_mul_u32_u24 v116, {OSTR}, v19
    v_lshl_add_u32 v116, v5, 4, v116
    v_add_u32 v116, {L_O}, v116
    v_lshlrev_b32 v117, 7, v19
    v_lshl_add_u32 v117, v5, 4, v117
    v_add_u32 v117, {L_ACT}, v117
    v_lshrrev_b32 v17, 5, v0
    v_lshlrev_b32 v17, 7, v17
    v_lshl_add_u32 v17, v4, 3, v17
    v_and_b32 v18, 1, v5
    v_lshl_add_u32 v17, v18, 2, v17
    s_mul_i32 s37, s30, {QSTR}
    s_add_u32 s37, s37, {L_Q}
    v_add_u32 v120, s37, v17
    v_and_b32 v19, 3, v0
    v_mul_u32_u24 v121, {QSTR}, v19
    v_lshl_add_u32 v121, v5, 4, v121
    v_add_u32 v121, {L_Q}, v121
    v_lshlrev_b32 v20, 6, v5
    v_lshl_add_u32 v20, v19, 4, v20
    v_add_u32 v108, {L_P}, v20
    s_lshl_b32 s37, s30, 8
    v_add_u32 v110, s37, v108
    s_lshl_b32 s37, s30, 9
    v_add_u32 v109, s37, v20
    s_and_b32 s41, s30, 1
    s_lshl_b32 s37, s41, 8
    s_add_u32 s37, s37, {L_AL}
    v_add_u32 v114, s37, v20
    v_lshlrev_b32 v111, 5, v19
    v_add_u32 v111, {L_ML}, v111
    s_lshl_b32 s37, s30, 2
    v_add_u32 v112, s37, v111
    v_lshlrev_b32 v106, 3, v4
    v_lshlrev_b32 v16, 12, v5
    v_lshl_add_u32 v113, v4, 4, v16
    s_and_b32 s43, s29, 3
    s_lshl_b32 s37, s43, 9
    s_lshr_b32 s42, s30, 1
    s_lshl_b32 s44, s42, 8
    s_add_u32 s37, s37, s44
    v_add_u32 v113, s37, v113
    s_lshl_b32 s44, s28, 17
    s_lshl_b32 s37, s41, 16
    s_add_u32 s44, s44, s37
    s_add_u32 s45, s44, 16384
    s_add_u32 s46, s44, 32768
    s_add_u32 s47, s44, 49152
    v_lshlrev_b32 v115, 4, v4
    v_lshl_add_u32 v115, v18, 2, v115
    s_mul_i32 s37, s41, {OSTR}
    s_lshl_b32 s42, s42, 3
    s_add_u32 s37, s37, s42
    s_add_u32 s37, s37, {L_O}
    v_add_u32 v115, s37, v115
    s_mov_b32 s50, 0x000f000f
    s_mov_b32 s51, 0x000f000f
    s_mov_b32 s58, 0x3db504f3
    s_mov_b32 s59, 0x3fb8aa3b
    s_lshl_b32 s70, s29, 9
    s_lshl_b32 s37, s30, 7
    s_add_u32 s70, s70, s37
    s_add_u32 s70, s70, {W_FP}
    v_lshrrev_b32 v17, 3, v0
    v_lshlrev_b32 v17, 14, v17
    v_and_b32 v16, 7, v0
    v_lshl_add_u32 v99, v16, 4, v17
    v_and_b32 v16, 1, v0
    v_lshlrev_b32 v16, 10, v16
    v_bfe_u32 v17, v0, 1, 2
    v_lshl_add_u32 v16, v17, 3, v16
    v_lshrrev_b32 v17, 5, v0
    v_lshl_add_u32 v16, v17, 2, v16
    s_lshr_b32 s37, s29, 2
    s_lshl_b32 s37, s37, 7
    s_lshl_b32 s41, s30, 5
    s_add_u32 s37, s37, s41
    v_add_u32 v98, s37, v16
    v_add_u32 v17, {L_XR}, v98
    ds_read_b32 v97, v17""")
    A("s_lshl_b32 s79, s43, 3\ns_add_u32 s79, s79, s28")
    rgmap(79, 37)
    for i in range(4):
        if vsplit:
            A(f"""s_add_u32 s37, s43, {i}
            s_and_b32 s37, s37, 3
            s_lshl_b32 s41, s37, 13
            v_add_u32 v{80+2*i}, s41, v100
            s_lshl_b32 s41, s37, 8
            v_add_u32 v{76+i}, s41, v108""")
        else:
            A(f"v_add_u32 v{80+2*i}, {i*8192}, v100\nv_add_u32 v{76+i}, {i*256}, v108")
        A(f"v_xor_b32 v{81+2*i}, 32, v{80+2*i}")
    if touchout: A("global_load_dword v124, v98, s[22:23]")
    if warmfp: A(f"s_mov_b64 exec, s[48:49]\nbuffer_load_dword v124, v118, s[32:35], s68 offen{wfl}\ns_mov_b64 exec, -1")
    A("s_mov_b32 s56, 0")
    if sa: A(f"s_sleep {sa}")
    stamp(6)
    def republish():
        A(f"""s_xor_b32 s37, s38, {W_B}
        s_mov_b64 exec, s[48:49]
        buffer_store_dwordx4 v[88:91], v107, s[32:35], s37 offen offset:{B_QP} sc1
        s_mov_b64 exec, -1
        s_mov_b32 s56, 1""")
    qs = [128, 136, 144][:qsets]
    for k, r in enumerate(qs):
        qloads(r)
        if k + 1 < len(qs) and sb: A(f"s_sleep {sb}")
    def kread():
        wait_flag(6, F_K, 41)
        for t in range(2):
            for kk in range(4):
                A(f"ds_read_b128 v[{44+16*t+4*kk}:{47+16*t+4*kk}], v{102+kk} offset:{L_K + t*4096}")
    if kpre: kread()
    A("L_qp:")
    for k, r in enumerate(qs):
        A(f"s_waitcnt vmcnt({2*(len(qs)-1)})")
        bad_tag(range(r, r + 8), 40, 55, 123)
        A(f"s_cbranch_vccz L_qok{k}")
        qloads(r)
    A(f"""ds_read_b32 v40, v6 offset:{F_MODE}
    s_waitcnt lgkmcnt(0)
    v_readfirstlane_b32 s57, v40
    s_xor_b32 s57, s57, 1
    s_or_b32 s57, s57, s56
    s_cbranch_scc1 L_norep""")
    republish()
    A(f"""s_waitcnt vmcnt(0)""")
    for r in qs: qloads(r)
    A(f"""L_norep:
    s_lshl_b32 s37, s56, 21
    s_xor_b32 s39, s39, s37
    s_xor_b32 s40, s40, s37
    s_add_u32 s101, s101, 1
    s_cmp_lt_u32 s101, {SPIN}
    s_cbranch_scc1 L_qp""")
    for k, r in reversed(list(enumerate(qs))):
        A(f"L_qok{k}:")
        for i in range(4): A(f"v_permlane32_swap_b32 v{r+i}, v{r+4+i}")
        A(f"v_pk_add_f32 v[40:41], v[{r}:{r+1}], v[{r+4}:{r+5}]\nv_pk_add_f32 v[42:43], v[{r+2}:{r+3}], v[{r+6}:{r+7}]")
        if k: A("s_branch L_qj")
    A("L_qj:")
    stamp(7)
    A("""v_permlane16_swap_b32 v40, v42
    v_permlane16_swap_b32 v41, v43
    v_pk_add_f32 v[40:41], v[40:41], v[42:43]
    v_cvt_pk_bf16_f32 v40, v40, v41
    v_min_u32 v40, s52, v40
    ds_write_b32 v120, v40""")
    if not kpre: kread()
    l = lab("ql")
    A(f"{l}:")
    for kk in range(4): A(f"ds_read_b128 v[{16+4*kk}:{19+4*kk}], v121 offset:{64*kk}")
    A("s_waitcnt lgkmcnt(0)")
    any_sent(range(16, 32), 40)
    loop_back(l)
    stamp(8)
    for kk in range(4):
        for t in range(2):
            A(f"v_mfma_f32_16x16x32_bf16 v[{8+4*t}:{11+4*t}], v[{44+16*t+4*kk}:{47+16*t+4*kk}], v[{16+4*kk}:{19+4*kk}], {f'v[{8+4*t}:{11+4*t}]' if kk else 0}")
    A(f"ds_read_b32 v42, v6 offset:{F_MODE}")
    for rnd in range(2):
        for i in range(4): A(f"v_cvt_pk_bf16_f32 v{24+i}, v{8+2*i}, v{9+2*i}")
        for i in range(4): A(f"v_lshlrev_b32 v{8+2*i}, 16, v{24+i}\nv_and_b32 v{9+2*i}, s36, v{24+i}")
        if rnd == 0:
            for i in range(4): A(f"v_pk_mul_f32 v[{8+2*i}:{9+2*i}], v[{8+2*i}:{9+2*i}], s[58:59] op_sel_hi:[1,0]")
    A("""v_max3_f32 v24, v8, v9, v10
    v_max3_f32 v25, v11, v12, v13
    v_max3_f32 v24, v24, v14, v15
    v_max_f32 v24, v24, v25""")
    allred(24, 25, "v_max_f32")
    A("""v_min_u32 v25, s52, v24
    s_mov_b64 exec, 15
    ds_write_b32 v112, v25
    s_mov_b64 exec, -1""")
    l = lab("ml")
    A(f"""{l}:
    ds_read_b128 v[28:31], v111
    s_waitcnt lgkmcnt(0)""")
    any_sent([28, 29, 30, 31], 20)
    loop_back(l)
    A("""v_max3_f32 v26, v28, v29, v30
    v_max_f32 v26, v26, v31
    v_mul_f32 v26, s59, v26
    v_and_b32 v26, s53, v26""")
    for i in range(8): A(f"v_fma_f32 v{8+i}, v{8+i}, s59, -v26")
    for i in range(8): A(f"v_exp_f32 v{8+i}, v{8+i}")
    for i in range(4): A(f"v_cvt_pk_bf16_f32 v{16+i}, v{8+2*i}, v{9+2*i}")
    for i in range(4): A(f"v_min_u32 v{16+i}, s52, v{16+i}")
    A(f"""s_mov_b64 exec, s[50:51]
    ds_write_b128 v110, v[16:19]
    s_mov_b64 exec, -1
    v_pk_add_f32 v[28:29], v[8:9], v[10:11]
    v_pk_add_f32 v[30:31], v[12:13], v[14:15]
    v_pk_add_f32 v[28:29], v[28:29], v[30:31]
    v_add_f32 v25, v28, v29""")
    allred(25, 27, "v_add_f32")
    A(f"""v_min_u32 v25, s52, v25
    s_mov_b64 exec, 15
    ds_write_b32 v112, v25 offset:16
    s_mov_b64 exec, -1
    v_readfirstlane_b32 s57, v42
    s_cmp_eq_u32 s57, 0
    s_cbranch_scc1 L_modeok""")
    wait_flag(6, F_MODE, 42)
    A("""v_readfirstlane_b32 s57, v42
    s_xor_b32 s37, s57, 1
    s_or_b32 s37, s37, s56
    s_cbranch_scc1 L_modeok""")
    republish()
    A(f"""L_modeok:
    s_cmp_eq_u32 s30, 0
    s_cbranch_scc0 L_noml""")
    l = lab("ll")
    A(f"""{l}:
    ds_read_b128 v[28:31], v111 offset:16
    s_waitcnt lgkmcnt(0)""")
    any_sent([28, 29, 30, 31], 20)
    loop_back(l)
    A(f"""v_pk_add_f32 v[28:29], v[28:29], v[30:31]
    v_or_b32 v26, v26, v156
    v_add_f32 v27, v28, v29
    v_and_or_b32 v27, v27, s53, v157
    s_mov_b64 exec, {0xffff if fullml else 15}
    s_cmp_eq_u32 s57, 0
    s_cbranch_scc1 L_mlf
    buffer_store_dwordx2 v[26:27], v106, s[32:35], s38 offen offset:{B_ML} sc1
    s_branch L_mle
    L_mlf:
    buffer_store_dwordx2 v[26:27], v106, s[32:35], s38 offen offset:{B_ML}
    L_mle:
    s_mov_b64 exec, -1
    L_noml:""")
    l = lab("pl")
    A(f"{l}:")
    for i in range(4): A(f"ds_read_b128 v[{44+4*i}:{47+4*i}], v{76+i}")
    A("s_waitcnt lgkmcnt(0)")
    any_sent(range(44, 60), 20)
    loop_back(l)
    stamp(9)
    def ffn2():
        if skipffn:
            for r in range(8, 12): A(f"v_mov_b32 v{r}, 0")
            A("s_cmp_lt_u32 s79, 28\ns_cbranch_scc0 L_noffn2")
        wait_flag(6, F_W2, 22)
        trw(L_W2, 2, 60)
        wait_flag(6, F_ACT, 22)
        A("ds_read_b128 v[68:71], v117\nds_read_b128 v[72:75], v117 offset:64\ns_waitcnt lgkmcnt(0)")
        for kk in range(2):
            A(f"v_mfma_f32_16x16x32_bf16 v[8:11], v[{60+4*kk}:{63+4*kk}], v[{68+4*kk}:{71+4*kk}], {'v[8:11]' if kk else 0}")
        if skipffn: A("L_noffn2:")
    def wopre():
        wait_flag(6, F_WO, 22)
        if op2: op_loads(44)
        if not opearly: op_loads()
        trw(L_WO, 4, 60)
    iv = order.index('v')
    assert order.index('w2') < order.index('wo') or order.index('wo') < iv
    if order.index('w2') < iv: ffn2()
    def pvstep(i, waitcnt):
        for t in range(2):
            for u in range(2):
                r = 24 + 8 * (i & 1) + 4 * t + 2 * u
                A(f"ds_read_b64_tr_b16 v[{r}:{r+1}], v{80+2*i+t} offset:{L_V + u*4096}")
    def pvmfma(i):
        for t in range(2):
            r = 24 + 8 * (i & 1) + 4 * t
            A(f"v_mfma_f32_16x16x32_bf16 v[{12+4*t}:{15+4*t}], v[{r}:{r+3}], v[{44+4*i}:{47+4*i}], {f'v[{12+4*t}:{15+4*t}]' if i else 0}")
    if vsplit:
        A(f"""ds_read_b32 v20, v6 offset:{F_V}
        s_waitcnt lgkmcnt(0)
        v_cmp_eq_u32 vcc, -1, v20
        s_cbranch_vccz L_pvall""")
        for i, f in enumerate((F_V0, F_V1, F_V2, F_V)):
            wait_flag(6, f, 20)
            if i == 3: stamp(10)
            pvstep(i, 0)
            A("s_waitcnt lgkmcnt(0)")
            pvmfma(i)
        A("s_branch L_pvdone\nL_pvall:")
    else:
        wait_flag(6, F_V, 20)
    if True:
        stamp(10)
        pvstep(0, 0); pvstep(1, 0)
        A("s_waitcnt lgkmcnt(4)"); pvmfma(0); pvstep(2, 0)
        A("s_waitcnt lgkmcnt(4)"); pvmfma(1); pvstep(3, 0)
        A("s_waitcnt lgkmcnt(4)"); pvmfma(2)
        A("s_waitcnt lgkmcnt(0)"); pvmfma(3)
        A("L_pvdone:\ns_nop 7")
    tag(range(12, 20))
    A(f"""s_mov_b64 exec, s[50:51]
    s_cmp_eq_u32 s57, 0
    s_cbranch_scc0 L_opslow
    buffer_store_dwordx4 v[12:15], v109, s[32:35], s38 offen offset:{B_OP}{pst}
    buffer_store_dwordx4 v[16:19], v109, s[32:35], s38 offen offset:{B_OP + 256}{pst}
    L_opdone:""")
    if hold: A(f"ds_write_b32 v101, v6 offset:{F_OPD}")
    A("s_mov_b64 exec, -1")
    stamp(11)
    def op_loads(r=24):
        for i in range(4): A(f"buffer_load_dwordx4 v[{r+4*i}:{r+3+4*i}], v113, s[32:35], s{44+i} offen offset:{B_OP} sc1")
    if opearly and not hold and not pre: op_loads()
    if order.index('w2') > iv: ffn2()
    if hold or pre:
        wait_flag(6, F_PRE, 22)
        if presl: A(f"s_sleep {presl}")
        op_loads()
    if dyn:
        wait_flag(6, F_RED, 22)
        A("""v_readfirstlane_b32 s76, v22
        s_xor_b32 s76, s76, s28
        s_or_b32 s77, s76, s57
        s_cselect_b32 s77, 2, 1
        s_and_b32 s37, s29, 3
        s_or_b32 s76, s76, s37
        s_cselect_b32 s76, s77, 0""")
    if not olate: wopre()
    else:
        assert not op2 and not hold and not pre
        if opsl: A(f"s_sleep {opsl}")
        if not opearly: op_loads()
    stamp(12)
    def alpha_wait(tagl):
        A("s_waitcnt lgkmcnt(0)")
        any_sent(range(40, 44), 22)
        A(f"s_cbranch_vccz L_alok{tagl}")
        l = lab("al")
        A(f"""{l}:
        ds_read_b128 v[40:43], v114
        s_waitcnt lgkmcnt(0)""")
        any_sent(range(40, 44), 22)
        loop_back(l)
        A(f"L_alok{tagl}:")
    def wsum(r):
        A(f"""v_pk_mul_f32 v[12:13], v[{r}:{r+1}], v[40:41] op_sel_hi:[1,0]
        v_pk_mul_f32 v[14:15], v[{r+2}:{r+3}], v[40:41] op_sel_hi:[1,0]
        v_pk_fma_f32 v[12:13], v[{r+4}:{r+5}], v[40:41], v[12:13] op_sel:[0,1,0] op_sel_hi:[1,1,1]
        v_pk_fma_f32 v[14:15], v[{r+6}:{r+7}], v[40:41], v[14:15] op_sel:[0,1,0] op_sel_hi:[1,1,1]
        v_pk_fma_f32 v[12:13], v[{r+8}:{r+9}], v[42:43], v[12:13] op_sel_hi:[1,0,1]
        v_pk_fma_f32 v[14:15], v[{r+10}:{r+11}], v[42:43], v[14:15] op_sel_hi:[1,0,1]
        v_pk_fma_f32 v[12:13], v[{r+12}:{r+13}], v[42:43], v[12:13] op_sel:[0,1,0] op_sel_hi:[1,1,1]
        v_pk_fma_f32 v[14:15], v[{r+14}:{r+15}], v[42:43], v[14:15] op_sel:[0,1,0] op_sel_hi:[1,1,1]""")
    if op2:
        A("L_opA:\nds_read_b128 v[40:43], v114\ns_waitcnt vmcnt(4)")
        bad_tag(range(24, 40), 88, 55, 123)
        A("s_cbranch_vccz L_opAok")
        op_loads(24)
        A("s_waitcnt vmcnt(4)")
        bad_tag(range(44, 60), 88, 55, 123)
        A("s_cbranch_vccz L_opBok")
        op_loads(44)
        A(f"""s_add_u32 s101, s101, 1
        s_cmp_lt_u32 s101, {SPIN}
        s_cbranch_scc1 L_opA
        L_opBok:""")
        stamp(13)
        alpha_wait("B"); wsum(44)
        A("s_branch L_opJ\nL_opAok:")
        stamp(13)
        alpha_wait("A"); wsum(24)
        A("L_opJ:")
    else:
        l = lab("og")
        A(f"s_branch L_ochk\n{l}:")
        op_loads()
        A("L_ochk:\nds_read_b128 v[40:43], v114\ns_waitcnt vmcnt(0)")
        bad_tag(range(24, 40), 88, 55, 123)
        if opmask:
            A(f"""s_cbranch_vccz L_opok
            s_mov_b64 exec, vcc
            L_opr:""")
            op_loads()
            A("s_waitcnt vmcnt(0)")
            bad_tag(range(24, 40), 88, 55, 123)
            A(f"""s_cbranch_vccz L_opdn
            s_mov_b64 exec, vcc
            s_add_u32 s101, s101, 1
            s_cmp_lt_u32 s101, {SPIN}
            s_cbranch_scc1 L_opr
            L_opdn:
            s_mov_b64 exec, -1
            ds_read_b128 v[40:43], v114
            L_opok:""")
        else:
            gloop_back(l)
        stamp(13)
        alpha_wait("A"); wsum(24)
    stamp(17)
    A("""v_permlane16_swap_b32 v12, v14
    v_permlane16_swap_b32 v13, v15
    v_pk_add_f32 v[12:13], v[12:13], v[14:15]
    v_mov_b32 v14, v12
    v_mov_b32 v15, v13
    v_permlane32_swap_b32 v14, v12
    v_permlane32_swap_b32 v15, v13
    v_pk_add_f32 v[12:13], v[12:13], v[14:15]
    v_cvt_pk_bf16_f32 v12, v12, v13
    v_min_u32 v12, s52, v12
    ds_write_b32 v115, v12""")
    l = lab("ol")
    A(f"{l}:")
    for kk in range(4): A(f"ds_read_b128 v[{76+4*kk}:{79+4*kk}], v116 offset:{64*kk}")
    A("s_waitcnt lgkmcnt(0)")
    any_sent(range(76, 92), 22)
    loop_back(l)
    if olate:
        stamp(18)
        wait_flag(6, F_WO, 22)
        trw(L_WO, 4, 60)
    for kk in range(4):
        if olate: A(f"s_waitcnt lgkmcnt({6 - 2*kk})")
        A(f"v_mfma_f32_16x16x32_bf16 v[8:11], v[{60+4*kk}:{63+4*kk}], v[{76+4*kk}:{79+4*kk}], v[8:11]")
    A("s_cmp_lt_u32 s76, 2" if dyn else "s_lshl_b32 s37, s28, 2\ns_cmp_eq_u32 s29, s37")
    tag(range(8, 12))
    A(f"""s_mov_b64 exec, s[48:49]
    s_cbranch_scc1 L_final
    buffer_store_dwordx4 v[8:11], v118, s[32:35], s68 offen sc1""")
    if stamps:
        A("s_mov_b64 exec, -1")
        stamp(14)
        A("s_branch L_cend")
    else: A("s_endpgm")
    A(f"""L_opslow:
    buffer_store_dwordx4 v[12:15], v109, s[32:35], s38 offen offset:{B_OP} sc1
    buffer_store_dwordx4 v[16:19], v109, s[32:35], s38 offen offset:{B_OP + 256} sc1
    s_branch L_opdone""")
    A(f"""L_final:
    buffer_store_dwordx4 v[8:11], v118, s[32:35], s68 offen
    s_mov_b64 exec, -1""")
    stamp(14)
    if dyn: A(f"s_cmp_eq_u32 s76, 0\ns_cbranch_scc0 {'L_cend' if stamps else 'L_end'}")
    if fdelay: A(f"s_sleep {fdelay}")
    def fp_loads(r):
        for i in range(4):
            A(f"buffer_load_dwordx4 v[{r+4*i}:{r+3+4*i}], v99, s[32:35], s70 offen offset:{512*i} sc1")
    sets = [24, 44, 60][:fpsets]
    for r in sets: fp_loads(r)
    A("L_fp:")
    for k, r in enumerate(sets):
        A(f"s_waitcnt vmcnt({4*(len(sets)-1)})")
        bad_tag(range(r, r + 16), 76, 55, 123)
        A(f"s_cbranch_vccz L_fpok{k}")
        if fpmask and fpsets == 1: A("s_mov_b64 exec, vcc")
        if fsl: A(f"s_sleep {fsl}")
        fp_loads(r)
    A(f"""s_add_u32 s101, s101, 1
    s_cmp_lt_u32 s101, {SPIN}
    s_cbranch_scc1 L_fp""")
    for k, r in reversed(list(enumerate(sets))):
        A(f"L_fpok{k}:")
        if fpmask and fpsets == 1: A("s_mov_b64 exec, -1")
        stamp(16)
        A(f"""v_pk_add_f32 v[12:13], v[{r}:{r+1}], v[{r+4}:{r+5}]
        v_pk_add_f32 v[14:15], v[{r+2}:{r+3}], v[{r+6}:{r+7}]
        v_pk_add_f32 v[16:17], v[{r+8}:{r+9}], v[{r+12}:{r+13}]
        v_pk_add_f32 v[18:19], v[{r+10}:{r+11}], v[{r+14}:{r+15}]""")
        if k: A("s_branch L_fpj")
    A(f"""L_fpj:
    v_pk_add_f32 v[12:13], v[12:13], v[16:17]
    v_pk_add_f32 v[14:15], v[14:15], v[18:19]
    v_permlane32_swap_b32 v12, v14
    v_permlane32_swap_b32 v13, v15
    v_pk_add_f32 v[12:13], v[12:13], v[14:15]
    v_mov_b32 v14, v12
    v_mov_b32 v15, v13
    v_permlane16_swap_b32 v14, v12
    v_permlane16_swap_b32 v15, v13
    v_pk_add_f32 v[12:13], v[12:13], v[14:15]
    v_lshlrev_b32 v14, 16, v97
    v_and_b32 v15, s36, v97
    v_add_f32 v12, v12, v12 row_ror:8
    v_add_f32 v13, v13, v13 row_ror:8
    v_pk_add_f32 v[12:13], v[12:13], v[14:15]
    v_cvt_pk_bf16_f32 v12, v12, v13
    s_mov_b32 s40, 0xff
    s_mov_b32 s41, 0xff
    s_mov_b64 exec, s[40:41]
    global_store_dword v98, v12, s[22:23]{outst}
    s_or_b32 s37, {'s29' if dyn else 's2'}, s30
    s_cbranch_scc1 L_cend
    v_mov_b32 v20, s54
    s_mov_b64 exec, 1
    global_store_dword v123, v20, s[26:27]{epsc}""")
    A("L_cend:")
    if stamps: A("s_mov_b64 exec, -1")
    stamp(15)
    if lst:
        A(f"""s_memrealtime s[98:99]
        s_and_b32 s37, s29, -4
        s_add_u32 s37, s37, s30
        s_lshl_b32 s37, s37, 3
        s_add_u32 s37, s37, 0x8000000
        v_mov_b32 v20, s37
        s_waitcnt lgkmcnt(0)
        v_mov_b32 v22, 0
        v_mov_b32 v23, s98
        s_mov_b64 exec, 1
        global_store_dwordx2 v20, v[22:23], s[26:27]""")
    if lamp:
        A(f"""s_memrealtime s[98:99]
        s_mov_b64 exec, -1
        ds_read_b32 v20, v6 offset:{F_PRE}
        s_waitcnt lgkmcnt(0)
        v_readfirstlane_b32 s94, v20
        s_nop 3
        s_sub_u32 s37, s98, s94
        s_mul_i32 s37, s37, 10
        s_add_u32 s37, s37, s98
        L_ampl:
        s_memrealtime s[40:41]
        s_waitcnt lgkmcnt(0)
        s_sub_u32 s40, s40, s37
        s_cmp_lt_i32 s40, 0
        s_cbranch_scc1 L_ampl""")
    if amp is not None:
        A(f"""s_cmp_eq_u32 s30, 0
        s_cbranch_scc0 L_end
        s_cmp_eq_u32 s2, {ampwg}
        s_cbranch_scc0 L_end
        v_readlane_b32 s37, v{VST}, {amp}
        s_nop 4
        s_sub_u32 s37, s37, s94
        s_mul_i32 s37, s37, 10
        s_add_u32 s37, s37, s98
        L_ampl:
        s_memrealtime s[40:41]
        s_waitcnt lgkmcnt(0)
        s_sub_u32 s40, s40, s37
        s_cmp_lt_i32 s40, 0
        s_cbranch_scc1 L_ampl""")
    dump_stamps()
    A("L_end:\ns_endpgm")
    A(f""".section .rodata,"a"
    .p2align 6
    .amdhsa_kernel {NAME}
    .amdhsa_next_free_vgpr 160
    .amdhsa_next_free_sgpr 102
    .amdhsa_accum_offset 160
    .amdhsa_group_segment_fixed_size 0
    .amdhsa_kernarg_size 96
    .amdhsa_user_sgpr_count 2
    .amdhsa_user_sgpr_kernarg_segment_ptr 1
    .amdhsa_system_sgpr_workgroup_id_x 1
    .amdhsa_float_denorm_mode_32 3
    .end_amdhsa_kernel""")
    return A.finish()

if __name__ == "__main__":
    out = sys.argv[1] if len(sys.argv) > 1 else "k.s"
    kw = {}
    for a in sys.argv[2:]:
        if '=' in a:
            k, v = a.split('=', 1); kw[k] = eval(v)
        else: kw[a] = True
    open(out, "w").write(gen(**kw))
```

```python
import sys
from asmlib import Asm

NAME = "parallel_sum__sliding_block_cached__dense_activation_mish__decode_kernel"

L_K, L_V, L_WQ, L_WO, L_W1, L_W2 = 0x0, 0x8000, 0x10000, 0x14000, 0x18000, 0x1A000
L_S = 0x1C000
L_Q, L_P, L_O, L_ML, L_FLG, L_AL = L_S, L_S + 0x500, L_S + 0x900, L_S + 0xB40, L_S + 0xC00, L_S + 0xD00
L_XN, L_ACT, L_XR = 0x1D000, 0x1D900, 0x1DA00
LDS_BYTES = 0x1E200
QSTR, XSTR, OSTR = 272, 1040, 272
F_WQ, F_W1, F_K, F_V, F_WO, F_W2, F_QA, F_QB, F_ACT, F_X, F_MODE, F_V0, F_V1, F_V2, F_XN, F_PRE = [4 * i for i in range(16)]
F_OPD = 64
W_BLK = 0x10000
B_QP, B_HP, B_OP, B_ML, B_ID = 0, 512, 1024, 3072, 3200
W_FP = 0x100000
W_ST = 0x120000
F_RED = F_QB
W_B = 0x200000
SPIN = 1 << 18
IDTRY = 48

def gen(depth=22, stamps=False, safe=False, amp=None, ampwg=0, order=('wq', 'w1', 'k', 'v', 'w2', 'wo'),
        qa=34, qb=44, hpt=None, pref=True, header="", warmfp=True, fdelay=0, loaderonly=False, vsplit=True,
        forcemode=None, mlt='k', nobeacon=False, noB=False, fullml=True, fullid=True, prof=False, dsched=None, kph='A', wph='A', ntw=' nt', ntkv=' nt', sa=4, sb=12, touchout=False, fpsets=1, op2=False, epsc='', b1early=True, idt='x', qsets=3, hs=12, opmask=False, fpmask=False, opearly=False, hold=0, presl=0, early=False, free=(28, 29, 30, 31), mlpipe=0, mlsl=3, prew=0, pre=0, olate=False, opsl=0, xdirty=0, fsl=0, pst='', outst='', mlpre=0, touch=0x1ffff00, tfl='', tlate=True, wfl='', lamp=False, lst=False, dyn=True, forcer=None, bias0=0, late0=0, latex=0, lateB=0, skipffn=False, depthn=None, fpearly=0, opack=True, lfirst=False, qack=False, lampv=None, xmask=None, cprio=2, kpre=True, deep=None, t0=95, slope=3.35, margin=25, chk=(18, 26, 34, 42, 50, 58, 66, 74, 82)):
    A = Asm()
    uid = [0]
    def lab(p):
        uid[0] += 1
        return f"L_{p}{uid[0]}"
    VST = 127
    def stamp(k):
        if stamps:
            A(f"s_memrealtime s[98:99]\ns_waitcnt lgkmcnt(0)\nv_writelane_b32 v{VST}, s98, {k}")
    def stamp0():
        if stamps: A(f"v_writelane_b32 v{VST}, s94, 0")
    def dump_stamps():
        if stamps and amp is None:
            A(f"""s_lshl_b32 s96, s2, 3
            s_add_u32 s96, s96, s3
            s_lshl_b32 s96, s96, 7
            s_add_u32 s96, s96, 0x8000000
            s_add_u32 s96, s26, s96
            s_addc_u32 s97, s27, 0
            s_mov_b32 exec_lo, -1
            s_mov_b32 exec_hi, 0
            v_mbcnt_lo_u32_b32 v126, -1, 0
            v_lshlrev_b32 v126, 2, v126
            global_store_dword v126, v{VST}, s[96:97]""")
    def loop_back(l):
        if safe:
            o = lab("out")
            A(f"""s_add_u32 s100, s100, 1
            s_bitcmp1_b32 s100, 21
            s_cbranch_scc1 {o}
            s_cbranch_vccnz {l}
            {o}:""")
        else:
            A(f"s_cbranch_vccnz {l}")
    def gloop_back(l, sleep=0):
        o = lab("ok")
        A(f"s_cbranch_vccz {o}")
        if sleep: A(f"s_sleep {sleep}")
        A(f"""s_add_u32 s101, s101, 1
        s_cmp_lt_u32 s101, {SPIN}
        s_cbranch_scc1 {l}
        {o}:""")
    def wait_flag(vaddr, off, vt):
        l = lab("wf")
        A(f"""{l}:
        ds_read_b32 v{vt}, v{vaddr} offset:{off}
        s_waitcnt lgkmcnt(0)
        v_cmp_eq_u32 vcc, -1, v{vt}""")
        loop_back(l)
    def set_flag(vaddr, off, vdata):
        A(f"""s_mov_b64 exec, 1
        ds_write_b32 v{vaddr}, v{vdata} offset:{off}
        s_mov_b64 exec, -1""")
    def any_sent(regs, vt):
        regs = list(regs)
        A(f"v_max3_u32 v{vt}, v{regs[0]}, v{regs[1]}, v{regs[2] if len(regs) > 2 else regs[1]}")
        rest = regs[3:]
        while rest:
            a = rest[0]; b = rest[1] if len(rest) > 1 else rest[0]
            A(f"v_max3_u32 v{vt}, v{vt}, v{a}, v{b}")
            rest = rest[2:]
        A(f"v_cmp_eq_u32 vcc, -1, v{vt}")
    def bad_tag(regs, t0, sT, vzero):
        regs = list(regs); n = len(regs) // 2
        for i in range(n):
            if isinstance(sT, list):
                a, b, t = sT[i]
                A(f"v_bitop3_b32 v{t0+i}, v{a}, v{b}, {t} bitop3:0x7e")
            else:
                g, r = i // 4, i % 4
                A(f"v_bitop3_b32 v{t0+i}, v{regs[8*g+r]}, v{regs[8*g+4+r]}, s{72+r} bitop3:0x7e")
        cur = [t0 + i for i in range(n)]
        while len(cur) > 1:
            if len(cur) >= 3:
                A(f"v_or3_b32 v{cur[0]}, v{cur[0]}, v{cur[1]}, v{cur[2]}"); cur = cur[3:] + [cur[0]]
            else:
                A(f"v_or_b32 v{cur[0]}, v{cur[0]}, v{cur[1]}"); cur = [cur[0]]
        A(f"v_cmp_ne_u32_sdwa vcc, v{cur[0]}, v{vzero} src0_sel:BYTE_0 src1_sel:DWORD")
    def mktags(se, lanebit):
        A(f"""s_mov_b32 s72, s{se}
        s_lshr_b32 s73, s{se}, 8
        s_lshr_b32 s74, s{se}, 16
        s_lshr_b32 s75, s{se}, 24
        v_mov_b32 v156, 0xff
        v_and_b32 v152, s72, v156
        v_and_b32 v153, s73, v156
        v_and_b32 v154, s74, v156
        v_and_b32 v155, s75, v156
        v_and_b32 v157, 1, v0
        v_cmp_eq_u32 vcc, 0, v157
        v_cndmask_b32 v156, v154, v152, vcc
        v_cndmask_b32 v157, v155, v153, vcc""")
    def rgmap(r, t):
        if tuple(free) == (28, 29, 30, 31): return
        mask = 0xffffffff
        for f in free: mask &= ~(1 << f)
        A(f"""s_bfm_b32 s{t}, s{r}, 0
        s_and_b32 s{t}, s{t}, {mask}
        s_bcnt1_i32_b32 s{t}, s{t}
        s_bitcmp1_b32 {mask}, s{r}
        s_cselect_b32 s{r}, s{t}, 28""")
    def bf16r(d, s):
        A(f"v_cvt_pk_bf16_f32 v{d}, v{s}, v{s}\nv_lshlrev_b32 v{d}, 16, v{d}")
    def ws_srd(d):
        A(f"""s_add_u32 s{d}, s26, {W_BLK}
        s_addc_u32 s{d+1}, s27, 0
        s_mov_b32 s{d+2}, 0x300000
        s_mov_b32 s{d+3}, 0x00020000""")
    def allred(v, t, op):
        A(f"""v_mov_b32 v{t}, v{v}
        v_permlane32_swap_b32 v{t}, v{v}
        {op} v{v}, v{v}, v{t}
        v_mov_b32 v{t}, v{v}
        v_permlane16_swap_b32 v{t}, v{v}
        {op} v{v}, v{v}, v{t}""")

    def allred2(v, t, w, u, op):
        for sw in ("v_permlane32_swap_b32", "v_permlane16_swap_b32"):
            A(f"""v_mov_b32 v{t}, v{v}
            v_mov_b32 v{u}, v{w}
            {sw} v{t}, v{v}
            {sw} v{u}, v{w}
            {op} v{v}, v{v}, v{t}
            {op} v{w}, v{w}, v{u}""")
    A(header)
    A(f"; @launch grid=(256,1,1) block=(384,1,1) lds={LDS_BYTES}")
    A(f""".amdgcn_target "amdgcn-amd-amdhsa--gfx950"
    .text
    .globl {NAME}
    .p2align 8
    .type {NAME},@function
    {NAME}:""")
    if early: A("s_memrealtime s[92:93]")
    A(f"""s_load_dwordx16 s[4:19], s[0:1], 0
    s_load_dwordx8 s[20:27], s[0:1], 64
    s_getpc_b64 s[30:31]
    L_pc:
    s_cmpk_ge_u32 s2, 256
    s_cbranch_scc1 L_end
    v_xor_b32 v2, 0x140, v0
    v_readfirstlane_b32 s3, v0
    v_lshlrev_b32 v2, 7, v2
    v_min_u32 v2, L_end-L_pc, v2
    global_load_dword v125, v2, s[30:31]""")
    if lateB: A(f"s_bitcmp0_b32 s2, 2\ns_cbranch_scc1 L_nl\ns_sleep {lateB}\nL_nl:")
    if late0: A(f"s_and_b32 s28, s2, 7\ns_cmp_lg_u32 s28, {latex}\ns_cbranch_scc1 L_nl\ns_sleep {late0}\nL_nl:" if latex else f"s_and_b32 s28, s2, 7\ns_cbranch_scc1 L_nl\ns_sleep {late0}\nL_nl:")
    if stamps: A("s_memrealtime s[94:95]")
    A(f"""s_cmp_eq_u32 s3, 0
    s_cbranch_scc0 L_notloader
    v_lshrrev_b32 v2, 3, v0
    v_and_b32 v9, 6, v2
    v_xor_b32 v9, v9, v0
    v_and_b32 v9, 7, v9
    v_lshlrev_b32 v9, 4, v9
    v_lshrrev_b32 v4, 5, v0
    v_and_b32 v5, 3, v2
    v_lshl_add_u32 v6, v4, 3, v5
    v_lshl_add_u32 v10, v6, 13, v9
    v_add_u32 v11, 31744, v10
    v_lshlrev_b32 v21, 4, v0
    s_mov_b32 s34, -1
    s_mov_b32 s35, 0x00020000
    s_movk_i32 s60, 0x800
    {'' if late0 else 's_and_b32 s28, s2, 7'}
    s_lshr_b32 s29, s2, 3
    s_lshr_b32 s57, s2, 6
    s_lshl_b32 s57, s57, 10
    s_or_b32 s57, s57, s28
    s_lshl_b32 s57, s57, 3
    s_and_b32 s58, s29, 7
    s_or_b32 s57, s57, s58
    s_lshl_b32 s57, s57, 7
    s_lshl_b32 s59, s60, 6
    s_mov_b32 m0, {L_XR}
    {'s_memrealtime s[76:77]' if early else ''}
    s_waitcnt lgkmcnt(0)
    {'s_memrealtime s[78:79]' if early else ''}
    global_load_lds_dwordx4 v21, s[4:5]
    global_load_lds_dwordx4 v21, s[4:5] offset:1024
    s_lshl_b32 m0, s60, 5
    s_mov_b64 s[32:33], s[10:11]
    L_wq:
    buffer_load_dwordx4 v10, s[32:35], s57 offen nt lds
    buffer_load_dwordx4 v11, s[32:35], s57 offen offset:1024 nt lds
    s_add_u32 m0, m0, s60
    s_add_u32 s57, s57, s59
    s_bitcmp0_b32 m0, 14
    s_cbranch_scc1 L_wq""")
    A("L_after256:")
    if early: A("s_memrealtime s[82:83]\ns_mov_b32 s80, s82")
    if stamps: A(f"v_mov_b32 v{VST}, 0")
    A("""s_setprio 3
    s_and_b32 s61, s29, 3
    s_lshl_b32 s62, s61, 3
    s_add_u32 s62, s62, s28
    s_lshr_b32 s63, s29, 2""")
    rgmap(62, 58)
    if deep and xmask is None: A("s_memrealtime s[72:73]")
    assert order[0] == 'wq' and L_WQ == 0x10000
    info = dict(wq=(8, 32, 10, L_WQ, F_WQ), w1=(4, 36, 12, L_W1, F_W1), k=(16, 40, 14, L_K, F_K), v=(16, 44, 14, L_V, F_V),
                wo=(8, 48, 16, L_WO, F_WO), w2=(4, 52, 18, L_W2, F_W2))
    def mkflags(order):
        flag_at = {2: [F_X]}
        cum = 2
        for m in order:
            if m == 'v' and vsplit:
                for i, f in enumerate((F_V0, F_V1, F_V2)): flag_at.setdefault(cum + 8 * (i + 1), []).append(f)
            cum += 2 * info[m][0]
            flag_at.setdefault(cum, []).append(info[m][4])
        return flag_at, cum
    flag_at, cum = mkflags(order)
    def kphase():
        if kph == 'A': A("s_and_b32 s67, s29, 15")
        elif kph == 'B': A("s_lshl_b32 s67, s28, 1\ns_lshr_b32 s59, s29, 4\ns_add_u32 s67, s67, s59")
        elif kph == 'C': A("s_lshl_b32 s67, s28, 1\ns_lshr_b32 s59, s29, 4\ns_add_u32 s67, s67, s59\ns_and_b32 s59, s29, 8\ns_add_u32 s67, s67, s59\ns_and_b32 s67, s67, 15")
        elif kph == 'D': A("s_lshl_b32 s67, s28, 1\ns_add_u32 s67, s67, s29\ns_and_b32 s67, s67, 15")
        elif kph == 'E': A("s_lshl_b32 s67, s28, 1\ns_lshr_b32 s59, s29, 2\ns_add_u32 s67, s67, s59\ns_and_b32 s67, s67, 15")
        elif kph == 'F': A("s_mul_i32 s67, s29, 5\ns_mul_i32 s59, s28, 3\ns_add_u32 s67, s67, s59\ns_and_b32 s67, s67, 15")
        elif kph == 'G': A("s_and_b32 s67, s29, 7\ns_lshl_b32 s67, s67, 1")
        elif kph == 'Z': A("s_mov_b32 s67, 0")
    def setup(m):
        if m == 'wq': return
        if m == 'w1':
            A("""v_mul_u32_u24 v12, 3584, v6
            v_add_u32 v12, v12, v9
            v_add_u32 v13, 13312, v12
            s_mov_b32 s36, s16
            s_mov_b32 s37, s17
            s_cmp_lt_u32 s62, 28
            s_cselect_b32 s38, 1835008, 0
            s_mov_b32 s39, 0x00020000
            s_mul_i32 s57, s63, 229376
            s_lshl_b32 s58, s62, 7
            s_add_u32 s57, s57, s58
            s_lshl_b32 s56, s61, 11""")
        elif m == 'k':
            A(f"""v_lshrrev_b32 v7, 4, v0
            v_lshlrev_b32 v8, 1, v7
            v_xor_b32 v8, v8, v0
            v_and_b32 v8, 15, v8
            v_lshlrev_b32 v8, 4, v8
            v_lshl_add_u32 v14, v7, 8, v8
            v_xor_b32 v15, 128, v14
            s_mov_b32 s40, s6
            s_mov_b32 s41, s7
            s_mov_b32 s42, 33554432
            s_mov_b32 s43, 0x00020000
            s_lshr_b32 s64, s29, 4
            s_lshl_b32 s64, s64, 3
            s_add_u32 s64, s64, s28
            s_lshl_b32 s64, s64, 21
            s_and_b32 s58, s29, 15
            s_lshl_b32 s58, s58, 15
            s_add_u32 s64, s64, s58
            s_add_u32 s64, s64, 1572864""")
            kphase()
            A("s_lshl_b32 s56, s67, 11")
        elif m == 'v':
            A(f"""s_mov_b32 s44, s8
            s_mov_b32 s45, s9
            s_mov_b32 s46, 33554432
            s_mov_b32 s47, 0x00020000""")
            if vsplit:
                A("""s_lshl_b32 s65, s61, 13
                s_and_b32 s66, s63, 3
                s_lshl_b32 s66, s66, 11
                s_or_b32 s56, s65, s66""")
            else:
                A("s_lshl_b32 s56, s67, 11")
        elif m == 'wo':
            A("""v_lshl_add_u32 v7, v4, 7, v5
            v_lshl_add_u32 v16, v7, 10, v9
            v_add_u32 v17, 15360, v16
            s_mov_b32 s48, s12
            s_mov_b32 s49, s13
            s_mov_b32 s50, 4194304
            s_mov_b32 s51, 0x00020000
            s_lshl_b32 s57, s28, 19
            s_lshl_b32 s58, s61, 15
            s_add_u32 s57, s57, s58
            s_lshl_b32 s58, s63, 7
            s_add_u32 s57, s57, s58""")
            A(dict(A="s_and_b32 s56, s29, 7\ns_lshl_b32 s56, s56, 11", Z="s_mov_b32 s56, 0", X="s_lshl_b32 s56, s28, 11", P="s_lshl_b32 s56, s28, 11")[wph])
        elif m == 'w2':
            A("""v_lshl_add_u32 v18, v6, 10, v9
            v_add_u32 v19, 3072, v18
            s_mov_b32 s52, s20
            s_mov_b32 s53, s21
            s_cmp_lt_u32 s62, 28
            s_cselect_b32 s54, 1835008, 0
            s_mov_b32 s55, 0x00020000
            s_lshl_b32 s57, s62, 16
            s_lshl_b32 s58, s63, 7
            s_add_u32 s57, s57, s58
            s_lshl_b32 s56, s61, 11""")
    total = cum
    if hold or pre: flag_at.setdefault(total - (hold or pre), []).append(F_PRE)
    if mlpre: flag_at.setdefault(total - mlpre, []).append(F_QA)
    stn = {F_PRE: 10, F_WQ: 3, F_W1: 4, F_K: 5, F_V: 6, F_WO: 7, F_QA: 2, F_X: 8, F_W2: 9}
    def stream(depth, variant, order=order, flag_at=flag_at):
        issued = 2
        done_barrier = variant == 1
        flagged = set()
        live = variant != 1
        pending = False
        def landed(n):
            for c in sorted(flag_at):
                if c <= n and c not in flagged:
                    flagged.add(c)
                    if not live: continue
                    A("s_mov_b64 exec, 1")
                    for f in flag_at[c]: A(f"ds_write_b32 v20, v20 offset:{f}")
                    A("s_mov_b64 exec, -1")
                    for f in flag_at[c]:
                        if f in stn: stamp(stn[f])
        for m in order:
            npair, srd, vo, lbase, _ = info[m]
            if m == 'wq':
                issued += 16
                continue
            if live: setup(m)
            for p in range(npair):
                d = depth
                if dsched and variant == 0:
                    for (frm, dd) in dsched:
                        if issued >= frm: d = dd
                if variant == 1 and (issued - (depth0 - 2)) in chk:
                    live = True
                    A(f"L_deep{issued}:")
                if hold and issued >= total - hold:
                    if issued == total - hold and live:
                        cv = [c for c in flag_at if F_V in flag_at[c]][0]
                        for c in sorted(flag_at):
                            if c <= cv and c not in flagged:
                                A(f"s_waitcnt vmcnt({issued - c})")
                                landed(c)
                        l = lab("hold")
                        A(f"""{l}:
                        ds_read_b128 v[24:27], v20 offset:{F_OPD}
                        s_waitcnt lgkmcnt(0)
                        v_max3_u32 v24, v24, v25, v26
                        v_max_u32 v24, v24, v27
                        v_cmp_eq_u32 vcc, -1, v24
                        s_cbranch_vccnz {l}""")
                elif issued + 2 > d:
                    if not done_barrier:
                        A(f"v_mov_b32 v20, {L_FLG}\ns_barrier")
                        stamp(1)
                        done_barrier = True
                    if live: A(f"s_waitcnt vmcnt({d - 2})")
                    landed(issued - (d - 2) if live else min(issued - (d - 2), issued - (depth0 - 2)))
                    if prof and live and (issued - (d - 2)) % 8 == 2: stamp(11 + (issued - (d - 2)) // 8)
                    if variant == 0 and deep:
                        n = issued - (d - 2)
                        if n in chk and xmask is not None:
                            A(f"s_bitcmp1_b32 {xmask}, s28\ns_cbranch_scc1 L_deep{issued}")
                        elif n in chk:
                            thr = int(t0 + slope * (n - 2) + margin)
                            A(f"""s_memrealtime s[70:71]
                            s_waitcnt lgkmcnt(0)
                            s_sub_u32 s70, s70, s72
                            s_cmp_gt_u32 s70, {thr}
                            s_cbranch_scc1 L_deep{issued}""")
                if live:
                    A(f"s_add_u32 m0, s56, {lbase}" if lbase else "s_mov_b32 m0, s56")
                    if m == 'wq': A("s_lshl_b32 s58, s56, 6\ns_add_u32 s58, s58, s57")
                    elif m == 'w1': A("s_mul_i32 s58, s56, 28\ns_add_u32 s58, s58, s57")
                    elif m == 'w2': A("s_lshl_b32 s58, s56, 3\ns_add_u32 s58, s58, s57")
                    elif m == 'wo': A("s_and_b32 s58, s56, s60\ns_lshl_b32 s58, s58, 7\ns_and_b32 s59, s56, 0x3000\ns_add_u32 s58, s58, s59\ns_add_u32 s58, s58, s57")
                    else: A("s_add_u32 s58, s56, s64")
                    fl = ntkv if m in ('k', 'v') else ntw
                    A(f"buffer_load_dwordx4 v{vo}, s[{srd}:{srd+3}], s58 offen{fl} lds")
                    A(f"buffer_load_dwordx4 v{vo+1}, s[{srd}:{srd+3}], s58 offen offset:1024{fl} lds")
                issued += 2
                if p != npair - 1 and live:
                    if m == 'v' and vsplit:
                        A("s_add_u32 s66, s66, s60\ns_and_b32 s66, s66, 0x1fff")
                        if p % 4 == 3: A("s_add_u32 s65, s65, 0x2000\ns_and_b32 s65, s65, 0x7fff")
                        A("s_or_b32 s56, s65, s66")
                    else:
                        A(f"s_add_u32 s56, s56, s60\ns_and_b32 s56, s56, {npair * 2048 - 1}")
        pts = set(c for c in flag_at if c not in flagged)
        if prof: pts |= set(c for c in range(issued - depth + 4, issued + 1) if c % 8 == 2)
        for c in sorted(pts):
            A(f"s_waitcnt vmcnt({issued - c})")
            landed(c)
            if prof and c % 8 == 2: stamp(11 + c // 8)
        if early:
            for k, r in ((11, 76), (12, 78), (13, 80), (14, 82), (15, 92)): A(f"v_writelane_b32 v{VST}, s{r}, {k}")
        if stamps: A(f"s_mov_b32 s98, {variant + 1}\nv_writelane_b32 v{VST}, s98, 31")
        stamp0()
        dump_stamps()
        A("s_endpgm")
    depth0 = depth
    if skipffn: A("s_cmp_lt_u32 s62, 28\ns_cbranch_scc0 L_noffn")
    stream(depth, 0)
    if deep: stream(deep, 1)
    if skipffn:
        A("L_noffn:")
        o2 = tuple(m for m in order if m not in ('w1', 'w2'))
        stream(depthn or depth, 2, o2, mkflags(o2)[0])

    A("L_notloader:")
    A("""s_lshr_b32 s3, s3, 6
    v_and_b32 v0, 63, v0
    s_and_b32 s28, s2, 7
    s_lshr_b32 s29, s2, 3""")
    if stamps: A(f"v_mov_b32 v{VST}, 0")
    if loaderonly: A("s_barrier\ns_endpgm")
    A("s_cmp_eq_u32 s3, 1\ns_cbranch_scc0 L_compute")
    A(f"""s_and_b32 s61, s29, 3
    s_lshl_b32 s62, s61, 3
    s_add_u32 s62, s62, s28""")
    rgmap(62, 63)
    A(f"""v_and_b32 v11, 7, v0
    v_lshlrev_b32 v11, 2, v11
    v_lshrrev_b32 v12, 5, v0
    v_lshl_add_u32 v11, v12, 1, v11
    v_bfe_u32 v12, v0, 4, 1
    v_add_u32 v11, v11, v12
    v_bfe_u32 v12, v0, 3, 1
    v_lshl_add_u32 v11, v12, 5, v11
    s_min_u32 s63, s62, 27
    s_lshl_b32 s63, s63, 6
    v_add_u32 v13, s63, v11
    v_lshlrev_b32 v13, 1, v13
    v_mov_b32 v20, {L_FLG}
    v_mov_b32 v40, 0
    v_mov_b32 v41, 0
    v_mov_b32 v19, 0
    s_mov_b32 s100, 0
    s_mov_b32 s101, 0
    s_getreg_b32 s64, hwreg(HW_REG_XCC_ID)
    {'s_memrealtime s[76:77]' if dyn else ''}
    s_lshl_b32 s65, s28, 17
    s_lshl_b32 s66, s29, 12
    s_add_u32 s66, s66, s65
    v_and_b32 v21, 31, v0
    v_lshlrev_b32 v21, 12, v21
    s_waitcnt lgkmcnt(0)
    s_load_dword s5, s[26:27], 0""")
    if b1early: A("global_load_ushort v14, v13, s[18:19]")
    ws_srd(8)
    def dotouch():
        A(f"""v_lshlrev_b32 v25, 7, v0
        s_mov_b32 exec_lo, {touch}
        s_mov_b32 exec_hi, 0
        buffer_load_dword v124, v25, s[8:11], s66 offen{tfl}
        s_mov_b64 exec, -1""")
    if touch and not tlate: dotouch()
    A(f"""s_barrier
    s_and_b32 s64, s64, 15
    s_waitcnt lgkmcnt(0)
    s_add_u32 s5, s5, 1
    s_lshl_b32 s6, s5, 4
    s_or_b32 s6, s6, s64
    v_mov_b32 v22, s6
    v_lshlrev_b32 v24, 2, v0
    s_mov_b32 exec_lo, {0 if nobeacon else (-1 if fullid else 1)}
    s_mov_b32 exec_hi, 0
    buffer_store_dword v22, v24, s[8:11], s66 offen offset:{B_ID}
    s_mov_b64 exec, -1""")
    if dyn:
        A(f"""v_and_b32 v70, 7, v0
        v_lshlrev_b32 v71, 7, v70
        s_mov_b32 s78, {W_ST}
        s_cmp_eq_u32 s29, 0
        s_cbranch_scc0 L_nost
        s_lshl_b32 s34, s28, 7
        s_add_u32 s34, s34, s78
        s_cmp_eq_u32 s28, 0
        s_cselect_b32 s35, {bias0}, 0
        s_sub_u32 s76, s76, s35
        v_mov_b32 v26, s76
        v_mov_b32 v27, s5
        s_mov_b64 exec, 1
        buffer_store_dwordx2 v[26:27], v19, s[8:11], s34 offen sc1
        s_mov_b64 exec, -1
        L_nost:""")
    if prew:
        A("""s_not_b32 s34, s5
        v_mov_b32 v28, s34
        v_mov_b32 v29, s34
        v_mov_b32 v30, s34
        v_mov_b32 v31, s34
        v_lshlrev_b32 v25, 4, v0""")
        for o in ([0] if prew & 1 else []) + ([1024, 2048] if prew & 2 else []):
            A(f"buffer_store_dwordx4 v[28:31], v25, s[8:11], s66 offen offset:{o}")
        if prew & 4: A(f"s_mov_b64 exec, 0xff\nbuffer_store_dwordx4 v[28:31], v25, s[8:11], s66 offen offset:{B_ML}\ns_mov_b64 exec, -1")
    if xdirty:
        A(f"v_lshlrev_b32 v25, 4, v0\ns_xor_b32 s34, s66, {W_B}")
        for o in range(xdirty): A(f"buffer_store_dwordx4 v[28:31], v25, s[8:11], s34 offen offset:{1024*o}")
    if not b1early: A("global_load_ushort v14, v13, s[18:19]")
    stamp0()
    A(f"""v_lshrrev_b32 v5, 4, v0
    v_and_b32 v4, 15, v0
    v_bfe_u32 v60, v0, 2, 2
    v_and_b32 v17, 1, v5
    v_lshl_add_u32 v60, v17, 2, v60
    v_bfe_u32 v18, v0, 1, 1
    v_and_b32 v61, 6, v60
    v_xor_b32 v18, v18, v61
    v_lshlrev_b32 v18, 4, v18
    v_and_b32 v61, 1, v0
    v_lshl_add_u32 v18, v61, 3, v18
    v_lshrrev_b32 v17, 5, v0
    v_lshl_add_u32 v17, v17, 4, v60
    v_lshl_add_u32 v62, v17, 7, v18
    v_add_u32 v62, {L_W1}, v62
    v_xor_b32 v63, 32, v62
    v_xor_b32 v64, 64, v62
    v_xor_b32 v65, 96, v62
    v_mul_u32_u24 v18, {XSTR}, v61
    v_lshl_add_u32 v18, v5, 4, v18
    s_lshr_b32 s37, s29, 2
    s_lshl_b32 s37, s37, 7
    s_add_u32 s37, s37, {L_XN}
    v_add_u32 v66, s37, v18
    v_lshlrev_b32 v67, 8, v4
    v_lshl_add_u32 v67, v5, 4, v67
    s_movk_i32 s53, 0xff00
    s_mov_b32 s48, 0x00030003
    s_mov_b32 s49, 0x00030003""")
    mktags(5, 0)
    wait_flag(20, F_XN, 18)
    if not nobeacon: A(f"buffer_load_dword v23, v21, s[8:11], s65 offen offset:{B_ID} sc1")
    if skipffn: A("s_mov_b32 s7, 0\ns_cmp_lt_u32 s62, 28\ns_cbranch_scc0 L_idw0")
    A("ds_read_b128 v[24:27], v66\nds_read_b128 v[28:31], v66 offset:64")
    wait_flag(20, F_W1, 18)
    for t in range(4):
        for kk in range(2):
            for u in range(2):
                r = 72 + 8 * t + 4 * kk + 2 * u
                A(f"ds_read_b64_tr_b16 v[{r}:{r+1}], v{62+t} offset:{kk*4096 + u*1024}")
    for t in range(4):
        A(f"s_waitcnt lgkmcnt({12 - 4*t})")
        for kk in range(2):
            r = 72 + 8 * t + 4 * kk
            A(f"v_mfma_f32_16x16x32_bf16 v[{104+4*t}:{107+4*t}], v[{r}:{r+3}], v[{24+4*kk}:{27+4*kk}], {f'v[{104+4*t}:{107+4*t}]' if kk else 0}")
    for r in range(104, 120): A(f"v_and_or_b32 v{r}, v{r}, s53, v{152 + r % 4}")
    A("s_mov_b64 exec, s[48:49]")
    for t in range(4): A(f"buffer_store_dwordx4 v[{104+4*t}:{107+4*t}], v67, s[8:11], s66 offen offset:{B_HP + 64*t}{pst}")
    A("s_mov_b64 exec, -1\ns_mov_b32 s7, 0")
    stamp(6)
    if nobeacon: A("s_branch L_idok")
    l = lab("id")
    A(f"""s_waitcnt vmcnt(4)
    s_branch L_idchk
    {l}:
    buffer_load_dword v23, v21, s[8:11], s65 offen offset:{B_ID} sc1
    L_idw0:
    s_waitcnt vmcnt(0)
    L_idchk:
    v_cmp_ne_u32 vcc, s6, v23
    s_cbranch_vccz L_idok
    s_add_u32 s7, s7, 1
    s_cmp_lt_u32 s7, {IDTRY}
    s_cbranch_scc1 {l}
    L_idok:
    s_cmp_eq_u32 s7, {IDTRY}
    s_cselect_b32 s7, 1, 0""")
    if forcemode is not None: A(f"s_mov_b32 s7, {forcemode}")
    A("v_mov_b32 v23, s7")
    set_flag(20, F_MODE, 23)
    if touch and tlate: dotouch()
    stamp(1)
    A(f"""s_cmp_ge_u32 s62, 28
    s_cbranch_scc1 L_hpfast
    s_cmp_eq_u32 s7, 0
    s_cbranch_scc1 L_hpfast
    s_xor_b32 s37, s66, {W_B}
    s_mov_b64 exec, s[48:49]""")
    for t in range(4): A(f"buffer_store_dwordx4 v[{104+4*t}:{107+4*t}], v67, s[8:11], s37 offen offset:{B_HP + 64*t} sc1")
    A("s_mov_b64 exec, -1\nL_hpfast:")
    if dyn: A("buffer_load_dwordx2 v[120:121], v71, s[8:11], s78 offen sc1")
    A(f"""s_cmp_lt_u32 s62, 28
    s_cbranch_scc0 L_actw
    v_lshrrev_b32 v16, 3, v0
    v_lshlrev_b32 v16, 14, v16
    v_and_b32 v17, 7, v0
    v_lshl_add_u32 v16, v17, 4, v16
    s_lshl_b32 s31, s61, 12
    s_add_u32 s31, s31, s65""")
    if hpt: wait_flag(20, {'k': F_K}[hpt], 18)
    elif hs: A(f"s_sleep {hs}")
    l = lab("hp")
    A(f"s_lshl_b32 s7, s7, 21\n{l}:\ns_xor_b32 s31, s31, s7")
    for i in range(4):
        b, half = i & 1, i >> 1
        A(f"buffer_load_dwordx4 v[{24+4*i}:{27+4*i}], v16, s[8:11], s31 offen offset:{B_HP + b*256 + half*128} sc1")
    A("s_waitcnt vmcnt(0)")
    bad_tag(range(24, 40), 44, 5, 19)
    gloop_back(l, sleep=4)
    stamp(2)
    for i in range(4):
        r = 24 + 4 * i
        A(f"""v_permlane32_swap_b32 v{r}, v{r+2}
        v_permlane32_swap_b32 v{r+1}, v{r+3}
        v_add_f32 v{r}, v{r}, v{r+2}
        v_add_f32 v{r+1}, v{r+1}, v{r+3}""")
    for i in range(4):
        r = 24 + 4 * i
        A(f"v_permlane16_swap_b32 v{r}, v{r+1}\nv_add_f32 v{r}, v{r}, v{r+1}")
    for i in range(4):
        r = 24 + 4 * i
        A(f"v_add_f32 v{r}, v{r}, v{r} row_ror:8")
    A("""v_and_b32 v18, 8, v0
    v_cmp_eq_u32 vcc, 0, v18
    v_cndmask_b32 v40, v32, v24, vcc
    v_cndmask_b32 v41, v36, v28, vcc
    v_lshlrev_b32 v14, 16, v14
    s_mov_b32 s32, 0x3fb8aa3b
    s_mov_b32 s33, 0x3f317218""")
    for h in (40, 41):
        t = 44
        bf16r(h, h)
        A(f"v_add_f32 v{h}, v{h}, v14")
        bf16r(h, h)
        A(f"v_mul_f32 v{t}, s32, v{h}\nv_exp_f32 v{t}, -abs(v{t})")
        bf16r(t, t)
        A(f"""v_add_f32 v{t+1}, 1.0, v{t}
        v_log_f32 v{t+2}, v{t+1}
        v_add_f32 v{t+3}, -1.0, v{t+1}
        v_rcp_f32 v{t+3}, v{t+3}
        v_mul_f32 v{t+2}, s33, v{t+2}
        v_mul_f32 v{t+2}, v{t+2}, v{t}
        v_mul_f32 v{t+2}, v{t+2}, v{t+3}
        v_cmp_eq_f32 vcc, 1.0, v{t+1}
        v_cndmask_b32 v{t+2}, v{t+2}, v{t}, vcc""")
        bf16r(t+2, t+2)
        A(f"v_max_f32 v{t+1}, 0, v{h}\nv_add_f32 v{t+2}, v{t+2}, v{t+1}")
        bf16r(t+2, t+2)
        A(f"""v_mul_f32 v{t}, -2.0, v{t+2}
        v_mul_f32 v{t+1}, s32, v{t}
        v_exp_f32 v{t+1}, v{t+1}
        v_log_f32 v{t+3}, v{t+1}
        v_add_f32 v{t+4}, -1.0, v{t+1}
        v_mul_f32 v{t+3}, s33, v{t+3}
        v_rcp_f32 v{t+3}, v{t+3}
        v_mul_f32 v{t+5}, v{t+4}, v{t}
        v_mul_f32 v{t+5}, v{t+5}, v{t+3}
        v_cmp_eq_f32 vcc, 1.0, v{t+1}
        v_cndmask_b32 v{t+5}, v{t+5}, v{t}, vcc
        v_cmp_gt_f32 vcc, 0.5, v{t+1}
        v_cndmask_b32 v{t+5}, v{t+5}, v{t+4}, vcc
        v_add_f32 v{t+4}, 2.0, v{t+5}
        v_rcp_f32 v{t+4}, v{t+4}
        v_mul_f32 v{t+5}, v{t+5}, v{t+4}
        v_sub_f32 v{t+5}, 0, v{t+5}""")
        bf16r(t+5, t+5)
        A(f"v_mul_f32 v{h}, v{h}, v{t+5}\nv_cvt_pk_bf16_f32 v{h}, v{h}, v{h}")
    A(f"""L_actw:
    v_lshlrev_b32 v11, 1, v11
    v_add_u32 v11, {L_ACT}, v11
    ds_write_b16 v11, v40
    ds_write_b16 v11, v41 offset:128""")
    set_flag(20, F_ACT, 20)
    stamp(3)
    if dyn:
        l = lab("st")
        A(f"""s_waitcnt vmcnt(0)
        s_branch L_stchk
        {l}:
        buffer_load_dwordx2 v[120:121], v71, s[8:11], s78 offen sc1
        s_waitcnt vmcnt(0)
        L_stchk:
        v_cmp_ne_u32 vcc, s5, v121""")
        gloop_back(l, sleep=4)
        if lamp:
            A(f"""v_readfirstlane_b32 s34, v120
            v_subrev_u32 v122, s34, v120
            v_mov_b32 v123, {bias0}
            v_cmp_eq_u32 vcc, 0, v70
            v_cndmask_b32 v123, 0, v123, vcc
            v_add_u32 v122, v122, v123
            v_min_i32 v122, v122, v122 row_ror:1
            v_min_i32 v122, v122, v122 row_ror:2
            v_min_i32 v122, v122, v122 row_ror:4
            v_add_u32 v122, s34, v122""")
            if lampv is not None:
                A(f"""v_subrev_u32 v126, s34, v120
                v_subrev_u32 v122, s34, v122
                v_max_i32 v125, v126, v126 row_ror:1
                v_max_i32 v125, v125, v125 row_ror:2
                v_max_i32 v125, v125, v125 row_ror:4""")
                if lampv == 'gap1': A("v_sub_u32 v122, v125, v122")
                elif lampv == 'gap2':
                    A("""v_cmp_eq_u32 vcc, v125, v126
                    v_cndmask_b32 v126, v126, v122, vcc
                    v_max_i32 v126, v126, v126 row_ror:1
                    v_max_i32 v126, v126, v126 row_ror:2
                    v_max_i32 v126, v126, v126 row_ror:4
                    v_sub_u32 v122, v125, v126""")
                elif isinstance(lampv, int):
                    A(f"v_readlane_b32 s35, v126, {lampv}\nv_sub_u32 v122, s35, v122")
            set_flag(20, F_PRE, 122)
        A("""v_readfirstlane_b32 s34, v120
        v_subrev_u32 v120, s34, v120
        v_lshl_add_u32 v120, v120, 3, v70
        v_max_i32 v120, v120, v120 row_ror:1
        v_max_i32 v120, v120, v120 row_ror:2
        v_max_i32 v120, v120, v120 row_ror:4
        v_and_b32 v120, 7, v120""")
        if forcer is not None: A(f"v_mov_b32 v120, {forcer}")
        set_flag(20, F_RED, 120)
    A(f"""v_lshrrev_b32 v16, 2, v0
    v_and_b32 v17, 3, v0
    v_lshlrev_b32 v21, 12, v16
    v_lshl_add_u32 v21, v17, 3, v21
    s_add_u32 s66, s65, 65536
    v_and_b32 v18, 15, v0
    v_lshlrev_b32 v18, 4, v18
    v_lshrrev_b32 v22, 4, v0
    v_lshl_add_u32 v22, v22, 2, v18
    v_add_u32 v22, {L_AL}, v22
    s_movk_i32 s53, 0xff00
    s_mov_b32 s52, -2""")
    if mlpre: wait_flag(20, F_QA, 18)
    elif mlt: wait_flag(20, {'v0': F_V0, 'v1': F_V1, 'v2': F_V2, 'v': F_V, 'k': F_K}[mlt], 18)
    l = lab("ml")
    if mlpipe: A("v_not_b32 v24, v156\nv_not_b32 v26, v156\ns_waitcnt vmcnt(0)")
    A(f"""{l}:
    buffer_load_dwordx2 v[24:25], v21, s[8:11], s65 offen offset:{B_ML} sc1
    buffer_load_dwordx2 v[26:27], v21, s[8:11], s66 offen offset:{B_ML} sc1""")
    if mlpipe and mlsl: A(f"s_sleep {mlsl}")
    A(f"""s_waitcnt vmcnt({2 * mlpipe})
    v_mov_b32 v32, v24
    v_mov_b32 v33, v25
    v_mov_b32 v34, v26
    v_mov_b32 v35, v27""")
    bad_tag(range(32, 36), 44, [(32, 34, "v156"), (33, 35, "v157")], 19)
    gloop_back(l)
    stamp(4)
    A("""v_and_b32 v32, s53, v32
    v_and_b32 v34, s53, v34
    v_max_f32 v28, v32, v32 row_ror:4
    v_max_f32 v29, v34, v34 row_ror:4
    v_max_f32 v28, v28, v28 row_ror:8
    v_max_f32 v29, v29, v29 row_ror:8""")
    allred2(28, 30, 29, 31, "v_max_f32")
    A("""v_sub_f32 v32, v32, v28
    v_sub_f32 v34, v34, v29
    v_exp_f32 v32, v32
    v_exp_f32 v34, v34
    v_mul_f32 v33, v32, v33
    v_mul_f32 v35, v34, v35
    v_add_f32 v28, v33, v33 row_ror:4
    v_add_f32 v29, v35, v35 row_ror:4
    v_add_f32 v28, v28, v28 row_ror:8
    v_add_f32 v29, v29, v29 row_ror:8""")
    allred2(28, 30, 29, 31, "v_add_f32")
    A("""v_rcp_f32 v28, v28
    v_rcp_f32 v29, v29
    v_mul_f32 v32, v32, v28
    v_mul_f32 v34, v34, v29
    v_min_u32 v32, s52, v32
    v_min_u32 v34, s52, v34
    ds_write_b32 v22, v32
    ds_write_b32 v22, v34 offset:256""")
    stamp(5)
    dump_stamps()
    A("s_waitcnt lgkmcnt(0)\ns_endpgm")

    A("L_compute:")
    if cprio: A(f"s_setprio {cprio}")
    A(f"""s_sub_u32 s30, s3, 2
    v_lshlrev_b32 v2, 4, v0
    s_lshl_b32 s31, s30, 10
    s_add_u32 s31, s31, {L_S}
    v_add_u32 v3, s31, v2
    v_mov_b32 v4, -1
    v_mov_b32 v5, -1
    v_mov_b32 v6, -1
    v_mov_b32 v7, -1
    ds_write_b128 v3, v[4:7]
    s_mov_b32 s100, 0
    s_mov_b32 s101, 0
    s_waitcnt lgkmcnt(0)
    s_load_dword s54, s[26:27], 0
    s_barrier""")
    ws_srd(32)
    A(f"""s_mov_b32 s36, 0xffff0000
    v_and_b32 v4, 15, v0
    v_lshrrev_b32 v5, 4, v0
    v_mov_b32 v6, {L_FLG}
    v_bfe_u32 v96, v0, 2, 2
    v_and_b32 v17, 1, v5
    v_lshl_add_u32 v96, v17, 2, v96
    v_bfe_u32 v18, v0, 1, 1
    s_lshl_b32 s37, s30, 1
    v_add_u32 v18, s37, v18
    v_and_b32 v19, 6, v96
    v_xor_b32 v18, v18, v19
    v_lshlrev_b32 v18, 4, v18
    v_and_b32 v19, 1, v0
    v_lshl_add_u32 v18, v19, 3, v18
    v_lshrrev_b32 v17, 5, v0
    v_lshl_add_u32 v17, v17, 4, v96
    v_lshl_add_u32 v7, v17, 7, v18
    v_add_u32 v7, {L_WQ}, v7
    ; xn frag addresses v106 (wq rows), v105 (w1 rows)
    v_mul_u32_u24 v18, {XSTR}, v19
    v_lshl_add_u32 v18, v5, 4, v18
    s_lshr_b32 s37, s29, 3
    s_lshl_b32 s37, s37, 8
    s_add_u32 s37, s37, {L_XN}
    v_add_u32 v106, s37, v18
    s_lshl_b32 s37, s30, 6
    v_lshlrev_b32 v18, 8, v4
    v_lshl_add_u32 v18, v5, 4, v18
    v_add_u32 v107, s37, v18
    s_lshl_b32 s38, s28, 5
    s_add_u32 s38, s38, s29
    s_lshl_b32 s68, s38, 9
    s_lshl_b32 s38, s38, 12
    s_add_u32 s68, s68, {W_FP}
    v_add_u32 v3, {L_XN}, v2
    v_add_u32 v16, {L_XR}, v2
    s_mov_b32 s48, 0x00030003
    s_mov_b32 s49, 0x00030003
    s_mov_b32 s52, -2
    s_movk_i32 s53, 0xff00""")
    stamp(1)
    wait_flag(6, F_X, 17)
    A(f"""ds_read_b128 v[8:11], v16
    ds_read_b128 v[12:15], v16 offset:1024
    s_add_u32 s54, s54, 1
    s_waitcnt lgkmcnt(0)""")
    stamp0()
    stamp(2)
    for b in range(2):
        for i in range(4):
            A(f"v_lshlrev_b32 v{16+8*b+2*i}, 16, v{8+4*b+i}\nv_and_b32 v{17+8*b+2*i}, s36, v{8+4*b+i}")
    def red2(a, b, t):
        A(f"""v_permlane32_swap_b32 v{a}, v{b}
        v_add_f32 v{a}, v{a}, v{b}
        v_mov_b32 v{t}, v{a}
        v_permlane16_swap_b32 v{t}, v{a}
        v_add_f32 v{a}, v{a}, v{t}
        v_add_f32 v{a}, v{a}, v{a} row_ror:8
        v_add_f32 v{a}, v{a}, v{a} row_ror:4
        v_add_f32 v{a}, v{a}, v{a} row_ror:2
        v_add_f32 v{a}, v{a}, v{a} row_ror:1""")
    for b in range(2):
        f = 16 + 8 * b
        A(f"""v_pk_add_f32 v[{32+4*b}:{33+4*b}], v[{f}:{f+1}], v[{f+2}:{f+3}]
        v_pk_add_f32 v[{34+4*b}:{35+4*b}], v[{f+4}:{f+5}], v[{f+6}:{f+7}]""")
    for b in range(2):
        A(f"v_pk_add_f32 v[{32+4*b}:{33+4*b}], v[{32+4*b}:{33+4*b}], v[{34+4*b}:{35+4*b}]")
    A("v_add_f32 v32, v32, v33\nv_add_f32 v36, v36, v37")
    red2(32, 36, 33)
    A("""v_mul_f32 v32, 0x3b000000, v32
    v_readlane_b32 s60, v32, 0
    v_readlane_b32 s62, v32, 32""")
    for b in range(2):
        f = 16 + 8 * b
        for i in range(4):
            A(f"v_pk_add_f32 v[{40+8*b+2*i}:{41+8*b+2*i}], v[{f+2*i}:{f+2*i+1}], s[{60+2*b}:{61+2*b}] op_sel_hi:[1,0] neg_lo:[0,1] neg_hi:[0,1]")
    for b in range(2):
        d = 40 + 8 * b
        A(f"v_pk_mul_f32 v[{34+2*b}:{35+2*b}], v[{d}:{d+1}], v[{d}:{d+1}]")
    for i in range(1, 4):
        for b in range(2):
            d = 40 + 8 * b + 2 * i
            A(f"v_pk_fma_f32 v[{34+2*b}:{35+2*b}], v[{d}:{d+1}], v[{d}:{d+1}], v[{34+2*b}:{35+2*b}]")
    A("v_add_f32 v34, v34, v35\nv_add_f32 v36, v36, v37")
    red2(34, 36, 33)
    A("v_mul_f32 v34, 0x3b000000, v34")
    bf16r(34, 34)
    A("v_add_f32 v34, 0x3727c5ac, v34")
    bf16r(34, 34)
    A("v_sqrt_f32 v34, v34")
    bf16r(32, 32)
    bf16r(34, 34)
    A("v_rcp_f32 v34, v34")
    A("""v_readlane_b32 s60, v32, 0
    v_readlane_b32 s62, v32, 32
    v_readlane_b32 s64, v34, 0
    v_readlane_b32 s66, v34, 32""")
    for b in range(2):
        f = 16 + 8 * b
        for i in range(4):
            A(f"v_pk_add_f32 v[{f+2*i}:{f+2*i+1}], v[{f+2*i}:{f+2*i+1}], s[{60+2*b}:{61+2*b}] op_sel_hi:[1,0] neg_lo:[0,1] neg_hi:[0,1]")
    for i in range(8):
        A(f"v_cvt_pk_bf16_f32 v{8+i}, v{16+2*i}, v{17+2*i}")
    for i in range(8):
        A(f"v_lshlrev_b32 v{16+2*i}, 16, v{8+i}\nv_and_b32 v{17+2*i}, s36, v{8+i}")
    for b in range(2):
        f = 16 + 8 * b
        for i in range(4):
            A(f"v_pk_mul_f32 v[{f+2*i}:{f+2*i+1}], v[{f+2*i}:{f+2*i+1}], s[{64+2*b}:{65+2*b}] op_sel_hi:[1,0]")
    for i in range(8):
        A(f"v_cvt_pk_bf16_f32 v{8+i}, v{16+2*i}, v{17+2*i}")
    A(f"""ds_write_b128 v3, v[8:11]
    ds_write_b128 v3, v[12:15] offset:{XSTR}""")
    set_flag(6, F_XN, 6)
    mktags(54, 0)
    A("s_waitcnt lgkmcnt(0)")
    for kk in range(4): A(f"ds_read_b128 v[{24+4*kk}:{27+4*kk}], v106 offset:{64*kk}")
    stamp(3)
    wait_flag(6, F_WQ, 16)
    stamp(4)
    def trw(base, nk, r0):
        for kk in range(nk):
            for u in range(2):
                A(f"ds_read_b64_tr_b16 v[{r0+4*kk+2*u}:{r0+4*kk+2*u+1}], v7 offset:{base - L_WQ + kk*4096 + u*1024}")
    def tag(regs):
        for r in regs: A(f"v_and_or_b32 v{r}, v{r}, s53, v{152 + r % 4}")
    trw(L_WQ, 4, 48)
    for kk in range(4):
        A(f"s_waitcnt lgkmcnt({6 - 2*kk})")
        A(f"v_mfma_f32_16x16x32_bf16 v[88:91], v[{48+4*kk}:{51+4*kk}], v[{24+4*kk}:{27+4*kk}], {'v[88:91]' if kk else 0}")
    tag(range(88, 92))
    A(f"""s_mov_b64 exec, s[48:49]
    buffer_store_dwordx4 v[88:91], v107, s[32:35], s38 offen offset:{B_QP}{pst}
    s_mov_b64 exec, -1""")
    stamp(5)
    A(f"""v_lshlrev_b32 v119, 15, v5
    v_lshl_add_u32 v119, v4, 4, v119
    s_lshl_b32 s39, s28, 17
    s_lshl_b32 s37, s30, 13
    s_add_u32 s39, s39, s37
    s_lshr_b32 s37, s29, 4
    s_lshl_b32 s37, s37, 8
    s_add_u32 s39, s39, s37
    s_add_u32 s40, s39, 4096
    v_lshlrev_b32 v118, 5, v5
    v_lshl_add_u32 v118, v4, 4, v118
    s_lshl_b32 s37, s30, 7
    v_add_u32 v118, s37, v118""")
    def qloads(r):
        A(f"""buffer_load_dwordx4 v[{r}:{r+3}], v119, s[32:35], s39 offen offset:{B_QP} sc1
        buffer_load_dwordx4 v[{r+4}:{r+7}], v119, s[32:35], s40 offen offset:{B_QP} sc1""")
    A(f"""; ---- remaining addresses
    v_mov_b32 v123, 0
    v_and_b32 v19, 1, v0
    v_bfe_u32 v18, v0, 1, 1
    s_lshl_b32 s37, s30, 2
    v_add_u32 v18, s37, v18
    v_lshlrev_b32 v17, 1, v96
    v_xor_b32 v18, v18, v17
    v_lshlrev_b32 v18, 4, v18
    v_lshl_add_u32 v18, v19, 3, v18
    v_lshrrev_b32 v17, 2, v0
    v_lshl_add_u32 v100, v17, 8, v18
    s_lshl_b32 s37, s30, 2
    v_add_u32 v101, s37, v6
    v_and_b32 v17, 7, v0
    v_lshlrev_b32 v17, 1, v17
    v_xor_b32 v17, v17, v5
    v_lshlrev_b32 v17, 4, v17
    v_lshl_add_u32 v17, v4, 8, v17
    s_lshl_b32 s37, s30, 13
    v_add_u32 v102, s37, v17
    v_xor_b32 v103, 64, v102
    v_xor_b32 v104, 128, v102
    v_xor_b32 v105, 192, v102
    v_mul_u32_u24 v116, {OSTR}, v19
    v_lshl_add_u32 v116, v5, 4, v116
    v_add_u32 v116, {L_O}, v116
    v_lshlrev_b32 v117, 7, v19
    v_lshl_add_u32 v117, v5, 4, v117
    v_add_u32 v117, {L_ACT}, v117
    v_lshrrev_b32 v17, 5, v0
    v_lshlrev_b32 v17, 7, v17
    v_lshl_add_u32 v17, v4, 3, v17
    v_and_b32 v18, 1, v5
    v_lshl_add_u32 v17, v18, 2, v17
    s_mul_i32 s37, s30, {QSTR}
    s_add_u32 s37, s37, {L_Q}
    v_add_u32 v120, s37, v17
    v_and_b32 v19, 3, v0
    v_mul_u32_u24 v121, {QSTR}, v19
    v_lshl_add_u32 v121, v5, 4, v121
    v_add_u32 v121, {L_Q}, v121
    v_lshlrev_b32 v20, 6, v5
    v_lshl_add_u32 v20, v19, 4, v20
    v_add_u32 v108, {L_P}, v20
    s_lshl_b32 s37, s30, 8
    v_add_u32 v110, s37, v108
    s_lshl_b32 s37, s30, 9
    v_add_u32 v109, s37, v20
    s_and_b32 s41, s30, 1
    s_lshl_b32 s37, s41, 8
    s_add_u32 s37, s37, {L_AL}
    v_add_u32 v114, s37, v20
    v_lshlrev_b32 v111, 5, v19
    v_add_u32 v111, {L_ML}, v111
    s_lshl_b32 s37, s30, 2
    v_add_u32 v112, s37, v111
    v_lshlrev_b32 v106, 3, v4
    v_lshlrev_b32 v16, 12, v5
    v_lshl_add_u32 v113, v4, 4, v16
    s_and_b32 s43, s29, 3
    s_lshl_b32 s37, s43, 9
    s_lshr_b32 s42, s30, 1
    s_lshl_b32 s44, s42, 8
    s_add_u32 s37, s37, s44
    v_add_u32 v113, s37, v113
    s_lshl_b32 s44, s28, 17
    s_lshl_b32 s37, s41, 16
    s_add_u32 s44, s44, s37
    s_add_u32 s45, s44, 16384
    s_add_u32 s46, s44, 32768
    s_add_u32 s47, s44, 49152
    v_lshlrev_b32 v115, 4, v4
    v_lshl_add_u32 v115, v18, 2, v115
    s_mul_i32 s37, s41, {OSTR}
    s_lshl_b32 s42, s42, 3
    s_add_u32 s37, s37, s42
    s_add_u32 s37, s37, {L_O}
    v_add_u32 v115, s37, v115
    s_mov_b32 s50, 0x000f000f
    s_mov_b32 s51, 0x000f000f
    s_mov_b32 s58, 0x3db504f3
    s_mov_b32 s59, 0x3fb8aa3b
    s_lshl_b32 s70, s29, 9
    s_lshl_b32 s37, s30, 7
    s_add_u32 s70, s70, s37
    s_add_u32 s70, s70, {W_FP}
    v_lshrrev_b32 v17, 3, v0
    v_lshlrev_b32 v17, 14, v17
    v_and_b32 v16, 7, v0
    v_lshl_add_u32 v99, v16, 4, v17
    v_and_b32 v16, 1, v0
    v_lshlrev_b32 v16, 10, v16
    v_bfe_u32 v17, v0, 1, 2
    v_lshl_add_u32 v16, v17, 3, v16
    v_lshrrev_b32 v17, 5, v0
    v_lshl_add_u32 v16, v17, 2, v16
    s_lshr_b32 s37, s29, 2
    s_lshl_b32 s37, s37, 7
    s_lshl_b32 s41, s30, 5
    s_add_u32 s37, s37, s41
    v_add_u32 v98, s37, v16
    v_add_u32 v17, {L_XR}, v98
    ds_read_b32 v97, v17""")
    A("s_lshl_b32 s79, s43, 3\ns_add_u32 s79, s79, s28")
    rgmap(79, 37)
    for i in range(4):
        if vsplit:
            A(f"""s_add_u32 s37, s43, {i}
            s_and_b32 s37, s37, 3
            s_lshl_b32 s41, s37, 13
            v_add_u32 v{80+2*i}, s41, v100
            s_lshl_b32 s41, s37, 8
            v_add_u32 v{76+i}, s41, v108""")
        else:
            A(f"v_add_u32 v{80+2*i}, {i*8192}, v100\nv_add_u32 v{76+i}, {i*256}, v108")
        A(f"v_xor_b32 v{81+2*i}, 32, v{80+2*i}")
    if touchout: A("global_load_dword v124, v98, s[22:23]")
    if warmfp and not qack: A(f"s_mov_b64 exec, s[48:49]\nbuffer_load_dword v124, v118, s[32:35], s68 offen{wfl}\ns_mov_b64 exec, -1")
    if qack: A("s_waitcnt vmcnt(0)")
    A("s_mov_b32 s56, 0")
    if sa: A(f"s_sleep {sa}")
    stamp(6)
    def republish():
        A(f"""s_xor_b32 s37, s38, {W_B}
        s_mov_b64 exec, s[48:49]
        buffer_store_dwordx4 v[88:91], v107, s[32:35], s37 offen offset:{B_QP} sc1
        s_mov_b64 exec, -1
        s_mov_b32 s56, 1""")
    qs = [128, 136, 144, 160][:qsets]
    for k, r in enumerate(qs):
        qloads(r)
        if k + 1 < len(qs) and sb: A(f"s_sleep {sb}")
    def kread():
        wait_flag(6, F_K, 41)
        for t in range(2):
            for kk in range(4):
                A(f"ds_read_b128 v[{44+16*t+4*kk}:{47+16*t+4*kk}], v{102+kk} offset:{L_K + t*4096}")
    if kpre: kread()
    A("L_qp:")
    for k, r in enumerate(qs):
        A(f"s_waitcnt vmcnt({2*(len(qs)-1)})")
        bad_tag(range(r, r + 8), 40, 55, 123)
        A(f"s_cbranch_vccz L_qok{k}")
        qloads(r)
    A(f"""ds_read_b32 v40, v6 offset:{F_MODE}
    s_waitcnt lgkmcnt(0)
    v_readfirstlane_b32 s57, v40
    s_xor_b32 s57, s57, 1
    s_or_b32 s57, s57, s56
    s_cbranch_scc1 L_norep""")
    republish()
    A(f"""s_waitcnt vmcnt(0)""")
    for r in qs: qloads(r)
    A(f"""L_norep:
    s_lshl_b32 s37, s56, 21
    s_xor_b32 s39, s39, s37
    s_xor_b32 s40, s40, s37
    s_add_u32 s101, s101, 1
    s_cmp_lt_u32 s101, {SPIN}
    s_cbranch_scc1 L_qp""")
    for k, r in reversed(list(enumerate(qs))):
        A(f"L_qok{k}:")
        for i in range(4): A(f"v_permlane32_swap_b32 v{r+i}, v{r+4+i}")
        A(f"v_pk_add_f32 v[40:41], v[{r}:{r+1}], v[{r+4}:{r+5}]\nv_pk_add_f32 v[42:43], v[{r+2}:{r+3}], v[{r+6}:{r+7}]")
        if k: A("s_branch L_qj")
    A("L_qj:")
    stamp(7)
    A("""v_permlane16_swap_b32 v40, v42
    v_permlane16_swap_b32 v41, v43
    v_pk_add_f32 v[40:41], v[40:41], v[42:43]
    v_cvt_pk_bf16_f32 v40, v40, v41
    v_min_u32 v40, s52, v40
    ds_write_b32 v120, v40""")
    if not kpre: kread()
    l = lab("ql")
    A(f"{l}:")
    for kk in range(4): A(f"ds_read_b128 v[{16+4*kk}:{19+4*kk}], v121 offset:{64*kk}")
    A("s_waitcnt lgkmcnt(0)")
    any_sent(range(16, 32), 40)
    loop_back(l)
    stamp(8)
    for kk in range(4):
        for t in range(2):
            A(f"v_mfma_f32_16x16x32_bf16 v[{8+4*t}:{11+4*t}], v[{44+16*t+4*kk}:{47+16*t+4*kk}], v[{16+4*kk}:{19+4*kk}], {f'v[{8+4*t}:{11+4*t}]' if kk else 0}")
    A(f"ds_read_b32 v42, v6 offset:{F_MODE}")
    for rnd in range(2):
        for i in range(4): A(f"v_cvt_pk_bf16_f32 v{24+i}, v{8+2*i}, v{9+2*i}")
        for i in range(4): A(f"v_lshlrev_b32 v{8+2*i}, 16, v{24+i}\nv_and_b32 v{9+2*i}, s36, v{24+i}")
        if rnd == 0:
            for i in range(4): A(f"v_pk_mul_f32 v[{8+2*i}:{9+2*i}], v[{8+2*i}:{9+2*i}], s[58:59] op_sel_hi:[1,0]")
    A("""v_max3_f32 v24, v8, v9, v10
    v_max3_f32 v25, v11, v12, v13
    v_max3_f32 v24, v24, v14, v15
    v_max_f32 v24, v24, v25""")
    allred(24, 25, "v_max_f32")
    A("""v_min_u32 v25, s52, v24
    s_mov_b64 exec, 15
    ds_write_b32 v112, v25
    s_mov_b64 exec, -1""")
    l = lab("ml")
    A(f"""{l}:
    ds_read_b128 v[28:31], v111
    s_waitcnt lgkmcnt(0)""")
    any_sent([28, 29, 30, 31], 20)
    loop_back(l)
    A("""v_max3_f32 v26, v28, v29, v30
    v_max_f32 v26, v26, v31
    v_mul_f32 v26, s59, v26
    v_and_b32 v26, s53, v26""")
    for i in range(8): A(f"v_fma_f32 v{8+i}, v{8+i}, s59, -v26")
    for i in range(8): A(f"v_exp_f32 v{8+i}, v{8+i}")
    def pwrite():
        for i in range(4): A(f"v_cvt_pk_bf16_f32 v{16+i}, v{8+2*i}, v{9+2*i}")
        for i in range(4): A(f"v_min_u32 v{16+i}, s52, v{16+i}")
        A(f"""s_mov_b64 exec, s[50:51]
        ds_write_b128 v110, v[16:19]
        s_mov_b64 exec, -1""")
    if not lfirst: pwrite()
    A(f"""v_pk_add_f32 v[28:29], v[8:9], v[10:11]
    v_pk_add_f32 v[30:31], v[12:13], v[14:15]
    v_pk_add_f32 v[28:29], v[28:29], v[30:31]
    v_add_f32 v25, v28, v29""")
    allred(25, 27, "v_add_f32")
    A(f"""v_min_u32 v25, s52, v25
    s_mov_b64 exec, 15
    ds_write_b32 v112, v25 offset:16
    s_mov_b64 exec, -1""")
    if lfirst: pwrite()
    A(f"""v_readfirstlane_b32 s57, v42
    s_cmp_eq_u32 s57, 0
    s_cbranch_scc1 L_modeok""")
    wait_flag(6, F_MODE, 42)
    A("""v_readfirstlane_b32 s57, v42
    s_xor_b32 s37, s57, 1
    s_or_b32 s37, s37, s56
    s_cbranch_scc1 L_modeok""")
    republish()
    A(f"""L_modeok:
    s_cmp_eq_u32 s30, 0
    s_cbranch_scc0 L_noml""")
    l = lab("ll")
    A(f"""{l}:
    ds_read_b128 v[28:31], v111 offset:16
    s_waitcnt lgkmcnt(0)""")
    any_sent([28, 29, 30, 31], 20)
    loop_back(l)
    A(f"""v_pk_add_f32 v[28:29], v[28:29], v[30:31]
    v_or_b32 v26, v26, v156
    v_add_f32 v27, v28, v29
    v_and_or_b32 v27, v27, s53, v157
    s_mov_b64 exec, {0xffff if fullml else 15}
    s_cmp_eq_u32 s57, 0
    s_cbranch_scc1 L_mlf
    buffer_store_dwordx2 v[26:27], v106, s[32:35], s38 offen offset:{B_ML} sc1
    s_branch L_mle
    L_mlf:
    buffer_store_dwordx2 v[26:27], v106, s[32:35], s38 offen offset:{B_ML}
    L_mle:
    s_mov_b64 exec, -1
    L_noml:""")
    l = lab("pl")
    A(f"{l}:")
    for i in range(4): A(f"ds_read_b128 v[{44+4*i}:{47+4*i}], v{76+i}")
    A("s_waitcnt lgkmcnt(0)")
    any_sent(range(44, 60), 20)
    loop_back(l)
    stamp(9)
    if warmfp and qack: A(f"s_mov_b64 exec, s[48:49]\nbuffer_load_dword v124, v118, s[32:35], s68 offen{wfl}\ns_mov_b64 exec, -1")
    def ffn2():
        if skipffn:
            for r in range(8, 12): A(f"v_mov_b32 v{r}, 0")
            A("s_cmp_lt_u32 s79, 28\ns_cbranch_scc0 L_noffn2")
        wait_flag(6, F_W2, 22)
        trw(L_W2, 2, 60)
        wait_flag(6, F_ACT, 22)
        A("ds_read_b128 v[68:71], v117\nds_read_b128 v[72:75], v117 offset:64\ns_waitcnt lgkmcnt(0)")
        for kk in range(2):
            A(f"v_mfma_f32_16x16x32_bf16 v[8:11], v[{60+4*kk}:{63+4*kk}], v[{68+4*kk}:{71+4*kk}], {'v[8:11]' if kk else 0}")
        if skipffn: A("L_noffn2:")
    def wopre():
        if opack:
            A("s_waitcnt vmcnt(0)")
            op_loads()
        wait_flag(6, F_WO, 22)
        if op2: op_loads(44)
        if not opearly and not opack: op_loads()
        trw(L_WO, 4, 60)
    iv = order.index('v')
    assert order.index('w2') < order.index('wo') or order.index('wo') < iv
    if order.index('w2') < iv: ffn2()
    def pvstep(i, waitcnt):
        for t in range(2):
            for u in range(2):
                r = 24 + 8 * (i & 1) + 4 * t + 2 * u
                A(f"ds_read_b64_tr_b16 v[{r}:{r+1}], v{80+2*i+t} offset:{L_V + u*4096}")
    def pvmfma(i):
        for t in range(2):
            r = 24 + 8 * (i & 1) + 4 * t
            A(f"v_mfma_f32_16x16x32_bf16 v[{12+4*t}:{15+4*t}], v[{r}:{r+3}], v[{44+4*i}:{47+4*i}], {f'v[{12+4*t}:{15+4*t}]' if i else 0}")
    if vsplit:
        A(f"""ds_read_b32 v20, v6 offset:{F_V}
        s_waitcnt lgkmcnt(0)
        v_cmp_eq_u32 vcc, -1, v20
        s_cbranch_vccz L_pvall""")
        for i, f in enumerate((F_V0, F_V1, F_V2, F_V)):
            wait_flag(6, f, 20)
            if i == 3: stamp(10)
            pvstep(i, 0)
            A("s_waitcnt lgkmcnt(0)")
            pvmfma(i)
        A("s_branch L_pvdone\nL_pvall:")
    else:
        wait_flag(6, F_V, 20)
    if True:
        stamp(10)
        pvstep(0, 0); pvstep(1, 0)
        A("s_waitcnt lgkmcnt(4)"); pvmfma(0); pvstep(2, 0)
        A("s_waitcnt lgkmcnt(4)"); pvmfma(1); pvstep(3, 0)
        A("s_waitcnt lgkmcnt(4)"); pvmfma(2)
        A("s_waitcnt lgkmcnt(0)"); pvmfma(3)
        A("L_pvdone:\ns_nop 7")
    tag(range(12, 20))
    A(f"""s_mov_b64 exec, s[50:51]
    s_cmp_eq_u32 s57, 0
    s_cbranch_scc0 L_opslow
    buffer_store_dwordx4 v[12:15], v109, s[32:35], s38 offen offset:{B_OP}{pst}
    buffer_store_dwordx4 v[16:19], v109, s[32:35], s38 offen offset:{B_OP + 256}{pst}
    L_opdone:""")
    if hold: A(f"ds_write_b32 v101, v6 offset:{F_OPD}")
    A("s_mov_b64 exec, -1")
    stamp(11)
    def op_loads(r=24):
        for i in range(4): A(f"buffer_load_dwordx4 v[{r+4*i}:{r+3+4*i}], v113, s[32:35], s{44+i} offen offset:{B_OP} sc1")
    if opearly and not hold and not pre: op_loads()
    if order.index('w2') > iv: ffn2()
    if hold or pre:
        wait_flag(6, F_PRE, 22)
        if presl: A(f"s_sleep {presl}")
        op_loads()
    if dyn:
        wait_flag(6, F_RED, 22)
        A("""v_readfirstlane_b32 s76, v22
        s_xor_b32 s76, s76, s28
        s_or_b32 s77, s76, s57
        s_cselect_b32 s77, 2, 1
        s_and_b32 s37, s29, 3
        s_or_b32 s76, s76, s37
        s_cselect_b32 s76, s77, 0""")
    if not olate: wopre()
    else:
        assert not op2 and not hold and not pre
        if opsl: A(f"s_sleep {opsl}")
        if not opearly: op_loads()
    stamp(12)
    def fp_warm(k):
        if fpearly == k:
            A("s_cmp_eq_u32 s76, 0\ns_cbranch_scc0 L_nofw")
            for i in range(4): A(f"buffer_load_dwordx4 v[{128+4*i}:{131+4*i}], v99, s[32:35], s70 offen offset:{512*i} sc1")
            A("L_nofw:")
    def alpha_wait(tagl):
        A("s_waitcnt lgkmcnt(0)")
        any_sent(range(40, 44), 22)
        A(f"s_cbranch_vccz L_alok{tagl}")
        l = lab("al")
        A(f"""{l}:
        ds_read_b128 v[40:43], v114
        s_waitcnt lgkmcnt(0)""")
        any_sent(range(40, 44), 22)
        loop_back(l)
        A(f"L_alok{tagl}:")
    def wsum(r):
        A(f"""v_pk_mul_f32 v[12:13], v[{r}:{r+1}], v[40:41] op_sel_hi:[1,0]
        v_pk_mul_f32 v[14:15], v[{r+2}:{r+3}], v[40:41] op_sel_hi:[1,0]
        v_pk_fma_f32 v[12:13], v[{r+4}:{r+5}], v[40:41], v[12:13] op_sel:[0,1,0] op_sel_hi:[1,1,1]
        v_pk_fma_f32 v[14:15], v[{r+6}:{r+7}], v[40:41], v[14:15] op_sel:[0,1,0] op_sel_hi:[1,1,1]
        v_pk_fma_f32 v[12:13], v[{r+8}:{r+9}], v[42:43], v[12:13] op_sel_hi:[1,0,1]
        v_pk_fma_f32 v[14:15], v[{r+10}:{r+11}], v[42:43], v[14:15] op_sel_hi:[1,0,1]
        v_pk_fma_f32 v[12:13], v[{r+12}:{r+13}], v[42:43], v[12:13] op_sel:[0,1,0] op_sel_hi:[1,1,1]
        v_pk_fma_f32 v[14:15], v[{r+14}:{r+15}], v[42:43], v[14:15] op_sel:[0,1,0] op_sel_hi:[1,1,1]""")
    if op2:
        A("L_opA:\nds_read_b128 v[40:43], v114\ns_waitcnt vmcnt(4)")
        bad_tag(range(24, 40), 88, 55, 123)
        A("s_cbranch_vccz L_opAok")
        op_loads(24)
        A("s_waitcnt vmcnt(4)")
        bad_tag(range(44, 60), 88, 55, 123)
        A("s_cbranch_vccz L_opBok")
        op_loads(44)
        A(f"""s_add_u32 s101, s101, 1
        s_cmp_lt_u32 s101, {SPIN}
        s_cbranch_scc1 L_opA
        L_opBok:""")
        stamp(13)
        alpha_wait("B"); wsum(44)
        A("s_branch L_opJ\nL_opAok:")
        stamp(13)
        alpha_wait("A"); wsum(24)
        A("L_opJ:")
    else:
        l = lab("og")
        A(f"s_branch L_ochk\n{l}:")
        op_loads()
        A("L_ochk:\nds_read_b128 v[40:43], v114\ns_waitcnt vmcnt(0)")
        bad_tag(range(24, 40), 88, 55, 123)
        if opmask:
            A(f"""s_cbranch_vccz L_opok
            s_mov_b64 exec, vcc
            L_opr:""")
            op_loads()
            A("s_waitcnt vmcnt(0)")
            bad_tag(range(24, 40), 88, 55, 123)
            A(f"""s_cbranch_vccz L_opdn
            s_mov_b64 exec, vcc
            s_add_u32 s101, s101, 1
            s_cmp_lt_u32 s101, {SPIN}
            s_cbranch_scc1 L_opr
            L_opdn:
            s_mov_b64 exec, -1
            ds_read_b128 v[40:43], v114
            L_opok:""")
        else:
            gloop_back(l)
        stamp(13)
        fp_warm(1)
        alpha_wait("A"); wsum(24)
    stamp(17)
    A("""v_permlane16_swap_b32 v12, v14
    v_permlane16_swap_b32 v13, v15
    v_pk_add_f32 v[12:13], v[12:13], v[14:15]
    v_mov_b32 v14, v12
    v_mov_b32 v15, v13
    v_permlane32_swap_b32 v14, v12
    v_permlane32_swap_b32 v15, v13
    v_pk_add_f32 v[12:13], v[12:13], v[14:15]
    v_cvt_pk_bf16_f32 v12, v12, v13
    v_min_u32 v12, s52, v12
    ds_write_b32 v115, v12""")
    fp_warm(2)
    l = lab("ol")
    A(f"{l}:")
    for kk in range(4): A(f"ds_read_b128 v[{76+4*kk}:{79+4*kk}], v116 offset:{64*kk}")
    A("s_waitcnt lgkmcnt(0)")
    any_sent(range(76, 92), 22)
    loop_back(l)
    if olate:
        stamp(18)
        wait_flag(6, F_WO, 22)
        trw(L_WO, 4, 60)
    for kk in range(4):
        if olate: A(f"s_waitcnt lgkmcnt({6 - 2*kk})")
        A(f"v_mfma_f32_16x16x32_bf16 v[8:11], v[{60+4*kk}:{63+4*kk}], v[{76+4*kk}:{79+4*kk}], v[8:11]")
    A("s_cmp_lt_u32 s76, 2" if dyn else "s_lshl_b32 s37, s28, 2\ns_cmp_eq_u32 s29, s37")
    tag(range(8, 12))
    A(f"""s_mov_b64 exec, s[48:49]
    s_cbranch_scc1 L_final
    buffer_store_dwordx4 v[8:11], v118, s[32:35], s68 offen sc1""")
    if stamps:
        A("s_mov_b64 exec, -1")
        stamp(14)
        A("s_branch L_cend")
    else: A("s_endpgm")
    A(f"""L_opslow:
    buffer_store_dwordx4 v[12:15], v109, s[32:35], s38 offen offset:{B_OP} sc1
    buffer_store_dwordx4 v[16:19], v109, s[32:35], s38 offen offset:{B_OP + 256} sc1
    s_branch L_opdone""")
    A(f"""L_final:
    buffer_store_dwordx4 v[8:11], v118, s[32:35], s68 offen
    s_mov_b64 exec, -1""")
    stamp(14)
    if dyn: A(f"s_cmp_eq_u32 s76, 0\ns_cbranch_scc0 {'L_cend' if stamps else 'L_end'}")
    if fdelay: A(f"s_sleep {fdelay}")
    def fp_loads(r):
        for i in range(4):
            A(f"buffer_load_dwordx4 v[{r+4*i}:{r+3+4*i}], v99, s[32:35], s70 offen offset:{512*i} sc1")
    sets = [24, 44, 60][:fpsets]
    for r in sets: fp_loads(r)
    A("L_fp:")
    for k, r in enumerate(sets):
        A(f"s_waitcnt vmcnt({4*(len(sets)-1)})")
        bad_tag(range(r, r + 16), 76, 55, 123)
        A(f"s_cbranch_vccz L_fpok{k}")
        if fpmask and fpsets == 1: A("s_mov_b64 exec, vcc")
        if fsl: A(f"s_sleep {fsl}")
        fp_loads(r)
    A(f"""s_add_u32 s101, s101, 1
    s_cmp_lt_u32 s101, {SPIN}
    s_cbranch_scc1 L_fp""")
    for k, r in reversed(list(enumerate(sets))):
        A(f"L_fpok{k}:")
        if fpmask and fpsets == 1: A("s_mov_b64 exec, -1")
        stamp(16)
        A(f"""v_pk_add_f32 v[12:13], v[{r}:{r+1}], v[{r+4}:{r+5}]
        v_pk_add_f32 v[14:15], v[{r+2}:{r+3}], v[{r+6}:{r+7}]
        v_pk_add_f32 v[16:17], v[{r+8}:{r+9}], v[{r+12}:{r+13}]
        v_pk_add_f32 v[18:19], v[{r+10}:{r+11}], v[{r+14}:{r+15}]""")
        if k: A("s_branch L_fpj")
    A(f"""L_fpj:
    v_pk_add_f32 v[12:13], v[12:13], v[16:17]
    v_pk_add_f32 v[14:15], v[14:15], v[18:19]
    v_permlane32_swap_b32 v12, v14
    v_permlane32_swap_b32 v13, v15
    v_pk_add_f32 v[12:13], v[12:13], v[14:15]
    v_mov_b32 v14, v12
    v_mov_b32 v15, v13
    v_permlane16_swap_b32 v14, v12
    v_permlane16_swap_b32 v15, v13
    v_pk_add_f32 v[12:13], v[12:13], v[14:15]
    v_lshlrev_b32 v14, 16, v97
    v_and_b32 v15, s36, v97
    v_add_f32 v12, v12, v12 row_ror:8
    v_add_f32 v13, v13, v13 row_ror:8
    v_pk_add_f32 v[12:13], v[12:13], v[14:15]
    v_cvt_pk_bf16_f32 v12, v12, v13
    s_mov_b32 s40, 0xff
    s_mov_b32 s41, 0xff
    s_mov_b64 exec, s[40:41]
    global_store_dword v98, v12, s[22:23]{outst}
    s_or_b32 s37, {'s29' if dyn else 's2'}, s30
    s_cbranch_scc1 L_cend
    v_mov_b32 v20, s54
    s_mov_b64 exec, 1
    global_store_dword v123, v20, s[26:27]{epsc}""")
    A("L_cend:")
    if stamps: A("s_mov_b64 exec, -1")
    stamp(15)
    if lst:
        A(f"""s_memrealtime s[98:99]
        s_and_b32 s37, s29, -4
        s_add_u32 s37, s37, s30
        s_lshl_b32 s37, s37, 3
        s_add_u32 s37, s37, 0x8000000
        v_mov_b32 v20, s37
        s_waitcnt lgkmcnt(0)
        v_mov_b32 v22, 0
        v_mov_b32 v23, s98
        s_mov_b64 exec, 1
        global_store_dwordx2 v20, v[22:23], s[26:27]""")
    if lamp:
        A(f"""s_memrealtime s[98:99]
        s_mov_b64 exec, -1
        ds_read_b32 v20, v6 offset:{F_PRE}
        s_waitcnt lgkmcnt(0)
        v_readfirstlane_b32 s94, v20
        s_nop 3
        {'s_mov_b32 s37, s94' if lampv is not None else 's_sub_u32 s37, s98, s94'}
        s_mul_i32 s37, s37, 10
        s_add_u32 s37, s37, s98
        L_ampl:
        s_memrealtime s[40:41]
        s_waitcnt lgkmcnt(0)
        s_sub_u32 s40, s40, s37
        s_cmp_lt_i32 s40, 0
        s_cbranch_scc1 L_ampl""")
    if amp is not None:
        A(f"""s_cmp_eq_u32 s30, 0
        s_cbranch_scc0 L_end
        s_cmp_eq_u32 s2, {ampwg}
        s_cbranch_scc0 L_end
        v_readlane_b32 s37, v{VST}, {amp}
        s_nop 4
        s_sub_u32 s37, s37, s94
        s_mul_i32 s37, s37, 10
        s_add_u32 s37, s37, s98
        L_ampl:
        s_memrealtime s[40:41]
        s_waitcnt lgkmcnt(0)
        s_sub_u32 s40, s40, s37
        s_cmp_lt_i32 s40, 0
        s_cbranch_scc1 L_ampl""")
    dump_stamps()
    A("L_end:\ns_endpgm")
    A(f""".section .rodata,"a"
    .p2align 6
    .amdhsa_kernel {NAME}
    .amdhsa_next_free_vgpr {168 if qsets > 3 else 160}
    .amdhsa_next_free_sgpr 102
    .amdhsa_accum_offset {168 if qsets > 3 else 160}
    .amdhsa_group_segment_fixed_size 0
    .amdhsa_kernarg_size 96
    .amdhsa_user_sgpr_count 2
    .amdhsa_user_sgpr_kernarg_segment_ptr 1
    .amdhsa_system_sgpr_workgroup_id_x 1
    .amdhsa_float_denorm_mode_32 3
    .end_amdhsa_kernel""")
    return A.finish()

if __name__ == "__main__":
    out = sys.argv[1] if len(sys.argv) > 1 else "k.s"
    kw = {}
    for a in sys.argv[2:]:
        if '=' in a:
            k, v = a.split('=', 1); kw[k] = eval(v)
        else: kw[a] = True
    open(out, "w").write(gen(**kw))
```
